```python
import torch

def _softmax(x, axis=-1):
    return torch.softmax(x, dim=axis)
def _gelu(x):
    return torch.nn.functional.gelu(x, approximate="tanh")
def _silu(x):
    return torch.nn.functional.silu(x)
def _sigmoid(x):
    return torch.sigmoid(x)
def _layernorm(x, axis=-1, eps=1e-5):
    m = x.mean(dim=axis, keepdim=True)
    v = x.var(dim=axis, keepdim=True, unbiased=False)
    return (x - m) / torch.sqrt(v + eps)
def _scatter_add(tgt, idx, src, axis=0):
    return tgt.clone().index_add_(axis, idx, src)
def _segment_sum(src, seg, n):
    out = torch.zeros((n,) + src.shape[1:], dtype=src.dtype)
    return out.index_add_(0, seg, src)
def _pad(x, pw):
    flat = tuple(v for pair in reversed(pw) for v in pair)
    return torch.nn.functional.pad(x, flat)

kernel_name = 'concat_heads__mha_block_cached__mha_block_cached__near_ridge'

def setup_inputs():

    _w = (lambda a: (lambda t: t.to(torch.bfloat16) if t.is_floating_point() else t)(torch.as_tensor(a)))
    def _A_setup():
        B, Sq, D = 16, 128, 512
        H, Sk, Dh = 32, 512, 128
        return {
            "x": _w((lambda *s: torch.randn(*s, dtype=torch.bfloat16) * 0.8)(B, Sq, D)),
            "k_cache": _w((lambda *s: torch.randn(*s, dtype=torch.bfloat16) * 0.8)(B, H, Sk, Dh)),
            "v_cache": _w((lambda *s: torch.randn(*s, dtype=torch.bfloat16) * 0.05)(B, H, Sk, Dh)),
            "wq": _w((lambda *s: torch.randn(*s, dtype=torch.bfloat16) * 0.8)(D, H * Dh) * (D ** -0.5)),
            "wo": _w((lambda *s: torch.randn(*s, dtype=torch.bfloat16) * 0.05)(H * Dh, D) * ((H * Dh) ** -0.5)),
        }
    _A_in = _A_setup()

    def _B_setup():
        B, Sq, D = 16, 128, 512
        H, Sk, Dh = 32, 512, 128
        return {
            "x": _w((lambda *s: torch.randn(*s, dtype=torch.bfloat16) * 0.8)(B, Sq, D)),
            "k_cache": _w((lambda *s: torch.randn(*s, dtype=torch.bfloat16) * 0.8)(B, H, Sk, Dh)),
            "v_cache": _w((lambda *s: torch.randn(*s, dtype=torch.bfloat16) * 0.05)(B, H, Sk, Dh)),
            "wq": _w((lambda *s: torch.randn(*s, dtype=torch.bfloat16) * 0.8)(D, H * Dh) * (D ** -0.5)),
            "wo": _w((lambda *s: torch.randn(*s, dtype=torch.bfloat16) * 0.05)(H * Dh, D) * ((H * Dh) ** -0.5)),
        }
    _B_in = _B_setup()

    return {
        "A_x": _A_in["x"],
        "A_k_cache": _A_in["k_cache"],
        "A_v_cache": _A_in["v_cache"],
        "A_wq": _A_in["wq"],
        "A_wo": _A_in["wo"],
        "B_x": _B_in["x"],
        "B_k_cache": _B_in["k_cache"],
        "B_v_cache": _B_in["v_cache"],
        "B_wq": _B_in["wq"],
        "B_wo": _B_in["wo"],
    }

def reference(A_x, A_k_cache, A_v_cache, A_wq, A_wo, B_x, B_k_cache, B_v_cache, B_wq, B_wo):
    def _A_ref(x, k_cache, v_cache, wq, wo):
        B, Sq, D = x.shape
        H, Dh = 32, 128
        q = (lambda x, *d: x.permute(*d))((x @ wq).reshape(B, Sq, H, Dh), 0, 2, 1, 3)
        scores = torch.einsum("bhqd,bhkd->bhqk", q, k_cache) * (Dh ** -0.5)
        p = _softmax(scores, axis=-1)
        o = torch.einsum("bhqk,bhkd->bhqd", p, v_cache)
        return (lambda x, *d: x.permute(*d))(o, 0, 2, 1, 3).reshape(B, Sq, H * Dh) @ wo

    def _B_ref(x, k_cache, v_cache, wq, wo):
        B, Sq, D = x.shape
        H, Dh = 32, 128
        q = (lambda x, *d: x.permute(*d))((x @ wq).reshape(B, Sq, H, Dh), 0, 2, 1, 3)
        scores = torch.einsum("bhqd,bhkd->bhqk", q, k_cache) * (Dh ** -0.5)
        p = _softmax(scores, axis=-1)
        o = torch.einsum("bhqk,bhkd->bhqd", p, v_cache)
        return (lambda x, *d: x.permute(*d))(o, 0, 2, 1, 3).reshape(B, Sq, H * Dh) @ wo

    a = _A_ref(A_x, A_k_cache, A_v_cache, A_wq, A_wo)
    b = _B_ref(B_x, B_k_cache, B_v_cache, B_wq, B_wo)
    return torch.concatenate([a, b], axis=-1)
```

```python
import re

def R(base, n=1):
    return f"v{base}" if n == 1 else f"v[{base}:{base+n-1}]"
def regs(base, n=1):
    return set(range(base, base + n))

class I:
    __slots__ = ("t", "k", "w", "r", "c", "tag")
    def __init__(self, t, k="other", w=(), r=(), c=(), tag=None):
        self.t = t; self.k = k; self.w = set(w); self.r = set(r); self.c = set(c); self.tag = tag

def mfma(d, a, b, c):
    cs = "0" if c is None else R(c, 4)
    return I(f"v_mfma_f32_16x16x32_bf16 {R(d,4)}, {R(a,4)}, {R(b,4)}, {cs}", "mfma", regs(d, 4), regs(a, 4) | regs(b, 4),
             () if c is None else regs(c, 4))
def valu(op, d, *srcs, kind="valu", extra_r=()):
    rd = set(extra_r)
    ss = []
    for s in srcs:
        if isinstance(s, int):
            ss.append(f"v{s}"); rd.add(s)
        else:
            ss.append(s)
            m = re.fullmatch(r"-?v(\d+)", s)
            if m: rd.add(int(m.group(1)))
    return I(f"{op} v{d}, " + ", ".join(ss), kind, {d}, rd)
def vexp(d, s): return valu("v_exp_f32", d, s, kind="trans")
def vrcp(d, s): return valu("v_rcp_f32", d, s, kind="trans")
def cvtpk(d, lo, hi): return valu("v_cvt_pk_bf16_f32", d, lo, hi)
def swap32(a, b): return I(f"v_permlane32_swap_b32 v{a}, v{b}", "perm", {a, b}, {a, b})
def swap16(a, b): return I(f"v_permlane16_swap_b32 v{a}, v{b}", "perm", {a, b}, {a, b})
def ds_r128(d, addr, off): return I(f"ds_read_b128 {R(d,4)}, v{addr} offset:{off}", "dsr", regs(d, 4), {addr})
def ds_tr(d, addr, off): return I(f"ds_read_b64_tr_b16 {R(d,2)}, v{addr} offset:{off}", "dsr", regs(d, 2), {addr})
def ds_w64(addr, s, off): return I(f"ds_write_b64 v{addr}, {R(s,2)} offset:{off}", "dsw", (), {addr} | regs(s, 2))
def S(t): return I(t, "salu")
def raw(t, k="other"): return I(t, k)
def label(n): return I(f"{n}:", "label")
def barrier(): return I("s_barrier", "barrier")
def lgkm0(): return I("s_waitcnt lgkmcnt(0)", "lgkm0")
def vmcnt(n): return I(f"s_waitcnt vmcnt({n})", "other")
def dma(voff, srd, soff, imm=0, flags=""):
    o = f" offset:{imm}" if imm else ""
    f = f" {flags}" if flags else ""
    return I(f"buffer_load_dwordx4 v{voff}, s[{srd}:{srd+3}], {soff} offen{o}{f} lds", "dma", (), {voff})
def bload(d, voff, srd, soff, imm=0, flags=""):
    o = f" offset:{imm}" if imm else ""
    f = f" {flags}" if flags else ""
    return I(f"buffer_load_dwordx4 {R(d,4)}, v{voff}, s[{srd}:{srd+3}], {soff} offen{o}{f}", "vload", regs(d, 4), {voff})
def bstore(s, voff, srd, soff, imm=0, flags="", n=4):
    o = f" offset:{imm}" if imm else ""
    f = f" {flags}" if flags else ""
    return I(f"buffer_store_dwordx{n} {R(s,n)}, v{voff}, s[{srd}:{srd+3}], {soff} offen{o}{f}", "vstore", (), {voff} | regs(s, n), tag=regs(s, n))

def insert_lgkm(seq):
    out = []
    q = []
    for ins in seq:
        if ins.k == "lgkm0":
            q = []
            out.append(ins); continue
        touched = ins.r | ins.c | ins.w
        need = None
        for idx, dst in enumerate(q):
            if dst & touched:
                need = idx
        if need is not None:
            n = len(q) - 1 - need
            n = min(n, 15)
            out.append(I(f"s_waitcnt lgkmcnt({n})", "other"))
            q = q[len(q) - n:] if n else []
        if ins.k == "dsr":
            q.append(set(ins.w))
        elif ins.k == "dsw":
            q.append(set())
        out.append(ins)
    return out

def states(ins):
    if ins.k == "label": return 0
    m = re.match(r"s_nop (\d+)", ins.t)
    if m: return int(m.group(1)) + 1
    return 1

VALU_KINDS = ("valu", "trans", "perm")
def fix_hazards(seq, wrap=0):
    out = []
    hist = list(seq[-wrap:]) if wrap else []
    base = len(hist)
    def need_for(ins):
        need = 0
        dist = 0
        for prev in reversed(hist):
            req = 0
            if prev.k in VALU_KINDS:
                if ins.k == "mfma" and prev.w & (ins.r | ins.c): req = max(req, 2)
                if ins.k == "perm" and prev.w & ins.r: req = max(req, 2)
                if prev.k == "trans" and ins.k in VALU_KINDS + ("vstore", "dsw") and ins.k != "trans" and prev.w & ins.r: req = max(req, 1)
                if ins.k == "rfl" and prev.w & ins.r: req = max(req, 1)
            if prev.k == "mfma":
                if ins.k == "mfma":
                    if prev.w & ins.r: req = max(req, 8)
                    if prev.w & ins.c and prev.w != ins.c: req = max(req, 6)
                    if prev.w & ins.w and prev.w != ins.c: req = max(req, 8)
                elif prev.w & (ins.r | ins.w): req = max(req, 8)
                if ins.k in VALU_KINDS and prev.c & ins.w: req = max(req, 3)
            if prev.k == "vstore" and prev.tag and len(prev.tag) >= 3 and prev.tag & ins.w: req = max(req, 2)
            if prev.k == "m0" and ins.k == "dma": req = max(req, 1)
            if prev.k == "vcmp" and ins.k == "needvcc": req = max(req, 2)
            if prev.k == "rfl" and ins.k in ("dma", "vload", "vstore"): req = max(req, 5)
            if prev.k == "rfl" and ins.k in VALU_KINDS: req = max(req, 2)
            need = max(need, req - dist)
            dist += states(prev)
            if dist >= 12: break
        return need
    for ins in seq:
        n = need_for(ins)
        if n > 0:
            nop = I(f"s_nop {n-1}", "other")
            out.append(nop); hist.append(nop)
        out.append(ins); hist.append(ins)
        if len(hist) > 64: hist = hist[-32:]
    return out

def m0set(t): return I(t, "m0")

def interleave(main, fillers):
    by = {}
    for pos, ins in fillers:
        by.setdefault(pos, []).append(ins)
    out = list(by.get(-1, []))
    for i, m in enumerate(main):
        out.append(m)
        out += by.get(i, [])
    for pos in sorted(by):
        if pos >= len(main): out += by[pos]
    return out

def spread(items, lo, hi):
    n = len(items)
    if n == 0: return []
    span = hi - lo + 1
    return [(lo + (i * span) // n, it) for i, it in enumerate(items)]

def emit(seq):
    return "\n".join((i.t if i.k == "label" else "    " + i.t) for i in seq)
```

```python
import sys, math, struct
from asmlib import *

NAME = "concat_heads__mha_block_cached__mha_block_cached__near_ridge"
WS_BYTES = 289406976
def f2u(x): return struct.unpack("<I", struct.pack("<f", x))[0]

KB0, VB0, WB0, QB0 = 0, 32768, 65536, 131072
SK, SV, SWQ, SWO, SX, SOST, SPART = 8, 12, 16, 20, 24, 28, 32
sW, sQB, sCNT, sBND, sSCL, sKo, sVo, sWc, sT, sM0, sOo, sRET = 36, 37, 38, 39, 40, 41, 42, 43, 44, 45, 46, 48
sPo, sCol, sRing = 50, 51, 52
def Qf(s, qs): return 8 + (s * 2 + qs) * 4
def Oa(dt, qs): return 40 + (dt * 2 + qs) * 4
def Sr(n, kt, qs):
    if kt < 2: return 104 + (kt * 2 + qs) * 4
    return 120 + (n & 1) * 16 + ((kt - 2) * 2 + qs) * 4
def Pf(n, u, qs):
    if u == 0: return 152 + (n & 1) * 8 + qs * 4
    return 168 + qs * 4
def NM(qs): return 176 + qs * 4
def FR(f): return 184 + (f & 7) * 4
TMP = 216
vL, vLS, vTS = 232, 234, 236
aK, aV, aQ, vOo = 238, 242, 250, 251
def Bf(s, qs): return 8 + (s * 2 + qs) * 4
def Ac(mt, qs): return 136 + (mt * 2 + qs) * 4
aW, vKo, vVo, vWq, vWo, aQw, vXo, vPo = 238, 242, 243, 244, 245, 246, 247, 248

BAR_IDX = 19

class Cfg:
    stamps = False
    kvflags = "nt"
    wflags = ""
    pflags = ""
    force_fb = False

def stamp(cfg, idx):
    if not cfg.stamps: return []
    return [S("s_memrealtime s[60:61]"), raw("s_waitcnt lgkmcnt(0)", "lgkm0"),
            raw("v_mov_b32 v2, s60"), raw("v_mov_b32 v3, s61"), raw("v_mov_b32 v4, 0"),
            S("s_mov_b64 s[62:63], exec"), S("s_mov_b64 exec, 1"),
            raw(f"buffer_store_dwordx2 v[2:3], v4, s[64:67], s68 offen offset:{idx*8}"),
            S("s_mov_b64 exec, s[62:63]")]

def softmax_part(n, part, first):
    L = []
    t = 0
    for qs in range(2):
        es = []
        for k in range(2):
            s = Sr(n, 2 * part + k, qs)
            base = TMP + ((qs * 2 + k) & 1) * 4 + 8 * 0
            base = TMP + (qs * 2 + k) % 2 * 4
            e = [base + i for i in range(4)]
            for i in range(4): L.append(vexp(e[i], s + i))
            if k == 0:
                L.append(valu("v_add_f32", vTS + qs, e[0], e[1]))
            else:
                L.append(valu("v_add_f32", vTS + qs, vTS + qs, e[0]))
                L.append(valu("v_add_f32", vTS + qs, vTS + qs, e[1]))
            L.append(cvtpk(Pf(n, part, qs) + 2 * k, e[0], e[1]))
            L.append(valu("v_add_f32", vTS + qs, vTS + qs, e[2]))
            L.append(valu("v_add_f32", vTS + qs, vTS + qs, e[3]))
            L.append(cvtpk(Pf(n, part, qs) + 2 * k + 1, e[2], e[3]))
    return L

def l_update(n, part):
    t = n & 7
    if t == 0 and part == 0:
        return [valu("v_mov_b32", vL + qs, vTS + qs) for qs in range(2)]
    L = [valu("v_add_f32", vL + qs, vL + qs, vTS + qs) for qs in range(2)]
    if t == 7 and part == 1:
        L = [valu("v_add_f32", vLS + qs, vL + qs, vTS + qs) for qs in range(2)]
    return L

SITES = {}
def check(n, part, sfx):
    t = n & 7
    if t == 0: return []
    name = f"{sfx}{t}_{part}"
    SITES[name] = (n & 1, part, t == 7)
    return [valu("v_max_f32", TMP + 8, vTS, vTS + 1),
            I(f"v_cmp_lt_f32 vcc, s{sBND}, v{TMP+8}", "valu", (), {TMP + 8}),
            raw(f"s_cbranch_vccnz L_fb_{name}"), label(f"L_ret_{name}")]

def xgroup(op, x, t):
    return [valu("v_mov_b32", t, x), swap32(t, x), valu(op, x, x, t),
            valu("v_mov_b32", t, x), swap16(t, x), valu(op, x, x, t)]

def rowmax(dst, srcs):
    L = [valu("v_max3_f32", dst, srcs[0], srcs[1], srcs[2])]
    rest = srcs[3:]
    while len(rest) >= 2:
        L.append(valu("v_max3_f32", dst, dst, rest[0], rest[1])); rest = rest[2:]
    if rest: L.append(valu("v_max_f32", dst, dst, rest[0]))
    return L

def zipl(a, b):
    out = []
    for i in range(max(len(a), len(b))):
        if i < len(a): out.append(a[i])
        if i < len(b): out.append(b[i])
    return out

def first_tile_max(n):
    per = []
    for qs in range(2):
        m, t = TMP + 8 + qs, TMP + 10 + qs
        srcs = [Sr(n, kt, qs) + i for kt in range(4) for i in range(4)]
        L = rowmax(m, srcs) + xgroup("v_max_f32", m, t)
        L += [valu("v_sub_f32", s, s, m) for s in srcs[:8]]
        per.append(L)
    L = zipl(per[0], per[1])
    late = []
    for qs in range(2):
        m = TMP + 8 + qs
        late += [valu("v_sub_f32", NM(qs) + i, "0", m) for i in range(4)]
        late += [valu("v_sub_f32", s, s, m) for s in [Sr(n, kt, qs) + i for kt in (2, 3) for i in range(4)]]
    return L, late

def o_epilogue(cfg):
    per = []
    for qs in range(2):
        per.append(xgroup("v_add_f32", vLS + qs, TMP + 12 + qs) + [vrcp(vLS + qs, vLS + qs)])
    L = zipl(per[0], per[1])
    k = 0
    for s in range(4):
        for qs in range(2):
            q = TMP + 8 + (k & 1) * 4
            if k == 0: q = TMP + 8
            for h in range(2):
                o = Oa(2 * s + h, qs)
                for i in range(4): L.append(valu("v_mul_f32", o + i, o + i, vLS + qs))
                L.append(cvtpk(q + 2 * h, o, o + 1)); L.append(cvtpk(q + 2 * h + 1, o + 2, o + 3))
            fr = s * 2 + qs
            if fr == 4: L.append(S(f"s_add_u32 s{sOo}, s{sOo}, 4096"))
            L.append(bstore(q, vOo, SOST, f"s{sOo}", (fr & 3) * 1024))
            k += 1
    L.append(S(f"s_add_u32 s{sOo}, s{sOo}, 4096"))
    return L

def k_read(n, f): return [ds_r128(FR(f), aK + (f & 3), KB0 + (n & 1) * 16384 + (f >> 2) * 4096)]
def v_read(n, f):
    dt, u = f >> 1, f & 1
    o = VB0 + (n & 1) * 16384 + u * 8192
    return [ds_tr(FR(f), aV + dt, o), ds_tr(FR(f) + 2, aV + dt, o + 4096)]

NT = 32
def a_stream(cfg):
    seq = []
    seq += [ds_r128(Qf(s, qs), aQ, (s * 2 + qs) * 1024) for s in range(4) for qs in range(2)]
    seq += [lgkm0(), barrier()]
    for f in range(8): seq += k_read(0, f)
    for n in range(NT + 1):
        t = n & 7
        sfx = "T" if n >= NT else "L"
        real = n < NT
        main = []
        for kt in range(4):
            for qs in range(2):
                for s in range(4):
                    c = Sr(n, kt, qs) if s else (None if t == 0 else NM(qs))
                    main.append(mfma(Sr(n, kt, qs), FR(4 * kt + s), Qf(s, qs), c) if real else None)
        fill = []
        if real:
            for f in range(8, 16):
                fill += [(4 + (f & 3) + 8 * ((f - 8) >> 2), i) for i in k_read(n, f)]
        va = []
        if n >= 1: va = softmax_part(n - 1, 1, False)
        if t == 1 and n > 8:
            ep = o_epilogue(cfg)
            fill += spread(va, 0, 9) + spread(ep, 4, 31)
        else:
            fill += spread(va, 0, 28)
        if t == 4: fill.append((2, vmcnt(0)))
        fill += [(BAR_IDX, lgkm0()), (BAR_IDX, barrier())]
        if n >= 1:
            for f in range(8):
                fill += [(20 + (f & 3) + 8 * (f >> 2), i) for i in v_read(n - 1, f)]
        if n >= 1:
            fill += [(31, i) for i in check(n - 1, 1, sfx) + l_update(n - 1, 1)]
        seq += [i for i in interleave(main, fill) if i is not None]
        realpv = n >= 1
        m = n - 1
        main = []
        for dt in range(8):
            for (u, qs) in ((0, 0), (1, 0), (1, 1), (0, 1)):
                firstk = (u == 0 and qs == 0) or (u == 1 and qs == 1)
                c = None if ((m & 7) == 0 and firstk) else Oa(dt, qs)
                main.append(mfma(Oa(dt, qs), FR(2 * dt + u), Pf(m, u, qs), c) if realpv else None)
        fill = []
        if realpv:
            for f in range(8, 16):
                fill += [(3 + 4 * ((f - 8) >> 1), i) for i in v_read(m, f)]
        if real:
            va = softmax_part(n, 0, t == 0)
            if t == 0:
                early, late = first_tile_max(n)
                fill += spread(early, 1, 10) + spread(va, 11, 24) + spread(late, 25, 30)
            else:
                fill += spread(va, 0, 28)
        if t == 7:
            fill += spread([ds_r128(Qf(s, qs), aQ, (s * 2 + qs) * 1024) for s in range(4) for qs in range(2)], 0, 14)
        if n < NT:
            fill += [(BAR_IDX, lgkm0()), (BAR_IDX, barrier())]
        if n + 1 < NT:
            for f in range(8):
                fill += [(19 + 4 * (f >> 1), i) for i in k_read(n + 1, f)]
        if real:
            sf2 = "T" if n + 1 >= NT else "L"
            fill += [(31, i) for i in check(n, 0, sf2) + l_update(n, 0)]
        seq += [i for i in interleave(main, fill) if i is not None]
    seq += o_epilogue(cfg)
    return seq

def split_segments(seq):
    segs, cur = [], []
    for i in seq:
        cur.append(i)
        if i.k == "barrier":
            segs.append(cur); cur = []
    segs.append(cur)
    return segs

def fallback(par, part, last):
    n = par + 2
    L = [raw("s_nop 7"), raw("s_nop 3")]
    D, F, T = TMP + 8, TMP + 10, TMP + 12
    kts = range(4) if part == 0 else (2, 3)
    for qs in range(2):
        srcs = [Sr(n, kt, qs) + i for kt in kts for i in range(4)]
        d, f, t = D + qs, F + qs, T + qs
        L += rowmax(d, srcs) + xgroup("v_max_f32", d, t)
        L += [valu("v_max_f32", d, "0", d), valu("v_ceil_f32", d, d), valu("v_sub_f32", t, "0", d), vexp(f, t)]
        L += [valu("v_sub_f32", s, s, d) for s in srcs]
        L += [valu("v_sub_f32", NM(qs) + i, NM(qs) + i, d) for i in range(4)]
        L += [valu("v_mul_f32", vL + qs, vL + qs, f)]
        L += [valu("v_mul_f32", Oa(dt, qs) + i, Oa(dt, qs) + i, f) for dt in range(8) for i in range(4)]
        if part == 1:
            for i in range(4):
                p = Pf(n, 0, qs) + i
                L += [valu("v_lshlrev_b32", t, "16", p), valu("v_and_b32", p, "0xffff0000", p),
                      valu("v_mul_f32", t, t, f), valu("v_mul_f32", p, p, f), cvtpk(p, t, p)]
            if not last:
                L += [valu("v_sub_f32", s, s, d) for s in [Sr(n + 1, kt, qs) + i for kt in range(4) for i in range(4)]]
    L += softmax_part(n, part, False)
    L += [raw("s_nop 2"), raw(f"s_setpc_b64 s[{sRET}:{sRET+1}]")]
    return fix_hazards(L)

def w_read(c, f):
    mt, ks = f >> 2, f & 3
    o = c * 16384 + ks * 4096
    return [ds_tr(FR(f), aW + mt, o), ds_tr(FR(f) + 2, aW + mt, o + 512)]

def g64_main(c):
    main = []
    for mt in range(4):
        for qs in range(2):
            for ks in range(4):
                cc = None if (c == 0 and ks == 0) else Ac(mt, qs)
                main.append(mfma(Ac(mt, qs), FR(4 * mt + ks), Bf(4 * c + ks, qs), cc))
    return main

def q_write(mts, hf_imm):
    L = []
    k = 0
    for mt in mts:
        for qs in range(2):
            a = Ac(mt, qs); t = TMP + (k & 3) * 4; k += 1
            for i in range(4): L.append(valu("v_mul_f32", t + i, f"s{sSCL}", a + i))
            L += [cvtpk(t, t, t + 1), cvtpk(t + 1, t + 2, t + 3)]
            L.append(ds_w64(aQw, t, hf_imm + (mt >> 1) * 2048 + qs * 1024 + (mt & 1) * 512))
    return L

def wq_dma(cfg, c, ks):
    return [m0set(f"s_add_u32 m0, s{sM0}, {WB0 + c*16384 + ks*4096}"),
            S(f"s_add_u32 s{sT}, s{sWc}, {c * (1 << 20) + ks * (1 << 18)}"),
            dma(vWq, SWQ, f"s{sT}", 0, cfg.wflags)]
def kv_dma(cfg, isK, slot, jj):
    base = (KB0 if isK else VB0) + slot * 16384 + jj * 3072
    return [m0set(f"s_add_u32 m0, s{sM0}, {base}"),
            dma(vKo if isK else vVo, SK if isK else SV, f"s{sKo if isK else sVo}", jj * 1024, cfg.kvflags)]

def p_prologue(cfg):
    seq = []
    for c in range(4):
        for ks in range(4): seq += wq_dma(cfg, c, ks)
        for ks in range(4):
            for qs in range(2):
                seq.append(bload(Bf(4 * c + ks, qs), vXo, SX, ("0" if qs == 0 else "s53"), (4 * c + ks) * 64))
    for jj in range(4): seq += kv_dma(cfg, True, 0, jj)
    seq.append(S(f"s_add_u32 s{sKo}, s{sKo}, 16384"))
    seq.append(S(f"s_add_u32 s{sWc}, s{sWc}, 128"))
    seq += [vmcnt(40), barrier()]
    for f in range(8): seq += w_read(0, f)
    issued_after = {0: 40, 1: 28, 2: 16, 3: 4}
    extra = 0
    for i in range(8):
        c = i & 3
        main = g64_main(c)
        fill = []
        for f in range(8, 16):
            fill += [(4 + (f & 3) + 8 * ((f - 8) >> 2), x) for x in w_read(c, f)]
        if i == 4:
            fill += spread(q_write((2, 3), 0), 1, 14)
        if i < 7:
            nxt = i + 1
            if nxt < 4: n = issued_after[nxt] + extra
            else: n = 4 * 2
            fill += [(BAR_IDX, vmcnt(n)), (BAR_IDX, lgkm0()), (BAR_IDX, barrier())]
            for f in range(8):
                fill += [(20 + (f & 3) + 8 * (f >> 2), x) for x in w_read(nxt & 3, f)]
            d = []
            for ks in range(4): d += wq_dma(cfg, c, ks)
            if c == 3: d.append(S(f"s_add_u32 s{sWc}, s{sWc}, 128"))
            fill += spread(d, 20, 30)
            extra += 4
        if c == 3:
            fill += spread(q_write((0, 1), (i >> 2) * 4096), 22, 31)
        seq += interleave(main, fill)
    seq += q_write((2, 3), 4096)
    seq += [vmcnt(8), lgkm0(), barrier()]
    return seq

def p_body(cfg, compute):
    seq = []
    for ph in range(8):
        c = ph >> 1
        isK = (ph & 1) == 0
        slot = [1, 0, 0, 1, 1, 0, 0, 1][ph]
        for jj in range(4): seq += kv_dma(cfg, isK, slot, jj)
        seq.append(S(f"s_add_u32 s{sKo if isK else sVo}, s{sKo if isK else sVo}, 16384"))
        if compute:
            half = ph & 1
            for f in range(8 * half, 8 * half + 8): seq += w_read(c, f)
            main = g64_main(c)[16 * half:16 * half + 16]
            d = []
            for ks in (2 * half, 2 * half + 1): d += wq_dma(cfg, (c + 3) & 3, ks)
            if ph == 1:
                d += [S(f"s_add_u32 s{sWc}, s{sWc}, 128"), S(f"s_cmp_ge_u32 s{sWc}, 1024"),
                      S(f"s_cselect_b32 s{sWc}, 0x40000000, s{sWc}")]
            seq += interleave(main, spread(d, 4, 14))
            if ph == 7:
                seq += q_write((0, 1, 2, 3), 0)
                seq.append(valu("v_xor_b32", aQw, "0x1000", aQw))
            seq += [vmcnt(14), lgkm0(), barrier()]
        else:
            seq += [vmcnt(8), barrier()]
    return seq

def wo_dma(cfg, c, ks):
    return [m0set(f"s_add_u32 m0, s{sRing}, {c*16384 + ks*4096}"),
            S(f"s_add_u32 s{sT}, s{sCol}, {c * 131072 + ks * 32768}"),
            dma(vWo, SWO, f"s{sT}", 0, cfg.wflags)]

def part_store(cfg, pair):
    L = []
    for qs in range(2):
        t = TMP + (pair * 2 + qs) * 4
        for h in range(2):
            a = Ac(2 * pair + h, qs)
            L += [cvtpk(t + 2 * h, a, a + 1), cvtpk(t + 2 * h + 1, a + 2, a + 3)]
        L.append(bstore(t, vPo, SPART, f"s{sPo}", (qs * 2 + pair) * 1024, cfg.pflags))
    return L

def final_phase(cfg):
    seq = []
    for c in range(4):
        for ks in range(4): seq += wo_dma(cfg, c, ks)
        for fr in range(8):
            if fr == 4 or (fr == 0 and c > 0): seq.append(S(f"s_add_u32 s{sOo}, s{sOo}, 4096"))
            seq.append(bload(Bf(4 * c + (fr >> 1), fr & 1), vOo, SOST, f"s{sOo}", (fr & 3) * 1024))
    seq.append(S(f"s_add_u32 s{sCol}, s{sCol}, 128"))
    q = []
    for c in range(4): q += [("W", c)] * 4 + [("B", c)] * 8
    def wait_for(tags):
        last = max(i for i, t in enumerate(q) if t in tags)
        return vmcnt(min(len(q) - 1 - last, 63))
    seq += [wait_for({("W", 0), ("B", 0)}), barrier()]
    for f in range(8): seq += w_read(0, f)
    for i in range(16):
        c = i & 3
        main = g64_main(c)
        fill = []
        for f in range(8, 16):
            fill += [(4 + (f & 3) + 8 * ((f - 8) >> 2), x) for x in w_read(c, f)]
        if c == 0 and i > 0:
            fill += spread(part_store(cfg, 1) + [S(f"s_add_u32 s{sPo}, s{sPo}, 131072")], 1, 14)
            q += [("S", i)] * 2
        if i < 15:
            nxt = i + 1
            tags = {("W", nxt)} | ({("B", nxt)} if nxt < 4 else set())
            fill += [(BAR_IDX, wait_for(tags)), (BAR_IDX, lgkm0()), (BAR_IDX, barrier())]
            for f in range(8):
                fill += [(20 + (f & 3) + 8 * (f >> 2), x) for x in w_read(nxt & 3, f)]
            if i + 4 < 16:
                d = []
                for ks in range(4): d += wo_dma(cfg, c, ks)
                if c == 3: d.append(S(f"s_add_u32 s{sCol}, s{sCol}, 128"))
                fill += spread(d, 20, 26)
                q += [("W", i + 4)] * 4
        if c == 3:
            fill += spread(part_store(cfg, 0), 27, 31)
            q += [("S", i)] * 2
        seq += interleave(main, fill)
    seq += part_store(cfg, 1)
    return seq

def fin(seq): return fix_hazards(insert_lgkm(seq))

def header():
    ref = open("cdna_kernels/" + NAME + ".s.ref").read().splitlines()
    return [l for l in ref if l.startswith(";") and "@launch" not in l and "Override" not in l and "grid=ceil" not in l]

def srd(dst, lo, hi, nbytes):
    return [f"s_mov_b32 s{dst}, s{lo}", f"s_mov_b32 s{dst+1}, s{hi}", f"s_mov_b32 s{dst+2}, {nbytes}", f"s_mov_b32 s{dst+3}, 0x20000"]

def srd_off(dst, lo, hi, off, nbytes):
    return [f"s_add_u32 s{dst}, s{lo}, {off}", f"s_addc_u32 s{dst+1}, s{hi}, 0", f"s_mov_b32 s{dst+2}, {nbytes}", f"s_mov_b32 s{dst+3}, 0x20000"]

def main_kernel(cfg):
    T = []
    A = lambda *a: T.extend("    " + x for x in a)
    T += [".globl attn_main_kernel", ".p2align 8", ".type attn_main_kernel,@function", "attn_main_kernel:"]
    A("s_cmp_ge_u32 s2, 256", "s_cbranch_scc1 L_end")
    A("s_load_dwordx8 s[72:79], s[0:1], 0", "s_load_dwordx8 s[80:87], s[0:1], 32", "s_load_dwordx4 s[88:91], s[0:1], 64",
      "s_load_dwordx2 s[92:93], s[0:1], 96")
    A("s_and_b32 s3, s2, 7", "s_lshr_b32 s4, s2, 3", "s_lshl_b32 s5, s3, 2", "s_lshr_b32 s6, s4, 3", "s_add_u32 s5, s5, s6",
      "s_and_b32 s6, s4, 7",
      "s_and_b32 s7, s5, 15")
    A("v_lshrrev_b32 v1, 6, v0", "v_and_b32 v0, 63, v0", f"v_readfirstlane_b32 s{sW}, v1")
    A("s_waitcnt lgkmcnt(0)")
    A("s_cmp_ge_u32 s5, 16")
    for k in range(5):
        A(f"s_cselect_b32 s{72+2*k}, s{82+2*k}, s{72+2*k}", f"s_cselect_b32 s{73+2*k}, s{83+2*k}, s{73+2*k}")
    A("s_lshl_b32 s54, s7, 22", "s_lshl_b32 s55, s6, 19", "s_add_u32 s54, s54, s55")
    A(*srd_off(SK, 74, 75, "s54", 524288)); A(*srd_off(SV, 76, 77, "s54", 524288))
    A("s_lshl_b32 s56, s6, 10")
    A(*srd_off(SWQ, 78, 79, "s56", 0), f"s_sub_u32 s{SWQ+2}, 0x400000, s56")
    A(*srd_off(SWO, 80, 81, "s55", 524288))
    A("s_lshl_b32 s56, s7, 17"); A(*srd_off(SX, 72, 73, "s56", 131072))
    A("s_lshl_b32 s56, s2, 17"); A(*srd_off(SOST, 92, 93, "s56", 131072))
    A("s_lshl_b32 s56, s5, 20", "s_add_u32 s56, s56, 0x2000000"); A(*srd_off(SPART, 92, 93, "s56", 1 << 20))
    if cfg.stamps:
        A(*srd_off(64, 92, 93, WS_BYTES - (1 << 20), 1 << 20))
        A(f"s_lshr_b32 s68, s{sW}, 2", "s_lshl_b32 s68, s68, 7", "s_lshl_b32 s69, s2, 8", "s_add_u32 s68, s68, s69",
          f"s_and_b32 s69, s{sW}, 3", "s_cmp_lg_u32 s69, 0", "s_cselect_b32 s68, 0x40000000, s68")
    A(f"s_and_b32 s{sQB}, s{sW}, 3", f"s_lshl_b32 s{sM0}, s{sQB}, 10")
    A(f"s_mov_b32 s{sBND}, 0x{f2u(1e-30 if cfg.force_fb else float(1 << 20)):x}",
      f"s_mov_b32 s{sSCL}, 0x{f2u(math.log2(math.e) / math.sqrt(128.0)):x}")
    A(f"s_lshl_b32 s{sOo}, s{sQB}, 15")
    A("v_and_b32 v1, 15, v0", "v_lshrrev_b32 v2, 4, v0", "v_lshrrev_b32 v3, 2, v1", "v_and_b32 v4, 3, v0")
    A(f"v_lshlrev_b32 v{vOo}, 4, v0")
    T += [emit(stamp(cfg, 0))] if cfg.stamps else []
    if cfg.stamps:
        A("v_lshrrev_b32 v2, 4, v0", "v_lshrrev_b32 v3, 2, v1", "v_and_b32 v4, 3, v0")
    A(f"s_cmp_ge_u32 s{sW}, 4", "s_cbranch_scc1 L_P")
    for s in range(4):
        A(f"v_add_u32 v5, {4*s}, v2", "v_xor_b32 v5, v5, v1", "v_lshlrev_b32 v5, 4, v5", f"v_lshl_add_u32 v{aK+s}, v1, 8, v5")
    A("v_and_b32 v5, 1, v2", "v_lshl_add_u32 v5, v5, 2, v3",
      "v_lshl_add_u32 v6, v2, 2, v3", "v_lshlrev_b32 v6, 8, v6", "v_lshl_add_u32 v6, v4, 3, v6")
    for dt in range(8):
        A(f"v_xor_b32 v7, {dt}, v5", f"v_lshl_add_u32 v{aV+dt}, v7, 5, v6")
    A(f"s_lshl_b32 s{sT}, s{sQB}, 13", f"s_add_u32 s{sT}, s{sT}, {QB0}", f"v_add_u32 v{aQ}, s{sT}, v{vOo}")
    for _ in range(9): A("s_barrier")
    segs = split_segments(fin(a_stream(cfg)))
    txt = [emit(s) for s in segs]
    E = lambda n: 1 + 2 * n
    for k in range(E(2), E(32) - 16):
        assert txt[k] == txt[k + 16], k
    T += [emit(stamp(cfg, 1))] if cfg.stamps else []
    T += txt[:E(2)]
    A(f"s_mov_b32 s{sCNT}, 0")
    T.append("L_Aloop:")
    T += txt[E(2):E(8)]
    A(f"s_cmp_eq_u32 s{sCNT}, 3", "s_cbranch_scc1 L_Atail")
    T += txt[E(8):E(10)]
    A(f"s_add_u32 s{sCNT}, s{sCNT}, 1", "s_branch L_Aloop")
    T.append("L_Atail:")
    T += txt[E(32):]
    T += [emit(stamp(cfg, 2))] if cfg.stamps else []
    A("s_waitcnt vmcnt(0)", "s_barrier")
    A(f"s_mov_b32 s{sRing}, s{sM0}", f"s_mov_b32 s{sCol}, 0", "s_mov_b32 s57, 0")
    A("s_branch L_final")
    variants = {}
    for name, key in SITES.items():
        variants.setdefault(key, f"L_fbr_{key[0]}_{key[1]}_{int(key[2])}")
        T.append(f"L_fb_{name}:")
        A(f"s_call_b64 s[{sRET}:{sRET+1}], {variants[key]}", f"s_branch L_ret_{name}")
    for key, lab in variants.items():
        T.append(f"{lab}:")
        T.append(emit(fallback(*key)))
    T.append("L_P:")
    def w_addr(base_s):
        A("v_lshrrev_b32 v5, 1, v3", "v_and_b32 v6, 1, v2", "v_lshl_add_u32 v5, v6, 1, v5",
          "v_lshl_add_u32 v6, v2, 3, v3", "v_lshlrev_b32 v6, 7, v6", "v_lshl_add_u32 v6, v4, 3, v6", f"v_add_u32 v6, {base_s}, v6")
        for mt in range(4):
            A(f"v_xor_b32 v7, {mt}, v5", f"v_lshl_add_u32 v{aW+mt}, v7, 5, v6")
    A(f"s_mov_b32 s57, {WB0}")
    w_addr("s57")
    A(f"s_lshl_b32 s{sT}, s{sQB}, 2", f"v_add_u32 v5, s{sT}, v2",
      "v_xor_b32 v6, v5, v1", "v_lshlrev_b32 v6, 4, v6",
      f"s_lshl_b32 s{sT}, s{sQB}, 4", f"v_add_u32 v7, s{sT}, v2", "v_lshlrev_b32 v7, 8, v7",
      f"v_add_u32 v{vKo}, v7, v6",
      "v_and_b32 v5, 7, v5", "v_lshlrev_b32 v5, 1, v5", "v_xor_b32 v6, v5, v1", "v_lshlrev_b32 v6, 4, v6", f"v_add_u32 v{vVo}, v7, v6")
    def lc16():
        A("v_lshrrev_b32 v5, 3, v0", "v_bfe_u32 v6, v0, 4, 1", f"s_and_b32 s{sT}, s{sQB}, 1", f"s_lshl_b32 s{sT}, s{sT}, 1",
          f"v_or_b32 v6, s{sT}, v6",
          "v_lshlrev_b32 v6, 1, v6", "v_and_b32 v7, 7, v0", "v_xor_b32 v6, v6, v7", "v_lshlrev_b32 v6, 4, v6")
    lc16()
    A(f"s_lshl_b32 s{sT}, s{sQB}, 3", f"v_add_u32 v7, s{sT}, v5", f"v_lshl_add_u32 v{vWq}, v7, 13, v6")
    A("v_lshrrev_b32 v5, 1, v2", "v_lshlrev_b32 v5, 8, v5", "v_lshl_add_u32 v5, v1, 4, v5", "v_and_b32 v6, 1, v2", "v_lshl_add_u32 v5, v6, 3, v5",
      f"s_lshl_b32 s{sT}, s{sQB}, 13", f"s_add_u32 s{sT}, s{sT}, {QB0}", f"v_add_u32 v{aQw}, s{sT}, v5")
    A(f"s_lshl_b32 s{sT}, s{sQB}, 5", f"v_add_u32 v5, s{sT}, v1", "v_lshlrev_b32 v5, 10, v5", f"v_lshl_add_u32 v{vXo}, v2, 4, v5")
    A("s_mov_b32 s53, 16384", f"s_mov_b32 s{sKo}, 0", f"s_mov_b32 s{sVo}, 0", f"s_mov_b32 s{sWc}, 0")
    T.append(emit(fin(p_prologue(cfg))))
    T += [emit(stamp(cfg, 1))] if cfg.stamps else []
    A(f"s_mov_b32 s{sCNT}, 0")
    T.append("L_Ploop:")
    T.append(emit(fin(p_body(cfg, True))))
    A(f"s_add_u32 s{sCNT}, s{sCNT}, 1", f"s_cmp_lt_u32 s{sCNT}, 6", "s_cbranch_scc1 L_Ploop")
    T.append("L_Ploop2:")
    T.append(emit(fin(p_body(cfg, False))))
    A(f"s_add_u32 s{sCNT}, s{sCNT}, 1", f"s_cmp_lt_u32 s{sCNT}, 8", "s_cbranch_scc1 L_Ploop2")
    A("s_waitcnt vmcnt(0)", "s_barrier", "s_barrier")
    T += [emit(stamp(cfg, 2))] if cfg.stamps else []
    A("s_barrier")
    A(f"s_add_u32 s{sRing}, s{sM0}, {WB0}", f"s_mov_b32 s{sCol}, 512")
    T.append("L_final:")
    A("v_and_b32 v1, 15, v0", "v_lshrrev_b32 v2, 4, v0", "v_lshrrev_b32 v3, 2, v1", "v_and_b32 v4, 3, v0")
    w_addr("s57")
    lc16()
    A("v_and_b32 v7, 3, v5", "v_lshrrev_b32 v5, 2, v5", "v_lshl_add_u32 v7, v5, 4, v7",
      f"s_lshl_b32 s{sT}, s{sQB}, 2", f"v_add_u32 v7, s{sT}, v7", f"v_lshl_add_u32 v{vWo}, v7, 10, v6")
    A(f"v_lshlrev_b32 v{vPo}, 4, v0")
    A(f"s_lshl_b32 s{sOo}, s{sQB}, 15")
    A(f"s_lshl_b32 s{sPo}, s{sCol}, 10", "s_lshl_b32 s58, s6, 14", f"s_add_u32 s{sPo}, s{sPo}, s58",
      f"s_lshl_b32 s58, s{sQB}, 12", f"s_add_u32 s{sPo}, s{sPo}, s58")
    T.append(emit(fin(final_phase(cfg))))
    if cfg.stamps:
        A("s_waitcnt vmcnt(0)")
        T.append(emit(stamp(cfg, 3)))
    T.append("L_end:")
    A("s_endpgm")
    return T

def reduce_kernel(cfg):
    T = []
    A = lambda *a: T.extend("    " + x for x in a)
    T += [".globl attn_reduce_kernel", ".p2align 8", ".type attn_reduce_kernel,@function", "attn_reduce_kernel:"]
    A("s_cmp_ge_u32 s2, 256", "s_cbranch_scc1 L_rend")
    A("s_load_dwordx2 s[4:5], s[0:1], 80", "s_load_dwordx2 s[6:7], s[0:1], 96")
    A("s_and_b32 s16, s2, 7", "s_lshr_b32 s17, s2, 3", "s_lshl_b32 s18, s16, 2", "s_lshr_b32 s19, s17, 3", "s_add_u32 s18, s18, s19",
      "s_and_b32 s19, s17, 7")
    A("s_lshl_b32 s20, s18, 20", "s_lshl_b32 s21, s19, 17", "s_add_u32 s20, s20, s21", "s_add_u32 s20, s20, 0x2000000")
    A("s_waitcnt lgkmcnt(0)")
    A(*srd_off(8, 6, 7, "s20", 131072))
    A(*srd(12, 4, 5, 1 << 22))
    A("v_lshrrev_b32 v1, 6, v0", "v_and_b32 v2, 63, v0", "v_lshlrev_b32 v3, 4, v2", "v_lshl_add_u32 v3, v1, 12, v3")
    for src in range(8):
        A(f"s_mov_b32 s22, {src*16384}")
        for fr in range(4):
            b = 16 + (src * 4 + fr) * 4
            A(f"buffer_load_dwordx4 v[{b}:{b+3}], v3, s[8:11], s22 offen offset:{fr*1024}")
    A("s_and_b32 s23, s18, 15", "s_lshl_b32 s23, s23, 18", "s_lshr_b32 s24, s18, 4", "s_lshl_b32 s24, s24, 10", "s_add_u32 s23, s23, s24",
      "s_lshl_b32 s24, s19, 7", "s_add_u32 s23, s23, s24", "s_add_u32 s25, s23, 32768")
    A("v_and_b32 v4, 15, v2", "v_lshl_add_u32 v4, v1, 5, v4", "v_lshlrev_b32 v4, 11, v4", "v_lshrrev_b32 v5, 4, v2", "v_lshl_add_u32 v4, v5, 3, v4")
    acc = 144
    for src in range(8):
        A(f"s_waitcnt vmcnt({(7-src)*4})")
        for fr in range(4):
            b = 16 + (src * 4 + fr) * 4
            for i in range(4):
                lo, hi = acc + fr * 8 + 2 * i, acc + fr * 8 + 2 * i + 1
                if src == 0:
                    A(f"v_lshlrev_b32 v{lo}, 16, v{b+i}", f"v_and_b32 v{hi}, 0xffff0000, v{b+i}")
                else:
                    A(f"v_lshlrev_b32 v6, 16, v{b+i}", f"v_and_b32 v7, 0xffff0000, v{b+i}", f"v_add_f32 v{lo}, v{lo}, v6", f"v_add_f32 v{hi}, v{hi}, v7")
    for fr in range(4):
        qs, pair = fr >> 1, fr & 1
        a = acc + fr * 8
        for i in range(4): A(f"v_cvt_pk_bf16_f32 v{16+fr*4+i}, v{a+2*i}, v{a+2*i+1}")
        so = "s23" if qs == 0 else "s25"
        A(f"buffer_store_dwordx2 v[{16+fr*4}:{17+fr*4}], v4, s[12:15], {so} offen offset:{pair*64}",
          f"buffer_store_dwordx2 v[{18+fr*4}:{19+fr*4}], v4, s[12:15], {so} offen offset:{pair*64+32}")
    T.append("L_rend:")
    A("s_endpgm")
    return T

def kd(name, vgpr, sgpr):
    return [".p2align 6", f".amdhsa_kernel {name}", f"  .amdhsa_next_free_vgpr {vgpr}", f"  .amdhsa_next_free_sgpr {sgpr}",
            f"  .amdhsa_accum_offset {(vgpr+3)//4*4}", "  .amdhsa_group_segment_fixed_size 0", "  .amdhsa_kernarg_size 104",
            "  .amdhsa_user_sgpr_count 2", "  .amdhsa_user_sgpr_kernarg_segment_ptr 1", "  .amdhsa_system_sgpr_workgroup_id_x 1",
            ".end_amdhsa_kernel"]

def generate(cfg, path):
    SITES.clear()
    T = header()
    T += ["; @launch kernel=attn_main_kernel grid=(256,1,1) block=(512,1,1) lds=163840",
          "; @launch kernel=attn_reduce_kernel grid=(256,1,1) block=(256,1,1) lds=0"]
    T += ['.amdgcn_target "amdgcn-amd-amdhsa--gfx950"', ".text"]
    T += main_kernel(cfg)
    T += reduce_kernel(cfg)
    T += ['.section .rodata,"a"'] + kd("attn_main_kernel", 256, 96) + kd("attn_reduce_kernel", 176, 32)
    open(path, "w").write("\n".join(T) + "\n")

if __name__ == "__main__":
    cfg = Cfg()
    out = "k.s"
    for a in sys.argv[1:]:
        if "=" in a:
            k, v = a.split("=", 1)
            cur = getattr(cfg, k)
            setattr(cfg, k, (v not in ("0", "False")) if isinstance(cur, bool) else type(cur)(v))
        else:
            out = a
    generate(cfg, out)
```

```python
import re

def R(base, n=1):
    return f"v{base}" if n == 1 else f"v[{base}:{base+n-1}]"
def regs(base, n=1):
    return set(range(base, base + n))

class I:
    __slots__ = ("t", "k", "w", "r", "c", "tag")
    def __init__(self, t, k="other", w=(), r=(), c=(), tag=None):
        self.t = t; self.k = k; self.w = set(w); self.r = set(r); self.c = set(c); self.tag = tag

def mfma(d, a, b, c, dep=()):
    cs = "0" if c is None else R(c, 4)
    ex = set()
    for x in dep: ex |= regs(x, 4)
    return I(f"v_mfma_f32_16x16x32_bf16 {R(d,4)}, {R(a,4)}, {R(b,4)}, {cs}", "mfma", regs(d, 4), regs(a, 4) | regs(b, 4),
             () if c is None else regs(c, 4), tag=ex)
def valu(op, d, *srcs, kind="valu", extra_r=()):
    rd = set(extra_r)
    ss = []
    for s in srcs:
        if isinstance(s, int):
            ss.append(f"v{s}"); rd.add(s)
        else:
            ss.append(s)
            m = re.fullmatch(r"-?v(\d+)", s)
            if m: rd.add(int(m.group(1)))
    return I(f"{op} v{d}, " + ", ".join(ss), kind, {d}, rd)
def vexp(d, s): return valu("v_exp_f32", d, s, kind="trans")
def vrcp(d, s): return valu("v_rcp_f32", d, s, kind="trans")
def cvtpk(d, lo, hi): return valu("v_cvt_pk_bf16_f32", d, lo, hi)
def swap32(a, b): return I(f"v_permlane32_swap_b32 v{a}, v{b}", "perm", {a, b}, {a, b})
def swap16(a, b): return I(f"v_permlane16_swap_b32 v{a}, v{b}", "perm", {a, b}, {a, b})
def ds_r128(d, addr, off): return I(f"ds_read_b128 {R(d,4)}, v{addr} offset:{off}", "dsr", regs(d, 4), {addr})
def ds_tr(d, addr, off): return I(f"ds_read_b64_tr_b16 {R(d,2)}, v{addr} offset:{off}", "dsr", regs(d, 2), {addr})
def ds_w64(addr, s, off): return I(f"ds_write_b64 v{addr}, {R(s,2)} offset:{off}", "dsw", (), {addr} | regs(s, 2))
def ds_w128(addr, s, off): return I(f"ds_write_b128 v{addr}, {R(s,4)} offset:{off}", "dsw", (), {addr} | regs(s, 4))
def S(t): return I(t, "salu")
def raw(t, k="other"): return I(t, k)
def label(n): return I(f"{n}:", "label")
def barrier(): return I("s_barrier", "barrier")
def lgkm0(): return I("s_waitcnt lgkmcnt(0)", "lgkm0")
def vmcnt(n): return I(f"s_waitcnt vmcnt({n})", "other")
def dma(voff, srd, soff, imm=0, flags=""):
    o = f" offset:{imm}" if imm else ""
    f = f" {flags}" if flags else ""
    return I(f"buffer_load_dwordx4 v{voff}, s[{srd}:{srd+3}], {soff} offen{o}{f} lds", "dma", (), {voff})
def bload(d, voff, srd, soff, imm=0, flags=""):
    o = f" offset:{imm}" if imm else ""
    f = f" {flags}" if flags else ""
    return I(f"buffer_load_dwordx4 {R(d,4)}, v{voff}, s[{srd}:{srd+3}], {soff} offen{o}{f}", "vload", regs(d, 4), {voff})
def bstore(s, voff, srd, soff, imm=0, flags="", n=4):
    o = f" offset:{imm}" if imm else ""
    f = f" {flags}" if flags else ""
    return I(f"buffer_store_dwordx{n} {R(s,n)}, v{voff}, s[{srd}:{srd+3}], {soff} offen{o}{f}", "vstore", (), {voff} | regs(s, n), tag=regs(s, n))

def insert_lgkm(seq):
    out = []
    q = []
    for ins in seq:
        if ins.k == "lgkm0":
            q = []
            out.append(ins); continue
        touched = ins.r | ins.c | ins.w
        if ins.k == "mfma" and ins.tag: touched = touched | ins.tag
        need = None
        for idx, dst in enumerate(q):
            if dst & touched:
                need = idx
        if need is not None:
            n = len(q) - 1 - need
            n = min(n, 15)
            out.append(I(f"s_waitcnt lgkmcnt({n})", "other"))
            q = q[len(q) - n:] if n else []
        if ins.k == "dsr":
            q.append(set(ins.w))
        elif ins.k == "dsw":
            q.append(set())
        out.append(ins)
    return out

def states(ins):
    if ins.k == "label": return 0
    m = re.match(r"s_nop (\d+)", ins.t)
    if m: return int(m.group(1)) + 1
    return 1

VALU_KINDS = ("valu", "trans", "perm")
def fix_hazards(seq, wrap=0):
    out = []
    hist = list(seq[-wrap:]) if wrap else []
    base = len(hist)
    def need_for(ins):
        need = 0
        dist = 0
        for prev in reversed(hist):
            req = 0
            if prev.k in VALU_KINDS:
                if ins.k == "mfma" and prev.w & (ins.r | ins.c): req = max(req, 2)
                if ins.k == "perm" and prev.w & ins.r: req = max(req, 2)
                if prev.k == "trans" and ins.k in VALU_KINDS + ("vstore", "dsw") and ins.k != "trans" and prev.w & ins.r: req = max(req, 1)
                if ins.k == "rfl" and prev.w & ins.r: req = max(req, 1)
            if prev.k == "mfma":
                if ins.k == "mfma":
                    if prev.w & ins.r: req = max(req, 8)
                    if prev.w & ins.c and prev.w != ins.c: req = max(req, 6)
                    if prev.w & ins.w and prev.w != ins.c: req = max(req, 8)
                elif prev.w & (ins.r | ins.w): req = max(req, 8)
                if ins.k in VALU_KINDS and prev.c & ins.w: req = max(req, 3)
            if prev.k == "vstore" and prev.tag and len(prev.tag) >= 3 and prev.tag & ins.w: req = max(req, 2)
            if prev.k == "m0" and ins.k == "dma": req = max(req, 1)
            if prev.k == "vcmp" and ins.k == "needvcc": req = max(req, 2)
            if prev.k == "rfl" and ins.k in ("dma", "vload", "vstore"): req = max(req, 5)
            if prev.k == "rfl" and ins.k in VALU_KINDS: req = max(req, 2)
            need = max(need, req - dist)
            dist += states(prev)
            if dist >= 12: break
        return need
    for ins in seq:
        n = need_for(ins)
        if n > 0:
            nop = I(f"s_nop {n-1}", "other")
            out.append(nop); hist.append(nop)
        out.append(ins); hist.append(ins)
        if len(hist) > 64: hist = hist[-32:]
    return out

def m0set(t): return I(t, "m0")

def interleave(main, fillers):
    by = {}
    for pos, ins in fillers:
        by.setdefault(pos, []).append(ins)
    out = list(by.get(-1, []))
    for i, m in enumerate(main):
        out.append(m)
        out += by.get(i, [])
    for pos in sorted(by):
        if pos >= len(main): out += by[pos]
    return out

def spread(items, lo, hi):
    n = len(items)
    if n == 0: return []
    span = hi - lo + 1
    return [(lo + (i * span) // n, it) for i, it in enumerate(items)]

def emit(seq):
    return "\n".join((i.t if i.k == "label" else "    " + i.t) for i in seq)
```

```python
import sys, math, struct
from asmlib import *

NAME = "concat_heads__mha_block_cached__mha_block_cached__near_ridge"
WS_BYTES = 289406976
def f2u(x): return struct.unpack("<I", struct.pack("<f", x))[0]

KB0, VB0, WB0, XB, YB = 0, 32768, 65536, 98304, 131072
DROP = 0x30000
OOB = 0x40000000
SK, SV, SWQ, SWO, SX, SPART = 8, 12, 16, 20, 24, 32
sW, sQB, sCNT, sBND, sSCL, sKo, sVo, sWc, sT, sM0, sWm0, sRET = 36, 37, 38, 39, 40, 41, 42, 43, 44, 45, 46, 48
sPo, sCol, sPo1, sX16, sROT, sKn, sVn, sWn, sKs, sVs = 50, 51, 52, 53, 59, 28, 29, 30, 54, 55
sFm0 = 31
sKVm0 = 47
aW3 = 248
aX = 253
def Qf(s, qs): return 8 + (s * 2 + qs) * 4
def Oa(dt, qs): return 40 + (dt * 2 + qs) * 4
def Sr(n, kt, qs):
    if kt < 2: return 104 + (kt * 2 + qs) * 4
    return 120 + (n & 1) * 16 + ((kt - 2) * 2 + qs) * 4
def Pf(n, u, qs):
    if u == 0: return 152 + (n & 1) * 8 + qs * 4
    return 168 + qs * 4
def NM(qs): return 176 + qs * 4
def FR(f): return 184 + (f & 7) * 4
TMP = 216
vL, vLS, vTS = 232, 234, 236
aK, aV, aQ, aO, vLane = 238, 242, 250, 251, 252
def Bf(s, qs): return 8 + (s * 2 + qs) * 4
def Ac(mt, qs): return 136 + (mt * 2 + qs) * 4
HLD = 168
aW, aW2, vKo, vVo, vWq, vWo, aQw, vXo = 232, 236, 242, 243, 244, 245, 246, 247

BAR_IDX = 19

class Cfg:
    stamps = False
    kvflags = "nt"
    wflags = ""
    pflags = "sc1"
    xflags = ""
    woflags = ""
    rflags = ""
    outflags = ""
    force_fb = False
    mapping = 2
    rot = True
    codepf = True
    wopf = True
    prioA = 0
    pwflags = ""
    krot = True
    series = False
    prioM = 0
    ppace = 0
    nopm = False
    nodma = False
    noav = False
    barq = 19
    barp = 23
    locap = 2
    pf0 = 24
    fbar = 1
    fwait = 2
    fburst = 1
    prioP = 0
    nokv = False
    nowq = False
    nowo = False
    nops = False

def stamp(cfg, idx):
    if not cfg.stamps: return []
    return [S("s_memrealtime s[60:61]"), S("s_memtime s[94:95]"), raw("s_waitcnt lgkmcnt(0)", "lgkm0"),
            raw("v_mov_b32 v2, s60"), raw("v_mov_b32 v3, s61"), raw("v_mov_b32 v4, 0"),
            raw("v_mov_b32 v6, s94"), raw("v_mov_b32 v7, s95"),
            S("s_mov_b64 s[62:63], exec"), S("s_mov_b64 exec, 1"),
            raw(f"buffer_store_dwordx2 v[2:3], v4, s[64:67], s68 offen offset:{idx*8}"),
            raw(f"buffer_store_dwordx2 v[6:7], v4, s[64:67], s68 offen offset:{idx*8+64}"),
            S("s_mov_b64 exec, s[62:63]")]

def softmax_part(n, part):
    L = []
    for qs in range(2):
        for k in range(2):
            s = Sr(n, 2 * part + k, qs)
            e = [TMP + k * 4 + i for i in range(4)]
            for i in range(4): L.append(vexp(e[i], s + i))
            if k == 0:
                L.append(valu("v_add_f32", vTS + qs, e[0], e[1]))
            else:
                L.append(valu("v_add_f32", vTS + qs, vTS + qs, e[0]))
                L.append(valu("v_add_f32", vTS + qs, vTS + qs, e[1]))
            L.append(cvtpk(Pf(n, part, qs) + 2 * k, e[0], e[1]))
            L.append(valu("v_add_f32", vTS + qs, vTS + qs, e[2]))
            L.append(valu("v_add_f32", vTS + qs, vTS + qs, e[3]))
            L.append(cvtpk(Pf(n, part, qs) + 2 * k + 1, e[2], e[3]))
    return L

def l_update(n, part):
    t = n & 7
    if t == 0 and part == 0:
        return [valu("v_mov_b32", vL + qs, vTS + qs) for qs in range(2)]
    if t == 7 and part == 1:
        return [valu("v_add_f32", vLS + qs, vL + qs, vTS + qs) for qs in range(2)]
    return [valu("v_add_f32", vL + qs, vL + qs, vTS + qs) for qs in range(2)]

SITES = {}
def check_pre(n):
    if (n & 7) == 0: return []
    return [valu("v_max_f32", TMP + 8, vTS, vTS + 1), I(f"v_cmp_lt_f32 vcc, s{sBND}, v{TMP+8}", "valu", (), {TMP + 8})]
def check(n, part, sfx):
    t = n & 7
    if t == 0: return []
    name = f"{sfx}{t}_{part}"
    SITES[name] = (n & 1, part, t == 7)
    return [raw(f"s_cbranch_vccnz L_fb_{name}"), label(f"L_ret_{name}")]

def xgroup(op, x, t):
    return [valu("v_mov_b32", t, x), swap32(t, x), valu(op, x, x, t),
            valu("v_mov_b32", t, x), swap16(t, x), valu(op, x, x, t)]

def rowmax(dst, srcs):
    L = [valu("v_max3_f32", dst, srcs[0], srcs[1], srcs[2])]
    rest = srcs[3:]
    while len(rest) >= 2:
        L.append(valu("v_max3_f32", dst, dst, rest[0], rest[1])); rest = rest[2:]
    if rest: L.append(valu("v_max_f32", dst, dst, rest[0]))
    return L

def zipl(a, b):
    out = []
    for i in range(max(len(a), len(b))):
        if i < len(a): out.append(a[i])
        if i < len(b): out.append(b[i])
    return out

def first_tile_max(n):
    per = []
    for qs in range(2):
        m, t = TMP + 8 + qs, TMP + 10 + qs
        srcs = [Sr(n, kt, qs) + i for kt in range(4) for i in range(4)]
        L = rowmax(m, srcs) + xgroup("v_max_f32", m, t)
        L += [valu("v_sub_f32", s, s, m) for s in srcs[:8]]
        per.append(L)
    L = zipl(per[0], per[1])
    late = []
    for qs in range(2):
        m = TMP + 8 + qs
        late += [valu("v_sub_f32", NM(qs) + i, "0", m) for i in range(4)]
        late += [valu("v_sub_f32", s, s, m) for s in [Sr(n, kt, qs) + i for kt in (2, 3) for i in range(4)]]
    return L, late

def o_epilogue(cfg):
    per = []
    for qs in range(2):
        per.append(xgroup("v_add_f32", vLS + qs, TMP + 12 + qs) + [vrcp(vLS + qs, vLS + qs)])
    L = zipl(per[0], per[1])
    k = 0
    for s in range(4):
        for qs in range(2):
            q = TMP + 8 + (k & 1) * 4
            for h in range(2):
                o = Oa(2 * s + h, qs)
                for i in range(4): L.append(valu("v_mul_f32", o + i, o + i, vLS + qs))
                L.append(cvtpk(q + 2 * h, o, o + 1)); L.append(cvtpk(q + 2 * h + 1, o + 2, o + 3))
            L.append(ds_w128(aO, q, (s * 2 + qs) * 1024))
            k += 1
    return L

def k_read(n, f): return [ds_r128(FR(f), aK + (f & 3), KB0 + (n & 1) * 16384 + (f >> 2) * 4096)]
def v_read(n, f):
    dt, u = f >> 1, f & 1
    o = VB0 + (n & 1) * 16384 + u * 8192
    return [ds_tr(FR(f), aV + dt, o), ds_tr(FR(f) + 2, aV + dt, o + 4096)]

NT = 32
def units(i):
    if i.k == "label" or "vmcnt" in i.t: return 0
    return 2 if i.k == "trans" else 1

def schedule(main, ds, blocks, fixed, lo_cap=2):
    fill = []
    ds = list(ds)
    n = len(main)
    used = [0] * (n + 64)
    for p, L in fixed.items(): used[p] += sum(units(i) for i in L)
    for p in range(1, n):
        if main[p] is not None and main[p].tag: used[p - 1] += 1
    g = 0
    cnt = {}
    bars = sorted(p for p, L in fixed.items() if any(i.k == "lgkm0" for i in L))
    for e, ins in ds:
        g = max(g, e)
        while cnt.get(g, 0) >= (1 if (g & 1) == 0 else 2) and main[min(g, n - 1)] is not None: g += 1
        nb = [b for b in bars if b >= e]
        assert not nb or g <= nb[0] - 2, (e, g, ins.t)
        cnt[g] = cnt.get(g, 0) + 1
        used[g] += 1
        fill.append((g, 1, ins))
    def conflict(a, b):
        return bool(a.w & (b.r | b.w)) or bool(a.r & b.w) or (not a.w and not a.r) or (not b.w and not b.r) or (a.k == "dsw" and b.k == "dsw")
    def try_place(s, e, L, hi):
        u = list(used); rest = list(L); out = []
        last = None
        for p in range(s, e + 1):
            cap = lo_cap if (p & 1) == 0 else hi
            last = None
            while rest:
                pick = None
                for k in range(min(len(rest), 14)):
                    c = rest[k]
                    if u[p] + units(c) > cap: continue
                    if any(conflict(x, c) for x in rest[:k]): continue
                    if last is not None and last.k == "trans" and c.k != "trans" and last.w & c.r: continue
                    if last is not None and c.k == "perm" and last.w & c.r: continue
                    pick = k; break
                if pick is None: break
                c = rest.pop(pick); u[p] += units(c); out.append((p, 0, c)); last = c
        return (u, out) if not rest else None
    for (s, e, L) in blocks:
        hi = lo_cap
        while True:
            r = try_place(s, e, L, hi)
            if r: break
            hi += 1
        used, out = r
        fill += out
    pre = [(p, i) for (p, o, i) in fill]
    return pre

def a_stream(cfg):
    qrd = lambda: [ds_r128(Qf(s, qs), aQ, (s * 2 + qs) * 1024) for s in range(4) for qs in range(2)]
    pre = qrd()
    for f in range(8): pre += k_read(0, f)
    main, ds, blocks, fixed = [], [], [], {}
    BQ, BP = cfg.barq, cfg.barp
    for n in range(NT + 1):
        t = n & 7
        sfx = "T" if n >= NT else "L"
        real = n < NT
        b0 = 64 * n
        for kt in range(4):
            for qs in range(2):
                for s in range(4):
                    c = Sr(n, kt, qs) if s else (None if t == 0 else NM(qs))
                    dep = [FR(4 * kt + x) for x in range(4)] if (qs == 0 and s == 0) else ()
                    main.append(mfma(Sr(n, kt, qs), FR(4 * kt + s), Qf(s, qs), c, dep) if real else None)
        if real:
            for f in range(8, 16):
                ds += [(b0 + 4 + (f & 3) + 8 * ((f - 8) >> 2), i) for i in k_read(n, f)]
        if n >= 1:
            va = softmax_part(n - 1, 1) + check_pre(n - 1)
            if t == 1 and n > 8: va = va[:12] + zipl(o_epilogue(cfg), va[12:])
            blocks.append((b0, b0 + 30, va))
        if n == 0:
            fixed[b0 + 7] = [barrier()]
            fixed[b0 + 13] = [barrier()]
        fixed[b0 + BQ] = ([vmcnt(4)] if n == 1 else []) + [lgkm0(), barrier()]
        if n >= 1:
            for f in range(8):
                ds += [(b0 + max(BQ + 1, 20 + (f & 3) + 8 * (f >> 2)), i) for i in v_read(n - 1, f)]
            fixed[b0 + 31] = check(n - 1, 1, sfx) + l_update(n - 1, 1)
        realpv = n >= 1
        m = n - 1
        b1 = b0 + 32
        for dt in range(8):
            for (u, qs) in ((0, 0), (1, 0), (1, 1), (0, 1)):
                firstk = (u == 0 and qs == 0) or (u == 1 and qs == 1)
                c = None if ((m & 7) == 0 and firstk) else Oa(dt, qs)
                dep = [FR(2 * dt + 1)] if (u == 0 and qs == 0) else ()
                main.append(mfma(Oa(dt, qs), FR(2 * dt + u), Pf(m, u, qs), c, dep) if realpv else None)
        qq = qrd() if t == 7 else []
        if realpv:
            for p in range(4):
                ds += [(b1 + 2 + 4 * p, i) for i in v_read(m, 9 + 2 * p)] + [(b1 + 3 + 4 * p, i) for i in v_read(m, 8 + 2 * p)]
                ds += [(b1, i) for i in qq[2 * p:2 * p + 2]]
        if real:
            va = softmax_part(n, 0) + check_pre(n)
            if t == 0:
                early, late = first_tile_max(n)
                blocks.append((b1 + 2, b1 + 30, early + va + late))
            else:
                blocks.append((b1, b1 + 30, va))
        if n < NT:
            fixed[b1 + BP] = ([vmcnt(8 if n == 0 else 0)] if n < 2 else []) + [lgkm0(), barrier()]
        if n + 1 < NT:
            for f in range(8):
                ds += [(b1 + max(BP + 1, 19 + 4 * (f >> 1)), i) for i in k_read(n + 1, f)]
        if real:
            sf2 = "T" if n + 1 >= NT else "L"
            fixed[b1 + 31] = check(n, 0, sf2) + l_update(n, 0)
    fill = schedule(main, ds, blocks, fixed, cfg.locap)
    fill += [(p, i) for p, L in fixed.items() for i in L]
    seq = pre + [i for i in interleave(main, fill) if i is not None]
    seq += o_epilogue(cfg)
    seq += [lgkm0(), barrier()]
    if cfg.noav: seq = [i for i in seq if i.k not in ("valu", "trans", "perm") and "cbranch" not in i.t]
    return seq

def split_segments(seq):
    segs, cur = [], []
    for i in seq:
        cur.append(i)
        if i.k == "barrier":
            segs.append(cur); cur = []
    if cur: segs.append(cur)
    return segs

def fallback(par, part, last):
    n = par + 2
    L = [raw("s_nop 7"), raw("s_nop 3")]
    D, F, T = TMP + 8, TMP + 10, TMP + 12
    kts = range(4) if part == 0 else (2, 3)
    for qs in range(2):
        srcs = [Sr(n, kt, qs) + i for kt in kts for i in range(4)]
        d, f, t = D + qs, F + qs, T + qs
        L += rowmax(d, srcs) + xgroup("v_max_f32", d, t)
        L += [valu("v_max_f32", d, "0", d), valu("v_ceil_f32", d, d), valu("v_sub_f32", t, "0", d), vexp(f, t)]
        L += [valu("v_sub_f32", s, s, d) for s in srcs]
        L += [valu("v_sub_f32", NM(qs) + i, NM(qs) + i, d) for i in range(4)]
        L += [valu("v_mul_f32", vL + qs, vL + qs, f)]
        L += [valu("v_mul_f32", Oa(dt, qs) + i, Oa(dt, qs) + i, f) for dt in range(8) for i in range(4)]
        if part == 1:
            for i in range(4):
                p = Pf(n, 0, qs) + i
                L += [valu("v_lshlrev_b32", t, "16", p), valu("v_and_b32", p, "0xffff0000", p),
                      valu("v_mul_f32", t, t, f), valu("v_mul_f32", p, p, f), cvtpk(p, t, p)]
            if not last:
                L += [valu("v_sub_f32", s, s, d) for s in [Sr(n + 1, kt, qs) + i for kt in range(4) for i in range(4)]]
    L += softmax_part(n, part)
    L += [raw("s_nop 2"), raw(f"s_setpc_b64 s[{sRET}:{sRET+1}]")]
    return fix_hazards(L)

def q_pack(dst):
    L = []
    for mt in range(4):
        for qs in range(2):
            a = Ac(mt, qs); d = dst + (mt * 2 + qs) * 2
            for i in range(4): L.append(valu("v_mul_f32", a + i, f"s{sSCL}", a + i))
            L += [cvtpk(d, a, a + 1), cvtpk(d + 1, a + 2, a + 3)]
    return L
def q_store(src, hf):
    return [ds_w64(aQw, src + (mt * 2 + qs) * 2, hf * 4096 + (mt >> 1) * 2048 + qs * 1024 + (mt & 1) * 512)
            for mt in range(4) for qs in range(2)]

def wc_adv():
    return [S(f"s_add_u32 s{sWn}, s{sWn}, 1"), S(f"s_add_u32 s{sWc}, s{sWc}, 128"), S(f"s_and_b32 s{sWc}, s{sWc}, 0x3803ff"),
            S(f"s_cmp_ge_u32 s{sWn}, 8"), S(f"s_cselect_b32 s{sWc}, {OOB}, s{sWc}"), S(f"s_cselect_b32 s{sWm0}, {DROP}, s{sWm0}")]
def wq_dma(cfg, kc, ks):
    return [m0set(f"s_add_u32 m0, s{sWm0}, {(kc & 3)*8192 + ks*4096}"),
            S(f"s_add_u32 s{sT}, s{sWc}, {kc * (1 << 19) + ks * (1 << 18)}"), S(f"s_and_b32 s{sT}, s{sT}, 0x403fffff"),
            dma(vWq, SWQ, f"s{sT}", 0, cfg.wflags)]
def kv_pre(isK):
    n, o, s = (sKn, sKo, sKs) if isK else (sVn, sVo, sVs)
    return [S(f"s_cmp_lt_u32 s{n}, 30"), S(f"s_cselect_b32 s{s}, s{o}, {OOB}"), S(f"s_cselect_b32 s{sKVm0}, s{sM0}, {DROP}"),
            S(f"s_add_u32 s{n}, s{n}, 1"), S(f"s_add_u32 s{o}, s{o}, 16384"), S(f"s_and_b32 s{o}, s{o}, 0x7ffff")]
def kv_dma(cfg, isK, slot, jj):
    base = (KB0 if isK else VB0) + slot * 16384 + jj * 3072
    return [m0set(f"s_add_u32 m0, s{sKVm0}, {base}"),
            dma(vKo if isK else vVo, SK if isK else SV, f"s{sKs if isK else sVs}", jj * 1024, cfg.kvflags)]
def kv_issue(cfg, isK, slot):
    L = kv_pre(isK)
    for jj in range(4): L += kv_dma(cfg, isK, slot, jj)
    return L

PRO_REG = [YB, XB, VB0]
sKR = 58
def Ac2(mt, qs):
    k = mt * 2 + qs
    return HLD + 4 * k if k < 4 else TMP + 4 * (k - 4)

def qwait(q, tags):
    last = max(i for i, t in enumerate(q) if t in tags)
    return vmcnt(len(q) - 1 - last)

def a_prologue(cfg):
    seq, q = [], []
    def wq(kc):
        L = []
        for hf in range(2):
            for ks in range(2):
                L += [m0set(f"s_add_u32 m0, s{sM0}, {PRO_REG[kc % 3] + hf*8192 + ks*4096}"),
                      S(f"s_add_u32 s{sT}, s{sWc}, {kc * (1 << 19) + ks * (1 << 18) + hf * 128}"), S(f"s_and_b32 s{sT}, s{sT}, 0x3fffff"),
                      dma(vWq, SWQ, f"s{sT}", 0, cfg.pwflags)]
        q.extend([kc] * 4)
        return L
    def two(isK):
        L = []
        s = sKs if isK else sVs
        for slot in range(2):
            L.append(S(f"s_add_u32 s{s}, s{sCol}, {slot * 16384}"))
            for jj in range(4): L += kv_dma(cfg, isK, slot, jj)
        q.extend(["kv"] * 8)
        return L
    first = []
    for kc in range(3): first += wq(kc)
    seq.append(S(f"s_mov_b32 s{sKVm0}, s{sM0}"))
    for kc in range(8):
        seq += [qwait(q, {kc}), barrier()]
        if 1 <= kc <= 5: seq += wq(kc + 2)
        if kc == 5: seq += two(True)
        if kc == 6: seq += two(False)
    return first, seq

def x_dma(cfg, kc):
    L = [m0set(f"s_add_u32 m0, s{sX16}, {PRO_REG[kc % 3] + 16384}"),
         S(f"s_add_u32 s{sT}, s{sKR}, {kc * 128}"), S(f"s_and_b32 s{sT}, s{sT}, 1023")]
    for p in range(4):
        if p: L += [m0set("s_add_u32 m0, m0, 1024"), S(f"s_add_u32 s{sT}, s{sT}, 8192")]
        L.append(dma(vXo, SX, f"s{sT}", 0, cfg.xflags))
    return L

def p_prologue(cfg):
    seq = []
    q = [0] * 4 + [1] * 4 + [2] * 4
    def base_of(addr):
        return (0, 0) if addr < 65536 else ((1, WB0) if addr < YB else (2, YB))
    def rd(kc, f):
        hf, mt, ks = f >> 3, (f >> 1) & 3, f & 1
        addr = PRO_REG[kc % 3] + hf * 8192 + ks * 4096
        k, base = base_of(addr)
        a = (aW2, aW, aW3)[k]
        return [ds_tr(FR(f), a + mt, addr - base), ds_tr(FR(f) + 2, a + mt, addr - base + 512)]
    def xrd(kc):
        addr = PRO_REG[kc % 3] + 16384
        k, base = base_of(addr)
        return [ds_r128(Bf(2 * kc + ks, qs), aX + k, addr - base + qs * 2048 + ks * 64) for ks in range(2) for qs in range(2)]
    for kc in range(8):
        seq += [qwait(q, {kc} if kc < 7 else {"w0"}), lgkm0(), barrier()]
        if cfg.stamps and kc in (0, 2, 4, 7): seq += stamp(cfg, {0: 4, 2: 5, 4: 6, 7: 7}[kc])
        seq += xrd(kc)
        for f in range(6): seq += rd(kc, f)
        if 1 <= kc <= 5:
            seq += x_dma(cfg, kc + 2); q += [kc + 2] * 4
        if kc == 5:
            for c in range(4):
                for ks in range(2): seq += wq_dma(cfg, c, ks)
            q += ["w0"] * 2 + ["w"] * 6
        for f in range(6, 8): seq += rd(kc, f)
        main, fill = [], []
        for g in range(8):
            hf, mt = g >> 2, g & 3
            for (ks, qs) in ((0, 0), (1, 0), (1, 1), (0, 1)):
                firstk = (ks == 0 and qs == 0) or (ks == 1 and qs == 1)
                a = (Ac if hf else Ac2)(mt, qs)
                dep = [FR(2 * g + 1)] if (ks == 0 and qs == 0) else ()
                main.append(mfma(a, FR(2 * g + ks), Bf(2 * kc + ks, qs), None if (kc == 0 and firstk) else a, dep))
            if g < 4:
                r = rd(kc, 2 * g + 9) + rd(kc, 2 * g + 8)
                fill += [(4 * g + 2 + k, x) for k, x in enumerate(r)]
        if kc == 7:
            pk = []
            for mt in range(4):
                for qs in range(2):
                    a = Ac2(mt, qs); d = HLD + (mt * 2 + qs) * 2
                    for i in range(4): pk.append(valu("v_mul_f32", a + i, f"s{sSCL}", a + i))
                    pk += [cvtpk(d, a, a + 1), cvtpk(d + 1, a + 2, a + 3)]
            fill += spread(pk + q_store(HLD, 0), 18, 31)
        seq += interleave(main, fill)
    for f in range(8): seq += ring_read(0, f)
    seq += q_pack(TMP) + q_store(TMP, 1) + [vmcnt(0), lgkm0(), barrier()]
    return seq

def ring_read(kc, f):
    mt, ks = f >> 1, f & 1
    o = (kc & 3) * 8192 + ks * 4096
    return [ds_tr(FR(f), aW + mt, o), ds_tr(FR(f) + 2, aW + mt, o + 512)]

def p_phase(cfg, ph):
    isK = (ph & 1) == 1
    slot = [1, 1, 0, 0, 1, 1, 0, 0][ph]
    main, fill = [], []
    for mt in range(4):
        for (ks, qs) in ((0, 0), (1, 0), (1, 1), (0, 1)):
            firstk = (ks == 0 and qs == 0) or (ks == 1 and qs == 1)
            c = None if (ph == 0 and firstk) else Ac(mt, qs)
            main.append(mfma(Ac(mt, qs), FR(2 * mt + ks), Bf(2 * ph + ks, qs), c))
        fill += [(4 * mt + 2, x) for x in ring_read(ph + 1, 2 * mt + 1)] + [(4 * mt + 3, x) for x in ring_read(ph + 1, 2 * mt)]
    kv = kv_issue(cfg, isK, slot)
    head, rest = kv[:8], kv[8:]
    d = []
    if ph == 4: d += wc_adv()
    for ks in range(2): d += wq_dma(cfg, (ph + 4) & 7, ks)
    fill = [(-1, x) for x in head] + [(k // 2, x) for k, x in enumerate(rest)] + spread(d, 4, 9) + fill
    if cfg.ppace: fill += [(k, raw(f"s_nop {cfg.ppace - 1}")) for k in range(15)]
    seq = interleave(main, fill) + [vmcnt(12), lgkm0(), barrier()]
    if cfg.nopm: seq = [i for i in seq if i.k not in ("mfma", "dsr")]
    if cfg.nodma: seq = [i for i in seq if i.k not in ("dma",)]
    return seq

def wo_dma(cfg, slot, c, ks, m0reg):
    lds = (XB + slot * 16384 if slot < 4 else (slot - 4) * 16384) + ks * 4096
    return [m0set(f"s_add_u32 m0, s{m0reg}, {lds}"),
            S(f"s_add_u32 s{sT}, s{sCol}, {c * 131072 + ks * 32768}"), S(f"s_and_b32 s{sT}, s{sT}, 0x4007ffff"),
            dma(vWo, SWO, f"s{sT}", 0, cfg.woflags)]

def b_load(pos):
    return [ds_r128(Bf(4 * pos + (fr >> 1), fr & 1), aQw, fr * 1024) for fr in range(8)]

def p_round3(cfg):
    seq = []
    q = [("old", 0)] * 12
    def setbase(base):
        return [S(f"s_lshl_b32 s{sT}, s{sQB}, 13"), S(f"s_add_u32 s{sT}, s{sT}, {base}"), valu("v_add_u32", aQw, f"s{sT}", vLane)]
    phases = []
    for n in range(23, 33):
        phases.append(("E", n))
        if n < 32: phases.append(("O", n))
    for pi, (kind, n) in enumerate(phases):
        tag = ("kv", pi)
        if kind == "E" and n <= 31: seq += kv_issue(cfg, False, n & 1); q += [tag] * 4
        if kind == "O" and n + 2 <= 31: seq += kv_issue(cfg, True, n & 1); q += [tag] * 4
        if (kind, n) == ("E", 23):
            seq += [valu("v_add_u32", aQw, f"{WB0 - YB}", aQw)]
            seq += q_pack(TMP) + q_store(HLD, 0) + q_store(TMP, 1)
        if (kind, n) == ("O", 23):
            seq += setbase(XB) + b_load(0) + setbase(YB) + b_load(1)
        if kind == "E" and 24 <= n <= 27:
            c = n - 24
            for ks in range(4): seq += wo_dma(cfg, c, c, ks, sM0)
            q += [("wo", c)] * 4
        if kind == "O" and cfg.wopf and cfg.pf0 <= n <= cfg.pf0 + 3:
            for i in range(2):
                seq += [S(f"s_add_u32 s{sT}, s56, {((n - cfg.pf0) * 2 + i) * 4096}"), bload(FR(i), vXo, SWO, f"s{sT}", 0, cfg.woflags)]
            q += [("pf", n)] * 2
        if (kind, n) == ("E", 26):
            seq += setbase(WB0) + b_load(2)
        need = [i for i, t in enumerate(q) if (t[0] == "kv" and t[1] <= pi - 2) or (t[0] == "old" and (pi >= 1 or i < 6))]
        seq.append(vmcnt(len(q) - 1 - max(need)))
        seq += [lgkm0(), barrier()]
    seq += [vmcnt(0), barrier()]
    seq += b_load(3)
    return seq

def w_read(slot, f):
    mt, ks = f >> 2, f & 3
    o = (slot & 3) * 16384 + ks * 4096
    a = (aW if slot < 4 else aW2) + mt
    return [ds_tr(FR(f), a, o), ds_tr(FR(f) + 2, a, o + 512)]

def stage(sl, pair, qs):
    return (TMP if (sl & 1) == 0 else HLD) + (pair * 2 + qs) * 4
def part_pack(sl, pair):
    L = []
    for qs in range(2):
        t = stage(sl, pair, qs)
        for h in range(2):
            a = Ac(2 * pair + h, qs)
            L += [cvtpk(t + 2 * h, a, a + 1), cvtpk(t + 2 * h + 1, a + 2, a + 3)]
    return L
def part_store(cfg, sl):
    L = [bstore(stage(sl, pair, qs), vLane, SPART, f"s{sPo1}", (qs * 2 + pair) * 1024, cfg.pflags) for pair in range(2) for qs in range(2)]
    return L + [S(f"s_mov_b32 s{sPo1}, s{sPo}"), S(f"s_add_u32 s{sPo}, s{sPo}, 131072")]

def p_final_stream(cfg, nblk):
    main, fill = [], []
    pre = []
    for f in range(8): pre += w_read(0, f)
    for i in range(nblk):
        c = i & 3; slot = i & 7; sl = i >> 2
        b0 = 32 * i
        for mt in range(4):
            for qs in range(2):
                for ks in range(4):
                    cc = None if (c == 0 and ks == 0) else Ac(mt, qs)
                    dep = [FR(4 * mt + ks + 1)] if (qs == 0 and ks in (0, 2)) else ()
                    if cfg.fwait == 1: dep = [FR(4 * mt + x) for x in range(4)] if (qs == 0 and ks == 0) else ()
                    main.append(mfma(Ac(mt, qs), FR(4 * mt + ks), Bf(4 * c + ks, qs), cc, dep))
        if i % cfg.fbar == 0: fill.append((b0 + 3, barrier()))
        for mt in range(4):
            sl2, mt2 = (slot, mt + 2) if mt < 2 else ((i + 1) & 7, mt - 2)
            rd = []
            for ks in range(4): rd += w_read(sl2, 4 * mt2 + ks)
            for k, x in enumerate(rd): fill.append((b0 + 8 * mt + 4 + k, x))
        if c == 0:
            fill += [(b0 + p, x) for p, x in spread(part_pack(sl - 1, 1), 4, 13)]
            if cfg.fburst == 1:
                fill += [(b0 + p, x) for p, x in spread(part_store(cfg, sl - 1), 15, 20)]
            elif (sl & 1) == 0:
                fill += [(b0 + p, x) for p, x in spread(part_store(cfg, sl - 2) + part_store(cfg, sl - 1), 15, 26)]
        if c == 3:
            fill += [(b0 + p, x) for p, x in spread(part_pack(sl, 0), 20, 31)]
    seq = pre + interleave(main, fill)
    sl = nblk // 4
    seq += part_pack(sl - 1, 1)
    if cfg.fburst == 2: seq += part_store(cfg, sl - 2)
    seq += part_store(cfg, sl - 1)
    return seq

def a_final_iter(cfg):
    seq = []
    fb = cfg.fbar
    for i in range(0, 8, fb):
        seq += [vmcnt(4 * (7 - 2 * fb)), barrier()]
        for k in range(i + 8 - fb, i + 8):
            k &= 7
            for ks in range(4): seq += wo_dma(cfg, k, k & 3, ks, sFm0)
            if (k & 3) == 3: seq.append(S(f"s_add_u32 s{sCol}, s{sCol}, 128"))
        if i == 0: seq += [S(f"s_cmp_eq_u32 s{sCNT}, 3"), S(f"s_cselect_b32 s{sCol}, {OOB}, s{sCol}")]
    return seq

def fin(seq): return fix_hazards(insert_lgkm(seq))

def header():
    ref = open("cdna_kernels/" + NAME + ".s.ref").read().splitlines()
    return [l for l in ref if l.startswith(";") and "@launch" not in l and "Override" not in l and "grid=ceil" not in l]

def srd(dst, lo, hi, nbytes):
    return [f"s_mov_b32 s{dst}, s{lo}", f"s_mov_b32 s{dst+1}, s{hi}", f"s_mov_b32 s{dst+2}, {nbytes}", f"s_mov_b32 s{dst+3}, 0x20000"]
def srd_off(dst, lo, hi, off, nbytes):
    return [f"s_add_u32 s{dst}, s{lo}, {off}", f"s_addc_u32 s{dst+1}, s{hi}, 0", f"s_mov_b32 s{dst+2}, {nbytes}", f"s_mov_b32 s{dst+3}, 0x20000"]

def main_kernel(cfg):
    T = []
    A = lambda *a: T.extend("    " + x for x in a)
    ST = lambda i: T.append(emit(stamp(cfg, i))) if cfg.stamps else None
    T += [".globl attn_main_kernel", ".p2align 8", ".type attn_main_kernel,@function", "attn_main_kernel:"]
    A("s_cmp_ge_u32 s2, 256", "s_cbranch_scc1 L_end")
    A("s_load_dwordx8 s[72:79], s[0:1], 0", "s_load_dwordx8 s[80:87], s[0:1], 32", "s_load_dwordx4 s[88:91], s[0:1], 64",
      "s_load_dwordx2 s[92:93], s[0:1], 96")
    if cfg.mapping == 0:
        A("s_and_b32 s3, s2, 7", "s_lshr_b32 s4, s2, 3", "s_lshl_b32 s5, s3, 2", "s_lshr_b32 s6, s4, 3", "s_add_u32 s5, s5, s6",
          "s_and_b32 s6, s4, 7", f"s_and_b32 s{sROT}, s3, 3")
    elif cfg.mapping == 1:
        A("s_and_b32 s6, s2, 7", "s_lshr_b32 s5, s2, 3", f"s_and_b32 s{sROT}, s5, 3")
    elif cfg.mapping == 2:
        A("s_and_b32 s3, s2, 7", "s_lshr_b32 s4, s2, 3",
          "s_and_b32 s5, s4, 15", "s_and_b32 s6, s3, 4", "s_lshl_b32 s6, s6, 2", "s_add_u32 s5, s5, s6",
          "s_and_b32 s6, s3, 3", "s_lshl_b32 s6, s6, 1", "s_lshr_b32 s4, s4, 4", "s_add_u32 s6, s6, s4",
          f"s_and_b32 s{sROT}, s5, 3")
    if not cfg.rot: A(f"s_mov_b32 s{sROT}, 0")
    A("s_and_b32 s7, s5, 15")
    A("v_lshrrev_b32 v1, 6, v0", "v_and_b32 v0, 63, v0", f"v_readfirstlane_b32 s{sW}, v1")
    A(f"v_lshlrev_b32 v{vLane}, 4, v0")
    A("s_waitcnt lgkmcnt(0)")
    A("s_cmp_ge_u32 s5, 16")
    for k in range(5):
        A(f"s_cselect_b32 s{72+2*k}, s{82+2*k}, s{72+2*k}", f"s_cselect_b32 s{73+2*k}, s{83+2*k}, s{73+2*k}")
    A("s_lshl_b32 s56, s7, 22", "s_lshl_b32 s57, s6, 19", "s_add_u32 s56, s56, s57")
    A(*srd_off(SK, 74, 75, "s56", 524288)); A(*srd_off(SV, 76, 77, "s56", 524288))
    A("s_lshl_b32 s56, s6, 10")
    A(*srd_off(SWQ, 78, 79, "s56", 0), f"s_sub_u32 s{SWQ+2}, 0x400000, s56")
    A(*srd_off(SWO, 80, 81, "s57", 524288))
    A("s_lshl_b32 s56, s7, 17"); A(*srd_off(SX, 72, 73, "s56", 131072))
    A("s_lshl_b32 s56, s5, 21", "s_add_u32 s56, s56, 0x100000"); A(*srd_off(SPART, 92, 93, "s56", 1 << 20))
    if cfg.nokv: A(f"s_mov_b32 s{SK+2}, 0", f"s_mov_b32 s{SV+2}, 0")
    if cfg.nowq: A(f"s_mov_b32 s{SWQ+2}, 0")
    if cfg.nowo: A(f"s_mov_b32 s{SWO+2}, 0")
    if cfg.nops: A(f"s_mov_b32 s{SPART+2}, 0")
    if cfg.stamps:
        A(*srd_off(64, 92, 93, WS_BYTES - (1 << 20), 1 << 20))
        A(f"s_lshr_b32 s68, s{sW}, 2", "s_lshl_b32 s68, s68, 7", "s_lshl_b32 s69, s2, 8", "s_add_u32 s68, s68, s69",
          f"s_and_b32 s69, s{sW}, 3", "s_cmp_lg_u32 s69, 0", f"s_cselect_b32 s68, {OOB}, s68")
    A(f"s_and_b32 s{sQB}, s{sW}, 3", f"s_lshl_b32 s{sM0}, s{sQB}, 10")
    A(f"s_lshl_b32 s{sCol}, s{sROT}, 17")
    ST(0)
    A("v_and_b32 v1, 15, v0", "v_lshrrev_b32 v2, 4, v0", "v_lshrrev_b32 v3, 2, v1", "v_and_b32 v4, 3, v0")
    def lc16():
        A("v_lshrrev_b32 v5, 3, v0", "v_bfe_u32 v6, v0, 4, 1", f"s_and_b32 s{sT}, s{sQB}, 1", f"s_lshl_b32 s{sT}, s{sT}, 1",
          f"v_or_b32 v6, s{sT}, v6", "v_lshlrev_b32 v6, 1, v6", "v_and_b32 v7, 7, v0", "v_xor_b32 v6, v6, v7", "v_lshlrev_b32 v6, 4, v6")
    def wo_voff():
        lc16()
        A("v_and_b32 v7, 3, v5", "v_lshrrev_b32 v5, 2, v5", "v_lshl_add_u32 v7, v5, 4, v7",
          f"s_lshl_b32 s{sT}, s{sQB}, 2", f"v_add_u32 v7, s{sT}, v7", f"v_lshl_add_u32 v{vWo}, v7, 10, v6")
    def kv_voff():
        A(f"s_lshl_b32 s{sT}, s{sQB}, 2", f"v_add_u32 v5, s{sT}, v2",
          "v_xor_b32 v6, v5, v1", "v_lshlrev_b32 v6, 4, v6",
          f"s_lshl_b32 s{sT}, s{sQB}, 4", f"v_add_u32 v7, s{sT}, v2", "v_lshlrev_b32 v7, 8, v7",
          f"v_add_u32 v{vKo}, v7, v6",
          "v_and_b32 v5, 7, v5", "v_lshlrev_b32 v5, 1, v5", "v_xor_b32 v6, v5, v1", "v_lshlrev_b32 v6, 4, v6", f"v_add_u32 v{vVo}, v7, v6")
    def wq_voff():
        lc16()
        A(f"s_lshl_b32 s{sT}, s{sQB}, 3", f"v_add_u32 v7, s{sT}, v5", f"v_lshl_add_u32 v{vWq}, v7, 13, v6")
    A(f"s_lshl_b32 s{sWc}, s{sROT}, 8")
    if cfg.krot:
        A("s_lshr_b32 s56, s7, 2", "s_lshl_b32 s56, s56, 1", "s_lshl_b32 s57, s6, 2", "s_add_u32 s56, s56, s57",
          "s_bfe_u32 s57, s6, 0x10001", "s_add_u32 s56, s56, s57", "s_and_b32 s56, s56, 7")
    else:
        A("s_mov_b32 s56, 0")
    A(f"s_lshl_b32 s{sKR}, s56, 7", "s_lshl_b32 s56, s56, 19", f"s_add_u32 s{sWc}, s{sWc}, s56")
    A(f"s_cmp_ge_u32 s{sW}, 4", "s_cbranch_scc1 L_P")
    wq_voff()
    first, rest = a_prologue(cfg)
    if cfg.codepf:
        A(f"s_cmp_ge_u32 s{sW}, 2", "s_cbranch_scc1 L_nopf")
        A("s_getpc_b64 s[70:71]")
        T.append("L_pc:")
        A("s_lshr_b32 s56, s2, 3", "s_lshl_b32 s56, s56, 11", f"s_add_u32 s56, s56, s{sM0}",
          "s_min_u32 s56, s56, L_end-L_pc-1024", f"v_add_u32 v5, s56, v{vLane}",
          "global_load_dwordx4 v[8:11], v5, s[70:71]")
        T.append("L_nopf:")
    T.append(emit(fin(first)))
    kv_voff()
    T.append(emit(fin(rest)))
    if cfg.prioA: A(f"s_setprio {cfg.prioA}")
    A(f"s_mov_b32 s{sBND}, 0x{f2u(1e-30 if cfg.force_fb else float(1 << 20)):x}")
    for s in range(4):
        A(f"v_add_u32 v5, {4*s}, v2", "v_xor_b32 v5, v5, v1", "v_lshlrev_b32 v5, 4, v5", f"v_lshl_add_u32 v{aK+s}, v1, 8, v5")
    A("v_and_b32 v5, 1, v2", "v_lshl_add_u32 v5, v5, 2, v3",
      "v_lshl_add_u32 v6, v2, 2, v3", "v_lshlrev_b32 v6, 8, v6", "v_lshl_add_u32 v6, v4, 3, v6")
    for dt in range(8):
        A(f"v_xor_b32 v7, {dt}, v5", f"v_lshl_add_u32 v{aV+dt}, v7, 5, v6")
    A(f"s_lshl_b32 s57, s{sQB}, 13", f"s_add_u32 s{sT}, s57, {YB}", f"v_add_u32 v{aQ}, s{sT}, v{vLane}")
    A("s_waitcnt vmcnt(12)", "s_barrier")
    segs = split_segments(fin(a_stream(cfg)))
    txt = [emit(s) for s in segs]
    E = lambda n: 2 + 2 * n
    for k in range(E(2), E(32) - 16):
        assert txt[k] == txt[k + 16], k
    ST(1)
    T += txt[:E(2)]
    A(f"s_mov_b32 s{sCNT}, 0")
    T.append("L_Aloop:")
    A(f"s_cmp_lt_u32 s{sCNT}, 2", f"s_cselect_b32 s{sT}, 2, 1", f"s_lshl_b32 s{sT}, s{sT}, 16", f"s_add_u32 s{sT}, s{sT}, s57", f"v_add_u32 v{aQ}, s{sT}, v{vLane}",
      f"v_mov_b32 v{aO}, v{aQ}", f"s_cmp_eq_u32 s{sCNT}, 0", "s_cbranch_scc0 L_Ao",
      f"v_add_u32 v{aO}, {XB - YB}, v{aO}")
    T.append("L_Ao:")
    if cfg.series:
        T.append(emit(stamp(cfg, 0))); A("s_add_u32 s68, s68, 8")
        T += txt[E(2):E(6)]
        T.append(emit(stamp(cfg, 0))); A("s_add_u32 s68, s68, 8")
        T += txt[E(6):E(8)]
    else:
        T += txt[E(2):E(8)]
    A(f"s_cmp_eq_u32 s{sCNT}, 3", "s_cbranch_scc1 L_Atail")
    T += txt[E(8):E(10)]
    A(f"s_add_u32 s{sCNT}, s{sCNT}, 1", "s_branch L_Aloop")
    T.append("L_Atail:")
    if cfg.series: A(f"s_mov_b32 s68, {OOB}")
    T += txt[E(32):]
    ST(2)
    wo_voff()
    A(f"s_mov_b32 s{sFm0}, s{sM0}", f"s_add_u32 s{sCol}, s{sCol}, 128")
    d = []
    for i in range(4, 8 - cfg.fbar):
        for ks in range(4): d += wo_dma(cfg, i, i & 3, ks, sFm0)
    T.append(emit(fin(d)))
    A(f"s_mov_b32 s{sCNT}, 0")
    T.append("L_Afin:")
    T.append(emit(fin(a_final_iter(cfg))))
    A(f"s_add_u32 s{sCNT}, s{sCNT}, 1", f"s_cmp_lt_u32 s{sCNT}, 4", "s_cbranch_scc1 L_Afin")
    ST(3)
    A("s_endpgm")
    T.append("L_P:")
    A("v_lshrrev_b32 v5, 3, v0", "v_and_b32 v6, 7, v0", "v_xor_b32 v6, v6, v2", "v_lshlrev_b32 v6, 4, v6",
      f"s_lshl_b32 s{sT}, s{sQB}, 5", f"v_add_u32 v5, s{sT}, v5", f"v_lshl_add_u32 v{vXo}, v5, 10, v6")
    A(f"s_lshl_b32 s{sX16}, s{sQB}, 12")
    d = []
    for kc in range(3): d += x_dma(cfg, kc)
    T.append(emit(fin(d)))
    A("v_bfe_u32 v5, v1, 1, 2", "v_xor_b32 v5, v5, v2", "v_lshlrev_b32 v5, 4, v5", "v_lshl_add_u32 v5, v1, 7, v5",
      f"v_add_u32 v{aX}, s{sX16}, v5", f"v_add_u32 v{aX+1}, {WB0}, v{aX}", f"v_add_u32 v{aX+2}, {YB}, v{aX}")
    wq_voff()
    A(f"s_add_u32 s{sWc}, s{sWc}, 256", f"s_and_b32 s{sWc}, s{sWc}, 0x3803ff", f"s_add_u32 s{sWm0}, s{sM0}, {WB0}", f"s_mov_b32 s{sWn}, 2")
    A("v_lshrrev_b32 v5, 1, v3", "v_and_b32 v6, 1, v2", "v_lshl_add_u32 v5, v6, 1, v5",
      "v_lshl_add_u32 v6, v2, 3, v3", "v_lshlrev_b32 v6, 7, v6", "v_lshl_add_u32 v6, v4, 3, v6")
    for mt in range(4):
        A(f"v_xor_b32 v7, {mt}, v5", f"v_lshl_add_u32 v{aW2+mt}, v7, 5, v6", f"v_add_u32 v{aW+mt}, {WB0}, v{aW2+mt}",
          f"v_add_u32 v{aW3+mt}, {YB}, v{aW2+mt}")
    kv_voff()
    A("v_lshrrev_b32 v5, 1, v2", "v_lshlrev_b32 v5, 8, v5", "v_lshl_add_u32 v5, v1, 4, v5", "v_and_b32 v6, 1, v2", "v_lshl_add_u32 v5, v6, 3, v5",
      f"s_lshl_b32 s{sT}, s{sQB}, 13", f"s_add_u32 s{sT}, s{sT}, {YB}", f"v_add_u32 v{aQw}, s{sT}, v5")
    wo_voff()
    A(f"s_mov_b32 s{sSCL}, 0x{f2u(math.log2(math.e) / math.sqrt(128.0)):x}")
    A(f"s_mov_b32 s{sKn}, -1", f"s_mov_b32 s{sVn}, -3",
      f"s_add_u32 s{sKo}, s{sCol}, 16384",
      f"s_sub_u32 s{sVo}, s{sCol}, 16384", f"s_and_b32 s{sVo}, s{sVo}, 0x7ffff")
    A(f"s_mov_b32 s{sCNT}, 2")
    T.append(emit(fin(p_prologue(cfg))))
    ST(1)
    if cfg.prioM: A(f"s_setprio {cfg.prioM}")
    A("s_branch L_Pgo")
    T.append("L_Ploop:")
    A(f"s_bitcmp1_b32 s{sCNT}, 0", "s_cbranch_scc0 L_Pwr")
    T.append(emit(fin([raw("s_nop 7")] + q_pack(HLD))))
    A("s_branch L_Pgo")
    T.append("L_Pwr:")
    T.append(emit(fin([raw("s_nop 7")] + q_pack(TMP) + q_store(HLD, 0) + q_store(TMP, 1) + [lgkm0()])))
    T.append("L_Pgo:")
    body = []
    for ph in range(8): body += p_phase(cfg, ph)
    T.append(emit(fin(body)))
    A(f"s_add_u32 s{sCNT}, s{sCNT}, 1", f"s_cmp_lt_u32 s{sCNT}, 8", "s_cbranch_scc1 L_Ploop")
    A("s_lshl_b32 s56, s7, 15", f"v_add_u32 v{vXo}, s{sM0}, v{vLane}")
    for mt in range(4): A(f"v_add_u32 v{aW+mt}, {XB}, v{aW2+mt}")
    A("s_lshl_b32 s58, s6, 14", f"s_lshl_b32 s{sPo}, s{sQB}, 12", f"s_add_u32 s{sPo}, s{sPo}, s58", f"s_mov_b32 s{sPo1}, {OOB}")
    if cfg.fburst == 2:
        A(f"s_sub_u32 s{SPART}, s{SPART}, 131072", f"s_subb_u32 s{SPART+1}, s{SPART+1}, 0", f"s_add_u32 s{SPART+2}, s{SPART+2}, 131072")
    if cfg.prioP: A(f"s_setprio {cfg.prioP}")
    fs = fin([raw("s_nop 7")] + p_round3(cfg) + (stamp(cfg, 2)) + p_final_stream(cfg, 32))
    segs = split_segments(fs)
    nr3 = 19 + 1
    txt = [emit(s) for s in segs]
    per, tot = 8 // cfg.fbar, 32 // cfg.fbar
    for k in range(nr3 + 1, nr3 + tot - per):
        assert txt[k] == txt[k + per], k
    T += txt[:nr3 + 1]
    A(f"s_mov_b32 s{sCNT}, 0")
    T.append("L_Pfin:")
    T += txt[nr3 + 1:nr3 + per]
    A(f"s_cmp_eq_u32 s{sCNT}, 3", "s_cbranch_scc1 L_Pend")
    T.append(txt[nr3 + per])
    A(f"s_add_u32 s{sCNT}, s{sCNT}, 1", "s_branch L_Pfin")
    T.append("L_Pend:")
    T.append(txt[nr3 + tot])
    if cfg.stamps:
        A("s_waitcnt vmcnt(0)")
        ST(3)
    A("s_endpgm")
    variants = {}
    for name, key in SITES.items():
        variants.setdefault(key, f"L_fbr_{key[0]}_{key[1]}_{int(key[2])}")
        T.append(f"L_fb_{name}:")
        A(f"s_call_b64 s[{sRET}:{sRET+1}], {variants[key]}", f"s_branch L_ret_{name}")
    for key, lab in variants.items():
        T.append(f"{lab}:")
        T.append(emit(fallback(*key)))
    T.append("L_end:")
    A("s_endpgm")
    return T

def reduce_kernel(cfg):
    T = []
    A = lambda *a: T.extend("    " + x for x in a)
    T += [".globl attn_reduce_kernel", ".p2align 8", ".type attn_reduce_kernel,@function", "attn_reduce_kernel:"]
    A("s_cmp_ge_u32 s2, 256", "s_cbranch_scc1 L_rend")
    if cfg.stamps: A("s_memrealtime s[40:41]")
    A("s_load_dwordx2 s[4:5], s[0:1], 80", "s_load_dwordx2 s[6:7], s[0:1], 96")
    A("s_lshr_b32 s18, s2, 3", "s_and_b32 s19, s2, 7")
    A("s_lshl_b32 s20, s18, 21", "s_lshl_b32 s21, s19, 17", "s_add_u32 s20, s20, s21", "s_add_u32 s20, s20, 0x100000")
    A("v_lshrrev_b32 v1, 6, v0", "v_and_b32 v2, 63, v0", "v_lshlrev_b32 v3, 4, v2", "v_lshl_add_u32 v3, v1, 11, v3")
    A("s_waitcnt lgkmcnt(0)")
    A(*srd_off(8, 6, 7, "s20", 131072))
    for src in range(8):
        A(f"s_mov_b32 s22, {src*16384}")
        for pair in range(2):
            b = 16 + (src * 2 + pair) * 4
            A(f"buffer_load_dwordx4 v[{b}:{b+3}], v3, s[8:11], s22 offen offset:{pair*1024} {cfg.rflags}")
    A(*srd(12, 4, 5, 1 << 22))
    A("s_and_b32 s23, s18, 15", "s_lshl_b32 s23, s23, 18", "s_lshr_b32 s24, s18, 4", "s_lshl_b32 s24, s24, 10", "s_add_u32 s23, s23, s24",
      "s_lshl_b32 s24, s19, 7", "s_add_u32 s23, s23, s24")
    A("v_and_b32 v4, 15, v2", "v_lshl_add_u32 v4, v1, 4, v4", "v_lshlrev_b32 v4, 11, v4",
      "v_bfe_u32 v5, v2, 4, 1", "v_lshl_add_u32 v4, v5, 5, v4", "v_lshrrev_b32 v5, 5, v2", "v_lshl_add_u32 v4, v5, 4, v4")
    acc = 80
    for src in range(8):
        A(f"s_waitcnt vmcnt({(7-src)*2})")
        for pair in range(2):
            b = 16 + (src * 2 + pair) * 4
            for i in range(4):
                lo, hi = acc + pair * 8 + 2 * i, acc + pair * 8 + 2 * i + 1
                if src == 0:
                    A(f"v_lshlrev_b32 v{lo}, 16, v{b+i}", f"v_and_b32 v{hi}, 0xffff0000, v{b+i}")
                else:
                    A(f"v_lshlrev_b32 v6, 16, v{b+i}", f"v_and_b32 v7, 0xffff0000, v{b+i}", f"v_add_f32 v{lo}, v{lo}, v6", f"v_add_f32 v{hi}, v{hi}, v7")
    for pair in range(2):
        a = acc + pair * 8
        for i in range(4): A(f"v_cvt_pk_bf16_f32 v{16+pair*4+i}, v{a+2*i}, v{a+2*i+1}")
    A("s_nop 1")
    for pair in range(2):
        d = 16 + pair * 4
        A(f"v_permlane16_swap_b32 v{d}, v{d+2}", f"v_permlane16_swap_b32 v{d+1}, v{d+3}")
        A(f"buffer_store_dwordx4 v[{d}:{d+3}], v4, s[12:15], s23 offen offset:{pair*64} {cfg.outflags}")
    if cfg.stamps:
        A("s_waitcnt vmcnt(0)", "s_memrealtime s[42:43]", "s_waitcnt lgkmcnt(0)")
        A(*srd_off(8, 6, 7, WS_BYTES - (1 << 20), 1 << 20))
        A("s_lshl_b32 s22, s2, 8", "v_mov_b32 v4, s40", "v_mov_b32 v5, s41", "v_mov_b32 v6, s42", "v_mov_b32 v7, s43",
          "v_cmp_eq_u32 vcc, 0, v0", "s_and_saveexec_b64 s[34:35], vcc", "s_cbranch_execz L_rend",
          "buffer_store_dwordx4 v[4:7], v0, s[8:11], s22 offen offset:32")
    T.append("L_rend:")
    A("s_endpgm")
    return T

def kd(name, vgpr, sgpr):
    return [".p2align 6", f".amdhsa_kernel {name}", f"  .amdhsa_next_free_vgpr {vgpr}", f"  .amdhsa_next_free_sgpr {sgpr}",
            f"  .amdhsa_accum_offset {(vgpr+3)//4*4}", "  .amdhsa_group_segment_fixed_size 0", "  .amdhsa_kernarg_size 104",
            "  .amdhsa_user_sgpr_count 2", "  .amdhsa_user_sgpr_kernarg_segment_ptr 1", "  .amdhsa_system_sgpr_workgroup_id_x 1",
            ".end_amdhsa_kernel"]

def generate(cfg, path):
    SITES.clear()
    T = header()
    T += ["; @launch kernel=attn_main_kernel grid=(256,1,1) block=(512,1,1) lds=163840",
          "; @launch kernel=attn_reduce_kernel grid=(256,1,1) block=(512,1,1) lds=0"]
    T += ['.amdgcn_target "amdgcn-amd-amdhsa--gfx950"', ".text"]
    T += main_kernel(cfg)
    T += reduce_kernel(cfg)
    T += ['.section .rodata,"a"'] + kd("attn_main_kernel", 256, 96) + kd("attn_reduce_kernel", 96, 48)
    open(path, "w").write("\n".join(T) + "\n")

if __name__ == "__main__":
    cfg = Cfg()
    out = "k.s"
    for a in sys.argv[1:]:
        if "=" in a:
            k, v = a.split("=", 1)
            cur = getattr(cfg, k)
            setattr(cfg, k, (v not in ("0", "False")) if isinstance(cur, bool) else type(cur)(v))
        else:
            out = a
    generate(cfg, out)
```

```python
import sys, math, struct
from asmlib import *

NAME = "concat_heads__mha_block_cached__mha_block_cached__near_ridge"
WS_BYTES = 289406976
def f2u(x): return struct.unpack("<I", struct.pack("<f", x))[0]

KB0, VB0, WB0, XB, YB = 0, 32768, 65536, 98304, 131072
DROP = 0x30000
OOB = 0x40000000
SK, SV, SWQ, SWO, SX, SPART = 8, 12, 16, 20, 24, 32
sW, sQB, sCNT, sBND, sSCL, sKo, sVo, sWc, sT, sM0, sWm0, sRET = 36, 37, 38, 39, 40, 41, 42, 43, 44, 45, 46, 48
sPo, sCol, sPo1, sX16, sROT, sKn, sVn, sWn, sKs, sVs = 50, 51, 52, 53, 59, 28, 29, 30, 54, 55
sFm0 = 31
sKVm0 = 47
SFLG, SDBG, SOUT = 72, 76, 80
sFv = 84
vFlag = 240
FLG = 0x4800000
aW3 = 248
aX = 253
def Qf(s, qs): return 8 + (s * 2 + qs) * 4
def Oa(dt, qs): return 40 + (dt * 2 + qs) * 4
def Sr(n, kt, qs):
    if kt < 2: return 104 + (kt * 2 + qs) * 4
    return 120 + (n & 1) * 16 + ((kt - 2) * 2 + qs) * 4
def Pf(n, u, qs):
    if u == 0: return 152 + (n & 1) * 8 + qs * 4
    return 168 + qs * 4
def NM(qs): return 176 + qs * 4
def FR(f): return 184 + (f & 7) * 4
TMP = 216
vL, vLS, vTS = 232, 234, 236
aK, aV, aQ, aO, vLane = 238, 242, 250, 251, 252
def Bf(s, qs): return 8 + (s * 2 + qs) * 4
def Ac(mt, qs): return 136 + (mt * 2 + qs) * 4
HLD = 168
aW, aW2, vKo, vVo, vWq, vWo, aQw, vXo = 232, 236, 242, 243, 244, 245, 246, 247

BAR_IDX = 19

class Cfg:
    stamps = False
    kvflags = "nt"
    wflags = ""
    pflags = "sc1"
    xflags = ""
    woflags = ""
    rflags = ""
    outflags = ""
    force_fb = False
    mapping = 2
    rot = True
    codepf = True
    wopf = True
    prioA = 0
    fused = True
    lastbar = 26
    flagc = 0
    flaglag = 1
    pdup = 0
    plead = 3
    pwflags = ""
    krot = False
    series = False
    prioM = 0
    ppace = 0
    nopm = False
    nodma = False
    noav = False
    barq = 19
    barp = 23
    locap = 2
    pf0 = 28
    fbar = 1
    fwait = 2
    fburst = 1
    prioP = 0
    nokv = False
    nowq = False
    nowo = False
    nops = False

def stamp(cfg, idx):
    if not cfg.stamps: return []
    return [S("s_memrealtime s[60:61]"), S("s_memtime s[94:95]"), raw("s_waitcnt lgkmcnt(0)", "lgkm0"),
            raw("v_mov_b32 v2, s60"), raw("v_mov_b32 v3, s61"), raw("v_mov_b32 v4, 0"),
            raw("v_mov_b32 v6, s94"), raw("v_mov_b32 v7, s95"),
            S("s_mov_b64 s[62:63], exec"), S("s_mov_b64 exec, 1"),
            raw(f"buffer_store_dwordx2 v[2:3], v4, s[64:67], s68 offen offset:{idx*8}"),
            raw(f"buffer_store_dwordx2 v[6:7], v4, s[64:67], s68 offen offset:{idx*8+64}"),
            S("s_mov_b64 exec, s[62:63]")]

def softmax_part(n, part):
    L = []
    for qs in range(2):
        for k in range(2):
            s = Sr(n, 2 * part + k, qs)
            e = [TMP + k * 4 + i for i in range(4)]
            for i in range(4): L.append(vexp(e[i], s + i))
            if k == 0:
                L.append(valu("v_add_f32", vTS + qs, e[0], e[1]))
            else:
                L.append(valu("v_add_f32", vTS + qs, vTS + qs, e[0]))
                L.append(valu("v_add_f32", vTS + qs, vTS + qs, e[1]))
            L.append(cvtpk(Pf(n, part, qs) + 2 * k, e[0], e[1]))
            L.append(valu("v_add_f32", vTS + qs, vTS + qs, e[2]))
            L.append(valu("v_add_f32", vTS + qs, vTS + qs, e[3]))
            L.append(cvtpk(Pf(n, part, qs) + 2 * k + 1, e[2], e[3]))
    return L

def l_update(n, part):
    t = n & 7
    if t == 0 and part == 0:
        return [valu("v_mov_b32", vL + qs, vTS + qs) for qs in range(2)]
    if t == 7 and part == 1:
        return [valu("v_add_f32", vLS + qs, vL + qs, vTS + qs) for qs in range(2)]
    return [valu("v_add_f32", vL + qs, vL + qs, vTS + qs) for qs in range(2)]

SITES = {}
def check_pre(n):
    if (n & 7) == 0: return []
    return [valu("v_max_f32", TMP + 8, vTS, vTS + 1), I(f"v_cmp_lt_f32 vcc, s{sBND}, v{TMP+8}", "valu", (), {TMP + 8})]
def check(n, part, sfx):
    t = n & 7
    if t == 0: return []
    name = f"{sfx}{t}_{part}"
    SITES[name] = (n & 1, part, t == 7)
    return [raw(f"s_cbranch_vccnz L_fb_{name}"), label(f"L_ret_{name}")]

def xgroup(op, x, t):
    return [valu("v_mov_b32", t, x), swap32(t, x), valu(op, x, x, t),
            valu("v_mov_b32", t, x), swap16(t, x), valu(op, x, x, t)]

def rowmax(dst, srcs):
    L = [valu("v_max3_f32", dst, srcs[0], srcs[1], srcs[2])]
    rest = srcs[3:]
    while len(rest) >= 2:
        L.append(valu("v_max3_f32", dst, dst, rest[0], rest[1])); rest = rest[2:]
    if rest: L.append(valu("v_max_f32", dst, dst, rest[0]))
    return L

def zipl(a, b):
    out = []
    for i in range(max(len(a), len(b))):
        if i < len(a): out.append(a[i])
        if i < len(b): out.append(b[i])
    return out

def first_tile_max(n):
    per = []
    for qs in range(2):
        m, t = TMP + 8 + qs, TMP + 10 + qs
        srcs = [Sr(n, kt, qs) + i for kt in range(4) for i in range(4)]
        L = rowmax(m, srcs) + xgroup("v_max_f32", m, t)
        L += [valu("v_sub_f32", s, s, m) for s in srcs[:8]]
        per.append(L)
    L = zipl(per[0], per[1])
    late = []
    for qs in range(2):
        m = TMP + 8 + qs
        late += [valu("v_sub_f32", NM(qs) + i, "0", m) for i in range(4)]
        late += [valu("v_sub_f32", s, s, m) for s in [Sr(n, kt, qs) + i for kt in (2, 3) for i in range(4)]]
    return L, late

def o_epilogue(cfg):
    per = []
    for qs in range(2):
        per.append(xgroup("v_add_f32", vLS + qs, TMP + 12 + qs) + [vrcp(vLS + qs, vLS + qs)])
    L = zipl(per[0], per[1])
    k = 0
    for s in range(4):
        for qs in range(2):
            q = TMP + 8 + (k & 1) * 4
            for h in range(2):
                o = Oa(2 * s + h, qs)
                for i in range(4): L.append(valu("v_mul_f32", o + i, o + i, vLS + qs))
                L.append(cvtpk(q + 2 * h, o, o + 1)); L.append(cvtpk(q + 2 * h + 1, o + 2, o + 3))
            L.append(ds_w128(aO, q, (s * 2 + qs) * 1024))
            k += 1
    return L

def k_read(n, f): return [ds_r128(FR(f), aK + (f & 3), KB0 + (n & 1) * 16384 + (f >> 2) * 4096)]
def v_read(n, f):
    dt, u = f >> 1, f & 1
    o = VB0 + (n & 1) * 16384 + u * 8192
    return [ds_tr(FR(f), aV + dt, o), ds_tr(FR(f) + 2, aV + dt, o + 4096)]

NT = 32
def units(i):
    if i.k == "label" or "vmcnt" in i.t: return 0
    return 2 if i.k == "trans" else 1

def schedule(main, ds, blocks, fixed, lo_cap=2):
    fill = []
    ds = list(ds)
    n = len(main)
    used = [0] * (n + 64)
    for p, L in fixed.items(): used[p] += sum(units(i) for i in L)
    for p in range(1, n):
        if main[p] is not None and main[p].tag: used[p - 1] += 1
    g = 0
    cnt = {}
    bars = sorted(p for p, L in fixed.items() if any(i.k == "lgkm0" for i in L))
    for e, ins in ds:
        g = max(g, e)
        while cnt.get(g, 0) >= (1 if (g & 1) == 0 else 2) and main[min(g, n - 1)] is not None: g += 1
        nb = [b for b in bars if b >= e]
        assert not nb or g <= nb[0] - 2, (e, g, ins.t)
        cnt[g] = cnt.get(g, 0) + 1
        used[g] += 1
        fill.append((g, 1, ins))
    def conflict(a, b):
        return bool(a.w & (b.r | b.w)) or bool(a.r & b.w) or (not a.w and not a.r) or (not b.w and not b.r) or (a.k == "dsw" and b.k == "dsw")
    def try_place(s, e, L, hi):
        u = list(used); rest = list(L); out = []
        last = None
        for p in range(s, e + 1):
            cap = lo_cap if (p & 1) == 0 else hi
            last = None
            while rest:
                pick = None
                for k in range(min(len(rest), 14)):
                    c = rest[k]
                    if u[p] + units(c) > cap: continue
                    if any(conflict(x, c) for x in rest[:k]): continue
                    if last is not None and last.k == "trans" and c.k != "trans" and last.w & c.r: continue
                    if last is not None and c.k == "perm" and last.w & c.r: continue
                    pick = k; break
                if pick is None: break
                c = rest.pop(pick); u[p] += units(c); out.append((p, 0, c)); last = c
        return (u, out) if not rest else None
    for (s, e, L) in blocks:
        hi = lo_cap
        while True:
            r = try_place(s, e, L, hi)
            if r: break
            hi += 1
        used, out = r
        fill += out
    pre = [(p, i) for (p, o, i) in fill]
    return pre

def a_stream(cfg):
    qrd = lambda: [ds_r128(Qf(s, qs), aQ, (s * 2 + qs) * 1024) for s in range(4) for qs in range(2)]
    pre = qrd()
    for f in range(8): pre += k_read(0, f)
    main, ds, blocks, fixed = [], [], [], {}
    BQ, BP = cfg.barq, cfg.barp
    for n in range(NT + 1):
        t = n & 7
        sfx = "T" if n >= NT else "L"
        real = n < NT
        b0 = 64 * n
        for kt in range(4):
            for qs in range(2):
                for s in range(4):
                    c = Sr(n, kt, qs) if s else (None if t == 0 else NM(qs))
                    dep = [FR(4 * kt + x) for x in range(4)] if (qs == 0 and s == 0) else ()
                    main.append(mfma(Sr(n, kt, qs), FR(4 * kt + s), Qf(s, qs), c, dep) if real else None)
        if real:
            for f in range(8, 16):
                ds += [(b0 + 4 + (f & 3) + 8 * ((f - 8) >> 2), i) for i in k_read(n, f)]
        if n >= 1:
            va = softmax_part(n - 1, 1) + check_pre(n - 1)
            if t == 1 and n > 8: va = va[:12] + zipl(o_epilogue(cfg), va[12:])
            blocks.append((b0, b0 + 30, va))
        if n == 0:
            fixed[b0 + 7] = [barrier()]
            fixed[b0 + 13] = [barrier()]
        fixed[b0 + BQ] = ([vmcnt(4)] if n == 1 else []) + [lgkm0(), barrier()]
        if n >= 1:
            for f in range(8):
                ds += [(b0 + max(BQ + 1, 20 + (f & 3) + 8 * (f >> 2)), i) for i in v_read(n - 1, f)]
            fixed[b0 + 31] = check(n - 1, 1, sfx) + l_update(n - 1, 1)
        realpv = n >= 1
        m = n - 1
        b1 = b0 + 32
        for dt in range(8):
            for (u, qs) in ((0, 0), (1, 0), (1, 1), (0, 1)):
                firstk = (u == 0 and qs == 0) or (u == 1 and qs == 1)
                c = None if ((m & 7) == 0 and firstk) else Oa(dt, qs)
                dep = [FR(2 * dt + 1)] if (u == 0 and qs == 0) else ()
                main.append(mfma(Oa(dt, qs), FR(2 * dt + u), Pf(m, u, qs), c, dep) if realpv else None)
        qq = qrd() if t == 7 else []
        if realpv:
            for p in range(4):
                ds += [(b1 + 2 + 4 * p, i) for i in v_read(m, 9 + 2 * p)] + [(b1 + 3 + 4 * p, i) for i in v_read(m, 8 + 2 * p)]
                ds += [(b1, i) for i in qq[2 * p:2 * p + 2]]
        if real:
            va = softmax_part(n, 0) + check_pre(n)
            if t == 0:
                early, late = first_tile_max(n)
                blocks.append((b1 + 2, b1 + 30, early + va + late))
            else:
                blocks.append((b1, b1 + 30, va))
        if n < NT:
            fixed[b1 + BP] = ([vmcnt(8 if n == 0 else 0)] if n < 2 else []) + [lgkm0(), barrier()]
        if n + 1 < NT:
            for f in range(8):
                ds += [(b1 + max(BP + 1, 19 + 4 * (f >> 1)), i) for i in k_read(n + 1, f)]
        if real:
            sf2 = "T" if n + 1 >= NT else "L"
            fixed[b1 + 31] = check(n, 0, sf2) + l_update(n, 0)
    fill = schedule(main, ds, blocks, fixed, cfg.locap)
    fill += [(p, i) for p, L in fixed.items() for i in L]
    seq = pre + [i for i in interleave(main, fill) if i is not None]
    seq += o_epilogue(cfg)
    seq += [lgkm0(), barrier()]
    if cfg.noav: seq = [i for i in seq if i.k not in ("valu", "trans", "perm") and "cbranch" not in i.t]
    return seq

def split_segments(seq):
    segs, cur = [], []
    for i in seq:
        cur.append(i)
        if i.k == "barrier":
            segs.append(cur); cur = []
    if cur: segs.append(cur)
    return segs

def fallback(par, part, last):
    n = par + 2
    L = [raw("s_nop 7"), raw("s_nop 3")]
    D, F, T = TMP + 8, TMP + 10, TMP + 12
    kts = range(4) if part == 0 else (2, 3)
    for qs in range(2):
        srcs = [Sr(n, kt, qs) + i for kt in kts for i in range(4)]
        d, f, t = D + qs, F + qs, T + qs
        L += rowmax(d, srcs) + xgroup("v_max_f32", d, t)
        L += [valu("v_max_f32", d, "0", d), valu("v_ceil_f32", d, d), valu("v_sub_f32", t, "0", d), vexp(f, t)]
        L += [valu("v_sub_f32", s, s, d) for s in srcs]
        L += [valu("v_sub_f32", NM(qs) + i, NM(qs) + i, d) for i in range(4)]
        L += [valu("v_mul_f32", vL + qs, vL + qs, f)]
        L += [valu("v_mul_f32", Oa(dt, qs) + i, Oa(dt, qs) + i, f) for dt in range(8) for i in range(4)]
        if part == 1:
            for i in range(4):
                p = Pf(n, 0, qs) + i
                L += [valu("v_lshlrev_b32", t, "16", p), valu("v_and_b32", p, "0xffff0000", p),
                      valu("v_mul_f32", t, t, f), valu("v_mul_f32", p, p, f), cvtpk(p, t, p)]
            if not last:
                L += [valu("v_sub_f32", s, s, d) for s in [Sr(n + 1, kt, qs) + i for kt in range(4) for i in range(4)]]
    L += softmax_part(n, part)
    L += [raw("s_nop 2"), raw(f"s_setpc_b64 s[{sRET}:{sRET+1}]")]
    return fix_hazards(L)

def q_pack(dst):
    L = []
    for mt in range(4):
        for qs in range(2):
            a = Ac(mt, qs); d = dst + (mt * 2 + qs) * 2
            for i in range(4): L.append(valu("v_mul_f32", a + i, f"s{sSCL}", a + i))
            L += [cvtpk(d, a, a + 1), cvtpk(d + 1, a + 2, a + 3)]
    return L
def q_store(src, hf):
    return [ds_w64(aQw, src + (mt * 2 + qs) * 2, hf * 4096 + (mt >> 1) * 2048 + qs * 1024 + (mt & 1) * 512)
            for mt in range(4) for qs in range(2)]

def wc_adv():
    return [S(f"s_add_u32 s{sWn}, s{sWn}, 1"), S(f"s_add_u32 s{sWc}, s{sWc}, 128"), S(f"s_and_b32 s{sWc}, s{sWc}, 0x3803ff"),
            S(f"s_cmp_ge_u32 s{sWn}, 8"), S(f"s_cselect_b32 s{sWc}, {OOB}, s{sWc}"), S(f"s_cselect_b32 s{sWm0}, {DROP}, s{sWm0}")]
def wq_dma(cfg, kc, ks):
    return [m0set(f"s_add_u32 m0, s{sWm0}, {(kc & 3)*8192 + ks*4096}"),
            S(f"s_add_u32 s{sT}, s{sWc}, {kc * (1 << 19) + ks * (1 << 18)}"), S(f"s_and_b32 s{sT}, s{sT}, 0x403fffff"),
            dma(vWq, SWQ, f"s{sT}", 0, cfg.wflags)]
def kv_pre(isK):
    n, o, s = (sKn, sKo, sKs) if isK else (sVn, sVo, sVs)
    return [S(f"s_cmp_lt_u32 s{n}, 30"), S(f"s_cselect_b32 s{s}, s{o}, {OOB}"), S(f"s_cselect_b32 s{sKVm0}, s{sM0}, {DROP}"),
            S(f"s_add_u32 s{n}, s{n}, 1"), S(f"s_add_u32 s{o}, s{o}, 16384"), S(f"s_and_b32 s{o}, s{o}, 0x7ffff")]
def kv_dma(cfg, isK, slot, jj):
    base = (KB0 if isK else VB0) + slot * 16384 + jj * 3072
    return [m0set(f"s_add_u32 m0, s{sKVm0}, {base}"),
            dma(vKo if isK else vVo, SK if isK else SV, f"s{sKs if isK else sVs}", jj * 1024, cfg.kvflags)]
def kv_issue(cfg, isK, slot):
    L = kv_pre(isK)
    for jj in range(4): L += kv_dma(cfg, isK, slot, jj)
    return L

PRO_REG = [YB, VB0, XB, WB0, KB0]
sKR = 58
def Ac2(mt, qs):
    k = mt * 2 + qs
    return HLD + 4 * k if k < 4 else TMP + 4 * (k - 4)

def qwait(q, tags):
    last = max(i for i, t in enumerate(q) if t in tags)
    return vmcnt(len(q) - 1 - last)

def a_prologue(cfg):
    seq, q = [], []
    def wq(kc):
        L = []
        for hf in range(2):
            for ks in range(2):
                L += [m0set(f"s_add_u32 m0, s{sM0}, {PRO_REG[kc % 5] + hf*8192 + ks*4096}"),
                      S(f"s_add_u32 s{sT}, s{sWc}, {kc * (1 << 19) + ks * (1 << 18) + hf * 128}"), S(f"s_and_b32 s{sT}, s{sT}, 0x3fffff"),
                      dma(vWq, SWQ, f"s{sT}", 0, cfg.pwflags)]
        L += x_dma(cfg, kc)
        q.extend([kc] * 8)
        return L
    def two(isK):
        L = []
        s = sKs if isK else sVs
        for slot in range(2):
            L.append(S(f"s_add_u32 s{s}, s{sCol}, {slot * 16384}"))
            for jj in range(4): L += kv_dma(cfg, isK, slot, jj)
        q.extend(["kv"] * 8)
        return L
    first = []
    for kc in range(cfg.plead): first += wq(kc)
    seq.append(S(f"s_mov_b32 s{sKVm0}, s{sM0}"))
    nxt = cfg.plead
    for kc in range(9):
        seq += [qwait(q, {kc}), barrier()]
        while nxt <= min(kc + 3, 7) and nxt <= kc + cfg.plead:
            seq += wq(nxt); nxt += 1
        if kc == 5:
            seq += [S(f"s_add_u32 s{sWc}, s{sWc}, 256"), S(f"s_and_b32 s{sWc}, s{sWc}, 0x3803ff"), S(f"s_add_u32 s{sWm0}, s{sM0}, {WB0}")]
            for c in range(4):
                for ks in range(2): seq += wq_dma(cfg, c, ks)
            q += [8] * 8
        if kc == 6: seq += two(True)
        if kc == 8: seq += two(False)
    return first, seq

def x_dma(cfg, kc):
    L = [m0set(f"s_add_u32 m0, s{sX16}, {PRO_REG[kc % 5] + 16384}"),
         S(f"s_add_u32 s{sT}, s{sKR}, {kc * 128}"), S(f"s_and_b32 s{sT}, s{sT}, 1023")]
    for p in range(4):
        if p: L += [m0set("s_add_u32 m0, m0, 1024"), S(f"s_add_u32 s{sT}, s{sT}, 8192")]
        L.append(dma(vXo, SX, f"s{sT}", 0, cfg.xflags))
    return L

def p_prologue(cfg):
    def base_of(addr):
        return (0, 0) if addr < 65536 else ((1, WB0) if addr < YB else (2, YB))
    def rd(kc, f):
        if kc == 8: return ring_read(0, f)
        hf, mt, ks = f >> 3, (f >> 1) & 3, f & 1
        addr = PRO_REG[kc % 5] + hf * 8192 + ks * 4096
        k, base = base_of(addr)
        a = (aW2, aW, aW3)[k]
        return [ds_tr(FR(f), a + mt, addr - base), ds_tr(FR(f) + 2, a + mt, addr - base + 512)]
    def xrd(kc):
        addr = PRO_REG[kc % 5] + 16384
        k, base = base_of(addr)
        return [ds_r128(Bf(2 * kc + ks, qs), aX + k, addr - base + qs * 2048 + ks * 64) for ks in range(2) for qs in range(2)]
    pre = [barrier()] + stamp(cfg, 4) + xrd(0)
    for f in range(8): pre += rd(0, f)
    main, fill = [], []
    for kc in range(8):
        b0 = 32 * kc
        for g in range(8):
            hf, mt = g >> 2, g & 3
            for (ks, qs) in ((0, 0), (1, 0), (1, 1), (0, 1)):
                firstk = (ks == 0 and qs == 0) or (ks == 1 and qs == 1)
                a = (Ac if hf else Ac2)(mt, qs)
                dep = [FR(2 * g + 1)] if (ks == 0 and qs == 0) else ()
                main.append(mfma(a, FR(2 * g + ks), Bf(2 * kc + ks, qs), None if (kc == 0 and firstk) else a, dep))
            if g == 4:
                fill.append((b0 + 17, barrier()))
                if cfg.stamps and kc in (1, 3, 6): fill += [(b0 + 17, x) for x in stamp(cfg, {1: 5, 3: 6, 6: 7}[kc])]
                if kc < 7: fill += [(b0 + 17 + 2 * k, x) for k, x in enumerate(xrd(kc + 1))]
            k2, f2 = (kc, 2 * g + 8) if g < 4 else (kc + 1, 2 * g - 8)
            r = rd(k2, f2 + 1) + rd(k2, f2)
            fill += [(b0 + 4 * g + 2 + k, x) for k, x in enumerate(r)]
        if kc == 7:
            pk = []
            for mt in range(4):
                for qs in range(2):
                    a = Ac2(mt, qs); d = HLD + (mt * 2 + qs) * 2
                    for i in range(4): pk.append(valu("v_mul_f32", a + i, f"s{sSCL}", a + i))
                    pk += [cvtpk(d, a, a + 1), cvtpk(d + 1, a + 2, a + 3)]
            fill += [(b0 + p, x) for p, x in spread(pk + q_store(HLD, 0), 18, 31)]
    seq = pre + interleave(main, fill)
    pk, st = q_pack(TMP), q_store(TMP, 1)
    for k in range(8): seq += pk[6 * k:6 * k + 6] + [st[k]]
    seq += [lgkm0(), barrier()]
    return seq

def ring_read(kc, f):
    mt, ks = f >> 1, f & 1
    o = (kc & 3) * 8192 + ks * 4096
    return [ds_tr(FR(f), aW + mt, o), ds_tr(FR(f) + 2, aW + mt, o + 512)]

def p_phase(cfg, ph):
    isK = (ph & 1) == 1
    slot = [1, 1, 0, 0, 1, 1, 0, 0][ph]
    main, fill = [], []
    for mt in range(4):
        for (ks, qs) in ((0, 0), (1, 0), (1, 1), (0, 1)):
            firstk = (ks == 0 and qs == 0) or (ks == 1 and qs == 1)
            c = None if (ph == 0 and firstk) else Ac(mt, qs)
            main.append(mfma(Ac(mt, qs), FR(2 * mt + ks), Bf(2 * ph + ks, qs), c))
        fill += [(4 * mt + 2, x) for x in ring_read(ph + 1, 2 * mt + 1)] + [(4 * mt + 3, x) for x in ring_read(ph + 1, 2 * mt)]
    kv = kv_issue(cfg, isK, slot)
    head, rest = kv[:8], kv[8:]
    d = []
    if ph == 4: d += wc_adv()
    for ks in range(2): d += wq_dma(cfg, (ph + 4) & 7, ks)
    fill = [(-1, x) for x in head] + [(k // 2, x) for k, x in enumerate(rest)] + spread(d, 4, 9) + fill
    if cfg.pdup:
        for k in range(cfg.pdup):
            pos = (k * 16) // cfg.pdup
            mt = pos >> 2
            fill.append((4 * mt + 1, mfma(TMP + 4 * (k & 3), FR(2 * mt + (k & 1)), Bf((2 * ph + 5 + k) & 15, k & 1), TMP + 4 * (k & 3))))
            fill.append((4 * mt + 1, ds_tr(248 + 2 * (k & 1), aW + mt, (ph & 3) * 8192 + 512 * (k & 7))))
    if cfg.ppace: fill += [(k, raw(f"s_nop {cfg.ppace - 1}")) for k in range(15)]
    seq = interleave(main, fill) + [vmcnt(12), lgkm0(), barrier()]
    if cfg.nopm: seq = [i for i in seq if i.k not in ("mfma", "dsr")]
    if cfg.nodma: seq = [i for i in seq if i.k not in ("dma",)]
    return seq

def wo_dma(cfg, slot, c, ks, m0reg):
    lds = (XB + slot * 16384 if slot < 4 else (slot - 4) * 16384) + ks * 4096
    return [m0set(f"s_add_u32 m0, s{m0reg}, {lds}"),
            S(f"s_add_u32 s{sT}, s{sCol}, {c * 131072 + ks * 32768}"), S(f"s_and_b32 s{sT}, s{sT}, 0x4007ffff"),
            dma(vWo, SWO, f"s{sT}", 0, cfg.woflags)]

def b_load(pos):
    return [ds_r128(Bf(4 * pos + (fr >> 1), fr & 1), aQw, fr * 1024) for fr in range(8)]

def p_round3(cfg):
    seq = []
    q = [("old", 0)] * 12
    def setbase(base):
        return [S(f"s_lshl_b32 s{sT}, s{sQB}, 13"), S(f"s_add_u32 s{sT}, s{sT}, {base}"), valu("v_add_u32", aQw, f"s{sT}", vLane)]
    phases = []
    for n in range(23, 33):
        phases.append(("E", n))
        if n < 32: phases.append(("O", n))
    for pi, (kind, n) in enumerate(phases):
        tag = ("kv", pi)
        if kind == "E" and n <= 31: seq += kv_issue(cfg, False, n & 1); q += [tag] * 4
        if kind == "O" and n + 2 <= 31: seq += kv_issue(cfg, True, n & 1); q += [tag] * 4
        if (kind, n) == ("E", 23):
            seq += [valu("v_add_u32", aQw, f"{WB0 - YB}", aQw)]
            seq += q_pack(TMP) + q_store(HLD, 0) + q_store(TMP, 1)
        if (kind, n) == ("O", 23):
            seq += setbase(XB) + b_load(0) + setbase(YB) + b_load(1)
        if kind == "E" and 24 <= n <= 27:
            c = n - 24
            for ks in range(4): seq += wo_dma(cfg, c, c, ks, sM0)
            q += [("wo", c)] * 4
        if kind == "O" and cfg.wopf and cfg.pf0 <= n <= cfg.pf0 + 3:
            for i in range(2):
                seq += [S(f"s_add_u32 s{sT}, s56, {((n - cfg.pf0) * 2 + i) * 4096}"), bload(FR(i), vXo, SWO, f"s{sT}", 0, cfg.woflags)]
            q += [("pf", n)] * 2
        if (kind, n) == ("E", 26):
            seq += setbase(WB0) + b_load(2)
        need = [i for i, t in enumerate(q) if (t[0] == "kv" and t[1] <= pi - 2) or (t[0] == "old" and (pi >= 1 or i < 6))]
        seq.append(vmcnt(len(q) - 1 - max(need)))
        seq += [lgkm0(), barrier()]
    seq += [vmcnt(0), barrier()]
    seq += b_load(3)
    return seq

def w_read(slot, f):
    mt, ks = f >> 2, f & 3
    o = (slot & 3) * 16384 + ks * 4096
    a = (aW if slot < 4 else aW2) + mt
    return [ds_tr(FR(f), a, o), ds_tr(FR(f) + 2, a, o + 512)]

def stage(sl, pair, qs):
    return (TMP if (sl & 1) == 0 else HLD) + (pair * 2 + qs) * 4
def part_pack(sl, pair):
    L = []
    for qs in range(2):
        t = stage(sl, pair, qs)
        for h in range(2):
            a = Ac(2 * pair + h, qs)
            L += [cvtpk(t + 2 * h, a, a + 1), cvtpk(t + 2 * h + 1, a + 2, a + 3)]
    return L
def part_store(cfg, sl):
    L = [bstore(stage(sl, pair, qs), vLane, SPART, f"s{sPo1}", (qs * 2 + pair) * 1024, cfg.pflags) for pair in range(2) for qs in range(2)]
    return L + [S(f"s_mov_b32 s{sPo1}, s{sPo}"), S(f"s_add_u32 s{sPo}, s{sPo}, 131072")]

def flag_pub(keep=0):
    return [valu("v_max_i32", vFlag, "0", f"s{sFv}") if False else valu("v_mov_b32", vFlag, f"s{sFv}"), valu("v_max_i32", vFlag, "0", vFlag), vmcnt(keep),
            I(f"buffer_store_dword v{vFlag}, v{vLane}, s[{SFLG}:{SFLG+3}], 0 offen sc1", "vstore", (), {vFlag, vLane}),
            S(f"s_add_u32 s{sFv}, s{sFv}, 1")]

def p_final_stream(cfg, nblk):
    main, fill = [], []
    pre = []
    for f in range(8): pre += w_read(0, f)
    for i in range(nblk):
        c = i & 3; slot = i & 7; sl = i >> 2
        b0 = 32 * i
        for mt in range(4):
            for qs in range(2):
                for ks in range(4):
                    cc = None if (c == 0 and ks == 0) else Ac(mt, qs)
                    dep = [FR(4 * mt + ks + 1)] if (qs == 0 and ks in (0, 2)) else ()
                    if cfg.fwait == 1: dep = [FR(4 * mt + x) for x in range(4)] if (qs == 0 and ks == 0) else ()
                    main.append(mfma(Ac(mt, qs), FR(4 * mt + ks), Bf(4 * c + ks, qs), cc, dep))
        if i % cfg.fbar == 0 and not (cfg.fused and i > cfg.lastbar): fill.append((b0 + 3, barrier()))
        if cfg.fused and c == cfg.flagc:
            fill += [(b0 + 24, x) for x in flag_pub(4 * cfg.flaglag)]
        for mt in range(4):
            sl2, mt2 = (slot, mt + 2) if mt < 2 else ((i + 1) & 7, mt - 2)
            rd = []
            for ks in range(4): rd += w_read(sl2, 4 * mt2 + ks)
            for k, x in enumerate(rd): fill.append((b0 + 8 * mt + 4 + k, x))
        if c == 0:
            fill += [(b0 + p, x) for p, x in spread(part_pack(sl - 1, 1), 4, 13)]
            if cfg.fburst == 1:
                fill += [(b0 + p, x) for p, x in spread(part_store(cfg, sl - 1), 15, 20)]
            elif (sl & 1) == 0:
                fill += [(b0 + p, x) for p, x in spread(part_store(cfg, sl - 2) + part_store(cfg, sl - 1), 15, 26)]
        if c == 3:
            fill += [(b0 + p, x) for p, x in spread(part_pack(sl, 0), 20, 31)]
    seq = pre + interleave(main, fill)
    sl = nblk // 4
    seq += part_pack(sl - 1, 1)
    if cfg.fburst == 2: seq += part_store(cfg, sl - 2)
    seq += part_store(cfg, sl - 1)
    if cfg.fused:
        if cfg.flaglag: seq += flag_pub(4)
        seq += flag_pub(cfg.flaglag)
    return seq

def a_final_iter(cfg):
    seq = []
    fb = cfg.fbar
    for i in range(0, 8, fb):
        seq += [vmcnt(4 * (7 - 2 * fb)), barrier()]
        for k in range(i + 8 - fb, i + 8):
            k &= 7
            for ks in range(4): seq += wo_dma(cfg, k, k & 3, ks, sFm0)
            if (k & 3) == 3: seq.append(S(f"s_add_u32 s{sCol}, s{sCol}, 128"))
    return seq

def a_reduce(cfg):
    T = []
    A = lambda *a: T.extend("    " + x for x in a)
    A("v_lshlrev_b32 v1, 2, v0", "v_and_b32 v4, 15, v0", "v_lshlrev_b32 v4, 11, v4",
      "v_bfe_u32 v5, v0, 4, 1", "v_lshl_add_u32 v4, v5, 5, v4", "v_lshrrev_b32 v5, 5, v0", "v_lshl_add_u32 v4, v5, 4, v4", "v_mov_b32 v3, 0")
    A("s_mov_b32 s85, 0", "s_mov_b32 s86, 0x01010101")
    T.append("L_hs:")
    A(f"buffer_load_dwordx2 v[6:7], v3, s[{SDBG}:{SDBG+3}], 0 offen sc1", "s_add_u32 s85, s85, 1", "s_waitcnt vmcnt(0)",
      "v_and_b32 v6, v6, v7", "v_cmp_eq_u32 vcc, s86, v6", "s_cbranch_vccnz L_hs_ok", "s_cmp_lt_u32 s85, 0x20000", "s_cbranch_scc1 L_hs")
    T.append("L_hs_ok:")
    A(f"s_mov_b32 s87, s{sQB}")
    T.append("L_rs:")
    A("s_mov_b32 s85, 0")
    T.append("L_poll:")
    A(f"buffer_load_dword v6, v1, s[{SFLG}:{SFLG+3}], 0 offen sc1", "s_add_u32 s85, s85, 1", "s_waitcnt vmcnt(0)",
      "v_cmp_lt_u32 vcc, s87, v6", "s_cmp_eq_u32 vcc_lo, 0xff", "s_cbranch_scc1 L_got", "s_cmp_lt_u32 s85, 0x20000", "s_cbranch_scc1 L_poll")
    T.append("L_got:")
    A("s_lshl_b32 s88, s87, 17", "s_lshl_b32 s89, s6, 11", "s_add_u32 s88, s88, s89")
    for src in range(8):
        for pair in range(2):
            b = 16 + (src * 2 + pair) * 4
            A(f"buffer_load_dwordx4 v[{b}:{b+3}], v{vLane}, s[{SPART}:{SPART+3}], s88 offen offset:{pair*1024} sc1")
        if src < 7: A("s_add_u32 s88, s88, 16384")
    A("s_lshl_b32 s89, s87, 7")
    acc = 80
    for src in range(8):
        A(f"s_waitcnt vmcnt({(7-src)*2})")
        for pair in range(2):
            b = 16 + (src * 2 + pair) * 4
            for i in range(4):
                lo, hi = acc + pair * 8 + 2 * i, acc + pair * 8 + 2 * i + 1
                if src == 0:
                    A(f"v_lshlrev_b32 v{lo}, 16, v{b+i}", f"v_and_b32 v{hi}, 0xffff0000, v{b+i}")
                else:
                    A(f"v_lshlrev_b32 v6, 16, v{b+i}", f"v_and_b32 v7, 0xffff0000, v{b+i}", f"v_add_f32 v{lo}, v{lo}, v6", f"v_add_f32 v{hi}, v{hi}, v7")
    for pair in range(2):
        a = acc + pair * 8
        for i in range(4): A(f"v_cvt_pk_bf16_f32 v{8+pair*4+i}, v{a+2*i}, v{a+2*i+1}")
    A("s_nop 1")
    for pair in range(2):
        d = 8 + pair * 4
        A(f"v_permlane16_swap_b32 v{d}, v{d+2}", f"v_permlane16_swap_b32 v{d+1}, v{d+3}")
        A(f"buffer_store_dwordx4 v[{d}:{d+3}], v4, s[{SOUT}:{SOUT+3}], s89 offen offset:{pair*64} {cfg.outflags}")
    A("s_add_u32 s87, s87, 4", "s_cmp_lt_u32 s87, 8", "s_cbranch_scc1 L_rs")
    return T

def fin(seq): return fix_hazards(insert_lgkm(seq))

def header():
    ref = open("cdna_kernels/" + NAME + ".s.ref").read().splitlines()
    return [l for l in ref if l.startswith(";") and "@launch" not in l and "Override" not in l and "grid=ceil" not in l]

def srd(dst, lo, hi, nbytes):
    return [f"s_mov_b32 s{dst}, s{lo}", f"s_mov_b32 s{dst+1}, s{hi}", f"s_mov_b32 s{dst+2}, {nbytes}", f"s_mov_b32 s{dst+3}, 0x20000"]
def srd_off(dst, lo, hi, off, nbytes):
    return [f"s_add_u32 s{dst}, s{lo}, {off}", f"s_addc_u32 s{dst+1}, s{hi}, 0", f"s_mov_b32 s{dst+2}, {nbytes}", f"s_mov_b32 s{dst+3}, 0x20000"]

def main_kernel(cfg):
    T = []
    A = lambda *a: T.extend("    " + x for x in a)
    ST = lambda i: T.append(emit(stamp(cfg, i))) if cfg.stamps else None
    T += [".globl attn_main_kernel", ".p2align 8", ".type attn_main_kernel,@function", "attn_main_kernel:"]
    A("s_cmp_ge_u32 s2, 256", "s_cbranch_scc1 L_end")
    A("s_load_dwordx8 s[72:79], s[0:1], 0", "s_load_dwordx8 s[80:87], s[0:1], 32", "s_load_dwordx4 s[88:91], s[0:1], 64",
      "s_load_dwordx2 s[92:93], s[0:1], 96", "s_load_dwordx4 s[96:99], s[0:1], 80")
    if cfg.mapping == 0:
        A("s_and_b32 s3, s2, 7", "s_lshr_b32 s4, s2, 3", "s_lshl_b32 s5, s3, 2", "s_lshr_b32 s6, s4, 3", "s_add_u32 s5, s5, s6",
          "s_and_b32 s6, s4, 7", f"s_and_b32 s{sROT}, s3, 3")
    elif cfg.mapping == 1:
        A("s_and_b32 s6, s2, 7", "s_lshr_b32 s5, s2, 3", f"s_and_b32 s{sROT}, s5, 3")
    elif cfg.mapping == 2:
        A("s_and_b32 s3, s2, 7", "s_lshr_b32 s4, s2, 3",
          "s_and_b32 s5, s4, 15", "s_and_b32 s6, s3, 4", "s_lshl_b32 s6, s6, 2", "s_add_u32 s5, s5, s6",
          "s_and_b32 s6, s3, 3", "s_lshl_b32 s6, s6, 1", "s_lshr_b32 s4, s4, 4", "s_add_u32 s6, s6, s4",
          f"s_and_b32 s{sROT}, s5, 3")
    if not cfg.rot: A(f"s_mov_b32 s{sROT}, 0")
    A("s_and_b32 s7, s5, 15")
    A("v_lshrrev_b32 v1, 6, v0", "v_and_b32 v0, 63, v0", f"v_readfirstlane_b32 s{sW}, v1")
    A(f"v_lshlrev_b32 v{vLane}, 4, v0")
    A("s_waitcnt lgkmcnt(0)")
    A("s_cmp_ge_u32 s5, 16")
    for k in range(5):
        A(f"s_cselect_b32 s{72+2*k}, s{82+2*k}, s{72+2*k}", f"s_cselect_b32 s{73+2*k}, s{83+2*k}, s{73+2*k}")
    A("s_lshl_b32 s56, s7, 22", "s_lshl_b32 s57, s6, 19", "s_add_u32 s56, s56, s57")
    A(*srd_off(SK, 74, 75, "s56", 524288)); A(*srd_off(SV, 76, 77, "s56", 524288))
    A("s_lshl_b32 s56, s6, 10")
    A(*srd_off(SWQ, 78, 79, "s56", 0), f"s_sub_u32 s{SWQ+2}, 0x400000, s56")
    A(*srd_off(SWO, 80, 81, "s57", 524288))
    A("s_lshl_b32 s56, s7, 17"); A(*srd_off(SX, 72, 73, "s56", 131072))
    A("s_lshl_b32 s56, s5, 21", "s_add_u32 s56, s56, 0x100000"); A(*srd_off(SPART, 92, 93, "s56", 1 << 20))
    if cfg.fused:
        A("s_lshl_b32 s56, s5, 3"); A(*srd_off(SDBG, 98, 99, "s56", 8))
        A("s_lshl_b32 s56, s7, 18", "s_lshl_b32 s57, s6, 15", "s_add_u32 s56, s56, s57", "s_lshr_b32 s57, s5, 4", "s_lshl_b32 s57, s57, 10",
          "s_add_u32 s56, s56, s57")
        A(*srd_off(SOUT, 96, 97, "s56", 0), f"s_sub_u32 s{SOUT+2}, 0x400000, s56")
    if cfg.nokv: A(f"s_mov_b32 s{SK+2}, 0", f"s_mov_b32 s{SV+2}, 0")
    if cfg.nowq: A(f"s_mov_b32 s{SWQ+2}, 0")
    if cfg.nowo: A(f"s_mov_b32 s{SWO+2}, 0")
    if cfg.nops: A(f"s_mov_b32 s{SPART+2}, 0")
    if cfg.stamps:
        A(*srd_off(64, 92, 93, WS_BYTES - (1 << 20), 1 << 20))
        A(f"s_lshr_b32 s68, s{sW}, 2", "s_lshl_b32 s68, s68, 7", "s_lshl_b32 s69, s2, 8", "s_add_u32 s68, s68, s69",
          f"s_and_b32 s69, s{sW}, 3", "s_cmp_lg_u32 s69, 0", f"s_cselect_b32 s68, {OOB}, s68")
    A(f"s_and_b32 s{sQB}, s{sW}, 3", f"s_lshl_b32 s{sM0}, s{sQB}, 10")
    A(f"s_lshl_b32 s{sCol}, s{sROT}, 17")
    ST(0)
    A("v_and_b32 v1, 15, v0", "v_lshrrev_b32 v2, 4, v0", "v_lshrrev_b32 v3, 2, v1", "v_and_b32 v4, 3, v0")
    def lc16():
        A("v_lshrrev_b32 v5, 3, v0", "v_bfe_u32 v6, v0, 4, 1", f"s_and_b32 s{sT}, s{sQB}, 1", f"s_lshl_b32 s{sT}, s{sT}, 1",
          f"v_or_b32 v6, s{sT}, v6", "v_lshlrev_b32 v6, 1, v6", "v_and_b32 v7, 7, v0", "v_xor_b32 v6, v6, v7", "v_lshlrev_b32 v6, 4, v6")
    def wo_voff():
        lc16()
        A("v_and_b32 v7, 3, v5", "v_lshrrev_b32 v5, 2, v5", "v_lshl_add_u32 v7, v5, 4, v7",
          f"s_lshl_b32 s{sT}, s{sQB}, 2", f"v_add_u32 v7, s{sT}, v7", f"v_lshl_add_u32 v{vWo}, v7, 10, v6")
    def kv_voff():
        A(f"s_lshl_b32 s{sT}, s{sQB}, 2", f"v_add_u32 v5, s{sT}, v2",
          "v_xor_b32 v6, v5, v1", "v_lshlrev_b32 v6, 4, v6",
          f"s_lshl_b32 s{sT}, s{sQB}, 4", f"v_add_u32 v7, s{sT}, v2", "v_lshlrev_b32 v7, 8, v7",
          f"v_add_u32 v{vKo}, v7, v6",
          "v_and_b32 v5, 7, v5", "v_lshlrev_b32 v5, 1, v5", "v_xor_b32 v6, v5, v1", "v_lshlrev_b32 v6, 4, v6", f"v_add_u32 v{vVo}, v7, v6")
    def wq_voff():
        lc16()
        A(f"s_lshl_b32 s{sT}, s{sQB}, 3", f"v_add_u32 v7, s{sT}, v5", f"v_lshl_add_u32 v{vWq}, v7, 13, v6")
    A(f"s_lshl_b32 s{sWc}, s{sROT}, 8")
    if cfg.krot:
        A("s_lshr_b32 s56, s7, 2", "s_lshl_b32 s56, s56, 1", "s_lshl_b32 s57, s6, 2", "s_add_u32 s56, s56, s57",
          "s_bfe_u32 s57, s6, 0x10001", "s_add_u32 s56, s56, s57", "s_and_b32 s56, s56, 7")
    else:
        A("s_mov_b32 s56, 0")
    A(f"s_lshl_b32 s{sKR}, s56, 7", "s_lshl_b32 s56, s56, 19", f"s_add_u32 s{sWc}, s{sWc}, s56")
    A(f"s_cmp_ge_u32 s{sW}, 4", "s_cbranch_scc1 L_P")
    wq_voff()
    A("v_lshrrev_b32 v5, 3, v0", "v_and_b32 v6, 7, v0", "v_xor_b32 v6, v6, v2", "v_lshlrev_b32 v6, 4, v6",
      f"s_lshl_b32 s{sT}, s{sQB}, 5", f"v_add_u32 v5, s{sT}, v5", f"v_lshl_add_u32 v{vXo}, v5, 10, v6")
    A(f"s_lshl_b32 s{sX16}, s{sQB}, 12")
    first, rest = a_prologue(cfg)
    T.append(emit(fin(first)))
    kv_voff()
    T.append(emit(fin(rest)))
    if cfg.prioA: A(f"s_setprio {cfg.prioA}")
    A(f"s_mov_b32 s{sBND}, 0x{f2u(1e-30 if cfg.force_fb else float(1 << 20)):x}")
    for s in range(4):
        A(f"v_add_u32 v5, {4*s}, v2", "v_xor_b32 v5, v5, v1", "v_lshlrev_b32 v5, 4, v5", f"v_lshl_add_u32 v{aK+s}, v1, 8, v5")
    A("v_and_b32 v5, 1, v2", "v_lshl_add_u32 v5, v5, 2, v3",
      "v_lshl_add_u32 v6, v2, 2, v3", "v_lshlrev_b32 v6, 8, v6", "v_lshl_add_u32 v6, v4, 3, v6")
    for dt in range(8):
        A(f"v_xor_b32 v7, {dt}, v5", f"v_lshl_add_u32 v{aV+dt}, v7, 5, v6")
    A(f"s_lshl_b32 s57, s{sQB}, 13", f"s_add_u32 s{sT}, s57, {YB}", f"v_add_u32 v{aQ}, s{sT}, v{vLane}")
    A("s_waitcnt vmcnt(12)", "s_barrier")
    segs = split_segments(fin(a_stream(cfg)))
    txt = [emit(s) for s in segs]
    E = lambda n: 2 + 2 * n
    for k in range(E(2), E(32) - 16):
        assert txt[k] == txt[k + 16], k
    ST(1)
    T += txt[:E(2)]
    A(f"s_mov_b32 s{sCNT}, 0")
    T.append("L_Aloop:")
    A(f"s_cmp_lt_u32 s{sCNT}, 2", f"s_cselect_b32 s{sT}, 2, 1", f"s_lshl_b32 s{sT}, s{sT}, 16", f"s_add_u32 s{sT}, s{sT}, s57", f"v_add_u32 v{aQ}, s{sT}, v{vLane}",
      f"v_mov_b32 v{aO}, v{aQ}", f"s_cmp_eq_u32 s{sCNT}, 0", "s_cbranch_scc0 L_Ao",
      f"v_add_u32 v{aO}, {XB - YB}, v{aO}")
    T.append("L_Ao:")
    def sst():
        if cfg.series:
            L = [i for i in stamp(cfg, 0) if "v[6:7]" not in i.t]
            T.append(emit(L)); A("s_add_u32 s68, s68, 8")
    sst(); T += txt[E(2):E(4)]
    sst(); T += txt[E(4):E(6)]
    sst(); T += txt[E(6):E(8)]
    sst()
    A(f"s_cmp_eq_u32 s{sCNT}, 3", "s_cbranch_scc1 L_Atail")
    T += txt[E(8):E(10)]
    A(f"s_add_u32 s{sCNT}, s{sCNT}, 1", "s_branch L_Aloop")
    T.append("L_Atail:")
    if cfg.series: A(f"s_mov_b32 s68, {OOB}")
    T += txt[E(32):]
    ST(2)
    if cfg.fused:
        A("s_lshl_b32 s56, s5, 2", "s_lshr_b32 s58, s6, 1", "s_add_u32 s56, s56, s58", "s_lshl_b32 s56, s56, 7", f"s_add_u32 s56, s56, {FLG}")
        A(*srd_off(SFLG, 92, 93, "s56", 32))
    wo_voff()
    A(f"s_mov_b32 s{sFm0}, s{sM0}", f"s_add_u32 s{sCol}, s{sCol}, 128")
    d = []
    for i in range(4, 8 - cfg.fbar):
        for ks in range(4): d += wo_dma(cfg, i, i & 3, ks, sFm0)
    T.append(emit(fin(d)))
    A(f"s_mov_b32 s{sCNT}, 0")
    T.append("L_Afin:")
    it = fin(a_final_iter(cfg))
    T.append(emit(it))
    A(f"s_add_u32 s{sCNT}, s{sCNT}, 1", f"s_cmp_lt_u32 s{sCNT}, 3", "s_cbranch_scc1 L_Afin")
    asegs = split_segments(it)
    T.append(emit(asegs[0])); T.append(emit(asegs[1][:-2]))
    nb = ((cfg.lastbar if cfg.fused else 31) - 24) // cfg.fbar
    for k in range(nb):
        left = max(0, 4 * (7 - 2 * cfg.fbar) - 4 * cfg.fbar * k)
        A(f"s_waitcnt vmcnt({0 if k == nb - 1 else left})", "s_barrier")
    if cfg.fused:
        T += a_reduce(cfg)
    ST(3)
    A("s_endpgm")
    T.append("L_P:")
    if cfg.codepf:
        A(f"s_cmp_ge_u32 s{sQB}, 2", "s_cbranch_scc1 L_nopf")
        A("s_getpc_b64 s[70:71]")
        T.append("L_pc:")
        A("s_sub_u32 s70, s70, L_pc-attn_main_kernel", "s_subb_u32 s71, s71, 0")
        A("s_lshr_b32 s56, s2, 3", "s_lshl_b32 s56, s56, 11", f"s_add_u32 s56, s56, s{sM0}",
          "s_min_u32 s56, s56, L_cold-attn_main_kernel-1024", f"v_add_u32 v5, s56, v{vLane}",
          f"global_load_dwordx4 v[{FR(0)}:{FR(0)+3}], v5, s[70:71]")
        T.append("L_nopf:")
    if cfg.fused:
        A("s_lshl_b32 s56, s5, 9", "s_lshl_b32 s57, s6, 2", "s_add_u32 s56, s56, s57", f"s_add_u32 s56, s56, {FLG}")
        A(*srd_off(SFLG, 92, 93, "s56", 388))
        A(f"s_cmp_lg_u32 s{sQB}, 3", "s_cbranch_scc1 L_norst")
        A("v_mov_b32 v5, 0", "v_lshlrev_b32 v6, 7, v0", f"buffer_store_dword v5, v6, s[{SFLG}:{SFLG+3}], 0 offen sc1")
        T.append("L_norst:")
    A(f"s_lshl_b32 s{sX16}, s{sQB}, 12")
    A("v_bfe_u32 v5, v1, 1, 2", "v_xor_b32 v5, v5, v2", "v_lshlrev_b32 v5, 4, v5", "v_lshl_add_u32 v5, v1, 7, v5",
      f"v_add_u32 v{aX}, s{sX16}, v5", f"v_add_u32 v{aX+1}, {WB0}, v{aX}", f"v_add_u32 v{aX+2}, {YB}, v{aX}")
    wq_voff()
    A(f"s_add_u32 s{sWc}, s{sWc}, 256", f"s_and_b32 s{sWc}, s{sWc}, 0x3803ff", f"s_add_u32 s{sWm0}, s{sM0}, {WB0}", f"s_mov_b32 s{sWn}, 2")
    A("v_lshrrev_b32 v5, 1, v3", "v_and_b32 v6, 1, v2", "v_lshl_add_u32 v5, v6, 1, v5",
      "v_lshl_add_u32 v6, v2, 3, v3", "v_lshlrev_b32 v6, 7, v6", "v_lshl_add_u32 v6, v4, 3, v6")
    for mt in range(4):
        A(f"v_xor_b32 v7, {mt}, v5", f"v_lshl_add_u32 v{aW2+mt}, v7, 5, v6", f"v_add_u32 v{aW+mt}, {WB0}, v{aW2+mt}",
          f"v_add_u32 v{aW3+mt}, {YB}, v{aW2+mt}")
    kv_voff()
    A("v_lshrrev_b32 v5, 1, v2", "v_lshlrev_b32 v5, 8, v5", "v_lshl_add_u32 v5, v1, 4, v5", "v_and_b32 v6, 1, v2", "v_lshl_add_u32 v5, v6, 3, v5",
      f"s_lshl_b32 s{sT}, s{sQB}, 13", f"s_add_u32 s{sT}, s{sT}, {YB}", f"v_add_u32 v{aQw}, s{sT}, v5")
    wo_voff()
    A(f"s_mov_b32 s{sSCL}, 0x{f2u(math.log2(math.e) / math.sqrt(128.0)):x}")
    A(f"s_mov_b32 s{sKn}, -1", f"s_mov_b32 s{sVn}, -3",
      f"s_add_u32 s{sKo}, s{sCol}, 16384",
      f"s_sub_u32 s{sVo}, s{sCol}, 16384", f"s_and_b32 s{sVo}, s{sVo}, 0x7ffff")
    A(f"s_mov_b32 s{sCNT}, 2", "s_waitcnt vmcnt(0)")
    if cfg.fused:
        A(f"s_cmp_lg_u32 s{sQB}, 3", "s_cbranch_scc1 L_nohs")
        A("v_mov_b32 v5, 1", "v_add_u32 v6, s6, v{0}".format(vLane), f"buffer_store_byte v5, v6, s[{SDBG}:{SDBG+3}], 0 offen sc1")
        T.append("L_nohs:")
        A(f"s_lshl_b32 s56, s{sQB}, 7", f"s_add_u32 s{SFLG}, s{SFLG}, s56", f"s_addc_u32 s{SFLG+1}, s{SFLG+1}, 0", f"s_mov_b32 s{SFLG+2}, 4",
          f"s_mov_b32 s{sFv}, {-cfg.flaglag}")
    T.append(emit(fin(p_prologue(cfg))))
    ST(1)
    if cfg.prioM: A(f"s_setprio {cfg.prioM}")
    A("s_branch L_Pgo")
    T.append("L_Ploop:")
    A(f"s_bitcmp1_b32 s{sCNT}, 0", "s_cbranch_scc0 L_Pwr")
    T.append(emit(fin([raw("s_nop 7")] + q_pack(HLD))))
    A("s_branch L_Pgo")
    T.append("L_Pwr:")
    T.append(emit(fin([raw("s_nop 7")] + q_pack(TMP) + q_store(HLD, 0) + q_store(TMP, 1) + [lgkm0()])))
    T.append("L_Pgo:")
    body = []
    for ph in range(8): body += p_phase(cfg, ph)
    T.append(emit(fin(body)))
    A(f"s_add_u32 s{sCNT}, s{sCNT}, 1", f"s_cmp_lt_u32 s{sCNT}, 8", "s_cbranch_scc1 L_Ploop")
    A("s_lshl_b32 s56, s7, 15", f"v_add_u32 v{vXo}, s{sM0}, v{vLane}")
    for mt in range(4): A(f"v_add_u32 v{aW+mt}, {XB}, v{aW2+mt}")
    A("s_lshl_b32 s58, s6, 14", f"s_lshl_b32 s{sPo}, s{sQB}, 12", f"s_add_u32 s{sPo}, s{sPo}, s58", f"s_mov_b32 s{sPo1}, {OOB}")
    if cfg.fburst == 2:
        A(f"s_sub_u32 s{SPART}, s{SPART}, 131072", f"s_subb_u32 s{SPART+1}, s{SPART+1}, 0", f"s_add_u32 s{SPART+2}, s{SPART+2}, 131072")
    if cfg.prioP: A(f"s_setprio {cfg.prioP}")
    fs = fin([raw("s_nop 7")] + p_round3(cfg) + (stamp(cfg, 2)) + p_final_stream(cfg, 32))
    segs = split_segments(fs)
    nr3 = 19 + 1
    txt = [emit(s) for s in segs]
    per = 8 // cfg.fbar
    for k in range(nr3 + 1, nr3 + 1 + 2 * per):
        assert txt[k] == txt[k + per], k
    T += txt[:nr3 + 1]
    A(f"s_mov_b32 s{sCNT}, 0")
    T.append("L_Pfin:")
    T += txt[nr3 + 1:nr3 + 1 + per]
    A(f"s_add_u32 s{sCNT}, s{sCNT}, 1", f"s_cmp_lt_u32 s{sCNT}, 3", "s_cbranch_scc1 L_Pfin")
    T += txt[nr3 + 1 + 3 * per:]
    if cfg.stamps:
        A("s_waitcnt vmcnt(0)")
        ST(3)
    A("s_endpgm")
    T.append("L_cold:")
    variants = {}
    for name, key in SITES.items():
        variants.setdefault(key, f"L_fbr_{key[0]}_{key[1]}_{int(key[2])}")
        T.append(f"L_fb_{name}:")
        A(f"s_call_b64 s[{sRET}:{sRET+1}], {variants[key]}", f"s_branch L_ret_{name}")
    for key, lab in variants.items():
        T.append(f"{lab}:")
        T.append(emit(fallback(*key)))
    T.append("L_end:")
    A("s_endpgm")
    return T

def reduce_kernel(cfg):
    T = []
    A = lambda *a: T.extend("    " + x for x in a)
    T += [".globl attn_reduce_kernel", ".p2align 8", ".type attn_reduce_kernel,@function", "attn_reduce_kernel:"]
    A("s_cmp_ge_u32 s2, 256", "s_cbranch_scc1 L_rend")
    if cfg.stamps: A("s_memrealtime s[40:41]")
    A("s_load_dwordx2 s[4:5], s[0:1], 80", "s_load_dwordx2 s[6:7], s[0:1], 96")
    A("s_lshr_b32 s18, s2, 3", "s_and_b32 s19, s2, 7")
    A("s_lshl_b32 s20, s18, 21", "s_lshl_b32 s21, s19, 17", "s_add_u32 s20, s20, s21", "s_add_u32 s20, s20, 0x100000")
    A("v_lshrrev_b32 v1, 6, v0", "v_and_b32 v2, 63, v0", "v_lshlrev_b32 v3, 4, v2", "v_lshl_add_u32 v3, v1, 11, v3")
    A("s_waitcnt lgkmcnt(0)")
    A(*srd_off(8, 6, 7, "s20", 131072))
    for src in range(8):
        A(f"s_mov_b32 s22, {src*16384}")
        for pair in range(2):
            b = 16 + (src * 2 + pair) * 4
            A(f"buffer_load_dwordx4 v[{b}:{b+3}], v3, s[8:11], s22 offen offset:{pair*1024} {cfg.rflags}")
    A(*srd(12, 4, 5, 1 << 22))
    A("s_and_b32 s23, s18, 15", "s_lshl_b32 s23, s23, 18", "s_lshr_b32 s24, s18, 4", "s_lshl_b32 s24, s24, 10", "s_add_u32 s23, s23, s24",
      "s_lshl_b32 s24, s19, 7", "s_add_u32 s23, s23, s24")
    A("v_and_b32 v4, 15, v2", "v_lshl_add_u32 v4, v1, 4, v4", "v_lshlrev_b32 v4, 11, v4",
      "v_bfe_u32 v5, v2, 4, 1", "v_lshl_add_u32 v4, v5, 5, v4", "v_lshrrev_b32 v5, 5, v2", "v_lshl_add_u32 v4, v5, 4, v4")
    acc = 80
    for src in range(8):
        A(f"s_waitcnt vmcnt({(7-src)*2})")
        for pair in range(2):
            b = 16 + (src * 2 + pair) * 4
            for i in range(4):
                lo, hi = acc + pair * 8 + 2 * i, acc + pair * 8 + 2 * i + 1
                if src == 0:
                    A(f"v_lshlrev_b32 v{lo}, 16, v{b+i}", f"v_and_b32 v{hi}, 0xffff0000, v{b+i}")
                else:
                    A(f"v_lshlrev_b32 v6, 16, v{b+i}", f"v_and_b32 v7, 0xffff0000, v{b+i}", f"v_add_f32 v{lo}, v{lo}, v6", f"v_add_f32 v{hi}, v{hi}, v7")
    for pair in range(2):
        a = acc + pair * 8
        for i in range(4): A(f"v_cvt_pk_bf16_f32 v{16+pair*4+i}, v{a+2*i}, v{a+2*i+1}")
    A("s_nop 1")
    for pair in range(2):
        d = 16 + pair * 4
        A(f"v_permlane16_swap_b32 v{d}, v{d+2}", f"v_permlane16_swap_b32 v{d+1}, v{d+3}")
        A(f"buffer_store_dwordx4 v[{d}:{d+3}], v4, s[12:15], s23 offen offset:{pair*64} {cfg.outflags}")
    if cfg.stamps and not cfg.series:
        A("s_waitcnt vmcnt(0)", "s_memrealtime s[42:43]", "s_waitcnt lgkmcnt(0)")
        A(*srd_off(8, 6, 7, WS_BYTES - (1 << 20), 1 << 20))
        A("s_lshl_b32 s22, s2, 8", "v_mov_b32 v4, s40", "v_mov_b32 v5, s41", "v_mov_b32 v6, s42", "v_mov_b32 v7, s43",
          "v_cmp_eq_u32 vcc, 0, v0", "s_and_saveexec_b64 s[34:35], vcc", "s_cbranch_execz L_rend",
          "buffer_store_dwordx4 v[4:7], v0, s[8:11], s22 offen offset:32")
    T.append("L_rend:")
    A("s_endpgm")
    return T

def kd(name, vgpr, sgpr):
    return [".p2align 6", f".amdhsa_kernel {name}", f"  .amdhsa_next_free_vgpr {vgpr}", f"  .amdhsa_next_free_sgpr {sgpr}",
            f"  .amdhsa_accum_offset {(vgpr+3)//4*4}", "  .amdhsa_group_segment_fixed_size 0", "  .amdhsa_kernarg_size 104",
            "  .amdhsa_user_sgpr_count 2", "  .amdhsa_user_sgpr_kernarg_segment_ptr 1", "  .amdhsa_system_sgpr_workgroup_id_x 1",
            ".end_amdhsa_kernel"]

def generate(cfg, path):
    SITES.clear()
    T = header()
    if cfg.fused:
        T += ["; @launch grid=(256,1,1) block=(512,1,1) lds=163840"]
    else:
        T += ["; @launch kernel=attn_main_kernel grid=(256,1,1) block=(512,1,1) lds=163840",
              "; @launch kernel=attn_reduce_kernel grid=(256,1,1) block=(512,1,1) lds=0"]
    T += ['.amdgcn_target "amdgcn-amd-amdhsa--gfx950"', ".text"]
    T += main_kernel(cfg)
    if not cfg.fused: T += reduce_kernel(cfg)
    T += ['.section .rodata,"a"'] + kd("attn_main_kernel", 256, 102)
    if not cfg.fused: T += kd("attn_reduce_kernel", 96, 48)
    txt = "\n".join(T) + "\n"
    if cfg.fused: txt = txt.replace("attn_main_kernel", NAME + "_kernel")
    open(path, "w").write(txt)

if __name__ == "__main__":
    cfg = Cfg()
    out = "k.s"
    for a in sys.argv[1:]:
        if "=" in a:
            k, v = a.split("=", 1)
            cur = getattr(cfg, k)
            setattr(cfg, k, (v not in ("0", "False")) if isinstance(cur, bool) else type(cur)(v))
        else:
            out = a
    generate(cfg, out)
```

```python
import sys, math, struct
from asmlib import *

NAME = "concat_heads__mha_block_cached__mha_block_cached__near_ridge"
WS_BYTES = 289406976
def f2u(x): return struct.unpack("<I", struct.pack("<f", x))[0]

KB0, VB0, WB0, XB, YB = 0, 32768, 65536, 98304, 131072
DROP = 0x30000
OOB = 0x40000000
SK, SV, SWQ, SWO, SX, SPART = 8, 12, 16, 20, 24, 32
sW, sQB, sCNT, sBND, sSCL, sKo, sVo, sWc, sT, sM0, sWm0, sRET = 36, 37, 38, 39, 40, 41, 42, 43, 44, 45, 46, 48
sPo, sCol, sPo1, sX16, sROT, sKn, sVn, sWn, sKs, sVs = 50, 51, 52, 53, 59, 28, 29, 30, 54, 55
sFm0 = 31
sKVm0 = 47
SFLG, SDBG, SOUT = 72, 76, 80
sFv = 84
vFlag = 240
FLG = 0x4800000
aW3 = 248
aX = 253
def Qf(s, qs): return 8 + (s * 2 + qs) * 4
def Oa(dt, qs): return 40 + (dt * 2 + qs) * 4
def Sr(n, kt, qs):
    if kt < 2: return 104 + (kt * 2 + qs) * 4
    return 120 + (n & 1) * 16 + ((kt - 2) * 2 + qs) * 4
def Pf(n, u, qs):
    if u == 0: return 152 + (n & 1) * 8 + qs * 4
    return 168 + qs * 4
def NM(qs): return 176 + qs * 4
def FR(f): return 184 + (f & 7) * 4
TMP = 216
vL, vLS, vTS = 232, 234, 236
aK, aV, aQ, aO, vLane = 238, 242, 250, 251, 252
def Bf(s, qs): return 8 + (s * 2 + qs) * 4
def Ac(mt, qs): return 136 + (mt * 2 + qs) * 4
HLD = 168
aW, aW2, vKo, vVo, vWq, vWo, aQw, vXo = 232, 236, 242, 243, 244, 245, 246, 247

BAR_IDX = 19

class Cfg:
    stamps = False
    kvflags = "nt"
    wflags = ""
    pflags = "sc1"
    xflags = ""
    woflags = ""
    rflags = ""
    outflags = ""
    force_fb = False
    mapping = 2
    rot = True
    codepf = True
    wopf = True
    prioA = 0
    cal_pro = 0
    cal_main = 0
    cal_end = 0
    cal_mid = 0
    cal_wg = -1
    fused = True
    lastbar = 26
    flagc = 0
    flaglag = 1
    pdup = 0
    plead = 2
    pwflags = ""
    krot = False
    series = False
    prioM = 0
    ppace = 0
    nopm = False
    nodma = False
    noav = False
    barq = 19
    barp = 23
    locap = 2
    pf0 = 28
    fbar = 1
    fwait = 2
    fburst = 1
    prioP = 0
    nokv = False
    nowq = False
    nowo = False
    nops = False

def stamp(cfg, idx):
    if not cfg.stamps: return []
    return [S("s_memrealtime s[60:61]"), S("s_memtime s[94:95]"), raw("s_waitcnt lgkmcnt(0)", "lgkm0"),
            raw("v_mov_b32 v2, s60"), raw("v_mov_b32 v3, s61"), raw("v_mov_b32 v4, 0"),
            raw("v_mov_b32 v6, s94"), raw("v_mov_b32 v7, s95"),
            S("s_mov_b64 s[62:63], exec"), S("s_mov_b64 exec, 1"),
            raw(f"buffer_store_dwordx2 v[2:3], v4, s[64:67], s68 offen offset:{idx*8}"),
            raw(f"buffer_store_dwordx2 v[6:7], v4, s[64:67], s68 offen offset:{idx*8+64}"),
            S("s_mov_b64 exec, s[62:63]")]

def softmax_part(n, part):
    L = []
    for qs in range(2):
        for k in range(2):
            s = Sr(n, 2 * part + k, qs)
            e = [TMP + k * 4 + i for i in range(4)]
            for i in range(4): L.append(vexp(e[i], s + i))
            if k == 0:
                L.append(valu("v_add_f32", vTS + qs, e[0], e[1]))
            else:
                L.append(valu("v_add_f32", vTS + qs, vTS + qs, e[0]))
                L.append(valu("v_add_f32", vTS + qs, vTS + qs, e[1]))
            L.append(cvtpk(Pf(n, part, qs) + 2 * k, e[0], e[1]))
            L.append(valu("v_add_f32", vTS + qs, vTS + qs, e[2]))
            L.append(valu("v_add_f32", vTS + qs, vTS + qs, e[3]))
            L.append(cvtpk(Pf(n, part, qs) + 2 * k + 1, e[2], e[3]))
    return L

def l_update(n, part):
    t = n & 7
    if t == 0 and part == 0:
        return [valu("v_mov_b32", vL + qs, vTS + qs) for qs in range(2)]
    if t == 7 and part == 1:
        return [valu("v_add_f32", vLS + qs, vL + qs, vTS + qs) for qs in range(2)]
    return [valu("v_add_f32", vL + qs, vL + qs, vTS + qs) for qs in range(2)]

SITES = {}
def check_pre(n):
    if (n & 7) == 0: return []
    return [valu("v_max_f32", TMP + 8, vTS, vTS + 1), I(f"v_cmp_lt_f32 vcc, s{sBND}, v{TMP+8}", "valu", (), {TMP + 8})]
def check(n, part, sfx):
    t = n & 7
    if t == 0: return []
    name = f"{sfx}{t}_{part}"
    SITES[name] = (n & 1, part, t == 7)
    return [raw(f"s_cbranch_vccnz L_fb_{name}"), label(f"L_ret_{name}")]

def xgroup(op, x, t):
    return [valu("v_mov_b32", t, x), swap32(t, x), valu(op, x, x, t),
            valu("v_mov_b32", t, x), swap16(t, x), valu(op, x, x, t)]

def rowmax(dst, srcs):
    L = [valu("v_max3_f32", dst, srcs[0], srcs[1], srcs[2])]
    rest = srcs[3:]
    while len(rest) >= 2:
        L.append(valu("v_max3_f32", dst, dst, rest[0], rest[1])); rest = rest[2:]
    if rest: L.append(valu("v_max_f32", dst, dst, rest[0]))
    return L

def zipl(a, b):
    out = []
    for i in range(max(len(a), len(b))):
        if i < len(a): out.append(a[i])
        if i < len(b): out.append(b[i])
    return out

def first_tile_max(n):
    per = []
    for qs in range(2):
        m, t = TMP + 8 + qs, TMP + 10 + qs
        srcs = [Sr(n, kt, qs) + i for kt in range(4) for i in range(4)]
        L = rowmax(m, srcs) + xgroup("v_max_f32", m, t)
        L += [valu("v_sub_f32", s, s, m) for s in srcs[:8]]
        per.append(L)
    L = zipl(per[0], per[1])
    late = []
    for qs in range(2):
        m = TMP + 8 + qs
        late += [valu("v_sub_f32", NM(qs) + i, "0", m) for i in range(4)]
        late += [valu("v_sub_f32", s, s, m) for s in [Sr(n, kt, qs) + i for kt in (2, 3) for i in range(4)]]
    return L, late

def o_epilogue(cfg):
    per = []
    for qs in range(2):
        per.append(xgroup("v_add_f32", vLS + qs, TMP + 12 + qs) + [vrcp(vLS + qs, vLS + qs)])
    L = zipl(per[0], per[1])
    k = 0
    for s in range(4):
        for qs in range(2):
            q = TMP + 8 + (k & 1) * 4
            for h in range(2):
                o = Oa(2 * s + h, qs)
                for i in range(4): L.append(valu("v_mul_f32", o + i, o + i, vLS + qs))
                L.append(cvtpk(q + 2 * h, o, o + 1)); L.append(cvtpk(q + 2 * h + 1, o + 2, o + 3))
            L.append(ds_w128(aO, q, (s * 2 + qs) * 1024))
            k += 1
    return L

def k_read(n, f): return [ds_r128(FR(f), aK + (f & 3), KB0 + (n & 1) * 16384 + (f >> 2) * 4096)]
def v_read(n, f):
    dt, u = f >> 1, f & 1
    o = VB0 + (n & 1) * 16384 + u * 8192
    return [ds_tr(FR(f), aV + dt, o), ds_tr(FR(f) + 2, aV + dt, o + 4096)]

NT = 32
def units(i):
    if i.k == "label" or "vmcnt" in i.t: return 0
    return 2 if i.k == "trans" else 1

def schedule(main, ds, blocks, fixed, lo_cap=2):
    fill = []
    ds = list(ds)
    n = len(main)
    used = [0] * (n + 64)
    for p, L in fixed.items(): used[p] += sum(units(i) for i in L)
    for p in range(1, n):
        if main[p] is not None and main[p].tag: used[p - 1] += 1
    g = 0
    cnt = {}
    bars = sorted(p for p, L in fixed.items() if any(i.k == "lgkm0" for i in L))
    for e, ins in ds:
        g = max(g, e)
        while cnt.get(g, 0) >= (1 if (g & 1) == 0 else 2) and main[min(g, n - 1)] is not None: g += 1
        nb = [b for b in bars if b >= e]
        assert not nb or g <= nb[0] - 2, (e, g, ins.t)
        cnt[g] = cnt.get(g, 0) + 1
        used[g] += 1
        fill.append((g, 1, ins))
    def conflict(a, b):
        return bool(a.w & (b.r | b.w)) or bool(a.r & b.w) or (not a.w and not a.r) or (not b.w and not b.r) or (a.k == "dsw" and b.k == "dsw")
    def try_place(s, e, L, hi):
        u = list(used); rest = list(L); out = []
        last = None
        for p in range(s, e + 1):
            cap = lo_cap if (p & 1) == 0 else hi
            last = None
            while rest:
                pick = None
                for k in range(min(len(rest), 14)):
                    c = rest[k]
                    if u[p] + units(c) > cap: continue
                    if any(conflict(x, c) for x in rest[:k]): continue
                    if last is not None and last.k == "trans" and c.k != "trans" and last.w & c.r: continue
                    if last is not None and c.k == "perm" and last.w & c.r: continue
                    pick = k; break
                if pick is None: break
                c = rest.pop(pick); u[p] += units(c); out.append((p, 0, c)); last = c
        return (u, out) if not rest else None
    for (s, e, L) in blocks:
        hi = lo_cap
        while True:
            r = try_place(s, e, L, hi)
            if r: break
            hi += 1
        used, out = r
        fill += out
    pre = [(p, i) for (p, o, i) in fill]
    return pre

def a_stream(cfg):
    qrd = lambda: [ds_r128(Qf(s, qs), aQ, (s * 2 + qs) * 1024) for s in range(4) for qs in range(2)]
    pre = qrd()
    for f in range(8): pre += k_read(0, f)
    main, ds, blocks, fixed = [], [], [], {}
    BQ, BP = cfg.barq, cfg.barp
    for n in range(NT + 1):
        t = n & 7
        sfx = "T" if n >= NT else "L"
        real = n < NT
        b0 = 64 * n
        for kt in range(4):
            for qs in range(2):
                for s in range(4):
                    c = Sr(n, kt, qs) if s else (None if t == 0 else NM(qs))
                    dep = [FR(4 * kt + x) for x in range(4)] if (qs == 0 and s == 0) else ()
                    main.append(mfma(Sr(n, kt, qs), FR(4 * kt + s), Qf(s, qs), c, dep) if real else None)
        if real:
            for f in range(8, 16):
                ds += [(b0 + 4 + (f & 3) + 8 * ((f - 8) >> 2), i) for i in k_read(n, f)]
        if n >= 1:
            va = softmax_part(n - 1, 1) + check_pre(n - 1)
            if t == 1 and n > 8: va = va[:12] + zipl(o_epilogue(cfg), va[12:])
            blocks.append((b0, b0 + 30, va))
        if n == 0:
            fixed[b0 + 7] = [barrier()]
            fixed[b0 + 13] = [barrier()]
        fixed[b0 + BQ] = ([vmcnt(4)] if n == 1 else []) + [lgkm0(), barrier()]
        if n >= 1:
            for f in range(8):
                ds += [(b0 + max(BQ + 1, 20 + (f & 3) + 8 * (f >> 2)), i) for i in v_read(n - 1, f)]
            fixed[b0 + 31] = check(n - 1, 1, sfx) + l_update(n - 1, 1)
        realpv = n >= 1
        m = n - 1
        b1 = b0 + 32
        for dt in range(8):
            for (u, qs) in ((0, 0), (1, 0), (1, 1), (0, 1)):
                firstk = (u == 0 and qs == 0) or (u == 1 and qs == 1)
                c = None if ((m & 7) == 0 and firstk) else Oa(dt, qs)
                dep = [FR(2 * dt + 1)] if (u == 0 and qs == 0) else ()
                main.append(mfma(Oa(dt, qs), FR(2 * dt + u), Pf(m, u, qs), c, dep) if realpv else None)
        qq = qrd() if t == 7 else []
        if realpv:
            for p in range(4):
                ds += [(b1 + 2 + 4 * p, i) for i in v_read(m, 9 + 2 * p)] + [(b1 + 3 + 4 * p, i) for i in v_read(m, 8 + 2 * p)]
                ds += [(b1, i) for i in qq[2 * p:2 * p + 2]]
        if real:
            va = softmax_part(n, 0) + check_pre(n)
            if t == 0:
                early, late = first_tile_max(n)
                blocks.append((b1 + 2, b1 + 30, early + va + late))
            else:
                blocks.append((b1, b1 + 30, va))
        if n < NT:
            fixed[b1 + BP] = ([vmcnt(8 if n == 0 else 0)] if n < 2 else []) + [lgkm0(), barrier()]
        if n + 1 < NT:
            for f in range(8):
                ds += [(b1 + max(BP + 1, 19 + 4 * (f >> 1)), i) for i in k_read(n + 1, f)]
        if real:
            sf2 = "T" if n + 1 >= NT else "L"
            fixed[b1 + 31] = check(n, 0, sf2) + l_update(n, 0)
    fill = schedule(main, ds, blocks, fixed, cfg.locap)
    fill += [(p, i) for p, L in fixed.items() for i in L]
    seq = pre + [i for i in interleave(main, fill) if i is not None]
    seq += o_epilogue(cfg)
    seq += [lgkm0(), barrier()]
    if cfg.noav: seq = [i for i in seq if i.k not in ("valu", "trans", "perm") and "cbranch" not in i.t]
    return seq

def split_segments(seq):
    segs, cur = [], []
    for i in seq:
        cur.append(i)
        if i.k == "barrier":
            segs.append(cur); cur = []
    if cur: segs.append(cur)
    return segs

def fallback(par, part, last):
    n = par + 2
    L = [raw("s_nop 7"), raw("s_nop 3")]
    D, F, T = TMP + 8, TMP + 10, TMP + 12
    kts = range(4) if part == 0 else (2, 3)
    for qs in range(2):
        srcs = [Sr(n, kt, qs) + i for kt in kts for i in range(4)]
        d, f, t = D + qs, F + qs, T + qs
        L += rowmax(d, srcs) + xgroup("v_max_f32", d, t)
        L += [valu("v_max_f32", d, "0", d), valu("v_ceil_f32", d, d), valu("v_sub_f32", t, "0", d), vexp(f, t)]
        L += [valu("v_sub_f32", s, s, d) for s in srcs]
        L += [valu("v_sub_f32", NM(qs) + i, NM(qs) + i, d) for i in range(4)]
        L += [valu("v_mul_f32", vL + qs, vL + qs, f)]
        L += [valu("v_mul_f32", Oa(dt, qs) + i, Oa(dt, qs) + i, f) for dt in range(8) for i in range(4)]
        if part == 1:
            for i in range(4):
                p = Pf(n, 0, qs) + i
                L += [valu("v_lshlrev_b32", t, "16", p), valu("v_and_b32", p, "0xffff0000", p),
                      valu("v_mul_f32", t, t, f), valu("v_mul_f32", p, p, f), cvtpk(p, t, p)]
            if not last:
                L += [valu("v_sub_f32", s, s, d) for s in [Sr(n + 1, kt, qs) + i for kt in range(4) for i in range(4)]]
    L += softmax_part(n, part)
    L += [raw("s_nop 2"), raw(f"s_setpc_b64 s[{sRET}:{sRET+1}]")]
    return fix_hazards(L)

def q_pack(dst):
    L = []
    for mt in range(4):
        for qs in range(2):
            a = Ac(mt, qs); d = dst + (mt * 2 + qs) * 2
            for i in range(4): L.append(valu("v_mul_f32", a + i, f"s{sSCL}", a + i))
            L += [cvtpk(d, a, a + 1), cvtpk(d + 1, a + 2, a + 3)]
    return L
def q_store(src, hf):
    return [ds_w64(aQw, src + (mt * 2 + qs) * 2, hf * 4096 + (mt >> 1) * 2048 + qs * 1024 + (mt & 1) * 512)
            for mt in range(4) for qs in range(2)]

def wc_adv():
    return [S(f"s_add_u32 s{sWn}, s{sWn}, 1"), S(f"s_add_u32 s{sWc}, s{sWc}, 128"), S(f"s_and_b32 s{sWc}, s{sWc}, 0x3803ff"),
            S(f"s_cmp_ge_u32 s{sWn}, 8"), S(f"s_cselect_b32 s{sWc}, {OOB}, s{sWc}"), S(f"s_cselect_b32 s{sWm0}, {DROP}, s{sWm0}")]
def wq_dma(cfg, kc, ks):
    return [m0set(f"s_add_u32 m0, s{sWm0}, {(kc & 3)*8192 + ks*4096}"),
            S(f"s_add_u32 s{sT}, s{sWc}, {kc * (1 << 19) + ks * (1 << 18)}"), S(f"s_and_b32 s{sT}, s{sT}, 0x403fffff"),
            dma(vWq, SWQ, f"s{sT}", 0, cfg.wflags)]
def kv_pre(isK):
    n, o, s = (sKn, sKo, sKs) if isK else (sVn, sVo, sVs)
    return [S(f"s_cmp_lt_u32 s{n}, 30"), S(f"s_cselect_b32 s{s}, s{o}, {OOB}"), S(f"s_cselect_b32 s{sKVm0}, s{sM0}, {DROP}"),
            S(f"s_add_u32 s{n}, s{n}, 1"), S(f"s_add_u32 s{o}, s{o}, 16384"), S(f"s_and_b32 s{o}, s{o}, 0x7ffff")]
def kv_dma(cfg, isK, slot, jj):
    base = (KB0 if isK else VB0) + slot * 16384 + jj * 3072
    return [m0set(f"s_add_u32 m0, s{sKVm0}, {base}"),
            dma(vKo if isK else vVo, SK if isK else SV, f"s{sKs if isK else sVs}", jj * 1024, cfg.kvflags)]
def kv_issue(cfg, isK, slot):
    L = kv_pre(isK)
    for jj in range(4): L += kv_dma(cfg, isK, slot, jj)
    return L

PRO_REG = [YB, VB0, XB, WB0, KB0]
sKR = 58
def Ac2(mt, qs):
    k = mt * 2 + qs
    return HLD + 4 * k if k < 4 else TMP + 4 * (k - 4)

def qwait(q, tags):
    last = max(i for i, t in enumerate(q) if t in tags)
    return vmcnt(len(q) - 1 - last)

def a_prologue(cfg):
    seq, q = [], []
    def wq(kc):
        L = []
        for hf in range(2):
            for ks in range(2):
                L += [m0set(f"s_add_u32 m0, s{sM0}, {PRO_REG[kc % 5] + hf*8192 + ks*4096}"),
                      S(f"s_add_u32 s{sT}, s{sWc}, {kc * (1 << 19) + ks * (1 << 18) + hf * 128}"), S(f"s_and_b32 s{sT}, s{sT}, 0x3fffff"),
                      dma(vWq, SWQ, f"s{sT}", 0, cfg.pwflags)]
        L += x_dma(cfg, kc)
        q.extend([kc] * 8)
        return L
    def two(isK):
        L = []
        s = sKs if isK else sVs
        for slot in range(2):
            L.append(S(f"s_add_u32 s{s}, s{sCol}, {slot * 16384}"))
            for jj in range(4): L += kv_dma(cfg, isK, slot, jj)
        q.extend(["kv"] * 8)
        return L
    first = []
    for kc in range(cfg.plead): first += wq(kc)
    seq.append(S(f"s_mov_b32 s{sKVm0}, s{sM0}"))
    nxt = cfg.plead
    for kc in range(9):
        seq += [qwait(q, {kc}), barrier()]
        while nxt <= min(kc + 3, 7) and nxt <= kc + cfg.plead:
            seq += wq(nxt); nxt += 1
        if kc == 5:
            seq += [S(f"s_add_u32 s{sWc}, s{sWc}, 256"), S(f"s_and_b32 s{sWc}, s{sWc}, 0x3803ff"), S(f"s_add_u32 s{sWm0}, s{sM0}, {WB0}")]
            for c in range(4):
                for ks in range(2): seq += wq_dma(cfg, c, ks)
            q += [8] * 8
        if kc == 6: seq += two(True)
        if kc == 8: seq += two(False)
    return first, seq

def x_dma(cfg, kc):
    L = [m0set(f"s_add_u32 m0, s{sX16}, {PRO_REG[kc % 5] + 16384}"),
         S(f"s_add_u32 s{sT}, s{sKR}, {kc * 128}"), S(f"s_and_b32 s{sT}, s{sT}, 1023")]
    for p in range(4):
        if p: L += [m0set("s_add_u32 m0, m0, 1024"), S(f"s_add_u32 s{sT}, s{sT}, 8192")]
        L.append(dma(vXo, SX, f"s{sT}", 0, cfg.xflags))
    return L

def p_prologue(cfg):
    def base_of(addr):
        return (0, 0) if addr < 65536 else ((1, WB0) if addr < YB else (2, YB))
    def rd(kc, f):
        if kc == 8: return ring_read(0, f)
        hf, mt, ks = f >> 3, (f >> 1) & 3, f & 1
        addr = PRO_REG[kc % 5] + hf * 8192 + ks * 4096
        k, base = base_of(addr)
        a = (aW2, aW, aW3)[k]
        return [ds_tr(FR(f), a + mt, addr - base), ds_tr(FR(f) + 2, a + mt, addr - base + 512)]
    def xrd(kc):
        addr = PRO_REG[kc % 5] + 16384
        k, base = base_of(addr)
        return [ds_r128(Bf(2 * kc + ks, qs), aX + k, addr - base + qs * 2048 + ks * 64) for ks in range(2) for qs in range(2)]
    pre = [barrier()] + stamp(cfg, 4) + xrd(0)
    for f in range(8): pre += rd(0, f)
    main, fill = [], []
    for kc in range(8):
        b0 = 32 * kc
        for g in range(8):
            hf, mt = g >> 2, g & 3
            for (ks, qs) in ((0, 0), (1, 0), (1, 1), (0, 1)):
                firstk = (ks == 0 and qs == 0) or (ks == 1 and qs == 1)
                a = (Ac if hf else Ac2)(mt, qs)
                dep = [FR(2 * g + 1)] if (ks == 0 and qs == 0) else ()
                main.append(mfma(a, FR(2 * g + ks), Bf(2 * kc + ks, qs), None if (kc == 0 and firstk) else a, dep))
            if g == 4:
                fill.append((b0 + 17, barrier()))
                if cfg.stamps and kc in (1, 3, 6): fill += [(b0 + 17, x) for x in stamp(cfg, {1: 5, 3: 6, 6: 7}[kc])]
                if kc < 7: fill += [(b0 + 17 + 2 * k, x) for k, x in enumerate(xrd(kc + 1))]
            k2, f2 = (kc, 2 * g + 8) if g < 4 else (kc + 1, 2 * g - 8)
            r = rd(k2, f2 + 1) + rd(k2, f2)
            fill += [(b0 + 4 * g + 2 + k, x) for k, x in enumerate(r)]
        if kc == 7:
            pk = []
            for mt in range(4):
                for qs in range(2):
                    a = Ac2(mt, qs); d = HLD + (mt * 2 + qs) * 2
                    for i in range(4): pk.append(valu("v_mul_f32", a + i, f"s{sSCL}", a + i))
                    pk += [cvtpk(d, a, a + 1), cvtpk(d + 1, a + 2, a + 3)]
            fill += [(b0 + p, x) for p, x in spread(pk + q_store(HLD, 0), 18, 31)]
    seq = pre + interleave(main, fill)
    pk, st = q_pack(TMP), q_store(TMP, 1)
    for k in range(8): seq += pk[6 * k:6 * k + 6] + [st[k]]
    seq += [lgkm0(), barrier()]
    return seq

def ring_read(kc, f):
    mt, ks = f >> 1, f & 1
    o = (kc & 3) * 8192 + ks * 4096
    return [ds_tr(FR(f), aW + mt, o), ds_tr(FR(f) + 2, aW + mt, o + 512)]

def p_phase(cfg, ph):
    isK = (ph & 1) == 1
    slot = [1, 1, 0, 0, 1, 1, 0, 0][ph]
    main, fill = [], []
    for mt in range(4):
        for (ks, qs) in ((0, 0), (1, 0), (1, 1), (0, 1)):
            firstk = (ks == 0 and qs == 0) or (ks == 1 and qs == 1)
            c = None if (ph == 0 and firstk) else Ac(mt, qs)
            main.append(mfma(Ac(mt, qs), FR(2 * mt + ks), Bf(2 * ph + ks, qs), c))
        fill += [(4 * mt + 2, x) for x in ring_read(ph + 1, 2 * mt + 1)] + [(4 * mt + 3, x) for x in ring_read(ph + 1, 2 * mt)]
    kv = kv_issue(cfg, isK, slot)
    head, rest = kv[:8], kv[8:]
    d = []
    if ph == 4: d += wc_adv()
    for ks in range(2): d += wq_dma(cfg, (ph + 4) & 7, ks)
    fill = [(-1, x) for x in head] + [(k // 2, x) for k, x in enumerate(rest)] + spread(d, 4, 9) + fill
    if cfg.pdup:
        for k in range(cfg.pdup):
            pos = (k * 16) // cfg.pdup
            mt = pos >> 2
            fill.append((4 * mt + 1, mfma(TMP + 4 * (k & 3), FR(2 * mt + (k & 1)), Bf((2 * ph + 5 + k) & 15, k & 1), TMP + 4 * (k & 3))))
            fill.append((4 * mt + 1, ds_tr(248 + 2 * (k & 1), aW + mt, (ph & 3) * 8192 + 512 * (k & 7))))
    if cfg.ppace: fill += [(k, raw(f"s_nop {cfg.ppace - 1}")) for k in range(15)]
    seq = interleave(main, fill) + [vmcnt(12), lgkm0(), barrier()]
    if cfg.nopm: seq = [i for i in seq if i.k not in ("mfma", "dsr")]
    if cfg.nodma: seq = [i for i in seq if i.k not in ("dma",)]
    return seq

def wo_dma(cfg, slot, c, ks, m0reg):
    lds = (XB + slot * 16384 if slot < 4 else (slot - 4) * 16384) + ks * 4096
    return [m0set(f"s_add_u32 m0, s{m0reg}, {lds}"),
            S(f"s_add_u32 s{sT}, s{sCol}, {c * 131072 + ks * 32768}"), S(f"s_and_b32 s{sT}, s{sT}, 0x4007ffff"),
            dma(vWo, SWO, f"s{sT}", 0, cfg.woflags)]

def b_load(pos):
    return [ds_r128(Bf(4 * pos + (fr >> 1), fr & 1), aQw, fr * 1024) for fr in range(8)]

def p_round3(cfg):
    seq = []
    q = [("old", 0)] * 12
    def setbase(base):
        return [S(f"s_lshl_b32 s{sT}, s{sQB}, 13"), S(f"s_add_u32 s{sT}, s{sT}, {base}"), valu("v_add_u32", aQw, f"s{sT}", vLane)]
    phases = []
    for n in range(23, 33):
        phases.append(("E", n))
        if n < 32: phases.append(("O", n))
    for pi, (kind, n) in enumerate(phases):
        tag = ("kv", pi)
        if kind == "E" and n <= 31: seq += kv_issue(cfg, False, n & 1); q += [tag] * 4
        if kind == "O" and n + 2 <= 31: seq += kv_issue(cfg, True, n & 1); q += [tag] * 4
        if (kind, n) == ("E", 23):
            seq += [valu("v_add_u32", aQw, f"{WB0 - YB}", aQw)]
            seq += q_pack(TMP) + q_store(HLD, 0) + q_store(TMP, 1)
        if (kind, n) == ("O", 23):
            seq += setbase(XB) + b_load(0) + setbase(YB) + b_load(1)
        if kind == "E" and 24 <= n <= 27:
            c = n - 24
            for ks in range(4): seq += wo_dma(cfg, c, c, ks, sM0)
            q += [("wo", c)] * 4
        if kind == "O" and cfg.wopf and cfg.pf0 <= n <= cfg.pf0 + 3:
            for i in range(2):
                seq += [S(f"s_add_u32 s{sT}, s56, {((n - cfg.pf0) * 2 + i) * 4096}"), bload(FR(i), vXo, SWO, f"s{sT}", 0, cfg.woflags)]
            q += [("pf", n)] * 2
        if (kind, n) == ("E", 26):
            seq += setbase(WB0) + b_load(2)
        need = [i for i, t in enumerate(q) if (t[0] == "kv" and t[1] <= pi - 2) or (t[0] == "old" and (pi >= 1 or i < 6))]
        seq.append(vmcnt(len(q) - 1 - max(need)))
        seq += [lgkm0(), barrier()]
    seq += [vmcnt(0), barrier()]
    seq += b_load(3)
    return seq

def w_read(slot, f):
    mt, ks = f >> 2, f & 3
    o = (slot & 3) * 16384 + ks * 4096
    a = (aW if slot < 4 else aW2) + mt
    return [ds_tr(FR(f), a, o), ds_tr(FR(f) + 2, a, o + 512)]

def stage(sl, pair, qs):
    return (TMP if (sl & 1) == 0 else HLD) + (pair * 2 + qs) * 4
def part_pack(sl, pair):
    L = []
    for qs in range(2):
        t = stage(sl, pair, qs)
        for h in range(2):
            a = Ac(2 * pair + h, qs)
            L += [cvtpk(t + 2 * h, a, a + 1), cvtpk(t + 2 * h + 1, a + 2, a + 3)]
    return L
def part_store(cfg, sl):
    L = [bstore(stage(sl, pair, qs), vLane, SPART, f"s{sPo1}", (qs * 2 + pair) * 1024, cfg.pflags) for pair in range(2) for qs in range(2)]
    return L + [S(f"s_mov_b32 s{sPo1}, s{sPo}"), S(f"s_add_u32 s{sPo}, s{sPo}, 131072")]

def flag_pub(keep=0):
    return [valu("v_max_i32", vFlag, "0", f"s{sFv}") if False else valu("v_mov_b32", vFlag, f"s{sFv}"), valu("v_max_i32", vFlag, "0", vFlag), vmcnt(keep),
            I(f"buffer_store_dword v{vFlag}, v{vLane}, s[{SFLG}:{SFLG+3}], 0 offen sc1", "vstore", (), {vFlag, vLane}),
            S(f"s_add_u32 s{sFv}, s{sFv}, 1")]

def p_final_stream(cfg, nblk):
    main, fill = [], []
    pre = []
    for f in range(8): pre += w_read(0, f)
    for i in range(nblk):
        c = i & 3; slot = i & 7; sl = i >> 2
        b0 = 32 * i
        for mt in range(4):
            for qs in range(2):
                for ks in range(4):
                    cc = None if (c == 0 and ks == 0) else Ac(mt, qs)
                    dep = [FR(4 * mt + ks + 1)] if (qs == 0 and ks in (0, 2)) else ()
                    if cfg.fwait == 1: dep = [FR(4 * mt + x) for x in range(4)] if (qs == 0 and ks == 0) else ()
                    main.append(mfma(Ac(mt, qs), FR(4 * mt + ks), Bf(4 * c + ks, qs), cc, dep))
        if i % cfg.fbar == 0 and not (cfg.fused and i > cfg.lastbar): fill.append((b0 + 3, barrier()))
        if cfg.fused and c == cfg.flagc:
            fill += [(b0 + 24, x) for x in flag_pub(4 * cfg.flaglag)]
        for mt in range(4):
            sl2, mt2 = (slot, mt + 2) if mt < 2 else ((i + 1) & 7, mt - 2)
            rd = []
            for ks in range(4): rd += w_read(sl2, 4 * mt2 + ks)
            for k, x in enumerate(rd): fill.append((b0 + 8 * mt + 4 + k, x))
        if c == 0:
            fill += [(b0 + p, x) for p, x in spread(part_pack(sl - 1, 1), 4, 13)]
            if cfg.fburst == 1:
                fill += [(b0 + p, x) for p, x in spread(part_store(cfg, sl - 1), 15, 20)]
            elif (sl & 1) == 0:
                fill += [(b0 + p, x) for p, x in spread(part_store(cfg, sl - 2) + part_store(cfg, sl - 1), 15, 26)]
        if c == 3:
            fill += [(b0 + p, x) for p, x in spread(part_pack(sl, 0), 20, 31)]
    seq = pre + interleave(main, fill)
    sl = nblk // 4
    seq += part_pack(sl - 1, 1)
    if cfg.fburst == 2: seq += part_store(cfg, sl - 2)
    seq += part_store(cfg, sl - 1)
    if cfg.fused:
        if cfg.flaglag: seq += flag_pub(4)
        seq += flag_pub(cfg.flaglag)
    return seq

def a_final_iter(cfg):
    seq = []
    fb = cfg.fbar
    for i in range(0, 8, fb):
        seq += [vmcnt(4 * (7 - 2 * fb)), barrier()]
        for k in range(i + 8 - fb, i + 8):
            k &= 7
            for ks in range(4): seq += wo_dma(cfg, k, k & 3, ks, sFm0)
            if (k & 3) == 3: seq.append(S(f"s_add_u32 s{sCol}, s{sCol}, 128"))
    return seq

def a_reduce(cfg):
    T = []
    A = lambda *a: T.extend("    " + x for x in a)
    A("v_lshlrev_b32 v1, 2, v0", "v_and_b32 v4, 15, v0", "v_lshlrev_b32 v4, 11, v4",
      "v_bfe_u32 v5, v0, 4, 1", "v_lshl_add_u32 v4, v5, 5, v4", "v_lshrrev_b32 v5, 5, v0", "v_lshl_add_u32 v4, v5, 4, v4", "v_mov_b32 v3, 0")
    A("s_mov_b32 s85, 0", "s_mov_b32 s86, 0x01010101")
    T.append("L_hs:")
    A(f"buffer_load_dwordx2 v[6:7], v3, s[{SDBG}:{SDBG+3}], 0 offen sc1", "s_add_u32 s85, s85, 1", "s_waitcnt vmcnt(0)",
      "v_and_b32 v6, v6, v7", "v_cmp_eq_u32 vcc, s86, v6", "s_cbranch_vccnz L_hs_ok", "s_cmp_lt_u32 s85, 0x20000", "s_cbranch_scc1 L_hs")
    T.append("L_hs_ok:")
    A(f"s_mov_b32 s87, s{sQB}")
    T.append("L_rs:")
    A("s_mov_b32 s85, 0")
    T.append("L_poll:")
    A(f"buffer_load_dword v6, v1, s[{SFLG}:{SFLG+3}], 0 offen sc1", "s_add_u32 s85, s85, 1", "s_waitcnt vmcnt(0)",
      "v_cmp_lt_u32 vcc, s87, v6", "s_cmp_eq_u32 vcc_lo, 0xff", "s_cbranch_scc1 L_got", "s_cmp_lt_u32 s85, 0x20000", "s_cbranch_scc1 L_poll")
    T.append("L_got:")
    A("s_lshl_b32 s88, s87, 17", "s_lshl_b32 s89, s6, 11", "s_add_u32 s88, s88, s89")
    for src in range(8):
        for pair in range(2):
            b = 16 + (src * 2 + pair) * 4
            A(f"buffer_load_dwordx4 v[{b}:{b+3}], v{vLane}, s[{SPART}:{SPART+3}], s88 offen offset:{pair*1024} sc1")
        if src < 7: A("s_add_u32 s88, s88, 16384")
    A("s_lshl_b32 s89, s87, 7")
    acc = 80
    for src in range(8):
        A(f"s_waitcnt vmcnt({(7-src)*2})")
        for pair in range(2):
            b = 16 + (src * 2 + pair) * 4
            for i in range(4):
                lo, hi = acc + pair * 8 + 2 * i, acc + pair * 8 + 2 * i + 1
                if src == 0:
                    A(f"v_lshlrev_b32 v{lo}, 16, v{b+i}", f"v_and_b32 v{hi}, 0xffff0000, v{b+i}")
                else:
                    A(f"v_lshlrev_b32 v6, 16, v{b+i}", f"v_and_b32 v7, 0xffff0000, v{b+i}", f"v_add_f32 v{lo}, v{lo}, v6", f"v_add_f32 v{hi}, v{hi}, v7")
    for pair in range(2):
        a = acc + pair * 8
        for i in range(4): A(f"v_cvt_pk_bf16_f32 v{8+pair*4+i}, v{a+2*i}, v{a+2*i+1}")
    A("s_nop 1")
    for pair in range(2):
        d = 8 + pair * 4
        A(f"v_permlane16_swap_b32 v{d}, v{d+2}", f"v_permlane16_swap_b32 v{d+1}, v{d+3}")
        A(f"buffer_store_dwordx4 v[{d}:{d+3}], v4, s[{SOUT}:{SOUT+3}], s89 offen offset:{pair*64} {cfg.outflags}")
    A("s_add_u32 s87, s87, 4", "s_cmp_lt_u32 s87, 8", "s_cbranch_scc1 L_rs")
    return T

def fin(seq): return fix_hazards(insert_lgkm(seq))

def header():
    ref = open("cdna_kernels/" + NAME + ".s.ref").read().splitlines()
    return [l for l in ref if l.startswith(";") and "@launch" not in l and "Override" not in l and "grid=ceil" not in l]

def srd(dst, lo, hi, nbytes):
    return [f"s_mov_b32 s{dst}, s{lo}", f"s_mov_b32 s{dst+1}, s{hi}", f"s_mov_b32 s{dst+2}, {nbytes}", f"s_mov_b32 s{dst+3}, 0x20000"]
def srd_off(dst, lo, hi, off, nbytes):
    return [f"s_add_u32 s{dst}, s{lo}, {off}", f"s_addc_u32 s{dst+1}, s{hi}, 0", f"s_mov_b32 s{dst+2}, {nbytes}", f"s_mov_b32 s{dst+3}, 0x20000"]

def main_kernel(cfg):
    T = []
    A = lambda *a: T.extend("    " + x for x in a)
    ST = lambda i: T.append(emit(stamp(cfg, i))) if cfg.stamps else None
    T += [".globl attn_main_kernel", ".p2align 8", ".type attn_main_kernel,@function", "attn_main_kernel:"]
    A("s_cmp_ge_u32 s2, 256", "s_cbranch_scc1 L_end")
    cal = cfg.cal_pro or cfg.cal_main or cfg.cal_end or cfg.cal_mid
    if cal: A("s_memrealtime s[100:101]")
    def CAL(us, lab):
        if not us: return
        T.append(f"{lab}:")
        A("s_memrealtime s[60:61]", "s_waitcnt lgkmcnt(0)", "s_sub_u32 s60, s60, s100", f"s_cmp_lt_u32 s60, {us*100}", f"s_cbranch_scc1 {lab}")
    A("s_load_dwordx8 s[72:79], s[0:1], 0", "s_load_dwordx8 s[80:87], s[0:1], 32", "s_load_dwordx4 s[88:91], s[0:1], 64",
      "s_load_dwordx2 s[92:93], s[0:1], 96", "s_load_dwordx4 s[96:99], s[0:1], 80")
    if cfg.mapping == 0:
        A("s_and_b32 s3, s2, 7", "s_lshr_b32 s4, s2, 3", "s_lshl_b32 s5, s3, 2", "s_lshr_b32 s6, s4, 3", "s_add_u32 s5, s5, s6",
          "s_and_b32 s6, s4, 7", f"s_and_b32 s{sROT}, s3, 3")
    elif cfg.mapping == 1:
        A("s_and_b32 s6, s2, 7", "s_lshr_b32 s5, s2, 3", f"s_and_b32 s{sROT}, s5, 3")
    elif cfg.mapping == 2:
        A("s_and_b32 s3, s2, 7", "s_lshr_b32 s4, s2, 3",
          "s_and_b32 s5, s4, 15", "s_and_b32 s6, s3, 4", "s_lshl_b32 s6, s6, 2", "s_add_u32 s5, s5, s6",
          "s_and_b32 s6, s3, 3", "s_lshl_b32 s6, s6, 1", "s_lshr_b32 s4, s4, 4", "s_add_u32 s6, s6, s4",
          f"s_and_b32 s{sROT}, s5, 3")
    if not cfg.rot: A(f"s_mov_b32 s{sROT}, 0")
    A("s_and_b32 s7, s5, 15")
    A("v_lshrrev_b32 v1, 6, v0", "v_and_b32 v0, 63, v0", f"v_readfirstlane_b32 s{sW}, v1")
    A(f"v_lshlrev_b32 v{vLane}, 4, v0")
    A("s_waitcnt lgkmcnt(0)")
    A("s_cmp_ge_u32 s5, 16")
    for k in range(5):
        A(f"s_cselect_b32 s{72+2*k}, s{82+2*k}, s{72+2*k}", f"s_cselect_b32 s{73+2*k}, s{83+2*k}, s{73+2*k}")
    A("s_lshl_b32 s56, s7, 22", "s_lshl_b32 s57, s6, 19", "s_add_u32 s56, s56, s57")
    A(*srd_off(SK, 74, 75, "s56", 524288)); A(*srd_off(SV, 76, 77, "s56", 524288))
    A("s_lshl_b32 s56, s6, 10")
    A(*srd_off(SWQ, 78, 79, "s56", 0), f"s_sub_u32 s{SWQ+2}, 0x400000, s56")
    A(*srd_off(SWO, 80, 81, "s57", 524288))
    A("s_lshl_b32 s56, s7, 17"); A(*srd_off(SX, 72, 73, "s56", 131072))
    A("s_lshl_b32 s56, s5, 21", "s_add_u32 s56, s56, 0x100000"); A(*srd_off(SPART, 92, 93, "s56", 1 << 20))
    if cfg.fused:
        A("s_lshl_b32 s56, s5, 3"); A(*srd_off(SDBG, 98, 99, "s56", 8))
        A("s_lshl_b32 s56, s7, 18", "s_lshl_b32 s57, s6, 15", "s_add_u32 s56, s56, s57", "s_lshr_b32 s57, s5, 4", "s_lshl_b32 s57, s57, 10",
          "s_add_u32 s56, s56, s57")
        A(*srd_off(SOUT, 96, 97, "s56", 0), f"s_sub_u32 s{SOUT+2}, 0x400000, s56")
    if cfg.nokv: A(f"s_mov_b32 s{SK+2}, 0", f"s_mov_b32 s{SV+2}, 0")
    if cfg.nowq: A(f"s_mov_b32 s{SWQ+2}, 0")
    if cfg.nowo: A(f"s_mov_b32 s{SWO+2}, 0")
    if cfg.nops: A(f"s_mov_b32 s{SPART+2}, 0")
    if cfg.stamps:
        A(*srd_off(64, 92, 93, WS_BYTES - (1 << 20), 1 << 20))
        A(f"s_lshr_b32 s68, s{sW}, 2", "s_lshl_b32 s68, s68, 7", "s_lshl_b32 s69, s2, 8", "s_add_u32 s68, s68, s69",
          f"s_and_b32 s69, s{sW}, 3", "s_cmp_lg_u32 s69, 0", f"s_cselect_b32 s68, {OOB}, s68")
    A(f"s_and_b32 s{sQB}, s{sW}, 3", f"s_lshl_b32 s{sM0}, s{sQB}, 10")
    A(f"s_lshl_b32 s{sCol}, s{sROT}, 17")
    ST(0)
    A("v_and_b32 v1, 15, v0", "v_lshrrev_b32 v2, 4, v0", "v_lshrrev_b32 v3, 2, v1", "v_and_b32 v4, 3, v0")
    def lc16():
        A("v_lshrrev_b32 v5, 3, v0", "v_bfe_u32 v6, v0, 4, 1", f"s_and_b32 s{sT}, s{sQB}, 1", f"s_lshl_b32 s{sT}, s{sT}, 1",
          f"v_or_b32 v6, s{sT}, v6", "v_lshlrev_b32 v6, 1, v6", "v_and_b32 v7, 7, v0", "v_xor_b32 v6, v6, v7", "v_lshlrev_b32 v6, 4, v6")
    def wo_voff():
        lc16()
        A("v_and_b32 v7, 3, v5", "v_lshrrev_b32 v5, 2, v5", "v_lshl_add_u32 v7, v5, 4, v7",
          f"s_lshl_b32 s{sT}, s{sQB}, 2", f"v_add_u32 v7, s{sT}, v7", f"v_lshl_add_u32 v{vWo}, v7, 10, v6")
    def kv_voff():
        A(f"s_lshl_b32 s{sT}, s{sQB}, 2", f"v_add_u32 v5, s{sT}, v2",
          "v_xor_b32 v6, v5, v1", "v_lshlrev_b32 v6, 4, v6",
          f"s_lshl_b32 s{sT}, s{sQB}, 4", f"v_add_u32 v7, s{sT}, v2", "v_lshlrev_b32 v7, 8, v7",
          f"v_add_u32 v{vKo}, v7, v6",
          "v_and_b32 v5, 7, v5", "v_lshlrev_b32 v5, 1, v5", "v_xor_b32 v6, v5, v1", "v_lshlrev_b32 v6, 4, v6", f"v_add_u32 v{vVo}, v7, v6")
    def wq_voff():
        lc16()
        A(f"s_lshl_b32 s{sT}, s{sQB}, 3", f"v_add_u32 v7, s{sT}, v5", f"v_lshl_add_u32 v{vWq}, v7, 13, v6")
    A(f"s_lshl_b32 s{sWc}, s{sROT}, 8")
    if cfg.krot:
        A("s_lshr_b32 s56, s7, 2", "s_lshl_b32 s56, s56, 1", "s_lshl_b32 s57, s6, 2", "s_add_u32 s56, s56, s57",
          "s_bfe_u32 s57, s6, 0x10001", "s_add_u32 s56, s56, s57", "s_and_b32 s56, s56, 7")
    else:
        A("s_mov_b32 s56, 0")
    A(f"s_lshl_b32 s{sKR}, s56, 7", "s_lshl_b32 s56, s56, 19", f"s_add_u32 s{sWc}, s{sWc}, s56")
    A(f"s_cmp_ge_u32 s{sW}, 4", "s_cbranch_scc1 L_P")
    wq_voff()
    A("v_lshrrev_b32 v5, 3, v0", "v_and_b32 v6, 7, v0", "v_xor_b32 v6, v6, v2", "v_lshlrev_b32 v6, 4, v6",
      f"s_lshl_b32 s{sT}, s{sQB}, 5", f"v_add_u32 v5, s{sT}, v5", f"v_lshl_add_u32 v{vXo}, v5, 10, v6")
    A(f"s_lshl_b32 s{sX16}, s{sQB}, 12")
    first, rest = a_prologue(cfg)
    T.append(emit(fin(first)))
    kv_voff()
    T.append(emit(fin(rest)))
    if cfg.prioA: A(f"s_setprio {cfg.prioA}")
    A(f"s_mov_b32 s{sBND}, 0x{f2u(1e-30 if cfg.force_fb else float(1 << 20)):x}")
    for s in range(4):
        A(f"v_add_u32 v5, {4*s}, v2", "v_xor_b32 v5, v5, v1", "v_lshlrev_b32 v5, 4, v5", f"v_lshl_add_u32 v{aK+s}, v1, 8, v5")
    A("v_and_b32 v5, 1, v2", "v_lshl_add_u32 v5, v5, 2, v3",
      "v_lshl_add_u32 v6, v2, 2, v3", "v_lshlrev_b32 v6, 8, v6", "v_lshl_add_u32 v6, v4, 3, v6")
    for dt in range(8):
        A(f"v_xor_b32 v7, {dt}, v5", f"v_lshl_add_u32 v{aV+dt}, v7, 5, v6")
    A(f"s_lshl_b32 s57, s{sQB}, 13", f"s_add_u32 s{sT}, s57, {YB}", f"v_add_u32 v{aQ}, s{sT}, v{vLane}")
    A("s_waitcnt vmcnt(12)", "s_barrier")
    segs = split_segments(fin(a_stream(cfg)))
    txt = [emit(s) for s in segs]
    E = lambda n: 2 + 2 * n
    for k in range(E(2), E(32) - 16):
        assert txt[k] == txt[k + 16], k
    ST(1)
    CAL(cfg.cal_pro, "L_cal1")
    T += txt[:E(2)]
    A(f"s_mov_b32 s{sCNT}, 0")
    T.append("L_Aloop:")
    A(f"s_cmp_lt_u32 s{sCNT}, 2", f"s_cselect_b32 s{sT}, 2, 1", f"s_lshl_b32 s{sT}, s{sT}, 16", f"s_add_u32 s{sT}, s{sT}, s57", f"v_add_u32 v{aQ}, s{sT}, v{vLane}",
      f"v_mov_b32 v{aO}, v{aQ}", f"s_cmp_eq_u32 s{sCNT}, 0", "s_cbranch_scc0 L_Ao",
      f"v_add_u32 v{aO}, {XB - YB}, v{aO}")
    T.append("L_Ao:")
    if cfg.cal_mid:
        A(f"s_cmp_lg_u32 s{sCNT}, 2", "s_cbranch_scc1 L_nocal")
        CAL(cfg.cal_mid, "L_cal4")
        T.append("L_nocal:")
    def sst():
        if cfg.series:
            L = [i for i in stamp(cfg, 0) if "v[6:7]" not in i.t]
            T.append(emit(L)); A("s_add_u32 s68, s68, 8")
    sst(); T += txt[E(2):E(4)]
    sst(); T += txt[E(4):E(6)]
    sst(); T += txt[E(6):E(8)]
    sst()
    A(f"s_cmp_eq_u32 s{sCNT}, 3", "s_cbranch_scc1 L_Atail")
    T += txt[E(8):E(10)]
    A(f"s_add_u32 s{sCNT}, s{sCNT}, 1", "s_branch L_Aloop")
    T.append("L_Atail:")
    if cfg.series: A(f"s_mov_b32 s68, {OOB}")
    T += txt[E(32):]
    CAL(cfg.cal_main, "L_cal2")
    ST(2)
    if cfg.fused:
        A("s_lshl_b32 s56, s5, 2", "s_lshr_b32 s58, s6, 1", "s_add_u32 s56, s56, s58", "s_lshl_b32 s56, s56, 7", f"s_add_u32 s56, s56, {FLG}")
        A(*srd_off(SFLG, 92, 93, "s56", 32))
    wo_voff()
    A(f"s_mov_b32 s{sFm0}, s{sM0}", f"s_add_u32 s{sCol}, s{sCol}, 128")
    d = []
    for i in range(4, 8 - cfg.fbar):
        for ks in range(4): d += wo_dma(cfg, i, i & 3, ks, sFm0)
    T.append(emit(fin(d)))
    A(f"s_mov_b32 s{sCNT}, 0")
    T.append("L_Afin:")
    it = fin(a_final_iter(cfg))
    T.append(emit(it))
    A(f"s_add_u32 s{sCNT}, s{sCNT}, 1", f"s_cmp_lt_u32 s{sCNT}, 3", "s_cbranch_scc1 L_Afin")
    asegs = split_segments(it)
    T.append(emit(asegs[0])); T.append(emit(asegs[1][:-2]))
    nb = ((cfg.lastbar if cfg.fused else 31) - 24) // cfg.fbar
    for k in range(nb):
        left = max(0, 4 * (7 - 2 * cfg.fbar) - 4 * cfg.fbar * k)
        A(f"s_waitcnt vmcnt({0 if k == nb - 1 else left})", "s_barrier")
    if cfg.fused:
        T += a_reduce(cfg)
    if cfg.cal_wg >= 0: A(f"s_cmp_lg_u32 s2, {cfg.cal_wg}", "s_cbranch_scc1 L_end")
    CAL(cfg.cal_end, "L_cal3")
    ST(3)
    A("s_endpgm")
    T.append("L_P:")
    if cfg.codepf:
        A(f"s_cmp_ge_u32 s{sQB}, 2", "s_cbranch_scc1 L_nopf")
        A("s_getpc_b64 s[70:71]")
        T.append("L_pc:")
        A("s_sub_u32 s70, s70, L_pc-attn_main_kernel", "s_subb_u32 s71, s71, 0")
        A("s_lshr_b32 s56, s2, 3", "s_lshl_b32 s56, s56, 11", f"s_add_u32 s56, s56, s{sM0}",
          "s_min_u32 s56, s56, L_cold-attn_main_kernel-1024", f"v_add_u32 v5, s56, v{vLane}",
          f"global_load_dwordx4 v[{FR(0)}:{FR(0)+3}], v5, s[70:71]")
        T.append("L_nopf:")
    if cfg.fused:
        A("s_lshl_b32 s56, s5, 9", "s_lshl_b32 s57, s6, 2", "s_add_u32 s56, s56, s57", f"s_add_u32 s56, s56, {FLG}")
        A(*srd_off(SFLG, 92, 93, "s56", 388))
        A(f"s_cmp_lg_u32 s{sQB}, 3", "s_cbranch_scc1 L_norst")
        A("v_mov_b32 v5, 0", "v_lshlrev_b32 v6, 7, v0", f"buffer_store_dword v5, v6, s[{SFLG}:{SFLG+3}], 0 offen sc1")
        T.append("L_norst:")
    A(f"s_lshl_b32 s{sX16}, s{sQB}, 12")
    A("v_bfe_u32 v5, v1, 1, 2", "v_xor_b32 v5, v5, v2", "v_lshlrev_b32 v5, 4, v5", "v_lshl_add_u32 v5, v1, 7, v5",
      f"v_add_u32 v{aX}, s{sX16}, v5", f"v_add_u32 v{aX+1}, {WB0}, v{aX}", f"v_add_u32 v{aX+2}, {YB}, v{aX}")
    wq_voff()
    A(f"s_add_u32 s{sWc}, s{sWc}, 256", f"s_and_b32 s{sWc}, s{sWc}, 0x3803ff", f"s_add_u32 s{sWm0}, s{sM0}, {WB0}", f"s_mov_b32 s{sWn}, 2")
    A("v_lshrrev_b32 v5, 1, v3", "v_and_b32 v6, 1, v2", "v_lshl_add_u32 v5, v6, 1, v5",
      "v_lshl_add_u32 v6, v2, 3, v3", "v_lshlrev_b32 v6, 7, v6", "v_lshl_add_u32 v6, v4, 3, v6")
    for mt in range(4):
        A(f"v_xor_b32 v7, {mt}, v5", f"v_lshl_add_u32 v{aW2+mt}, v7, 5, v6", f"v_add_u32 v{aW+mt}, {WB0}, v{aW2+mt}",
          f"v_add_u32 v{aW3+mt}, {YB}, v{aW2+mt}")
    kv_voff()
    A("v_lshrrev_b32 v5, 1, v2", "v_lshlrev_b32 v5, 8, v5", "v_lshl_add_u32 v5, v1, 4, v5", "v_and_b32 v6, 1, v2", "v_lshl_add_u32 v5, v6, 3, v5",
      f"s_lshl_b32 s{sT}, s{sQB}, 13", f"s_add_u32 s{sT}, s{sT}, {YB}", f"v_add_u32 v{aQw}, s{sT}, v5")
    wo_voff()
    A(f"s_mov_b32 s{sSCL}, 0x{f2u(math.log2(math.e) / math.sqrt(128.0)):x}")
    A(f"s_mov_b32 s{sKn}, -1", f"s_mov_b32 s{sVn}, -3",
      f"s_add_u32 s{sKo}, s{sCol}, 16384",
      f"s_sub_u32 s{sVo}, s{sCol}, 16384", f"s_and_b32 s{sVo}, s{sVo}, 0x7ffff")
    A(f"s_mov_b32 s{sCNT}, 2", "s_waitcnt vmcnt(0)")
    if cfg.fused:
        A(f"s_cmp_lg_u32 s{sQB}, 3", "s_cbranch_scc1 L_nohs")
        A("v_mov_b32 v5, 1", "v_add_u32 v6, s6, v{0}".format(vLane), f"buffer_store_byte v5, v6, s[{SDBG}:{SDBG+3}], 0 offen sc1")
        T.append("L_nohs:")
        A(f"s_lshl_b32 s56, s{sQB}, 7", f"s_add_u32 s{SFLG}, s{SFLG}, s56", f"s_addc_u32 s{SFLG+1}, s{SFLG+1}, 0", f"s_mov_b32 s{SFLG+2}, 4",
          f"s_mov_b32 s{sFv}, {-cfg.flaglag}")
    T.append(emit(fin(p_prologue(cfg))))
    ST(1)
    if cfg.prioM: A(f"s_setprio {cfg.prioM}")
    A("s_branch L_Pgo")
    T.append("L_Ploop:")
    A(f"s_bitcmp1_b32 s{sCNT}, 0", "s_cbranch_scc0 L_Pwr")
    T.append(emit(fin([raw("s_nop 7")] + q_pack(HLD))))
    A("s_branch L_Pgo")
    T.append("L_Pwr:")
    T.append(emit(fin([raw("s_nop 7")] + q_pack(TMP) + q_store(HLD, 0) + q_store(TMP, 1) + [lgkm0()])))
    T.append("L_Pgo:")
    body = []
    for ph in range(8): body += p_phase(cfg, ph)
    T.append(emit(fin(body)))
    A(f"s_add_u32 s{sCNT}, s{sCNT}, 1", f"s_cmp_lt_u32 s{sCNT}, 8", "s_cbranch_scc1 L_Ploop")
    A("s_lshl_b32 s56, s7, 15", f"v_add_u32 v{vXo}, s{sM0}, v{vLane}")
    for mt in range(4): A(f"v_add_u32 v{aW+mt}, {XB}, v{aW2+mt}")
    A("s_lshl_b32 s58, s6, 14", f"s_lshl_b32 s{sPo}, s{sQB}, 12", f"s_add_u32 s{sPo}, s{sPo}, s58", f"s_mov_b32 s{sPo1}, {OOB}")
    if cfg.fburst == 2:
        A(f"s_sub_u32 s{SPART}, s{SPART}, 131072", f"s_subb_u32 s{SPART+1}, s{SPART+1}, 0", f"s_add_u32 s{SPART+2}, s{SPART+2}, 131072")
    if cfg.prioP: A(f"s_setprio {cfg.prioP}")
    fs = fin([raw("s_nop 7")] + p_round3(cfg) + (stamp(cfg, 2)) + p_final_stream(cfg, 32))
    segs = split_segments(fs)
    nr3 = 19 + 1
    txt = [emit(s) for s in segs]
    per = 8 // cfg.fbar
    for k in range(nr3 + 1, nr3 + 1 + 2 * per):
        assert txt[k] == txt[k + per], k
    T += txt[:nr3 + 1]
    A(f"s_mov_b32 s{sCNT}, 0")
    T.append("L_Pfin:")
    T += txt[nr3 + 1:nr3 + 1 + per]
    A(f"s_add_u32 s{sCNT}, s{sCNT}, 1", f"s_cmp_lt_u32 s{sCNT}, 3", "s_cbranch_scc1 L_Pfin")
    T += txt[nr3 + 1 + 3 * per:]
    if cfg.stamps:
        A("s_waitcnt vmcnt(0)")
        ST(3)
    A("s_endpgm")
    T.append("L_cold:")
    variants = {}
    for name, key in SITES.items():
        variants.setdefault(key, f"L_fbr_{key[0]}_{key[1]}_{int(key[2])}")
        T.append(f"L_fb_{name}:")
        A(f"s_call_b64 s[{sRET}:{sRET+1}], {variants[key]}", f"s_branch L_ret_{name}")
    for key, lab in variants.items():
        T.append(f"{lab}:")
        T.append(emit(fallback(*key)))
    T.append("L_end:")
    A("s_endpgm")
    return T

def reduce_kernel(cfg):
    T = []
    A = lambda *a: T.extend("    " + x for x in a)
    T += [".globl attn_reduce_kernel", ".p2align 8", ".type attn_reduce_kernel,@function", "attn_reduce_kernel:"]
    A("s_cmp_ge_u32 s2, 256", "s_cbranch_scc1 L_rend")
    if cfg.stamps: A("s_memrealtime s[40:41]")
    A("s_load_dwordx2 s[4:5], s[0:1], 80", "s_load_dwordx2 s[6:7], s[0:1], 96")
    A("s_lshr_b32 s18, s2, 3", "s_and_b32 s19, s2, 7")
    A("s_lshl_b32 s20, s18, 21", "s_lshl_b32 s21, s19, 17", "s_add_u32 s20, s20, s21", "s_add_u32 s20, s20, 0x100000")
    A("v_lshrrev_b32 v1, 6, v0", "v_and_b32 v2, 63, v0", "v_lshlrev_b32 v3, 4, v2", "v_lshl_add_u32 v3, v1, 11, v3")
    A("s_waitcnt lgkmcnt(0)")
    A(*srd_off(8, 6, 7, "s20", 131072))
    for src in range(8):
        A(f"s_mov_b32 s22, {src*16384}")
        for pair in range(2):
            b = 16 + (src * 2 + pair) * 4
            A(f"buffer_load_dwordx4 v[{b}:{b+3}], v3, s[8:11], s22 offen offset:{pair*1024} {cfg.rflags}")
    A(*srd(12, 4, 5, 1 << 22))
    A("s_and_b32 s23, s18, 15", "s_lshl_b32 s23, s23, 18", "s_lshr_b32 s24, s18, 4", "s_lshl_b32 s24, s24, 10", "s_add_u32 s23, s23, s24",
      "s_lshl_b32 s24, s19, 7", "s_add_u32 s23, s23, s24")
    A("v_and_b32 v4, 15, v2", "v_lshl_add_u32 v4, v1, 4, v4", "v_lshlrev_b32 v4, 11, v4",
      "v_bfe_u32 v5, v2, 4, 1", "v_lshl_add_u32 v4, v5, 5, v4", "v_lshrrev_b32 v5, 5, v2", "v_lshl_add_u32 v4, v5, 4, v4")
    acc = 80
    for src in range(8):
        A(f"s_waitcnt vmcnt({(7-src)*2})")
        for pair in range(2):
            b = 16 + (src * 2 + pair) * 4
            for i in range(4):
                lo, hi = acc + pair * 8 + 2 * i, acc + pair * 8 + 2 * i + 1
                if src == 0:
                    A(f"v_lshlrev_b32 v{lo}, 16, v{b+i}", f"v_and_b32 v{hi}, 0xffff0000, v{b+i}")
                else:
                    A(f"v_lshlrev_b32 v6, 16, v{b+i}", f"v_and_b32 v7, 0xffff0000, v{b+i}", f"v_add_f32 v{lo}, v{lo}, v6", f"v_add_f32 v{hi}, v{hi}, v7")
    for pair in range(2):
        a = acc + pair * 8
        for i in range(4): A(f"v_cvt_pk_bf16_f32 v{16+pair*4+i}, v{a+2*i}, v{a+2*i+1}")
    A("s_nop 1")
    for pair in range(2):
        d = 16 + pair * 4
        A(f"v_permlane16_swap_b32 v{d}, v{d+2}", f"v_permlane16_swap_b32 v{d+1}, v{d+3}")
        A(f"buffer_store_dwordx4 v[{d}:{d+3}], v4, s[12:15], s23 offen offset:{pair*64} {cfg.outflags}")
    if cfg.stamps and not cfg.series:
        A("s_waitcnt vmcnt(0)", "s_memrealtime s[42:43]", "s_waitcnt lgkmcnt(0)")
        A(*srd_off(8, 6, 7, WS_BYTES - (1 << 20), 1 << 20))
        A("s_lshl_b32 s22, s2, 8", "v_mov_b32 v4, s40", "v_mov_b32 v5, s41", "v_mov_b32 v6, s42", "v_mov_b32 v7, s43",
          "v_cmp_eq_u32 vcc, 0, v0", "s_and_saveexec_b64 s[34:35], vcc", "s_cbranch_execz L_rend",
          "buffer_store_dwordx4 v[4:7], v0, s[8:11], s22 offen offset:32")
    T.append("L_rend:")
    A("s_endpgm")
    return T

def kd(name, vgpr, sgpr):
    return [".p2align 6", f".amdhsa_kernel {name}", f"  .amdhsa_next_free_vgpr {vgpr}", f"  .amdhsa_next_free_sgpr {sgpr}",
            f"  .amdhsa_accum_offset {(vgpr+3)//4*4}", "  .amdhsa_group_segment_fixed_size 0", "  .amdhsa_kernarg_size 104",
            "  .amdhsa_user_sgpr_count 2", "  .amdhsa_user_sgpr_kernarg_segment_ptr 1", "  .amdhsa_system_sgpr_workgroup_id_x 1",
            ".end_amdhsa_kernel"]

def generate(cfg, path):
    SITES.clear()
    T = header()
    if cfg.fused:
        T += ["; @launch grid=(256,1,1) block=(512,1,1) lds=163840"]
    else:
        T += ["; @launch kernel=attn_main_kernel grid=(256,1,1) block=(512,1,1) lds=163840",
              "; @launch kernel=attn_reduce_kernel grid=(256,1,1) block=(512,1,1) lds=0"]
    T += ['.amdgcn_target "amdgcn-amd-amdhsa--gfx950"', ".text"]
    T += main_kernel(cfg)
    if not cfg.fused: T += reduce_kernel(cfg)
    T += ['.section .rodata,"a"'] + kd("attn_main_kernel", 256, 102)
    if not cfg.fused: T += kd("attn_reduce_kernel", 96, 48)
    txt = "\n".join(T) + "\n"
    if cfg.fused: txt = txt.replace("attn_main_kernel", NAME + "_kernel")
    open(path, "w").write(txt)

if __name__ == "__main__":
    cfg = Cfg()
    out = "k.s"
    for a in sys.argv[1:]:
        if "=" in a:
            k, v = a.split("=", 1)
            cur = getattr(cfg, k)
            setattr(cfg, k, (v not in ("0", "False")) if isinstance(cur, bool) else type(cur)(v))
        else:
            out = a
    generate(cfg, out)
```

```python
import re

def R(base, n=1):
    return f"v{base}" if n == 1 else f"v[{base}:{base+n-1}]"
def regs(base, n=1):
    return set(range(base, base + n))

class I:
    __slots__ = ("t", "k", "w", "r", "c", "tag", "vt")
    def __init__(self, t, k="other", w=(), r=(), c=(), tag=None):
        self.t = t; self.k = k; self.w = set(w); self.r = set(r); self.c = set(c); self.tag = tag; self.vt = None

def mfma(d, a, b, c, dep=()):
    cs = "0" if c is None else R(c, 4)
    ex = set()
    for x in dep: ex |= regs(x, 4)
    return I(f"v_mfma_f32_16x16x32_bf16 {R(d,4)}, {R(a,4)}, {R(b,4)}, {cs}", "mfma", regs(d, 4), regs(a, 4) | regs(b, 4),
             () if c is None else regs(c, 4), tag=ex)
def valu(op, d, *srcs, kind="valu", extra_r=()):
    rd = set(extra_r)
    ss = []
    for s in srcs:
        if isinstance(s, int):
            ss.append(f"v{s}"); rd.add(s)
        else:
            ss.append(s)
            m = re.fullmatch(r"-?v(\d+)", s)
            if m: rd.add(int(m.group(1)))
    return I(f"{op} v{d}, " + ", ".join(ss), kind, {d}, rd)
def vexp(d, s): return valu("v_exp_f32", d, s, kind="trans")
def vrcp(d, s): return valu("v_rcp_f32", d, s, kind="trans")
def cvtpk(d, lo, hi): return valu("v_cvt_pk_bf16_f32", d, lo, hi)
def swap32(a, b): return I(f"v_permlane32_swap_b32 v{a}, v{b}", "perm", {a, b}, {a, b})
def swap16(a, b): return I(f"v_permlane16_swap_b32 v{a}, v{b}", "perm", {a, b}, {a, b})
def ds_r128(d, addr, off): return I(f"ds_read_b128 {R(d,4)}, v{addr} offset:{off}", "dsr", regs(d, 4), {addr})
def ds_tr(d, addr, off): return I(f"ds_read_b64_tr_b16 {R(d,2)}, v{addr} offset:{off}", "dsr", regs(d, 2), {addr})
def ds_w64(addr, s, off): return I(f"ds_write_b64 v{addr}, {R(s,2)} offset:{off}", "dsw", (), {addr} | regs(s, 2))
def ds_w128(addr, s, off): return I(f"ds_write_b128 v{addr}, {R(s,4)} offset:{off}", "dsw", (), {addr} | regs(s, 4))
def S(t): return I(t, "salu")
def raw(t, k="other"): return I(t, k)
def label(n): return I(f"{n}:", "label")
def barrier(): return I("s_barrier", "barrier")
def lgkm0(): return I("s_waitcnt lgkmcnt(0)", "lgkm0")
def vmcnt(n): return I(f"s_waitcnt vmcnt({n})", "other")
def dma(voff, srd, soff, imm=0, flags=""):
    o = f" offset:{imm}" if imm else ""
    f = f" {flags}" if flags else ""
    return I(f"buffer_load_dwordx4 v{voff}, s[{srd}:{srd+3}], {soff} offen{o}{f} lds", "dma", (), {voff})
def bload(d, voff, srd, soff, imm=0, flags=""):
    o = f" offset:{imm}" if imm else ""
    f = f" {flags}" if flags else ""
    return I(f"buffer_load_dwordx4 {R(d,4)}, v{voff}, s[{srd}:{srd+3}], {soff} offen{o}{f}", "vload", regs(d, 4), {voff})
def bstore(s, voff, srd, soff, imm=0, flags="", n=4):
    o = f" offset:{imm}" if imm else ""
    f = f" {flags}" if flags else ""
    return I(f"buffer_store_dwordx{n} {R(s,n)}, v{voff}, s[{srd}:{srd+3}], {soff} offen{o}{f}", "vstore", (), {voff} | regs(s, n), tag=regs(s, n))

def insert_lgkm(seq):
    out = []
    q = []
    for ins in seq:
        if ins.k == "lgkm0":
            q = []
            out.append(ins); continue
        touched = ins.r | ins.c | ins.w
        if ins.k == "mfma" and ins.tag: touched = touched | ins.tag
        need = None
        for idx, dst in enumerate(q):
            if dst & touched:
                need = idx
        if need is not None:
            n = len(q) - 1 - need
            n = min(n, 15)
            out.append(I(f"s_waitcnt lgkmcnt({n})", "other"))
            q = q[len(q) - n:] if n else []
        if ins.k == "dsr":
            q.append(set(ins.w))
        elif ins.k == "dsw":
            q.append(set())
        out.append(ins)
    return out

def states(ins):
    if ins.k == "label": return 0
    m = re.match(r"s_nop (\d+)", ins.t)
    if m: return int(m.group(1)) + 1
    return 1

VALU_KINDS = ("valu", "trans", "perm")
def fix_hazards(seq, wrap=0):
    out = []
    hist = list(seq[-wrap:]) if wrap else []
    base = len(hist)
    def need_for(ins):
        need = 0
        dist = 0
        for prev in reversed(hist):
            req = 0
            if prev.k in VALU_KINDS:
                if ins.k == "mfma" and prev.w & (ins.r | ins.c): req = max(req, 2)
                if ins.k == "perm" and prev.w & ins.r: req = max(req, 2)
                if prev.k == "trans" and ins.k in VALU_KINDS + ("vstore", "dsw") and ins.k != "trans" and prev.w & ins.r: req = max(req, 1)
                if ins.k == "rfl" and prev.w & ins.r: req = max(req, 1)
            if prev.k == "mfma":
                if ins.k == "mfma":
                    if prev.w & ins.r: req = max(req, 8)
                    if prev.w & ins.c and prev.w != ins.c: req = max(req, 6)
                    if prev.w & ins.w and prev.w != ins.c: req = max(req, 8)
                elif prev.w & (ins.r | ins.w): req = max(req, 8)
                if ins.k in VALU_KINDS and prev.c & ins.w: req = max(req, 3)
            if prev.k == "vstore" and prev.tag and len(prev.tag) >= 3 and prev.tag & ins.w: req = max(req, 2)
            if prev.k == "m0" and ins.k == "dma": req = max(req, 1)
            if prev.k == "vcmp" and ins.k == "needvcc": req = max(req, 2)
            if prev.k == "rfl" and ins.k in ("dma", "vload", "vstore"): req = max(req, 5)
            if prev.k == "rfl" and ins.k in VALU_KINDS: req = max(req, 2)
            need = max(need, req - dist)
            dist += states(prev)
            if dist >= 12: break
        return need
    for ins in seq:
        n = need_for(ins)
        if n > 0:
            nop = I(f"s_nop {n-1}", "other")
            out.append(nop); hist.append(nop)
        out.append(ins); hist.append(ins)
        if len(hist) > 64: hist = hist[-32:]
    return out

def m0set(t): return I(t, "m0")

def interleave(main, fillers):
    by = {}
    for pos, ins in fillers:
        by.setdefault(pos, []).append(ins)
    out = list(by.get(-1, []))
    for i, m in enumerate(main):
        out.append(m)
        out += by.get(i, [])
    for pos in sorted(by):
        if pos >= len(main): out += by[pos]
    return out

def spread(items, lo, hi):
    n = len(items)
    if n == 0: return []
    span = hi - lo + 1
    return [(lo + (i * span) // n, it) for i, it in enumerate(items)]

def emit(seq):
    return "\n".join((i.t if i.k == "label" else "    " + i.t) for i in seq)


def vtag(L, t):
    for i in L:
        if i.k in ("dma", "vload", "vstore"): i.vt = t
    return L
def vwait(pred): return I("VWAIT", "vwait", tag=pred)
def resolve_vwaits(seq, q0=()):
    q = list(q0); out = []
    for i in seq:
        if i.k == "vwait":
            hit = [n for n, t in enumerate(q) if i.tag(t)]
            if hit:
                n = len(q) - 1 - max(hit)
                assert n <= 63
                out.append(vmcnt(n)); q = q[len(q) - n:] if n else []
            continue
        if i.k in ("dma", "vload", "vstore"): q.append(i.vt)
        out.append(i)
    return out


def order_gaps(seq):
    out = []
    for ins in seq:
        if ins.k == "dsr":
            p = len(out)
            while p > 0:
                prev = out[p - 1]
                if prev.k not in VALU_KINDS + ("salu", "m0", "dma", "vstore"): break
                if prev.w & (ins.r | ins.w) or prev.r & ins.w: break
                p -= 1
            out.insert(p, ins)
        else:
            out.append(ins)
    return out
```

```python
import sys, math, struct
from asmlib import *

NAME = "concat_heads__mha_block_cached__mha_block_cached__near_ridge"
WS_BYTES = 289406976
def f2u(x): return struct.unpack("<I", struct.pack("<f", x))[0]

KB0, VB0, WB0, XB, YB = 0, 32768, 65536, 98304, 131072
DROP = 0x30000
OOB = 0x40000000
SK, SV, SWQ, SWO, SX, SPART = 8, 12, 16, 20, 24, 32
sW, sQB, sCNT, sBND, sSCL, sKo, sVo, sWc, sT, sM0, sWm0, sRET = 36, 37, 38, 39, 40, 41, 42, 43, 44, 45, 46, 48
sPo, sCol, sPo1, sX16, sROT, sKn, sVn, sWn, sKs, sVs = 50, 51, 52, 53, 59, 28, 29, 30, 54, 55
sFm0 = 31
sKVm0 = 47
SFLG, SDBG, SOUT = 72, 76, 80
sFv = 84
vFlag = 240
FLG = 0x4800000
aW3 = 248
aX = 253
vWoA = 253
def Qf(s, qs): return 8 + (s * 2 + qs) * 4
def Oa(dt, qs): return 40 + (dt * 2 + qs) * 4
def Sr(n, kt, qs):
    if kt < 2: return 104 + (kt * 2 + qs) * 4
    return 120 + (n & 1) * 16 + ((kt - 2) * 2 + qs) * 4
def Pf(n, u, qs):
    if u == 0: return 152 + (n & 1) * 8 + qs * 4
    return 168 + qs * 4
def NM(qs): return 176 + qs * 4
def FR(f): return 184 + (f & 7) * 4
TMP = 216
vL, vLS, vTS = 232, 234, 236
aK, aV, aQ, aO, vLane = 238, 242, 250, 251, 252
def Bf(s, qs): return 8 + (s * 2 + qs) * 4
def Ac(mt, qs): return 136 + (mt * 2 + qs) * 4
HLD = 168
aW, aW2, vKo, vVo, vWq, vWo, aQw, vXo = 232, 236, 242, 243, 244, 245, 246, 247

BAR_IDX = 19

class Cfg:
    stamps = False
    kvflags = "nt"
    wflags = ""
    pflags = "sc1"
    xflags = ""
    woflags = ""
    rflags = ""
    outflags = ""
    force_fb = False
    mapping = 2
    rot = True
    codepf = True
    wopf = True
    prioA = 0
    cal_pro = 0
    cal_main = 0
    cal_end = 0
    cal_mid = 0
    cal_wg = -1
    fused = True
    lastbar = 26
    flagc = 0
    flaglag = 5
    ne = 3
    kvpos = ""
    tlead = 1
    tlate = 3
    pvm = 5
    kvlate = 2
    psplit = 6
    pspread = True
    half = 7
    ktouch = 0
    tflags = ""
    thead = 2
    bstamp = False
    midbar = 17
    aper = 2
    pubfrom = 24
    stw = 0
    pfbody = 7
    order = ""
    pdup = 0
    plead = 2
    pwflags = ""
    krot = False
    series = False
    prioM = 0
    ppace = 0
    nopm = False
    nodma = False
    noav = False
    barq = 19
    barp = 23
    locap = 2
    pf0 = 28
    fbar = 1
    fwait = 2
    fburst = 1
    prioP = 0
    nokv = False
    nowq = False
    nowo = False
    nops = False

def stamp(cfg, idx):
    if not cfg.stamps: return []
    return [S("s_memrealtime s[60:61]"), S("s_memtime s[94:95]"), raw("s_waitcnt lgkmcnt(0)", "lgkm0"),
            raw("v_mov_b32 v2, s60"), raw("v_mov_b32 v3, s61"), raw("v_mov_b32 v4, 0"),
            raw("v_mov_b32 v6, s94"), raw("v_mov_b32 v7, s95"),
            raw("s_mov_b64 s[62:63], exec"), raw("s_mov_b64 exec, 1"),
            raw(f"buffer_store_dwordx2 v[2:3], v4, s[64:67], s68 offen offset:{idx*8}"),
            raw(f"buffer_store_dwordx2 v[6:7], v4, s[64:67], s68 offen offset:{idx*8+64}"),
            raw("s_mov_b64 exec, s[62:63]")]

def softmax_part(n, part):
    L = []
    for qs in range(2):
        for k in range(2):
            s = Sr(n, 2 * part + k, qs)
            e = [TMP + k * 4 + i for i in range(4)]
            for i in range(4): L.append(vexp(e[i], s + i))
            if k == 0:
                L.append(valu("v_add_f32", vTS + qs, e[0], e[1]))
            else:
                L.append(valu("v_add_f32", vTS + qs, vTS + qs, e[0]))
                L.append(valu("v_add_f32", vTS + qs, vTS + qs, e[1]))
            L.append(cvtpk(Pf(n, part, qs) + 2 * k, e[0], e[1]))
            L.append(valu("v_add_f32", vTS + qs, vTS + qs, e[2]))
            L.append(valu("v_add_f32", vTS + qs, vTS + qs, e[3]))
            L.append(cvtpk(Pf(n, part, qs) + 2 * k + 1, e[2], e[3]))
    return L

def l_update(n, part):
    t = n & 7
    if t == 0 and part == 0:
        return [valu("v_mov_b32", vL + qs, vTS + qs) for qs in range(2)]
    if t == 7 and part == 1:
        return [valu("v_add_f32", vLS + qs, vL + qs, vTS + qs) for qs in range(2)]
    return [valu("v_add_f32", vL + qs, vL + qs, vTS + qs) for qs in range(2)]

SITES = {}
def check_pre(n):
    if (n & 7) == 0: return []
    return [valu("v_max_f32", TMP + 8, vTS, vTS + 1), I(f"v_cmp_lt_f32 vcc, s{sBND}, v{TMP+8}", "valu", (), {TMP + 8})]
def check(n, part, sfx):
    t = n & 7
    if t == 0: return []
    name = f"{sfx}{t}_{part}"
    SITES[name] = (n & 1, part, t == 7)
    return [raw(f"s_cbranch_vccnz L_fb_{name}"), label(f"L_ret_{name}")]

def xgroup(op, x, t):
    return [valu("v_mov_b32", t, x), swap32(t, x), valu(op, x, x, t),
            valu("v_mov_b32", t, x), swap16(t, x), valu(op, x, x, t)]

def rowmax(dst, srcs):
    L = [valu("v_max3_f32", dst, srcs[0], srcs[1], srcs[2])]
    rest = srcs[3:]
    while len(rest) >= 2:
        L.append(valu("v_max3_f32", dst, dst, rest[0], rest[1])); rest = rest[2:]
    if rest: L.append(valu("v_max_f32", dst, dst, rest[0]))
    return L

def zipl(a, b):
    out = []
    for i in range(max(len(a), len(b))):
        if i < len(a): out.append(a[i])
        if i < len(b): out.append(b[i])
    return out

def first_tile_max(n):
    per = []
    for qs in range(2):
        m, t = TMP + 8 + qs, TMP + 10 + qs
        srcs = [Sr(n, kt, qs) + i for kt in range(4) for i in range(4)]
        L = rowmax(m, srcs) + xgroup("v_max_f32", m, t)
        L += [valu("v_sub_f32", s, s, m) for s in srcs[:8]]
        per.append(L)
    L = zipl(per[0], per[1])
    late = []
    for qs in range(2):
        m = TMP + 8 + qs
        late += [valu("v_sub_f32", NM(qs) + i, "0", m) for i in range(4)]
        late += [valu("v_sub_f32", s, s, m) for s in [Sr(n, kt, qs) + i for kt in (2, 3) for i in range(4)]]
    return L, late

def o_epilogue(cfg):
    per = []
    for qs in range(2):
        per.append(xgroup("v_add_f32", vLS + qs, TMP + 12 + qs) + [vrcp(vLS + qs, vLS + qs)])
    L = zipl(per[0], per[1])
    k = 0
    for s in range(4):
        for qs in range(2):
            q = TMP + 8 + (k & 1) * 4
            for h in range(2):
                o = Oa(2 * s + h, qs)
                for i in range(4): L.append(valu("v_mul_f32", o + i, o + i, vLS + qs))
                L.append(cvtpk(q + 2 * h, o, o + 1)); L.append(cvtpk(q + 2 * h + 1, o + 2, o + 3))
            L.append(ds_w128(aO, q, (s * 2 + qs) * 1024))
            k += 1
    return L

def k_read(n, f): return [ds_r128(FR(f), aK + (f & 3), KB0 + (n & 1) * 16384 + (f >> 2) * 4096)]
def v_read(n, f):
    dt, u = f >> 1, f & 1
    o = VB0 + (n & 1) * 16384 + u * 8192
    return [ds_tr(FR(f), aV + dt, o), ds_tr(FR(f) + 2, aV + dt, o + 4096)]

NT = 32
def units(i):
    if i.k == "label" or "vmcnt" in i.t: return 0
    return 2 if i.k == "trans" else 1

def schedule(main, ds, blocks, fixed, lo_cap=2):
    fill = []
    ds = list(ds)
    n = len(main)
    used = [0] * (n + 64)
    for p, L in fixed.items(): used[p] += sum(units(i) for i in L)
    for p in range(1, n):
        if main[p] is not None and main[p].tag: used[p - 1] += 1
    g = 0
    cnt = {}
    bars = sorted(p for p, L in fixed.items() if any(i.k == "lgkm0" for i in L))
    for e, ins in ds:
        g = max(g, e)
        while cnt.get(g, 0) >= (1 if (g & 1) == 0 else 2) and main[min(g, n - 1)] is not None: g += 1
        nb = [b for b in bars if b >= e]
        assert not nb or g <= nb[0] - 2, (e, g, ins.t)
        cnt[g] = cnt.get(g, 0) + 1
        used[g] += 1
        fill.append((g, 1, ins))
    def conflict(a, b):
        return bool(a.w & (b.r | b.w)) or bool(a.r & b.w) or (not a.w and not a.r) or (not b.w and not b.r) or (a.k == "dsw" and b.k == "dsw")
    def try_place(s, e, L, hi):
        u = list(used); rest = list(L); out = []
        last = None
        for p in range(s, e + 1):
            cap = lo_cap if (p & 1) == 0 else hi
            last = None
            while rest:
                pick = None
                for k in range(min(len(rest), 14)):
                    c = rest[k]
                    if u[p] + units(c) > cap: continue
                    if any(conflict(x, c) for x in rest[:k]): continue
                    if last is not None and last.k == "trans" and c.k != "trans" and last.w & c.r: continue
                    if last is not None and c.k == "perm" and last.w & c.r: continue
                    pick = k; break
                if pick is None: break
                c = rest.pop(pick); u[p] += units(c); out.append((p, 0, c)); last = c
        return (u, out) if not rest else None
    for (s, e, L) in blocks:
        hi = lo_cap
        while True:
            r = try_place(s, e, L, hi)
            if r: break
            hi += 1
        used, out = r
        fill += out
    pre = [(p, i) for (p, o, i) in fill]
    return pre

def a_stream(cfg):
    qrd = lambda: [ds_r128(Qf(s, qs), aQ, (s * 2 + qs) * 1024) for s in range(4) for qs in range(2)]
    pre = qrd()
    for f in range(8): pre += k_read(0, f)
    main, ds, blocks, fixed = [], [], [], {}
    BQ, BP = cfg.barq, cfg.barp
    for n in range(NT + 1):
        t = n & 7
        sfx = "T" if n >= NT else "L"
        real = n < NT
        b0 = 64 * n
        for kt in range(4):
            for qs in range(2):
                for s in range(4):
                    c = Sr(n, kt, qs) if s else (None if t == 0 else NM(qs))
                    dep = [FR(4 * kt + x) for x in range(4)] if (qs == 0 and s == 0) else ()
                    main.append(mfma(Sr(n, kt, qs), FR(4 * kt + s), Qf(s, qs), c, dep) if real else None)
        if real:
            for f in range(8, 16):
                ds += [(b0 + 4 + (f & 3) + 8 * ((f - 8) >> 2), i) for i in k_read(n, f)]
        if n >= 1:
            va = softmax_part(n - 1, 1) + check_pre(n - 1)
            if t == 1 and n > 8: va = va[:12] + zipl(o_epilogue(cfg), va[12:])
            blocks.append((b0, b0 + 30, va))
        if n == 0:
            fixed[b0 + 7] = [barrier()]
            fixed[b0 + 13] = [barrier()]
        fixed[b0 + BQ] = ([vmcnt(4)] if n == 1 else []) + [lgkm0(), barrier()]
        if n >= 1:
            for f in range(8):
                ds += [(b0 + max(BQ + 1, 20 + (f & 3) + 8 * (f >> 2)), i) for i in v_read(n - 1, f)]
            fixed[b0 + 31] = check(n - 1, 1, sfx) + l_update(n - 1, 1)
        realpv = n >= 1
        m = n - 1
        b1 = b0 + 32
        for dt in range(8):
            for (u, qs) in ((0, 0), (1, 0), (1, 1), (0, 1)):
                firstk = (u == 0 and qs == 0) or (u == 1 and qs == 1)
                c = None if ((m & 7) == 0 and firstk) else Oa(dt, qs)
                dep = [FR(2 * dt + 1)] if (u == 0 and qs == 0) else ()
                main.append(mfma(Oa(dt, qs), FR(2 * dt + u), Pf(m, u, qs), c, dep) if realpv else None)
        qq = qrd() if t == 7 else []
        if realpv:
            for p in range(4):
                ds += [(b1 + 2 + 4 * p, i) for i in v_read(m, 9 + 2 * p)] + [(b1 + 3 + 4 * p, i) for i in v_read(m, 8 + 2 * p)]
                ds += [(b1, i) for i in qq[2 * p:2 * p + 2]]
        if real:
            va = softmax_part(n, 0) + check_pre(n)
            if t == 0:
                early, late = first_tile_max(n)
                blocks.append((b1 + 2, b1 + 30, early + va + late))
            else:
                blocks.append((b1, b1 + 30, va))
        fixed[b1 + BP] = ([vmcnt(8 if n == 0 else 0)] if n < 2 else []) + [lgkm0(), barrier()]
        if n + 1 < NT:
            for f in range(8):
                ds += [(b1 + max(BP + 1, 19 + 4 * (f >> 1)), i) for i in k_read(n + 1, f)]
        if real:
            sf2 = "T" if n + 1 >= NT else "L"
            fixed[b1 + 31] = check(n, 0, sf2) + l_update(n, 0)
    fill = schedule(main, ds, blocks, fixed, cfg.locap)
    fill += [(p, i) for p, L in fixed.items() for i in L]
    seq = pre + [i for i in interleave(main, fill) if i is not None]
    seq += o_epilogue(cfg)
    seq += [lgkm0(), barrier()]
    if cfg.noav: seq = [i for i in seq if i.k not in ("valu", "trans", "perm") and "cbranch" not in i.t]
    return seq

def split_segments(seq):
    segs, cur = [], []
    for i in seq:
        cur.append(i)
        if i.k == "barrier":
            segs.append(cur); cur = []
    if cur: segs.append(cur)
    return segs

def fallback(par, part, last):
    n = par + 2
    L = [raw("s_nop 7"), raw("s_nop 3")]
    D, F, T = TMP + 8, TMP + 10, TMP + 12
    kts = range(4) if part == 0 else (2, 3)
    for qs in range(2):
        srcs = [Sr(n, kt, qs) + i for kt in kts for i in range(4)]
        d, f, t = D + qs, F + qs, T + qs
        L += rowmax(d, srcs) + xgroup("v_max_f32", d, t)
        L += [valu("v_max_f32", d, "0", d), valu("v_ceil_f32", d, d), valu("v_sub_f32", t, "0", d), vexp(f, t)]
        L += [valu("v_sub_f32", s, s, d) for s in srcs]
        L += [valu("v_sub_f32", NM(qs) + i, NM(qs) + i, d) for i in range(4)]
        L += [valu("v_mul_f32", vL + qs, vL + qs, f)]
        L += [valu("v_mul_f32", Oa(dt, qs) + i, Oa(dt, qs) + i, f) for dt in range(8) for i in range(4)]
        if part == 1:
            for i in range(4):
                p = Pf(n, 0, qs) + i
                L += [valu("v_lshlrev_b32", t, "16", p), valu("v_and_b32", p, "0xffff0000", p),
                      valu("v_mul_f32", t, t, f), valu("v_mul_f32", p, p, f), cvtpk(p, t, p)]
            if not last:
                L += [valu("v_sub_f32", s, s, d) for s in [Sr(n + 1, kt, qs) + i for kt in range(4) for i in range(4)]]
    L += softmax_part(n, part)
    L += [raw("s_nop 2"), raw(f"s_setpc_b64 s[{sRET}:{sRET+1}]")]
    return fix_hazards(L)

def q_pack(dst):
    L = []
    for mt in range(4):
        for qs in range(2):
            a = Ac(mt, qs); d = dst + (mt * 2 + qs) * 2
            for i in range(4): L.append(valu("v_mul_f32", a + i, f"s{sSCL}", a + i))
            L += [cvtpk(d, a, a + 1), cvtpk(d + 1, a + 2, a + 3)]
    return L
def q_store(src, hf):
    return [ds_w64(aQw, src + (mt * 2 + qs) * 2, hf * 4096 + (mt >> 1) * 2048 + qs * 1024 + (mt & 1) * 512)
            for mt in range(4) for qs in range(2)]

def wc_adv():
    return [S(f"s_add_u32 s{sWn}, s{sWn}, 1"), S(f"s_add_u32 s{sWc}, s{sWc}, 128"), S(f"s_and_b32 s{sWc}, s{sWc}, 0x3803ff"),
            S(f"s_cmp_ge_u32 s{sWn}, 8"), S(f"s_cselect_b32 s{sWc}, {OOB}, s{sWc}"), S(f"s_cselect_b32 s{sWm0}, {DROP}, s{sWm0}")]
def wq_dma(cfg, kc, ks):
    return [m0set(f"s_add_u32 m0, s{sWm0}, {(kc & 3)*8192 + ks*4096}"),
            S(f"s_add_u32 s{sT}, s{sWc}, {kc * (1 << 19) + ks * (1 << 18)}"), S(f"s_and_b32 s{sT}, s{sT}, 0x403fffff"),
            dma(vWq, SWQ, f"s{sT}", 0, cfg.wflags)]
def kv_pre(isK):
    n, o, s = (sKn, sKo, sKs) if isK else (sVn, sVo, sVs)
    return [S(f"s_cmp_lt_u32 s{n}, 30"), S(f"s_cselect_b32 s{s}, s{o}, {OOB}"), S(f"s_cselect_b32 s{sKVm0}, s{sM0}, {DROP}"),
            S(f"s_add_u32 s{n}, s{n}, 1"), S(f"s_add_u32 s{o}, s{o}, 16384"), S(f"s_and_b32 s{o}, s{o}, 0x7ffff")]
def kv_dma(cfg, isK, slot, jj):
    base = (KB0 if isK else VB0) + slot * 16384 + jj * 3072
    return [m0set(f"s_add_u32 m0, s{sKVm0}, {base}"),
            dma(vKo if isK else vVo, SK if isK else SV, f"s{sKs if isK else sVs}", jj * 1024, cfg.kvflags)]
def kv_issue(cfg, isK, slot):
    L = kv_pre(isK)
    for jj in range(4): L += kv_dma(cfg, isK, slot, jj)
    return L

PRO_REG = [YB, VB0, XB, WB0, KB0]
sKR = 58
def Ac2(mt, qs):
    k = mt * 2 + qs
    return HLD + 4 * k if k < 4 else TMP + 4 * (k - 4)

def qwait(q, tags):
    last = max(i for i, t in enumerate(q) if t in tags)
    return vmcnt(len(q) - 1 - last)

def a_prologue(cfg):
    seq, q = [], []
    def wq(kc):
        L = []
        for hf in range(2):
            for ks in range(2):
                L += [m0set(f"s_add_u32 m0, s{sM0}, {PRO_REG[kc % 5] + hf*8192 + ks*4096}"),
                      S(f"s_add_u32 s{sT}, s{sWc}, {kc * (1 << 19) + ks * (1 << 18) + hf * 128}"), S(f"s_and_b32 s{sT}, s{sT}, 0x3fffff"),
                      dma(vWq, SWQ, f"s{sT}", 0, cfg.pwflags)]
        L += x_dma(cfg, kc)
        q.extend([kc] * 8)
        return L
    def two(isK):
        L = []
        s = sKs if isK else sVs
        for slot in range(2):
            L.append(S(f"s_add_u32 s{s}, s{sCol}, {slot * 16384}"))
            for jj in range(4): L += kv_dma(cfg, isK, slot, jj)
        q.extend(["kv"] * 8)
        return L
    first = []
    for kc in range(cfg.plead): first += wq(kc)
    seq.append(S(f"s_mov_b32 s{sKVm0}, s{sM0}"))
    nxt = cfg.plead
    for kc in range(9):
        seq += [qwait(q, {kc}), barrier()]
        while nxt <= min(kc + 3, 7) and nxt <= kc + cfg.plead:
            seq += wq(nxt); nxt += 1
        if kc == 5:
            seq += [S(f"s_add_u32 s{sWc}, s{sWc}, 256"), S(f"s_and_b32 s{sWc}, s{sWc}, 0x3803ff"), S(f"s_add_u32 s{sWm0}, s{sM0}, {WB0}")]
            for c in range(4):
                for ks in range(2): seq += wq_dma(cfg, c, ks)
            q += [8] * 8
        if kc == 6: seq += two(True)
        if kc == 8: seq += two(False)
    return first, seq

def x_dma(cfg, kc):
    L = [m0set(f"s_add_u32 m0, s{sX16}, {PRO_REG[kc % 5] + 16384}"),
         S(f"s_add_u32 s{sT}, s{sKR}, {kc * 128}"), S(f"s_and_b32 s{sT}, s{sT}, 1023")]
    for p in range(4):
        if p: L += [m0set("s_add_u32 m0, m0, 1024"), S(f"s_add_u32 s{sT}, s{sT}, 8192")]
        L.append(dma(vXo, SX, f"s{sT}", 0, cfg.xflags))
    return L

def p_prologue(cfg):
    def base_of(addr):
        return (0, 0) if addr < 65536 else ((1, WB0) if addr < YB else (2, YB))
    def rd(kc, f):
        if kc == 8: return ring_read(0, f)
        hf, mt, ks = f >> 3, (f >> 1) & 3, f & 1
        addr = PRO_REG[kc % 5] + hf * 8192 + ks * 4096
        k, base = base_of(addr)
        a = (aW2, aW, aW3)[k]
        return [ds_tr(FR(f), a + mt, addr - base), ds_tr(FR(f) + 2, a + mt, addr - base + 512)]
    def xrd(kc):
        addr = PRO_REG[kc % 5] + 16384
        k, base = base_of(addr)
        return [ds_r128(Bf(2 * kc + ks, qs), aX + k, addr - base + qs * 2048 + ks * 64) for ks in range(2) for qs in range(2)]
    pre = [barrier()] + xrd(0)
    for f in range(8): pre += rd(0, f)
    main, fill = [], []
    for kc in range(8):
        b0 = 32 * kc
        for g in range(8):
            hf, mt = g >> 2, g & 3
            for (ks, qs) in ((0, 0), (1, 0), (1, 1), (0, 1)):
                firstk = (ks == 0 and qs == 0) or (ks == 1 and qs == 1)
                a = (Ac if hf else Ac2)(mt, qs)
                dep = [FR(2 * g + 1)] if (ks == 0 and qs == 0) else ()
                main.append(mfma(a, FR(2 * g + ks), Bf(2 * kc + ks, qs), None if (kc == 0 and firstk) else a, dep))
            if g == 4:
                fill.append((b0 + 17, barrier()))
                if cfg.stamps and kc in (1, 3, 6): fill += [(b0 + 17, x) for x in stamp(cfg, {1: 5, 3: 6, 6: 7}[kc])]
                if kc < 7: fill += [(b0 + 17 + 2 * k, x) for k, x in enumerate(xrd(kc + 1))]
            k2, f2 = (kc, 2 * g + 8) if g < 4 else (kc + 1, 2 * g - 8)
            r = rd(k2, f2 + 1) + rd(k2, f2)
            fill += [(b0 + 4 * g + 2 + k, x) for k, x in enumerate(r)]
        if kc == 7:
            pk = []
            for mt in range(4):
                for qs in range(2):
                    a = Ac2(mt, qs); d = HLD + (mt * 2 + qs) * 2
                    for i in range(4): pk.append(valu("v_mul_f32", a + i, f"s{sSCL}", a + i))
                    pk += [cvtpk(d, a, a + 1), cvtpk(d + 1, a + 2, a + 3)]
            fill += [(b0 + p, x) for p, x in spread(pk + q_store(HLD, 0), 18, 31)]
    seq = pre + interleave(main, fill)
    pk, st = q_pack(TMP), q_store(TMP, 1)
    for k in range(8): seq += pk[6 * k:6 * k + 6] + [st[k]]
    seq += [lgkm0(), barrier()]
    return seq

def ring_read(kc, f):
    mt, ks = f >> 1, f & 1
    o = (kc & 3) * 8192 + ks * 4096
    return [ds_tr(FR(f), aW + mt, o), ds_tr(FR(f) + 2, aW + mt, o + 512)]

def chunk_mfmas(kc):
    L = []
    for mt in range(4):
        for (ks, qs) in ((0, 0), (1, 0), (1, 1), (0, 1)):
            firstk = (ks == 0 and qs == 0) or (ks == 1 and qs == 1)
            c = None if (kc == 0 and firstk) else Ac(mt, qs)
            dep = [FR(2 * mt + 1)] if (ks == 0 and qs == 0) else ()
            L.append(mfma(Ac(mt, qs), FR(2 * mt + ks), Bf(2 * kc + ks, qs), c, dep))
    return L

def p_phase(cfg, ph):
    PS = cfg.psplit
    isK = (ph & 1) == 1
    slot = [1, 1, 0, 0, 1, 1, 0, 0][ph]
    m1, m2 = chunk_mfmas((ph - 1) & 7)[PS:], chunk_mfmas(ph)[:PS]
    fill = []
    pos = -1
    for mt in range(4):
        for f, last in ((2 * mt + 1, 4 * mt + 2), (2 * mt, 4 * mt + 3)):
            for x in ring_read(ph, f):
                pos = max(pos, last - PS)
                fill.append((min(pos, len(m1) - 1), x))
                if cfg.pspread: pos += 1
    kv = kv_issue(cfg, isK, slot)
    head, rest = kv[:8], kv[8:]
    d = []
    if ph == 5: d += wc_adv()
    for ks in range(2): d += wq_dma(cfg, (ph + 3) & 7, ks)
    fill2 = []
    if cfg.kvpos:
        P = [int(x) for x in cfg.kvpos.split(",")]
        nw = len(d) - 4
        groups = [d[:nw], d[nw:], kv[:8], kv[8:10], kv[10:12], kv[12:14]]
        extra = []
        for p, gl in zip(P, groups):
            if p < len(m1) or ph == 0: extra += [(min(p, len(m1) - 1), x) for x in gl]
            else: fill2 += [(p - len(m1), x) for x in gl]
        fill = extra + fill
    elif cfg.kvlate:
        fill = spread(d, -1, 2) + spread(kv, cfg.kvlate, len(m1) - 1) + fill
    else:
        fill = [(-1, x) for x in head] + [(k // 2, x) for k, x in enumerate(rest)] + spread(d, 3, 8) + fill
    a = interleave(m1, fill)
    b = interleave(m2, fill2) + [vmcnt(cfg.pvm), lgkm0(), barrier()]
    if cfg.nopm: a, b = [[i for i in s if i.k not in ("mfma", "dsr")] for s in (a, b)]
    if cfg.nodma: a = [i for i in a if i.k not in ("dma",)]
    return a, b

def wo_chunk(cfg, k, plan, voff=None):
    sl, c = plan["blocks"][k]; slot = plan["slot"][k]
    L = []
    for ks in range(4):
        lds = (XB + slot * 16384 if slot < 4 else (slot - 4) * 16384) + ks * 4096
        L += [m0set(f"s_add_u32 m0, s{sM0}, {lds}"),
              S(f"s_add_u32 s{sT}, s{sCol}, {c * 131072 + ks * 32768 + sl * 128}"), S(f"s_and_b32 s{sT}, s{sT}, 0x7ffff"),
              dma(voff or vWo, SWO, f"s{sT}", 0, cfg.woflags)]
    return vtag(L, ("wo", k))

def b_load(pos, addr):
    return [ds_r128(Bf(4 * pos + (fr >> 1), fr & 1), addr, fr * 1024) for fr in range(8)]

def w_read(slot, f):
    mt, ks = f >> 2, f & 3
    o = (slot & 3) * 16384 + ks * 4096
    a = (aW if slot < 4 else aW2) + mt
    return [ds_tr(FR(f), a, o), ds_tr(FR(f) + 2, a, o + 512)]

def tail_plan(cfg):
    ne = cfg.ne
    names = {"A": "A", "H": "H", "T": "T", "L": "L0", "M": "L1", "F": "F"}
    order = cfg.order or ("AHTLM"[:ne] + "F" * (8 - ne))
    fo = [names[ch] for ch in order]
    early = [d for d in ("L0", "L1", "H", "T", "A") if d in fo]
    blocks = [(fo.index(d), c) for d in early for c in range(3)]
    n0 = len(blocks)
    for s, d in enumerate(fo):
        blocks += [(s, c) for c in (range(4) if d == "F" else (3,))]
    slot = {k: k & 3 for k in range(n0 + 3)}
    slot[n0 + 3] = 4; slot[n0 + 4] = 5
    a_issue = {}
    free = []
    nxt = n0 + 5
    for k in range(n0, cfg.lastbar):
        free.append(slot[k - 1])
        if k == n0 + 1: free += [6, 7]
        L = []
        while free and nxt < 32 and len(L) < cfg.aper:
            slot[nxt] = free.pop(0); L.append(nxt); nxt += 1
        a_issue[k] = L
    assert nxt == 32
    return dict(fo=fo, early=early, blocks=blocks, n0=n0, slot=slot, a_issue=a_issue)

def flag_pub(val):
    return [valu("v_mov_b32", vFlag, str(val)), vwait(lambda t: t[0] == "st" and t[1] < val)] + \
           vtag([I(f"buffer_store_dword v{vFlag}, v{vLane}, s[{SFLG}:{SFLG+3}], 0 offen sc1", "vstore", (), {vFlag, vLane})], ("fl", val))

def p_tail(cfg):
    plan = tail_plan(cfg)
    blocks, n0, slot, fo = plan["blocks"], plan["n0"], plan["slot"], plan["fo"]
    p0 = 21 - n0 - cfg.half
    assert p0 >= 5
    sp, ep = {}, {}
    p = p0
    for k in range(n0):
        sp[k] = p; p += 2 if k < cfg.half else 1; ep[k] = p - 1
    for k in range(n0, n0 + 5): sp[k] = ep[k] = 21 + (k - n0)
    ep[-1] = p0 - 1
    issue = {}
    for k in range(n0 + 3): issue.setdefault(2 + k if k < 4 else sp[k - 3], []).append(k)
    issue.setdefault(17, []).append(n0 + 3); issue.setdefault(18, []).append(n0 + 4)
    assert sp[2] >= 7
    def setbase(reg, base):
        return [S(f"s_lshl_b32 s{sT}, s{sQB}, 13"), S(f"s_add_u32 s{sT}, s{sT}, {base}"), valu("v_add_u32", reg, f"s{sT}", vLane)]
    def period_ops(p):
        n, kind = 23 + p // 2, "EO"[p & 1]
        mem, other = [], []
        ks = issue.get(p, [])
        for k in ks[:1]: mem += wo_chunk(cfg, k, plan)
        if kind == "E" and n <= 31: mem += vtag(kv_issue(cfg, False, n & 1), ("kv", p))
        if kind == "O" and n + 2 <= 31: mem += vtag(kv_issue(cfg, True, n & 1), ("kv", p))
        for k in ks[1:]: mem += wo_chunk(cfg, k, plan)
        if p == 0:
            other += chunk_mfmas(7)[cfg.psplit:] + [valu("v_add_u32", aQw, f"{WB0 - YB}", aQw)] + q_pack(TMP) + q_store(HLD, 0) + q_store(TMP, 1)
        if p == 1:
            other += setbase(aQw, XB) + b_load(0, aQw) + setbase(aQw, YB) + b_load(1, aQw) + setbase(aQw, WB0) + setbase(vXo, VB0)
        if p == 6: other += b_load(2, aQw)
        close = [vwait(lambda t, p=p: (t[0] == "kv" and t[1] <= p - cfg.tlead) or (t[0] == "wo" and ep[t[1] - 1] - 1 <= p))]
        if p < p0 - 1: close.append(lgkm0())
        close.append(barrier())
        return mem, other, close
    seq = []
    for p in range(p0):
        mem, other, close = period_ops(p)
        if p == p0 - 1:
            for f in range(8): other += w_read(slot[0], f)
        seq += mem + other + close
    main, fill = [], []
    src_of = {"H": HLD, "T": TMP, "L0": HLD, "L1": TMP}
    published = 0
    done_at = {}
    for k, (sl, c) in enumerate(blocks):
        b0 = 32 * k
        fresh = (c == 0)
        for mt in range(4):
            for qs in range(2):
                for ks in range(4):
                    cc = None if (fresh and ks == 0) else Ac(mt, qs)
                    dep = [FR(4 * mt + ks + 1)] if (qs == 0 and ks in (0, 2)) else ()
                    main.append(mfma(Ac(mt, qs), FR(4 * mt + ks), Bf(4 * c + ks, qs), cc, dep))
        if cfg.bstamp:
            fill.append((b0, raw("s_memtime s[90:91]")))
            fill.append((b0 + 24, raw(f"v_writelane_b32 v241, s90, {k}")))
        if k < n0:
            span = 32 // (ep[k] - sp[k] + 1)
            closes = []
            for h, p in enumerate(range(sp[k], ep[k] + 1)):
                mem, other, close = period_ops(p)
                o = b0 + h * span
                if h: fill += [(o - 1, x) for x in closes.pop()]
                fill += [(o + q, x) for q, x in spread(mem, cfg.tlate, min(17, span - 4))] + [(o + q, x) for q, x in spread(other, span // 2 - 2, span - 4)]
                closes.append(close)
            close = closes.pop()
        elif n0 < k <= cfg.lastbar:
            if k == n0 + 1: fill.append((b0 + 3, vwait(lambda t: t[0] == "wo")))
            fill.append((b0 + 3, barrier()))
        for mt in range(4):
            if mt >= 2 and k + 1 >= len(blocks): continue
            sl2, mt2 = (slot[k], mt + 2) if mt < 2 else (slot[k + 1], mt - 2)
            rd = []
            for ks in range(4): rd += w_read(sl2, 4 * mt2 + ks)
            for n, x in enumerate(rd): fill.append((b0 + 8 * mt + 4 + n, x))
        if k < n0:
            fill += [(b0 + 31, x) for x in close]
            if k == n0 - 1:
                fill += [(b0 + 31, x) for x in ([] if cfg.bstamp else stamp(cfg, 2)) + b_load(3, vXo)]
        for pair in range(2):
            for qs in range(2):
                s0 = b0 + 14 + 8 * qs + 16 * pair
                t, u = Ac(2 * pair, qs), Ac(2 * pair + 1, qs)
                if k < n0 and c == 2 and fo[sl] != "A":
                    d = fo[sl]
                    z = src_of[d] + (pair * 2 + qs) * 4
                    L = [cvtpk(z, t, t + 1), cvtpk(z + 1, t + 2, t + 3), cvtpk(z + 2, u, u + 1), cvtpk(z + 3, u + 2, u + 3)]
                    fill += [(s0 + n, x) for n, x in enumerate(L)]
                    if d[0] == "L": fill.append((s0 + 4, ds_w128(aQw, z, int(d[1]) * 4096 + (pair * 2 + qs) * 1024)))
                if k >= n0 and c == 3:
                    nxt = fo[sl + 1] if sl + 1 < len(fo) and fo[sl + 1] != "F" else None
                    if pair == 0 and qs == 0: fill.append((s0 - 1, S(f"s_add_u32 s{sPo1}, s{sPo}, {sl * 131072}")))
                    L = [cvtpk(t, t, t + 1), cvtpk(t + 1, t + 2, t + 3), cvtpk(t + 2, u, u + 1), cvtpk(t + 3, u + 2, u + 3)]
                    st = vtag([bstore(t, vLane, SPART, f"s{sPo1}", (qs * 2 + pair) * 1024, cfg.pflags)], ("st", sl))
                    if nxt:
                        s = src_of[nxt] + (pair * 2 + qs) * 4
                        U = []
                        for (dst, o) in ((u, 2), (t, 0)):
                            for h in range(2):
                                U += [valu("v_lshlrev_b32", dst + 2 * h, "16", s + o + h), valu("v_and_b32", dst + 2 * h + 1, "0xffff0000", s + o + h)]
                        fill += [(s0 + n // 2, x) for n, x in enumerate(L)] + [(s0 + 2, st[0])]
                        fill += [(s0 + p, x) for p, x in zip((3, 3, 4, 5, 5, 6, 7, 7), U)]
                    else:
                        fill += [(s0 + n, x) for n, x in enumerate(L)] + [(s0 + 4, st[0])]
                    done_at[sl] = k
        if k >= n0 and c == 3 and fo[sl] in ("H", "T"):
            d = {"H": "L0", "T": "L1"}[fo[sl]]
            if d in fo:
                assert fo.index(d) >= sl + 2
                fill += [(b0 + 17 + n, ds_r128(src_of[d] + 4 * n, aQw, int(d[1]) * 4096 + n * 1024)) for n in range(4)]
        if cfg.fused and k >= n0:
            ready = sum(1 for s, kk in done_at.items() if kk + cfg.flaglag <= k)
            if ready > published and k >= cfg.pubfrom:
                fill += [(b0 + 16, x) for x in flag_pub(ready)]
                published = ready
    seq += interleave(main, fill)
    if cfg.bstamp:
        seq += [raw("s_memtime s[90:91]"), lgkm0(), raw("v_writelane_b32 v241, s90, 32"), raw("v_lshlrev_b32 v5, 2, v0"),
                raw("s_lshl_b32 s90, s2, 8"), raw("s_add_u32 s90, s90, 0x10000"), raw(f"s_cmp_lg_u32 s{sQB}, {cfg.stw}"), raw(f"s_cselect_b32 s90, {OOB}, s90"),
                raw("buffer_store_dword v241, v5, s[64:67], s90 offen")]
    seq += stamp(cfg, 4)
    if cfg.fused:
        if published < 7: seq += flag_pub(7)
        seq += flag_pub(8)
    return resolve_vwaits(seq, [("kv", -2)] * 6 + [("kv", -1)] * 6)

def a_tail(cfg):
    plan = tail_plan(cfg)
    n0 = plan["n0"]
    seq = []
    for k in range(n0, cfg.lastbar + 1):
        last = k == cfg.lastbar
        if k > n0: seq += [vwait(lambda t, k=k, last=last: last or t[1] <= k + 1), barrier()]
        for kk in plan["a_issue"].get(k, []): seq += wo_chunk(cfg, kk, plan, vWoA)
    return resolve_vwaits(seq)

def rstamp(cfg, idx):
    if not cfg.stamps: return []
    return ["    " + x for x in ["s_memrealtime s[60:61]", "s_waitcnt lgkmcnt(0)", "v_mov_b32 v100, s60", "v_mov_b32 v101, s61", "v_mov_b32 v102, 0",
            "s_mov_b64 s[62:63], exec", "s_mov_b64 exec, 1", f"buffer_store_dwordx2 v[100:101], v102, s[64:67], s68 offen offset:{idx*8}", "s_mov_b64 exec, s[62:63]"]]

def a_reduce(cfg):
    T = []
    A = lambda *a: T.extend("    " + x for x in a)
    A("v_lshlrev_b32 v1, 2, v0", "v_and_b32 v4, 15, v0", "v_lshlrev_b32 v4, 11, v4",
      "v_bfe_u32 v5, v0, 4, 1", "v_lshl_add_u32 v4, v5, 5, v4", "v_lshrrev_b32 v5, 5, v0", "v_lshl_add_u32 v4, v5, 4, v4", "v_mov_b32 v3, 0")
    T += rstamp(cfg, 4)
    A("s_mov_b32 s85, 0", "s_mov_b32 s86, 0x01010101")
    T.append("L_hs:")
    A(f"buffer_load_dwordx2 v[6:7], v3, s[{SDBG}:{SDBG+3}], 0 offen sc1", "s_add_u32 s85, s85, 1", "s_waitcnt vmcnt(0)",
      "v_and_b32 v6, v6, v7", "v_cmp_eq_u32 vcc, s86, v6", "s_cbranch_vccnz L_hs_ok", "s_cmp_lt_u32 s85, 0x20000", "s_cbranch_scc1 L_hs")
    T.append("L_hs_ok:")
    A(f"s_mov_b32 s87, s{sQB}")
    T.append("L_rs:")
    T += rstamp(cfg, 5)
    A("s_mov_b32 s85, 0")
    T.append("L_poll:")
    A(f"buffer_load_dword v6, v1, s[{SFLG}:{SFLG+3}], 0 offen sc1", "s_add_u32 s85, s85, 1", "s_waitcnt vmcnt(0)",
      "v_cmp_lt_u32 vcc, s87, v6", "s_cmp_eq_u32 vcc_lo, 0xff", "s_cbranch_scc1 L_got", "s_cmp_lt_u32 s85, 0x20000", "s_cbranch_scc1 L_poll")
    T.append("L_got:")
    T += rstamp(cfg, 6)
    A("s_lshl_b32 s88, s87, 17", "s_lshl_b32 s89, s6, 11", "s_add_u32 s88, s88, s89")
    for src in range(8):
        for pair in range(2):
            b = 16 + (src * 2 + pair) * 4
            A(f"buffer_load_dwordx4 v[{b}:{b+3}], v{vLane}, s[{SPART}:{SPART+3}], s88 offen offset:{pair*1024} sc1")
        if src < 7: A("s_add_u32 s88, s88, 16384")
    A("s_lshl_b32 s89, s87, 7")
    acc = 80
    for src in range(8):
        A(f"s_waitcnt vmcnt({(7-src)*2})")
        for pair in range(2):
            b = 16 + (src * 2 + pair) * 4
            for i in range(4):
                lo, hi = acc + pair * 8 + 2 * i, acc + pair * 8 + 2 * i + 1
                if src == 0:
                    A(f"v_lshlrev_b32 v{lo}, 16, v{b+i}", f"v_and_b32 v{hi}, 0xffff0000, v{b+i}")
                else:
                    A(f"v_lshlrev_b32 v6, 16, v{b+i}", f"v_and_b32 v7, 0xffff0000, v{b+i}", f"v_add_f32 v{lo}, v{lo}, v6", f"v_add_f32 v{hi}, v{hi}, v7")
    for pair in range(2):
        a = acc + pair * 8
        for i in range(4): A(f"v_cvt_pk_bf16_f32 v{8+pair*4+i}, v{a+2*i}, v{a+2*i+1}")
    T += rstamp(cfg, 7)
    A("s_nop 1")
    for pair in range(2):
        d = 8 + pair * 4
        A(f"v_permlane16_swap_b32 v{d}, v{d+2}", f"v_permlane16_swap_b32 v{d+1}, v{d+3}")
        A(f"buffer_store_dwordx4 v[{d}:{d+3}], v4, s[{SOUT}:{SOUT+3}], s89 offen offset:{pair*64} {cfg.outflags}")
    A("s_add_u32 s87, s87, 4", "s_cmp_lt_u32 s87, 8", "s_cbranch_scc1 L_rs")
    return T

def fin(seq): return fix_hazards(insert_lgkm(order_gaps(seq)))

def header():
    ref = open("cdna_kernels/" + NAME + ".s.ref").read().splitlines()
    return [l for l in ref if l.startswith(";") and "@launch" not in l and "Override" not in l and "grid=ceil" not in l]

def srd(dst, lo, hi, nbytes):
    return [f"s_mov_b32 s{dst}, s{lo}", f"s_mov_b32 s{dst+1}, s{hi}", f"s_mov_b32 s{dst+2}, {nbytes}", f"s_mov_b32 s{dst+3}, 0x20000"]
def srd_off(dst, lo, hi, off, nbytes):
    return [f"s_add_u32 s{dst}, s{lo}, {off}", f"s_addc_u32 s{dst+1}, s{hi}, 0", f"s_mov_b32 s{dst+2}, {nbytes}", f"s_mov_b32 s{dst+3}, 0x20000"]

def main_kernel(cfg):
    T = []
    A = lambda *a: T.extend("    " + x for x in a)
    ST = lambda i: T.append(emit(stamp(cfg, i))) if cfg.stamps else None
    T += [".globl attn_main_kernel", ".p2align 8", ".type attn_main_kernel,@function", "attn_main_kernel:"]
    A("s_cmp_ge_u32 s2, 256", "s_cbranch_scc1 L_end")
    cal = cfg.cal_pro or cfg.cal_main or cfg.cal_end or cfg.cal_mid
    if cal: A("s_memrealtime s[100:101]")
    def CAL(us, lab):
        if not us: return
        T.append(f"{lab}:")
        A("s_memrealtime s[60:61]", "s_waitcnt lgkmcnt(0)", "s_sub_u32 s60, s60, s100", f"s_cmp_lt_u32 s60, {us*100}", f"s_cbranch_scc1 {lab}")
    A("s_load_dwordx8 s[72:79], s[0:1], 0", "s_load_dwordx8 s[80:87], s[0:1], 32", "s_load_dwordx4 s[88:91], s[0:1], 64",
      "s_load_dwordx2 s[92:93], s[0:1], 96", "s_load_dwordx4 s[96:99], s[0:1], 80")
    if cfg.mapping == 0:
        A("s_and_b32 s3, s2, 7", "s_lshr_b32 s4, s2, 3", "s_lshl_b32 s5, s3, 2", "s_lshr_b32 s6, s4, 3", "s_add_u32 s5, s5, s6",
          "s_and_b32 s6, s4, 7", f"s_and_b32 s{sROT}, s3, 3")
    elif cfg.mapping == 1:
        A("s_and_b32 s6, s2, 7", "s_lshr_b32 s5, s2, 3", f"s_and_b32 s{sROT}, s5, 3")
    elif cfg.mapping == 2:
        A("s_and_b32 s3, s2, 7", "s_lshr_b32 s4, s2, 3",
          "s_and_b32 s5, s4, 15", "s_and_b32 s6, s3, 4", "s_lshl_b32 s6, s6, 2", "s_add_u32 s5, s5, s6",
          "s_and_b32 s6, s3, 3", "s_lshl_b32 s6, s6, 1", "s_lshr_b32 s4, s4, 4", "s_add_u32 s6, s6, s4",
          f"s_and_b32 s{sROT}, s5, 3")
    if not cfg.rot: A(f"s_mov_b32 s{sROT}, 0")
    A("s_and_b32 s7, s5, 15")
    A("v_lshrrev_b32 v1, 6, v0", "v_and_b32 v0, 63, v0", f"v_readfirstlane_b32 s{sW}, v1")
    A(f"v_lshlrev_b32 v{vLane}, 4, v0")
    A("s_waitcnt lgkmcnt(0)")
    A("s_cmp_ge_u32 s5, 16")
    for k in range(5):
        A(f"s_cselect_b32 s{72+2*k}, s{82+2*k}, s{72+2*k}", f"s_cselect_b32 s{73+2*k}, s{83+2*k}, s{73+2*k}")
    A("s_lshl_b32 s56, s7, 22", "s_lshl_b32 s57, s6, 19", "s_add_u32 s56, s56, s57")
    A(*srd_off(SK, 74, 75, "s56", 524288)); A(*srd_off(SV, 76, 77, "s56", 524288))
    A("s_lshl_b32 s56, s6, 10")
    A(*srd_off(SWQ, 78, 79, "s56", 0), f"s_sub_u32 s{SWQ+2}, 0x400000, s56")
    A(*srd_off(SWO, 80, 81, "s57", 524288))
    A("s_lshl_b32 s56, s7, 17"); A(*srd_off(SX, 72, 73, "s56", 131072))
    A("s_lshl_b32 s56, s5, 21", "s_add_u32 s56, s56, 0x100000"); A(*srd_off(SPART, 92, 93, "s56", 1 << 20))
    if cfg.fused:
        A("s_lshl_b32 s56, s5, 3"); A(*srd_off(SDBG, 98, 99, "s56", 8))
        A("s_lshl_b32 s56, s7, 18", "s_lshl_b32 s57, s6, 15", "s_add_u32 s56, s56, s57", "s_lshr_b32 s57, s5, 4", "s_lshl_b32 s57, s57, 10",
          "s_add_u32 s56, s56, s57")
        A(*srd_off(SOUT, 96, 97, "s56", 0), f"s_sub_u32 s{SOUT+2}, 0x400000, s56")
    if cfg.nokv: A(f"s_mov_b32 s{SK+2}, 0", f"s_mov_b32 s{SV+2}, 0")
    if cfg.nowq: A(f"s_mov_b32 s{SWQ+2}, 0")
    if cfg.nowo: A(f"s_mov_b32 s{SWO+2}, 0")
    if cfg.nops: A(f"s_mov_b32 s{SPART+2}, 0")
    if cfg.stamps:
        A(*srd_off(64, 92, 93, WS_BYTES - (1 << 20), 1 << 20))
        A(f"s_lshr_b32 s68, s{sW}, 2", "s_lshl_b32 s68, s68, 7", "s_lshl_b32 s69, s2, 8", "s_add_u32 s68, s68, s69",
          f"s_and_b32 s69, s{sW}, 3", f"s_cmp_lg_u32 s69, {cfg.stw}", f"s_cselect_b32 s68, {OOB}, s68")
    A(f"s_and_b32 s{sQB}, s{sW}, 3", f"s_lshl_b32 s{sM0}, s{sQB}, 10")
    A(f"s_lshl_b32 s{sCol}, s{sROT}, 17")
    ST(0)
    A("v_and_b32 v1, 15, v0", "v_lshrrev_b32 v2, 4, v0", "v_lshrrev_b32 v3, 2, v1", "v_and_b32 v4, 3, v0")
    def lc16():
        A("v_lshrrev_b32 v5, 3, v0", "v_bfe_u32 v6, v0, 4, 1", f"s_and_b32 s{sT}, s{sQB}, 1", f"s_lshl_b32 s{sT}, s{sT}, 1",
          f"v_or_b32 v6, s{sT}, v6", "v_lshlrev_b32 v6, 1, v6", "v_and_b32 v7, 7, v0", "v_xor_b32 v6, v6, v7", "v_lshlrev_b32 v6, 4, v6")
    def wo_voff():
        lc16()
        A("v_and_b32 v7, 3, v5", "v_lshrrev_b32 v5, 2, v5", "v_lshl_add_u32 v7, v5, 4, v7",
          f"s_lshl_b32 s{sT}, s{sQB}, 2", f"v_add_u32 v7, s{sT}, v7", f"v_lshl_add_u32 v{vWo}, v7, 10, v6")
    def kv_voff():
        A(f"s_lshl_b32 s{sT}, s{sQB}, 2", f"v_add_u32 v5, s{sT}, v2",
          "v_xor_b32 v6, v5, v1", "v_lshlrev_b32 v6, 4, v6",
          f"s_lshl_b32 s{sT}, s{sQB}, 4", f"v_add_u32 v7, s{sT}, v2", "v_lshlrev_b32 v7, 8, v7",
          f"v_add_u32 v{vKo}, v7, v6",
          "v_and_b32 v5, 7, v5", "v_lshlrev_b32 v5, 1, v5", "v_xor_b32 v6, v5, v1", "v_lshlrev_b32 v6, 4, v6", f"v_add_u32 v{vVo}, v7, v6")
    def wq_voff():
        lc16()
        A(f"s_lshl_b32 s{sT}, s{sQB}, 3", f"v_add_u32 v7, s{sT}, v5", f"v_lshl_add_u32 v{vWq}, v7, 13, v6")
    A(f"s_lshl_b32 s{sWc}, s{sROT}, 8")
    if cfg.krot:
        A("s_lshr_b32 s56, s7, 2", "s_lshl_b32 s56, s56, 1", "s_lshl_b32 s57, s6, 2", "s_add_u32 s56, s56, s57",
          "s_bfe_u32 s57, s6, 0x10001", "s_add_u32 s56, s56, s57", "s_and_b32 s56, s56, 7")
    else:
        A("s_mov_b32 s56, 0")
    A(f"s_lshl_b32 s{sKR}, s56, 7", "s_lshl_b32 s56, s56, 19", f"s_add_u32 s{sWc}, s{sWc}, s56")
    A(f"s_cmp_ge_u32 s{sW}, 4", "s_cbranch_scc1 L_P")
    wq_voff()
    A("v_lshrrev_b32 v5, 3, v0", "v_and_b32 v6, 7, v0", "v_xor_b32 v6, v6, v2", "v_lshlrev_b32 v6, 4, v6",
      f"s_lshl_b32 s{sT}, s{sQB}, 5", f"v_add_u32 v5, s{sT}, v5", f"v_lshl_add_u32 v{vXo}, v5, 10, v6")
    A(f"s_lshl_b32 s{sX16}, s{sQB}, 12")
    first, rest = a_prologue(cfg)
    T.append(emit(fin(first)))
    kv_voff()
    T.append(emit(fin(rest)))
    wo_voff()
    A(f"v_mov_b32 v{vWoA}, v{vWo}")
    if cfg.fused:
        A("s_lshl_b32 s56, s5, 2", "s_lshr_b32 s58, s6, 1", "s_add_u32 s56, s56, s58", "s_lshl_b32 s56, s56, 7", f"s_add_u32 s56, s56, {FLG}")
        A(*srd_off(SFLG, 92, 93, "s56", 32))
    if cfg.prioA: A(f"s_setprio {cfg.prioA}")
    A(f"s_mov_b32 s{sBND}, 0x{f2u(1e-30 if cfg.force_fb else float(1 << 20)):x}")
    for s in range(4):
        A(f"v_add_u32 v5, {4*s}, v2", "v_xor_b32 v5, v5, v1", "v_lshlrev_b32 v5, 4, v5", f"v_lshl_add_u32 v{aK+s}, v1, 8, v5")
    A("v_and_b32 v5, 1, v2", "v_lshl_add_u32 v5, v5, 2, v3",
      "v_lshl_add_u32 v6, v2, 2, v3", "v_lshlrev_b32 v6, 8, v6", "v_lshl_add_u32 v6, v4, 3, v6")
    for dt in range(8):
        A(f"v_xor_b32 v7, {dt}, v5", f"v_lshl_add_u32 v{aV+dt}, v7, 5, v6")
    A(f"s_lshl_b32 s57, s{sQB}, 13", f"s_add_u32 s{sT}, s57, {YB}", f"v_add_u32 v{aQ}, s{sT}, v{vLane}")
    A("s_waitcnt vmcnt(12)", "s_barrier")
    segs = split_segments(fin(a_stream(cfg)))
    txt = [emit(s) for s in segs]
    E = lambda n: 2 + 2 * n
    for k in range(E(2), E(32) - 16):
        assert txt[k] == txt[k + 16], k
    ST(1)
    CAL(cfg.cal_pro, "L_cal1")
    T += txt[:E(2)]
    A(f"s_mov_b32 s{sCNT}, 0")
    T.append("L_Aloop:")
    A(f"s_cmp_lt_u32 s{sCNT}, 2", f"s_cselect_b32 s{sT}, 2, 1", f"s_lshl_b32 s{sT}, s{sT}, 16", f"s_add_u32 s{sT}, s{sT}, s57", f"v_add_u32 v{aQ}, s{sT}, v{vLane}",
      f"v_mov_b32 v{aO}, v{aQ}", f"s_cmp_eq_u32 s{sCNT}, 0", "s_cbranch_scc0 L_Ao",
      f"v_add_u32 v{aO}, {XB - YB}, v{aO}")
    T.append("L_Ao:")
    if cfg.cal_mid:
        A(f"s_cmp_lg_u32 s{sCNT}, 2", "s_cbranch_scc1 L_nocal")
        CAL(cfg.cal_mid, "L_cal4")
        T.append("L_nocal:")
    def sst():
        if cfg.series:
            L = [i for i in stamp(cfg, 0) if "v[6:7]" not in i.t]
            T.append(emit(L)); A("s_add_u32 s68, s68, 8")
    sst(); T += txt[E(2):E(4)]
    sst(); T += txt[E(4):E(6)]
    sst(); T += txt[E(6):E(8)]
    sst()
    A(f"s_cmp_eq_u32 s{sCNT}, 3", "s_cbranch_scc1 L_Atail")
    T += txt[E(8):E(10)]
    A(f"s_add_u32 s{sCNT}, s{sCNT}, 1", "s_branch L_Aloop")
    T.append("L_Atail:")
    A(f"v_add_u32 v{aO}, {VB0 - WB0}, v{aO}")
    if cfg.series: A(f"s_mov_b32 s68, {OOB}")
    T += txt[E(32):]
    CAL(cfg.cal_main, "L_cal2")
    if not cfg.bstamp: ST(2)
    T.append(emit(fin(a_tail(cfg))))
    if cfg.fused:
        T += a_reduce(cfg)
    if cfg.cal_wg >= 0: A(f"s_cmp_lg_u32 s2, {cfg.cal_wg}", "s_cbranch_scc1 L_end")
    CAL(cfg.cal_end, "L_cal3")
    ST(3)
    A("s_endpgm")
    T.append("L_P:")
    if cfg.codepf:
        A("s_getpc_b64 s[70:71]")
        T.append("L_pc:")
        A("s_sub_u32 s70, s70, L_pc-attn_main_kernel", "s_subb_u32 s71, s71, 0")
        A(f"s_cmp_ge_u32 s{sQB}, 2", "s_cbranch_scc1 L_nopf")
        A("s_lshr_b32 s56, s2, 3", "s_lshl_b32 s56, s56, 11", f"s_add_u32 s56, s56, s{sM0}",
          "s_min_u32 s56, s56, L_cold-attn_main_kernel-1024", f"v_add_u32 v5, s56, v{vLane}",
          f"global_load_dwordx4 v[{FR(0)}:{FR(0)+3}], v5, s[70:71]")
        T.append("L_nopf:")
    if cfg.fused:
        A("s_lshl_b32 s56, s5, 9", "s_lshl_b32 s57, s6, 2", "s_add_u32 s56, s56, s57", f"s_add_u32 s56, s56, {FLG}")
        A(*srd_off(SFLG, 92, 93, "s56", 388))
        A(f"s_cmp_lg_u32 s{sQB}, 3", "s_cbranch_scc1 L_norst")
        A("v_mov_b32 v5, 0", "v_lshlrev_b32 v6, 7, v0", f"buffer_store_dword v5, v6, s[{SFLG}:{SFLG+3}], 0 offen sc1")
        T.append("L_norst:")
    A(f"s_lshl_b32 s{sX16}, s{sQB}, 12")
    A("v_bfe_u32 v5, v1, 1, 2", "v_xor_b32 v5, v5, v2", "v_lshlrev_b32 v5, 4, v5", "v_lshl_add_u32 v5, v1, 7, v5",
      f"v_add_u32 v{aX}, s{sX16}, v5", f"v_add_u32 v{aX+1}, {WB0}, v{aX}", f"v_add_u32 v{aX+2}, {YB}, v{aX}")
    wq_voff()
    A(f"s_add_u32 s{sWc}, s{sWc}, 256", f"s_and_b32 s{sWc}, s{sWc}, 0x3803ff", f"s_add_u32 s{sWm0}, s{sM0}, {WB0}", f"s_mov_b32 s{sWn}, 2")
    A("v_lshrrev_b32 v5, 1, v3", "v_and_b32 v6, 1, v2", "v_lshl_add_u32 v5, v6, 1, v5",
      "v_lshl_add_u32 v6, v2, 3, v3", "v_lshlrev_b32 v6, 7, v6", "v_lshl_add_u32 v6, v4, 3, v6")
    for mt in range(4):
        A(f"v_xor_b32 v7, {mt}, v5", f"v_lshl_add_u32 v{aW2+mt}, v7, 5, v6", f"v_add_u32 v{aW+mt}, {WB0}, v{aW2+mt}",
          f"v_add_u32 v{aW3+mt}, {YB}, v{aW2+mt}")
    kv_voff()
    A("v_lshrrev_b32 v5, 1, v2", "v_lshlrev_b32 v5, 8, v5", "v_lshl_add_u32 v5, v1, 4, v5", "v_and_b32 v6, 1, v2", "v_lshl_add_u32 v5, v6, 3, v5",
      f"s_lshl_b32 s{sT}, s{sQB}, 13", f"s_add_u32 s{sT}, s{sT}, {YB}", f"v_add_u32 v{aQw}, s{sT}, v5")
    wo_voff()
    A(f"s_mov_b32 s{sSCL}, 0x{f2u(math.log2(math.e) / math.sqrt(128.0)):x}")
    A(f"s_mov_b32 s{sKn}, -1", f"s_mov_b32 s{sVn}, -2",
      f"s_add_u32 s{sKo}, s{sCol}, 16384",
      f"s_mov_b32 s{sVo}, s{sCol}")
    A(f"s_mov_b32 s{sCNT}, 2", "s_waitcnt vmcnt(0)")
    if cfg.fused:
        A("s_bfe_u32 s85, s2, 0x20003", "s_add_u32 s85, s85, 3", f"s_cmp_eq_u32 s{sQB}, 3", "s_cselect_b32 s85, s85, 99")
        A(f"s_lshl_b32 s56, s{sQB}, 7", f"s_add_u32 s{SFLG}, s{SFLG}, s56", f"s_addc_u32 s{SFLG+1}, s{SFLG+1}, 0", f"s_mov_b32 s{SFLG+2}, 4")
    T.append(emit(fin(p_prologue(cfg))))
    ST(1)
    A(f"v_lshlrev_b32 v{vXo}, 7, v0")
    if cfg.prioM: A(f"s_setprio {cfg.prioM}")
    A("s_branch L_Pgo")
    T.append("L_Ploop:")
    if cfg.fused:
        A(f"s_cmp_lg_u32 s{sCNT}, s85", "s_cbranch_scc1 L_nohs")
        A("v_mov_b32 v5, 1", "v_add_u32 v6, s6, v{0}".format(vLane), f"buffer_store_byte v5, v6, s[{SDBG}:{SDBG+3}], 0 offen sc1")
        T.append("L_nohs:")
    if cfg.wopf:
        A(f"s_add_u32 s56, s{sQB}, 4", f"s_cmp_lg_u32 s{sCNT}, s56", "s_cbranch_scc1 L_nowopf")
        A("s_lshl_b32 s56, s7, 15", f"s_lshl_b32 s57, s{sQB}, 13", "s_add_u32 s56, s56, s57",
          f"buffer_load_dword v{vFlag}, v{vXo}, s[{SWO}:{SWO+3}], s56 offen")
        T.append("L_nowopf:")
    if cfg.codepf:
        A(f"s_lshl_b32 s56, s{sQB}, 4", f"s_add_u32 s56, s56, s{sCNT}", "s_cmp_lg_u32 s56, 7", "s_cbranch_scc1 L_nocpf")
        A("s_bfe_u32 s56, s2, 0x30003", "s_lshl_b32 s56, s56, 13", "s_min_u32 s56, s56, L_cold-attn_main_kernel-8192",
          f"v_add_u32 v5, s56, v{vXo}", "global_load_dword v241, v5, s[70:71]")
        T.append("L_nocpf:")
    a0, b0 = p_phase(cfg, 0)
    T.append(emit(fin(a0)))
    A(f"s_bitcmp1_b32 s{sCNT}, 0", "s_cbranch_scc0 L_Pwr")
    T.append(emit(fin([raw("s_nop 1")] + q_pack(HLD) + [lgkm0()])))
    A("s_branch L_Pgo")
    T.append("L_Pwr:")
    pk, st = q_pack(TMP), q_store(TMP, 1)
    wr = q_store(HLD, 0)
    for k in range(8): wr += pk[6 * k:6 * k + 6] + ([st[k - 1]] if k else [])
    T.append(emit(fin(wr + [st[7], lgkm0()])))
    T.append("L_Pgo:")
    body = list(b0)
    for ph in range(1, 8):
        a, b = p_phase(cfg, ph)
        body += a + b
    T.append(emit(fin(body)))
    A(f"s_add_u32 s{sCNT}, s{sCNT}, 1", f"s_cmp_lt_u32 s{sCNT}, 8", "s_cbranch_scc1 L_Ploop")
    for mt in range(4): A(f"v_add_u32 v{aW+mt}, {XB}, v{aW2+mt}")
    A("s_lshl_b32 s58, s6, 14", f"s_lshl_b32 s{sPo}, s{sQB}, 12", f"s_add_u32 s{sPo}, s{sPo}, s58")
    if cfg.prioP: A(f"s_setprio {cfg.prioP}")
    T.append(emit(fin([raw("s_nop 7")] + p_tail(cfg))))
    if cfg.stamps:
        A("s_waitcnt vmcnt(0)")
        ST(3)
    A("s_endpgm")
    T.append("L_cold:")
    variants = {}
    for name, key in SITES.items():
        variants.setdefault(key, f"L_fbr_{key[0]}_{key[1]}_{int(key[2])}")
        T.append(f"L_fb_{name}:")
        A(f"s_call_b64 s[{sRET}:{sRET+1}], {variants[key]}", f"s_branch L_ret_{name}")
    for key, lab in variants.items():
        T.append(f"{lab}:")
        T.append(emit(fallback(*key)))
    T.append("L_end:")
    A("s_endpgm")
    return T

def reduce_kernel(cfg):
    T = []
    A = lambda *a: T.extend("    " + x for x in a)
    T += [".globl attn_reduce_kernel", ".p2align 8", ".type attn_reduce_kernel,@function", "attn_reduce_kernel:"]
    A("s_cmp_ge_u32 s2, 256", "s_cbranch_scc1 L_rend")
    if cfg.stamps: A("s_memrealtime s[40:41]")
    A("s_load_dwordx2 s[4:5], s[0:1], 80", "s_load_dwordx2 s[6:7], s[0:1], 96")
    A("s_lshr_b32 s18, s2, 3", "s_and_b32 s19, s2, 7")
    A("s_lshl_b32 s20, s18, 21", "s_lshl_b32 s21, s19, 17", "s_add_u32 s20, s20, s21", "s_add_u32 s20, s20, 0x100000")
    A("v_lshrrev_b32 v1, 6, v0", "v_and_b32 v2, 63, v0", "v_lshlrev_b32 v3, 4, v2", "v_lshl_add_u32 v3, v1, 11, v3")
    A("s_waitcnt lgkmcnt(0)")
    A(*srd_off(8, 6, 7, "s20", 131072))
    for src in range(8):
        A(f"s_mov_b32 s22, {src*16384}")
        for pair in range(2):
            b = 16 + (src * 2 + pair) * 4
            A(f"buffer_load_dwordx4 v[{b}:{b+3}], v3, s[8:11], s22 offen offset:{pair*1024} {cfg.rflags}")
    A(*srd(12, 4, 5, 1 << 22))
    A("s_and_b32 s23, s18, 15", "s_lshl_b32 s23, s23, 18", "s_lshr_b32 s24, s18, 4", "s_lshl_b32 s24, s24, 10", "s_add_u32 s23, s23, s24",
      "s_lshl_b32 s24, s19, 7", "s_add_u32 s23, s23, s24")
    A("v_and_b32 v4, 15, v2", "v_lshl_add_u32 v4, v1, 4, v4", "v_lshlrev_b32 v4, 11, v4",
      "v_bfe_u32 v5, v2, 4, 1", "v_lshl_add_u32 v4, v5, 5, v4", "v_lshrrev_b32 v5, 5, v2", "v_lshl_add_u32 v4, v5, 4, v4")
    acc = 80
    for src in range(8):
        A(f"s_waitcnt vmcnt({(7-src)*2})")
        for pair in range(2):
            b = 16 + (src * 2 + pair) * 4
            for i in range(4):
                lo, hi = acc + pair * 8 + 2 * i, acc + pair * 8 + 2 * i + 1
                if src == 0:
                    A(f"v_lshlrev_b32 v{lo}, 16, v{b+i}", f"v_and_b32 v{hi}, 0xffff0000, v{b+i}")
                else:
                    A(f"v_lshlrev_b32 v6, 16, v{b+i}", f"v_and_b32 v7, 0xffff0000, v{b+i}", f"v_add_f32 v{lo}, v{lo}, v6", f"v_add_f32 v{hi}, v{hi}, v7")
    for pair in range(2):
        a = acc + pair * 8
        for i in range(4): A(f"v_cvt_pk_bf16_f32 v{16+pair*4+i}, v{a+2*i}, v{a+2*i+1}")
    A("s_nop 1")
    for pair in range(2):
        d = 16 + pair * 4
        A(f"v_permlane16_swap_b32 v{d}, v{d+2}", f"v_permlane16_swap_b32 v{d+1}, v{d+3}")
        A(f"buffer_store_dwordx4 v[{d}:{d+3}], v4, s[12:15], s23 offen offset:{pair*64} {cfg.outflags}")
    if cfg.stamps and not cfg.series:
        A("s_waitcnt vmcnt(0)", "s_memrealtime s[42:43]", "s_waitcnt lgkmcnt(0)")
        A(*srd_off(8, 6, 7, WS_BYTES - (1 << 20), 1 << 20))
        A("s_lshl_b32 s22, s2, 8", "v_mov_b32 v4, s40", "v_mov_b32 v5, s41", "v_mov_b32 v6, s42", "v_mov_b32 v7, s43",
          "v_cmp_eq_u32 vcc, 0, v0", "s_and_saveexec_b64 s[34:35], vcc", "s_cbranch_execz L_rend",
          "buffer_store_dwordx4 v[4:7], v0, s[8:11], s22 offen offset:32")
    T.append("L_rend:")
    A("s_endpgm")
    return T

def kd(name, vgpr, sgpr):
    return [".p2align 6", f".amdhsa_kernel {name}", f"  .amdhsa_next_free_vgpr {vgpr}", f"  .amdhsa_next_free_sgpr {sgpr}",
            f"  .amdhsa_accum_offset {(vgpr+3)//4*4}", "  .amdhsa_group_segment_fixed_size 0", "  .amdhsa_kernarg_size 104",
            "  .amdhsa_user_sgpr_count 2", "  .amdhsa_user_sgpr_kernarg_segment_ptr 1", "  .amdhsa_system_sgpr_workgroup_id_x 1",
            ".end_amdhsa_kernel"]

def generate(cfg, path):
    SITES.clear()
    T = header()
    if cfg.fused:
        T += ["; @launch grid=(256,1,1) block=(512,1,1) lds=163840"]
    else:
        T += ["; @launch kernel=attn_main_kernel grid=(256,1,1) block=(512,1,1) lds=163840",
              "; @launch kernel=attn_reduce_kernel grid=(256,1,1) block=(512,1,1) lds=0"]
    T += ['.amdgcn_target "amdgcn-amd-amdhsa--gfx950"', ".text"]
    T += main_kernel(cfg)
    if not cfg.fused: T += reduce_kernel(cfg)
    T += ['.section .rodata,"a"'] + kd("attn_main_kernel", 256, 102)
    if not cfg.fused: T += kd("attn_reduce_kernel", 96, 48)
    txt = "\n".join(T) + "\n"
    if cfg.fused: txt = txt.replace("attn_main_kernel", NAME + "_kernel")
    open(path, "w").write(txt)

if __name__ == "__main__":
    cfg = Cfg()
    out = "k.s"
    for a in sys.argv[1:]:
        if "=" in a:
            k, v = a.split("=", 1)
            cur = getattr(cfg, k)
            setattr(cfg, k, (v not in ("0", "False")) if isinstance(cur, bool) else type(cur)(v))
        else:
            out = a
    generate(cfg, out)
```

```python
import sys, math, struct
from asmlib import *

NAME = "concat_heads__mha_block_cached__mha_block_cached__near_ridge"
WS_BYTES = 289406976
def f2u(x): return struct.unpack("<I", struct.pack("<f", x))[0]

KB0, VB0, WB0, XB, YB = 0, 32768, 65536, 98304, 131072
DROP = 0x30000
OOB = 0x40000000
SK, SV, SWQ, SWO, SX, SPART = 8, 12, 16, 20, 24, 32
sW, sQB, sCNT, sBND, sSCL, sKo, sVo, sWc, sT, sM0, sWm0, sRET = 36, 37, 38, 39, 40, 41, 42, 43, 44, 45, 46, 48
sPo, sCol, sPo1, sX16, sROT, sKn, sVn, sWn, sKs, sVs = 50, 51, 52, 53, 59, 28, 29, 30, 54, 55
sFm0 = 31
sKVm0 = 47
SFLG, SDBG, SOUT = 72, 76, 80
sFv = 84
vFlag = 240
FLG = 0x4800000
aW3 = 248
aX = 253
vWoA = 253
def Qf(s, qs): return 8 + (s * 2 + qs) * 4
def Oa(dt, qs): return 40 + (dt * 2 + qs) * 4
def Sr(n, kt, qs):
    if kt < 2: return 104 + (kt * 2 + qs) * 4
    return 120 + (n & 1) * 16 + ((kt - 2) * 2 + qs) * 4
def Pf(n, u, qs):
    if u == 0: return 152 + (n & 1) * 8 + qs * 4
    return 168 + qs * 4
def NM(qs): return 176 + qs * 4
def FR(f): return 184 + (f & 7) * 4
TMP = 216
vL, vLS, vTS = 232, 234, 236
aK, aV, aQ, aO, vLane = 238, 242, 250, 251, 252
def Bf(s, qs): return 8 + (s * 2 + qs) * 4
def Ac(mt, qs): return 136 + (mt * 2 + qs) * 4
HLD = 168
aW, aW2, vKo, vVo, vWq, vWo, aQw, vXo = 232, 236, 242, 243, 244, 245, 246, 247

BAR_IDX = 19

class Cfg:
    stamps = False
    kvflags = "nt"
    wflags = ""
    pflags = "sc1"
    xflags = ""
    woflags = ""
    rflags = ""
    outflags = ""
    force_fb = False
    mapping = 2
    rot = True
    codepf = True
    wopf = True
    prioA = 0
    cal_pro = 0
    cal_main = 0
    cal_end = 0
    cal_mid = 0
    cal_wg = -1
    probe = -1
    fused = True
    lastbar = 26
    flagc = 0
    flaglag = 5
    ne = 3
    kvpos = ""
    tlead = 1
    tlate = 3
    pvm = 5
    kvlate = 2
    psplit = 6
    pspread = True
    half = 7
    ktouch = 0
    tflags = ""
    thead = 2
    bstamp = False
    midbar = 17
    aper = 2
    pubfrom = 24
    stw = 0
    pfbody = 7
    order = ""
    pdup = 0
    plead = 2
    pwflags = ""
    krot = False
    series = False
    prioM = 0
    ppace = 0
    nopm = False
    nodma = False
    noav = False
    barq = 19
    barp = 23
    locap = 2
    pf0 = 28
    fbar = 1
    fwait = 2
    fburst = 1
    prioP = 0
    nokv = False
    nowq = False
    nowo = False
    nops = False

def stamp(cfg, idx):
    if not cfg.stamps: return []
    return [S("s_memrealtime s[60:61]"), S("s_memtime s[94:95]"), raw("s_waitcnt lgkmcnt(0)", "lgkm0"),
            raw("v_mov_b32 v2, s60"), raw("v_mov_b32 v3, s61"), raw("v_mov_b32 v4, 0"),
            raw("v_mov_b32 v6, s94"), raw("v_mov_b32 v7, s95"),
            raw("s_mov_b64 s[62:63], exec"), raw("s_mov_b64 exec, 1"),
            raw(f"buffer_store_dwordx2 v[2:3], v4, s[64:67], s68 offen offset:{idx*8}"),
            raw(f"buffer_store_dwordx2 v[6:7], v4, s[64:67], s68 offen offset:{idx*8+64}"),
            raw("s_mov_b64 exec, s[62:63]")]

def softmax_part(n, part):
    L = []
    for qs in range(2):
        for k in range(2):
            s = Sr(n, 2 * part + k, qs)
            e = [TMP + k * 4 + i for i in range(4)]
            for i in range(4): L.append(vexp(e[i], s + i))
            if k == 0:
                L.append(valu("v_add_f32", vTS + qs, e[0], e[1]))
            else:
                L.append(valu("v_add_f32", vTS + qs, vTS + qs, e[0]))
                L.append(valu("v_add_f32", vTS + qs, vTS + qs, e[1]))
            L.append(cvtpk(Pf(n, part, qs) + 2 * k, e[0], e[1]))
            L.append(valu("v_add_f32", vTS + qs, vTS + qs, e[2]))
            L.append(valu("v_add_f32", vTS + qs, vTS + qs, e[3]))
            L.append(cvtpk(Pf(n, part, qs) + 2 * k + 1, e[2], e[3]))
    return L

def l_update(n, part):
    t = n & 7
    if t == 0 and part == 0:
        return [valu("v_mov_b32", vL + qs, vTS + qs) for qs in range(2)]
    if t == 7 and part == 1:
        return [valu("v_add_f32", vLS + qs, vL + qs, vTS + qs) for qs in range(2)]
    return [valu("v_add_f32", vL + qs, vL + qs, vTS + qs) for qs in range(2)]

SITES = {}
def check_pre(n):
    if (n & 7) == 0: return []
    return [valu("v_max_f32", TMP + 8, vTS, vTS + 1), I(f"v_cmp_lt_f32 vcc, s{sBND}, v{TMP+8}", "valu", (), {TMP + 8})]
def check(n, part, sfx):
    t = n & 7
    if t == 0: return []
    name = f"{sfx}{t}_{part}"
    SITES[name] = (n & 1, part, t == 7)
    return [raw(f"s_cbranch_vccnz L_fb_{name}"), label(f"L_ret_{name}")]

def xgroup(op, x, t):
    return [valu("v_mov_b32", t, x), swap32(t, x), valu(op, x, x, t),
            valu("v_mov_b32", t, x), swap16(t, x), valu(op, x, x, t)]

def rowmax(dst, srcs):
    L = [valu("v_max3_f32", dst, srcs[0], srcs[1], srcs[2])]
    rest = srcs[3:]
    while len(rest) >= 2:
        L.append(valu("v_max3_f32", dst, dst, rest[0], rest[1])); rest = rest[2:]
    if rest: L.append(valu("v_max_f32", dst, dst, rest[0]))
    return L

def zipl(a, b):
    out = []
    for i in range(max(len(a), len(b))):
        if i < len(a): out.append(a[i])
        if i < len(b): out.append(b[i])
    return out

def first_tile_max(n):
    per = []
    for qs in range(2):
        m, t = TMP + 8 + qs, TMP + 10 + qs
        srcs = [Sr(n, kt, qs) + i for kt in range(4) for i in range(4)]
        L = rowmax(m, srcs) + xgroup("v_max_f32", m, t)
        L += [valu("v_sub_f32", s, s, m) for s in srcs[:8]]
        per.append(L)
    L = zipl(per[0], per[1])
    late = []
    for qs in range(2):
        m = TMP + 8 + qs
        late += [valu("v_sub_f32", NM(qs) + i, "0", m) for i in range(4)]
        late += [valu("v_sub_f32", s, s, m) for s in [Sr(n, kt, qs) + i for kt in (2, 3) for i in range(4)]]
    return L, late

def o_epilogue(cfg):
    per = []
    for qs in range(2):
        per.append(xgroup("v_add_f32", vLS + qs, TMP + 12 + qs) + [vrcp(vLS + qs, vLS + qs)])
    L = zipl(per[0], per[1])
    k = 0
    for s in range(4):
        for qs in range(2):
            q = TMP + 8 + (k & 1) * 4
            for h in range(2):
                o = Oa(2 * s + h, qs)
                for i in range(4): L.append(valu("v_mul_f32", o + i, o + i, vLS + qs))
                L.append(cvtpk(q + 2 * h, o, o + 1)); L.append(cvtpk(q + 2 * h + 1, o + 2, o + 3))
            L.append(ds_w128(aO, q, (s * 2 + qs) * 1024))
            k += 1
    return L

def k_read(n, f): return [ds_r128(FR(f), aK + (f & 3), KB0 + (n & 1) * 16384 + (f >> 2) * 4096)]
def v_read(n, f):
    dt, u = f >> 1, f & 1
    o = VB0 + (n & 1) * 16384 + u * 8192
    return [ds_tr(FR(f), aV + dt, o), ds_tr(FR(f) + 2, aV + dt, o + 4096)]

NT = 32
def units(i):
    if i.k == "label" or "vmcnt" in i.t: return 0
    return 2 if i.k == "trans" else 1

def schedule(main, ds, blocks, fixed, lo_cap=2):
    fill = []
    ds = list(ds)
    n = len(main)
    used = [0] * (n + 64)
    for p, L in fixed.items(): used[p] += sum(units(i) for i in L)
    for p in range(1, n):
        if main[p] is not None and main[p].tag: used[p - 1] += 1
    g = 0
    cnt = {}
    bars = sorted(p for p, L in fixed.items() if any(i.k == "lgkm0" for i in L))
    for e, ins in ds:
        g = max(g, e)
        while cnt.get(g, 0) >= (1 if (g & 1) == 0 else 2) and main[min(g, n - 1)] is not None: g += 1
        nb = [b for b in bars if b >= e]
        assert not nb or g <= nb[0] - 2, (e, g, ins.t)
        cnt[g] = cnt.get(g, 0) + 1
        used[g] += 1
        fill.append((g, 1, ins))
    def conflict(a, b):
        return bool(a.w & (b.r | b.w)) or bool(a.r & b.w) or (not a.w and not a.r) or (not b.w and not b.r) or (a.k == "dsw" and b.k == "dsw")
    def try_place(s, e, L, hi):
        u = list(used); rest = list(L); out = []
        last = None
        for p in range(s, e + 1):
            cap = lo_cap if (p & 1) == 0 else hi
            last = None
            while rest:
                pick = None
                for k in range(min(len(rest), 14)):
                    c = rest[k]
                    if u[p] + units(c) > cap: continue
                    if any(conflict(x, c) for x in rest[:k]): continue
                    if last is not None and last.k == "trans" and c.k != "trans" and last.w & c.r: continue
                    if last is not None and c.k == "perm" and last.w & c.r: continue
                    pick = k; break
                if pick is None: break
                c = rest.pop(pick); u[p] += units(c); out.append((p, 0, c)); last = c
        return (u, out) if not rest else None
    for (s, e, L) in blocks:
        hi = lo_cap
        while True:
            r = try_place(s, e, L, hi)
            if r: break
            hi += 1
        used, out = r
        fill += out
    pre = [(p, i) for (p, o, i) in fill]
    return pre

def a_stream(cfg):
    qrd = lambda: [ds_r128(Qf(s, qs), aQ, (s * 2 + qs) * 1024) for s in range(4) for qs in range(2)]
    pre = qrd()
    for f in range(8): pre += k_read(0, f)
    main, ds, blocks, fixed = [], [], [], {}
    BQ, BP = cfg.barq, cfg.barp
    for n in range(NT + 1):
        t = n & 7
        sfx = "T" if n >= NT else "L"
        real = n < NT
        b0 = 64 * n
        for kt in range(4):
            for qs in range(2):
                for s in range(4):
                    c = Sr(n, kt, qs) if s else (None if t == 0 else NM(qs))
                    dep = [FR(4 * kt + x) for x in range(4)] if (qs == 0 and s == 0) else ()
                    main.append(mfma(Sr(n, kt, qs), FR(4 * kt + s), Qf(s, qs), c, dep) if real else None)
        if real:
            for f in range(8, 16):
                ds += [(b0 + 4 + (f & 3) + 8 * ((f - 8) >> 2), i) for i in k_read(n, f)]
        if n >= 1:
            va = softmax_part(n - 1, 1) + check_pre(n - 1)
            if t == 1 and n > 8: va = va[:12] + zipl(o_epilogue(cfg), va[12:])
            blocks.append((b0, b0 + 30, va))
        if n == 0:
            fixed[b0 + 7] = [barrier()]
            fixed[b0 + 13] = [barrier()]
        fixed[b0 + BQ] = ([vmcnt(4)] if n == 1 else []) + [lgkm0(), barrier()]
        if n >= 1:
            for f in range(8):
                ds += [(b0 + max(BQ + 1, 20 + (f & 3) + 8 * (f >> 2)), i) for i in v_read(n - 1, f)]
            fixed[b0 + 31] = check(n - 1, 1, sfx) + l_update(n - 1, 1)
        realpv = n >= 1
        m = n - 1
        b1 = b0 + 32
        for dt in range(8):
            for (u, qs) in ((0, 0), (1, 0), (1, 1), (0, 1)):
                firstk = (u == 0 and qs == 0) or (u == 1 and qs == 1)
                c = None if ((m & 7) == 0 and firstk) else Oa(dt, qs)
                dep = [FR(2 * dt + 1)] if (u == 0 and qs == 0) else ()
                main.append(mfma(Oa(dt, qs), FR(2 * dt + u), Pf(m, u, qs), c, dep) if realpv else None)
        qq = qrd() if t == 7 else []
        if realpv:
            for p in range(4):
                ds += [(b1 + 2 + 4 * p, i) for i in v_read(m, 9 + 2 * p)] + [(b1 + 3 + 4 * p, i) for i in v_read(m, 8 + 2 * p)]
                ds += [(b1, i) for i in qq[2 * p:2 * p + 2]]
        if real:
            va = softmax_part(n, 0) + check_pre(n)
            if t == 0:
                early, late = first_tile_max(n)
                blocks.append((b1 + 2, b1 + 30, early + va + late))
            else:
                blocks.append((b1, b1 + 30, va))
        fixed[b1 + BP] = ([vmcnt(8 if n == 0 else 0)] if n < 2 else []) + [lgkm0(), barrier()]
        if n + 1 < NT:
            for f in range(8):
                ds += [(b1 + max(BP + 1, 19 + 4 * (f >> 1)), i) for i in k_read(n + 1, f)]
        if real:
            sf2 = "T" if n + 1 >= NT else "L"
            fixed[b1 + 31] = check(n, 0, sf2) + l_update(n, 0)
    fill = schedule(main, ds, blocks, fixed, cfg.locap)
    fill += [(p, i) for p, L in fixed.items() for i in L]
    seq = pre + [i for i in interleave(main, fill) if i is not None]
    seq += o_epilogue(cfg)
    seq += [lgkm0(), barrier()]
    if cfg.noav: seq = [i for i in seq if i.k not in ("valu", "trans", "perm") and "cbranch" not in i.t]
    return seq

def split_segments(seq):
    segs, cur = [], []
    for i in seq:
        cur.append(i)
        if i.k == "barrier":
            segs.append(cur); cur = []
    if cur: segs.append(cur)
    return segs

def fallback(par, part, last):
    n = par + 2
    L = [raw("s_nop 7"), raw("s_nop 3")]
    D, F, T = TMP + 8, TMP + 10, TMP + 12
    kts = range(4) if part == 0 else (2, 3)
    for qs in range(2):
        srcs = [Sr(n, kt, qs) + i for kt in kts for i in range(4)]
        d, f, t = D + qs, F + qs, T + qs
        L += rowmax(d, srcs) + xgroup("v_max_f32", d, t)
        L += [valu("v_max_f32", d, "0", d), valu("v_ceil_f32", d, d), valu("v_sub_f32", t, "0", d), vexp(f, t)]
        L += [valu("v_sub_f32", s, s, d) for s in srcs]
        L += [valu("v_sub_f32", NM(qs) + i, NM(qs) + i, d) for i in range(4)]
        L += [valu("v_mul_f32", vL + qs, vL + qs, f)]
        L += [valu("v_mul_f32", Oa(dt, qs) + i, Oa(dt, qs) + i, f) for dt in range(8) for i in range(4)]
        if part == 1:
            for i in range(4):
                p = Pf(n, 0, qs) + i
                L += [valu("v_lshlrev_b32", t, "16", p), valu("v_and_b32", p, "0xffff0000", p),
                      valu("v_mul_f32", t, t, f), valu("v_mul_f32", p, p, f), cvtpk(p, t, p)]
            if not last:
                L += [valu("v_sub_f32", s, s, d) for s in [Sr(n + 1, kt, qs) + i for kt in range(4) for i in range(4)]]
    L += softmax_part(n, part)
    L += [raw("s_nop 2"), raw(f"s_setpc_b64 s[{sRET}:{sRET+1}]")]
    return fix_hazards(L)

def q_pack(dst):
    L = []
    for mt in range(4):
        for qs in range(2):
            a = Ac(mt, qs); d = dst + (mt * 2 + qs) * 2
            for i in range(4): L.append(valu("v_mul_f32", a + i, f"s{sSCL}", a + i))
            L += [cvtpk(d, a, a + 1), cvtpk(d + 1, a + 2, a + 3)]
    return L
def q_store(src, hf):
    return [ds_w64(aQw, src + (mt * 2 + qs) * 2, hf * 4096 + (mt >> 1) * 2048 + qs * 1024 + (mt & 1) * 512)
            for mt in range(4) for qs in range(2)]

def wc_adv():
    return [S(f"s_add_u32 s{sWn}, s{sWn}, 1"), S(f"s_add_u32 s{sWc}, s{sWc}, 128"), S(f"s_and_b32 s{sWc}, s{sWc}, 0x3803ff"),
            S(f"s_cmp_ge_u32 s{sWn}, 8"), S(f"s_cselect_b32 s{sWc}, {OOB}, s{sWc}"), S(f"s_cselect_b32 s{sWm0}, {DROP}, s{sWm0}")]
def wq_dma(cfg, kc, ks):
    return [m0set(f"s_add_u32 m0, s{sWm0}, {(kc & 3)*8192 + ks*4096}"),
            S(f"s_add_u32 s{sT}, s{sWc}, {kc * (1 << 19) + ks * (1 << 18)}"), S(f"s_and_b32 s{sT}, s{sT}, 0x403fffff"),
            dma(vWq, SWQ, f"s{sT}", 0, cfg.wflags)]
def kv_pre(isK):
    n, o, s = (sKn, sKo, sKs) if isK else (sVn, sVo, sVs)
    return [S(f"s_cmp_lt_u32 s{n}, 30"), S(f"s_cselect_b32 s{s}, s{o}, {OOB}"), S(f"s_cselect_b32 s{sKVm0}, s{sM0}, {DROP}"),
            S(f"s_add_u32 s{n}, s{n}, 1"), S(f"s_add_u32 s{o}, s{o}, 16384"), S(f"s_and_b32 s{o}, s{o}, 0x7ffff")]
def kv_dma(cfg, isK, slot, jj):
    base = (KB0 if isK else VB0) + slot * 16384 + jj * 3072
    return [m0set(f"s_add_u32 m0, s{sKVm0}, {base}"),
            dma(vKo if isK else vVo, SK if isK else SV, f"s{sKs if isK else sVs}", jj * 1024, cfg.kvflags)]
def kv_issue(cfg, isK, slot):
    L = kv_pre(isK)
    for jj in range(4): L += kv_dma(cfg, isK, slot, jj)
    return L

PRO_REG = [YB, VB0, XB, WB0, KB0]
sKR = 58
def Ac2(mt, qs):
    k = mt * 2 + qs
    return HLD + 4 * k if k < 4 else TMP + 4 * (k - 4)

def qwait(q, tags):
    last = max(i for i, t in enumerate(q) if t in tags)
    return vmcnt(len(q) - 1 - last)

def a_prologue(cfg):
    seq, q = [], []
    def wq(kc):
        L = []
        for hf in range(2):
            for ks in range(2):
                L += [m0set(f"s_add_u32 m0, s{sM0}, {PRO_REG[kc % 5] + hf*8192 + ks*4096}"),
                      S(f"s_add_u32 s{sT}, s{sWc}, {kc * (1 << 19) + ks * (1 << 18) + hf * 128}"), S(f"s_and_b32 s{sT}, s{sT}, 0x3fffff"),
                      dma(vWq, SWQ, f"s{sT}", 0, cfg.pwflags)]
        L += x_dma(cfg, kc)
        q.extend([kc] * 8)
        return L
    def two(isK):
        L = []
        s = sKs if isK else sVs
        for slot in range(2):
            L.append(S(f"s_add_u32 s{s}, s{sCol}, {slot * 16384}"))
            for jj in range(4): L += kv_dma(cfg, isK, slot, jj)
        q.extend(["kv"] * 8)
        return L
    first = []
    for kc in range(cfg.plead): first += wq(kc)
    seq.append(S(f"s_mov_b32 s{sKVm0}, s{sM0}"))
    nxt = cfg.plead
    for kc in range(9):
        seq += [qwait(q, {kc}), barrier()]
        while nxt <= min(kc + 3, 7) and nxt <= kc + cfg.plead:
            seq += wq(nxt); nxt += 1
        if kc == 5:
            seq += [S(f"s_add_u32 s{sWc}, s{sWc}, 256"), S(f"s_and_b32 s{sWc}, s{sWc}, 0x3803ff"), S(f"s_add_u32 s{sWm0}, s{sM0}, {WB0}")]
            for c in range(4):
                for ks in range(2): seq += wq_dma(cfg, c, ks)
            q += [8] * 8
        if kc == 6: seq += two(True)
        if kc == 8: seq += two(False)
    return first, seq

def x_dma(cfg, kc):
    L = [m0set(f"s_add_u32 m0, s{sX16}, {PRO_REG[kc % 5] + 16384}"),
         S(f"s_add_u32 s{sT}, s{sKR}, {kc * 128}"), S(f"s_and_b32 s{sT}, s{sT}, 1023")]
    for p in range(4):
        if p: L += [m0set("s_add_u32 m0, m0, 1024"), S(f"s_add_u32 s{sT}, s{sT}, 8192")]
        L.append(dma(vXo, SX, f"s{sT}", 0, cfg.xflags))
    return L

def p_prologue(cfg):
    def base_of(addr):
        return (0, 0) if addr < 65536 else ((1, WB0) if addr < YB else (2, YB))
    def rd(kc, f):
        if kc == 8: return ring_read(0, f)
        hf, mt, ks = f >> 3, (f >> 1) & 3, f & 1
        addr = PRO_REG[kc % 5] + hf * 8192 + ks * 4096
        k, base = base_of(addr)
        a = (aW2, aW, aW3)[k]
        return [ds_tr(FR(f), a + mt, addr - base), ds_tr(FR(f) + 2, a + mt, addr - base + 512)]
    def xrd(kc):
        addr = PRO_REG[kc % 5] + 16384
        k, base = base_of(addr)
        return [ds_r128(Bf(2 * kc + ks, qs), aX + k, addr - base + qs * 2048 + ks * 64) for ks in range(2) for qs in range(2)]
    pre = [barrier()] + xrd(0)
    for f in range(8): pre += rd(0, f)
    main, fill = [], []
    for kc in range(8):
        b0 = 32 * kc
        for g in range(8):
            hf, mt = g >> 2, g & 3
            for (ks, qs) in ((0, 0), (1, 0), (1, 1), (0, 1)):
                firstk = (ks == 0 and qs == 0) or (ks == 1 and qs == 1)
                a = (Ac if hf else Ac2)(mt, qs)
                dep = [FR(2 * g + 1)] if (ks == 0 and qs == 0) else ()
                main.append(mfma(a, FR(2 * g + ks), Bf(2 * kc + ks, qs), None if (kc == 0 and firstk) else a, dep))
            if g == 4:
                fill.append((b0 + 17, barrier()))
                if cfg.stamps and kc in (1, 3, 6): fill += [(b0 + 17, x) for x in stamp(cfg, {1: 5, 3: 6, 6: 7}[kc])]
                if kc < 7: fill += [(b0 + 17 + 2 * k, x) for k, x in enumerate(xrd(kc + 1))]
            k2, f2 = (kc, 2 * g + 8) if g < 4 else (kc + 1, 2 * g - 8)
            r = rd(k2, f2 + 1) + rd(k2, f2)
            fill += [(b0 + 4 * g + 2 + k, x) for k, x in enumerate(r)]
        if kc == 7:
            pk = []
            for mt in range(4):
                for qs in range(2):
                    a = Ac2(mt, qs); d = HLD + (mt * 2 + qs) * 2
                    for i in range(4): pk.append(valu("v_mul_f32", a + i, f"s{sSCL}", a + i))
                    pk += [cvtpk(d, a, a + 1), cvtpk(d + 1, a + 2, a + 3)]
            fill += [(b0 + p, x) for p, x in spread(pk + q_store(HLD, 0), 18, 31)]
    seq = pre + interleave(main, fill)
    pk, st = q_pack(TMP), q_store(TMP, 1)
    for k in range(8): seq += pk[6 * k:6 * k + 6] + [st[k]]
    seq += [lgkm0(), barrier()]
    return seq

def ring_read(kc, f):
    mt, ks = f >> 1, f & 1
    o = (kc & 3) * 8192 + ks * 4096
    return [ds_tr(FR(f), aW + mt, o), ds_tr(FR(f) + 2, aW + mt, o + 512)]

def chunk_mfmas(kc):
    L = []
    for mt in range(4):
        for (ks, qs) in ((0, 0), (1, 0), (1, 1), (0, 1)):
            firstk = (ks == 0 and qs == 0) or (ks == 1 and qs == 1)
            c = None if (kc == 0 and firstk) else Ac(mt, qs)
            dep = [FR(2 * mt + 1)] if (ks == 0 and qs == 0) else ()
            L.append(mfma(Ac(mt, qs), FR(2 * mt + ks), Bf(2 * kc + ks, qs), c, dep))
    return L

def p_phase(cfg, ph):
    PS = cfg.psplit
    isK = (ph & 1) == 1
    slot = [1, 1, 0, 0, 1, 1, 0, 0][ph]
    m1, m2 = chunk_mfmas((ph - 1) & 7)[PS:], chunk_mfmas(ph)[:PS]
    fill = []
    pos = -1
    for mt in range(4):
        for f, last in ((2 * mt + 1, 4 * mt + 2), (2 * mt, 4 * mt + 3)):
            for x in ring_read(ph, f):
                pos = max(pos, last - PS)
                fill.append((min(pos, len(m1) - 1), x))
                if cfg.pspread: pos += 1
    kv = kv_issue(cfg, isK, slot)
    head, rest = kv[:8], kv[8:]
    d = []
    if ph == 5: d += wc_adv()
    for ks in range(2): d += wq_dma(cfg, (ph + 3) & 7, ks)
    fill2 = []
    if cfg.kvpos:
        P = [int(x) for x in cfg.kvpos.split(",")]
        nw = len(d) - 4
        groups = [d[:nw], d[nw:], kv[:8], kv[8:10], kv[10:12], kv[12:14]]
        extra = []
        for p, gl in zip(P, groups):
            if p < len(m1) or ph == 0: extra += [(min(p, len(m1) - 1), x) for x in gl]
            else: fill2 += [(p - len(m1), x) for x in gl]
        fill = extra + fill
    elif cfg.kvlate:
        fill = spread(d, -1, 2) + spread(kv, cfg.kvlate, len(m1) - 1) + fill
    else:
        fill = [(-1, x) for x in head] + [(k // 2, x) for k, x in enumerate(rest)] + spread(d, 3, 8) + fill
    a = interleave(m1, fill)
    b = interleave(m2, fill2) + [vmcnt(cfg.pvm), lgkm0(), barrier()]
    if cfg.nopm: a, b = [[i for i in s if i.k not in ("mfma", "dsr")] for s in (a, b)]
    if cfg.nodma: a = [i for i in a if i.k not in ("dma",)]
    return a, b

def wo_chunk(cfg, k, plan, voff=None):
    sl, c = plan["blocks"][k]; slot = plan["slot"][k]
    L = []
    for ks in range(4):
        lds = (XB + slot * 16384 if slot < 4 else (slot - 4) * 16384) + ks * 4096
        L += [m0set(f"s_add_u32 m0, s{sM0}, {lds}"),
              S(f"s_add_u32 s{sT}, s{sCol}, {c * 131072 + ks * 32768 + sl * 128}"), S(f"s_and_b32 s{sT}, s{sT}, 0x7ffff"),
              dma(voff or vWo, SWO, f"s{sT}", 0, cfg.woflags)]
    return vtag(L, ("wo", k))

def b_load(pos, addr):
    return [ds_r128(Bf(4 * pos + (fr >> 1), fr & 1), addr, fr * 1024) for fr in range(8)]

def w_read(slot, f):
    mt, ks = f >> 2, f & 3
    o = (slot & 3) * 16384 + ks * 4096
    a = (aW if slot < 4 else aW2) + mt
    return [ds_tr(FR(f), a, o), ds_tr(FR(f) + 2, a, o + 512)]

def tail_plan(cfg):
    ne = cfg.ne
    names = {"A": "A", "H": "H", "T": "T", "L": "L0", "M": "L1", "F": "F"}
    order = cfg.order or ("AHTLM"[:ne] + "F" * (8 - ne))
    fo = [names[ch] for ch in order]
    early = [d for d in ("L0", "L1", "H", "T", "A") if d in fo]
    blocks = [(fo.index(d), c) for d in early for c in range(3)]
    n0 = len(blocks)
    for s, d in enumerate(fo):
        blocks += [(s, c) for c in (range(4) if d == "F" else (3,))]
    slot = {k: k & 3 for k in range(n0 + 3)}
    slot[n0 + 3] = 4; slot[n0 + 4] = 5
    a_issue = {}
    free = []
    nxt = n0 + 5
    for k in range(n0, cfg.lastbar):
        free.append(slot[k - 1])
        if k == n0 + 1: free += [6, 7]
        L = []
        while free and nxt < 32 and len(L) < cfg.aper:
            slot[nxt] = free.pop(0); L.append(nxt); nxt += 1
        a_issue[k] = L
    assert nxt == 32
    return dict(fo=fo, early=early, blocks=blocks, n0=n0, slot=slot, a_issue=a_issue)

def flag_pub(val):
    return [valu("v_mov_b32", vFlag, str(val)), vwait(lambda t: t[0] == "st" and t[1] < val)] + \
           vtag([I(f"buffer_store_dword v{vFlag}, v{vLane}, s[{SFLG}:{SFLG+3}], 0 offen sc1", "vstore", (), {vFlag, vLane})], ("fl", val))

def p_tail(cfg):
    plan = tail_plan(cfg)
    blocks, n0, slot, fo = plan["blocks"], plan["n0"], plan["slot"], plan["fo"]
    p0 = 21 - n0 - cfg.half
    assert p0 >= 5
    sp, ep = {}, {}
    p = p0
    for k in range(n0):
        sp[k] = p; p += 2 if k < cfg.half else 1; ep[k] = p - 1
    for k in range(n0, n0 + 5): sp[k] = ep[k] = 21 + (k - n0)
    ep[-1] = p0 - 1
    issue = {}
    for k in range(n0 + 3): issue.setdefault(2 + k if k < 4 else sp[k - 3], []).append(k)
    issue.setdefault(17, []).append(n0 + 3); issue.setdefault(18, []).append(n0 + 4)
    assert sp[2] >= 7
    def setbase(reg, base):
        return [S(f"s_lshl_b32 s{sT}, s{sQB}, 13"), S(f"s_add_u32 s{sT}, s{sT}, {base}"), valu("v_add_u32", reg, f"s{sT}", vLane)]
    def period_ops(p):
        n, kind = 23 + p // 2, "EO"[p & 1]
        mem, other = [], []
        ks = issue.get(p, [])
        for k in ks[:1]: mem += wo_chunk(cfg, k, plan)
        if kind == "E" and n <= 31: mem += vtag(kv_issue(cfg, False, n & 1), ("kv", p))
        if kind == "O" and n + 2 <= 31: mem += vtag(kv_issue(cfg, True, n & 1), ("kv", p))
        for k in ks[1:]: mem += wo_chunk(cfg, k, plan)
        if p == 0:
            other += chunk_mfmas(7)[cfg.psplit:] + [valu("v_add_u32", aQw, f"{WB0 - YB}", aQw)] + q_pack(TMP) + q_store(HLD, 0) + q_store(TMP, 1)
        if p == 1:
            other += setbase(aQw, XB) + b_load(0, aQw) + setbase(aQw, YB) + b_load(1, aQw) + setbase(aQw, WB0) + setbase(vXo, VB0)
        if p == 6: other += b_load(2, aQw)
        close = [vwait(lambda t, p=p: (t[0] == "kv" and t[1] <= p - cfg.tlead) or (t[0] == "wo" and ep[t[1] - 1] - 1 <= p))]
        if p < p0 - 1: close.append(lgkm0())
        close.append(barrier())
        return mem, other, close
    seq = []
    for p in range(p0):
        mem, other, close = period_ops(p)
        if p == p0 - 1:
            for f in range(8): other += w_read(slot[0], f)
        seq += mem + other + close
    main, fill = [], []
    src_of = {"H": HLD, "T": TMP, "L0": HLD, "L1": TMP}
    published = 0
    done_at = {}
    for k, (sl, c) in enumerate(blocks):
        b0 = 32 * k
        fresh = (c == 0)
        for mt in range(4):
            for qs in range(2):
                for ks in range(4):
                    cc = None if (fresh and ks == 0) else Ac(mt, qs)
                    dep = [FR(4 * mt + ks + 1)] if (qs == 0 and ks in (0, 2)) else ()
                    main.append(mfma(Ac(mt, qs), FR(4 * mt + ks), Bf(4 * c + ks, qs), cc, dep))
        if cfg.bstamp:
            fill.append((b0, raw("s_memtime s[90:91]")))
            fill.append((b0 + 24, raw(f"v_writelane_b32 v241, s90, {k}")))
        if k < n0:
            span = 32 // (ep[k] - sp[k] + 1)
            closes = []
            for h, p in enumerate(range(sp[k], ep[k] + 1)):
                mem, other, close = period_ops(p)
                o = b0 + h * span
                if h: fill += [(o - 1, x) for x in closes.pop()]
                fill += [(o + q, x) for q, x in spread(mem, cfg.tlate, min(17, span - 4))] + [(o + q, x) for q, x in spread(other, span // 2 - 2, span - 4)]
                closes.append(close)
            close = closes.pop()
        elif n0 < k <= cfg.lastbar:
            if k == n0 + 1: fill.append((b0 + 3, vwait(lambda t: t[0] == "wo")))
            fill.append((b0 + 3, barrier()))
        for mt in range(4):
            if mt >= 2 and k + 1 >= len(blocks): continue
            sl2, mt2 = (slot[k], mt + 2) if mt < 2 else (slot[k + 1], mt - 2)
            rd = []
            for ks in range(4): rd += w_read(sl2, 4 * mt2 + ks)
            for n, x in enumerate(rd): fill.append((b0 + 8 * mt + 4 + n, x))
        if k < n0:
            fill += [(b0 + 31, x) for x in close]
            if k == n0 - 1:
                fill += [(b0 + 31, x) for x in ([] if cfg.bstamp else stamp(cfg, 2)) + b_load(3, vXo)]
        for pair in range(2):
            for qs in range(2):
                s0 = b0 + 14 + 8 * qs + 16 * pair
                t, u = Ac(2 * pair, qs), Ac(2 * pair + 1, qs)
                if k < n0 and c == 2 and fo[sl] != "A":
                    d = fo[sl]
                    z = src_of[d] + (pair * 2 + qs) * 4
                    L = [cvtpk(z, t, t + 1), cvtpk(z + 1, t + 2, t + 3), cvtpk(z + 2, u, u + 1), cvtpk(z + 3, u + 2, u + 3)]
                    fill += [(s0 + n, x) for n, x in enumerate(L)]
                    if d[0] == "L": fill.append((s0 + 4, ds_w128(aQw, z, int(d[1]) * 4096 + (pair * 2 + qs) * 1024)))
                if k >= n0 and c == 3:
                    nxt = fo[sl + 1] if sl + 1 < len(fo) and fo[sl + 1] != "F" else None
                    if pair == 0 and qs == 0: fill.append((s0 - 1, S(f"s_add_u32 s{sPo1}, s{sPo}, {sl * 131072}")))
                    L = [cvtpk(t, t, t + 1), cvtpk(t + 1, t + 2, t + 3), cvtpk(t + 2, u, u + 1), cvtpk(t + 3, u + 2, u + 3)]
                    st = vtag([bstore(t, vLane, SPART, f"s{sPo1}", (qs * 2 + pair) * 1024, cfg.pflags)], ("st", sl))
                    if nxt:
                        s = src_of[nxt] + (pair * 2 + qs) * 4
                        U = []
                        for (dst, o) in ((u, 2), (t, 0)):
                            for h in range(2):
                                U += [valu("v_lshlrev_b32", dst + 2 * h, "16", s + o + h), valu("v_and_b32", dst + 2 * h + 1, "0xffff0000", s + o + h)]
                        fill += [(s0 + n // 2, x) for n, x in enumerate(L)] + [(s0 + 2, st[0])]
                        fill += [(s0 + p, x) for p, x in zip((3, 3, 4, 5, 5, 6, 7, 7), U)]
                    else:
                        fill += [(s0 + n, x) for n, x in enumerate(L)] + [(s0 + 4, st[0])]
                    done_at[sl] = k
        if k >= n0 and c == 3 and fo[sl] in ("H", "T"):
            d = {"H": "L0", "T": "L1"}[fo[sl]]
            if d in fo:
                assert fo.index(d) >= sl + 2
                fill += [(b0 + 17 + n, ds_r128(src_of[d] + 4 * n, aQw, int(d[1]) * 4096 + n * 1024)) for n in range(4)]
        if cfg.fused and k >= n0:
            ready = sum(1 for s, kk in done_at.items() if kk + cfg.flaglag <= k)
            if ready > published and k >= cfg.pubfrom:
                fill += [(b0 + 16, x) for x in flag_pub(ready)]
                published = ready
    seq += interleave(main, fill)
    if cfg.bstamp:
        seq += [raw("s_memtime s[90:91]"), lgkm0(), raw("v_writelane_b32 v241, s90, 32"), raw("v_lshlrev_b32 v5, 2, v0"),
                raw("s_lshl_b32 s90, s2, 8"), raw("s_add_u32 s90, s90, 0x10000"), raw(f"s_cmp_lg_u32 s{sQB}, {cfg.stw}"), raw(f"s_cselect_b32 s90, {OOB}, s90"),
                raw("buffer_store_dword v241, v5, s[64:67], s90 offen")]
    seq += stamp(cfg, 4)
    if cfg.fused:
        if published < 7: seq += flag_pub(7)
        seq += flag_pub(8)
    return resolve_vwaits(seq, [("kv", -2)] * 6 + [("kv", -1)] * 6)

def a_tail(cfg):
    plan = tail_plan(cfg)
    n0 = plan["n0"]
    seq = []
    for k in range(n0, cfg.lastbar + 1):
        last = k == cfg.lastbar
        if k > n0: seq += [vwait(lambda t, k=k, last=last: last or t[1] <= k + 1), barrier()]
        for kk in plan["a_issue"].get(k, []): seq += wo_chunk(cfg, kk, plan, vWoA)
    return resolve_vwaits(seq)

def rstamp(cfg, idx):
    if not cfg.stamps: return []
    return ["    " + x for x in ["s_memrealtime s[60:61]", "s_waitcnt lgkmcnt(0)", "v_mov_b32 v100, s60", "v_mov_b32 v101, s61", "v_mov_b32 v102, 0",
            "s_mov_b64 s[62:63], exec", "s_mov_b64 exec, 1", f"buffer_store_dwordx2 v[100:101], v102, s[64:67], s68 offen offset:{idx*8}", "s_mov_b64 exec, s[62:63]"]]

def a_reduce(cfg):
    T = []
    A = lambda *a: T.extend("    " + x for x in a)
    A("v_lshlrev_b32 v1, 2, v0", "v_and_b32 v4, 15, v0", "v_lshlrev_b32 v4, 11, v4",
      "v_bfe_u32 v5, v0, 4, 1", "v_lshl_add_u32 v4, v5, 5, v4", "v_lshrrev_b32 v5, 5, v0", "v_lshl_add_u32 v4, v5, 4, v4", "v_mov_b32 v3, 0")
    T += rstamp(cfg, 4)
    A("s_mov_b32 s85, 0", "s_mov_b32 s86, 0x01010101")
    T.append("L_hs:")
    A(f"buffer_load_dwordx2 v[6:7], v3, s[{SDBG}:{SDBG+3}], 0 offen sc1", "s_add_u32 s85, s85, 1", "s_waitcnt vmcnt(0)",
      "v_and_b32 v6, v6, v7", "v_cmp_eq_u32 vcc, s86, v6", "s_cbranch_vccnz L_hs_ok", "s_cmp_lt_u32 s85, 0x20000", "s_cbranch_scc1 L_hs")
    T.append("L_hs_ok:")
    A(f"s_mov_b32 s87, s{sQB}")
    T.append("L_rs:")
    T += rstamp(cfg, 5)
    A("s_mov_b32 s85, 0")
    T.append("L_poll:")
    A(f"buffer_load_dword v6, v1, s[{SFLG}:{SFLG+3}], 0 offen sc1", "s_add_u32 s85, s85, 1", "s_waitcnt vmcnt(0)",
      "v_cmp_lt_u32 vcc, s87, v6", "s_cmp_eq_u32 vcc_lo, 0xff", "s_cbranch_scc1 L_got", "s_cmp_lt_u32 s85, 0x20000", "s_cbranch_scc1 L_poll")
    T.append("L_got:")
    T += rstamp(cfg, 6)
    A("s_lshl_b32 s88, s87, 17", "s_lshl_b32 s89, s6, 11", "s_add_u32 s88, s88, s89")
    for src in range(8):
        for pair in range(2):
            b = 16 + (src * 2 + pair) * 4
            A(f"buffer_load_dwordx4 v[{b}:{b+3}], v{vLane}, s[{SPART}:{SPART+3}], s88 offen offset:{pair*1024} sc1")
        if src < 7: A("s_add_u32 s88, s88, 16384")
    A("s_lshl_b32 s89, s87, 7")
    acc = 80
    for src in range(8):
        A(f"s_waitcnt vmcnt({(7-src)*2})")
        for pair in range(2):
            b = 16 + (src * 2 + pair) * 4
            for i in range(4):
                lo, hi = acc + pair * 8 + 2 * i, acc + pair * 8 + 2 * i + 1
                if src == 0:
                    A(f"v_lshlrev_b32 v{lo}, 16, v{b+i}", f"v_and_b32 v{hi}, 0xffff0000, v{b+i}")
                else:
                    A(f"v_lshlrev_b32 v6, 16, v{b+i}", f"v_and_b32 v7, 0xffff0000, v{b+i}", f"v_add_f32 v{lo}, v{lo}, v6", f"v_add_f32 v{hi}, v{hi}, v7")
    for pair in range(2):
        a = acc + pair * 8
        for i in range(4): A(f"v_cvt_pk_bf16_f32 v{8+pair*4+i}, v{a+2*i}, v{a+2*i+1}")
    T += rstamp(cfg, 7)
    A("s_nop 1")
    for pair in range(2):
        d = 8 + pair * 4
        A(f"v_permlane16_swap_b32 v{d}, v{d+2}", f"v_permlane16_swap_b32 v{d+1}, v{d+3}")
        A(f"buffer_store_dwordx4 v[{d}:{d+3}], v4, s[{SOUT}:{SOUT+3}], s89 offen offset:{pair*64} {cfg.outflags}")
    A("s_add_u32 s87, s87, 4", "s_cmp_lt_u32 s87, 8", "s_cbranch_scc1 L_rs")
    return T

def fin(seq): return fix_hazards(insert_lgkm(order_gaps(seq)))

def header():
    ref = open("cdna_kernels/" + NAME + ".s.ref").read().splitlines()
    return [l for l in ref if l.startswith(";") and "@launch" not in l and "Override" not in l and "grid=ceil" not in l]

def srd(dst, lo, hi, nbytes):
    return [f"s_mov_b32 s{dst}, s{lo}", f"s_mov_b32 s{dst+1}, s{hi}", f"s_mov_b32 s{dst+2}, {nbytes}", f"s_mov_b32 s{dst+3}, 0x20000"]
def srd_off(dst, lo, hi, off, nbytes):
    return [f"s_add_u32 s{dst}, s{lo}, {off}", f"s_addc_u32 s{dst+1}, s{hi}, 0", f"s_mov_b32 s{dst+2}, {nbytes}", f"s_mov_b32 s{dst+3}, 0x20000"]

def main_kernel(cfg):
    T = []
    A = lambda *a: T.extend("    " + x for x in a)
    ST = lambda i: T.append(emit(stamp(cfg, i))) if cfg.stamps else None
    T += [".globl attn_main_kernel", ".p2align 8", ".type attn_main_kernel,@function", "attn_main_kernel:"]
    A("s_cmp_ge_u32 s2, 256", "s_cbranch_scc1 L_end")
    cal = cfg.cal_pro or cfg.cal_main or cfg.cal_end or cfg.cal_mid or cfg.probe >= 0
    def PR(k):
        if cfg.probe == k: A("s_memrealtime s[94:95]", "s_waitcnt lgkmcnt(0)")
    if cal: A("s_memrealtime s[100:101]")
    def CAL(us, lab):
        if not us: return
        T.append(f"{lab}:")
        A("s_memrealtime s[60:61]", "s_waitcnt lgkmcnt(0)", "s_sub_u32 s60, s60, s100", f"s_cmp_lt_u32 s60, {us*100}", f"s_cbranch_scc1 {lab}")
    A("s_load_dwordx8 s[72:79], s[0:1], 0", "s_load_dwordx8 s[80:87], s[0:1], 32", "s_load_dwordx4 s[88:91], s[0:1], 64",
      "s_load_dwordx2 s[92:93], s[0:1], 96", "s_load_dwordx4 s[96:99], s[0:1], 80")
    if cfg.mapping == 0:
        A("s_and_b32 s3, s2, 7", "s_lshr_b32 s4, s2, 3", "s_lshl_b32 s5, s3, 2", "s_lshr_b32 s6, s4, 3", "s_add_u32 s5, s5, s6",
          "s_and_b32 s6, s4, 7", f"s_and_b32 s{sROT}, s3, 3")
    elif cfg.mapping == 1:
        A("s_and_b32 s6, s2, 7", "s_lshr_b32 s5, s2, 3", f"s_and_b32 s{sROT}, s5, 3")
    elif cfg.mapping == 2:
        A("s_and_b32 s3, s2, 7", "s_lshr_b32 s4, s2, 3",
          "s_and_b32 s5, s4, 15", "s_and_b32 s6, s3, 4", "s_lshl_b32 s6, s6, 2", "s_add_u32 s5, s5, s6",
          "s_and_b32 s6, s3, 3", "s_lshl_b32 s6, s6, 1", "s_lshr_b32 s4, s4, 4", "s_add_u32 s6, s6, s4",
          f"s_and_b32 s{sROT}, s5, 3")
    if not cfg.rot: A(f"s_mov_b32 s{sROT}, 0")
    A("s_and_b32 s7, s5, 15")
    A("v_lshrrev_b32 v1, 6, v0", "v_and_b32 v0, 63, v0", f"v_readfirstlane_b32 s{sW}, v1")
    A(f"v_lshlrev_b32 v{vLane}, 4, v0")
    A("s_waitcnt lgkmcnt(0)")
    A("s_cmp_ge_u32 s5, 16")
    for k in range(5):
        A(f"s_cselect_b32 s{72+2*k}, s{82+2*k}, s{72+2*k}", f"s_cselect_b32 s{73+2*k}, s{83+2*k}, s{73+2*k}")
    A("s_lshl_b32 s56, s7, 22", "s_lshl_b32 s57, s6, 19", "s_add_u32 s56, s56, s57")
    A(*srd_off(SK, 74, 75, "s56", 524288)); A(*srd_off(SV, 76, 77, "s56", 524288))
    A("s_lshl_b32 s56, s6, 10")
    A(*srd_off(SWQ, 78, 79, "s56", 0), f"s_sub_u32 s{SWQ+2}, 0x400000, s56")
    A(*srd_off(SWO, 80, 81, "s57", 524288))
    A("s_lshl_b32 s56, s7, 17"); A(*srd_off(SX, 72, 73, "s56", 131072))
    A("s_lshl_b32 s56, s5, 21", "s_add_u32 s56, s56, 0x100000"); A(*srd_off(SPART, 92, 93, "s56", 1 << 20))
    if cfg.fused:
        A("s_lshl_b32 s56, s5, 3"); A(*srd_off(SDBG, 98, 99, "s56", 8))
        A("s_lshl_b32 s56, s7, 18", "s_lshl_b32 s57, s6, 15", "s_add_u32 s56, s56, s57", "s_lshr_b32 s57, s5, 4", "s_lshl_b32 s57, s57, 10",
          "s_add_u32 s56, s56, s57")
        A(*srd_off(SOUT, 96, 97, "s56", 0), f"s_sub_u32 s{SOUT+2}, 0x400000, s56")
    if cfg.nokv: A(f"s_mov_b32 s{SK+2}, 0", f"s_mov_b32 s{SV+2}, 0")
    if cfg.nowq: A(f"s_mov_b32 s{SWQ+2}, 0")
    if cfg.nowo: A(f"s_mov_b32 s{SWO+2}, 0")
    if cfg.nops: A(f"s_mov_b32 s{SPART+2}, 0")
    if cfg.stamps:
        A(*srd_off(64, 92, 93, WS_BYTES - (1 << 20), 1 << 20))
        A(f"s_lshr_b32 s68, s{sW}, 2", "s_lshl_b32 s68, s68, 7", "s_lshl_b32 s69, s2, 8", "s_add_u32 s68, s68, s69",
          f"s_and_b32 s69, s{sW}, 3", f"s_cmp_lg_u32 s69, {cfg.stw}", f"s_cselect_b32 s68, {OOB}, s68")
    A(f"s_and_b32 s{sQB}, s{sW}, 3", f"s_lshl_b32 s{sM0}, s{sQB}, 10")
    A(f"s_lshl_b32 s{sCol}, s{sROT}, 17")
    ST(0)
    A("v_and_b32 v1, 15, v0", "v_lshrrev_b32 v2, 4, v0", "v_lshrrev_b32 v3, 2, v1", "v_and_b32 v4, 3, v0")
    def lc16():
        A("v_lshrrev_b32 v5, 3, v0", "v_bfe_u32 v6, v0, 4, 1", f"s_and_b32 s{sT}, s{sQB}, 1", f"s_lshl_b32 s{sT}, s{sT}, 1",
          f"v_or_b32 v6, s{sT}, v6", "v_lshlrev_b32 v6, 1, v6", "v_and_b32 v7, 7, v0", "v_xor_b32 v6, v6, v7", "v_lshlrev_b32 v6, 4, v6")
    def wo_voff():
        lc16()
        A("v_and_b32 v7, 3, v5", "v_lshrrev_b32 v5, 2, v5", "v_lshl_add_u32 v7, v5, 4, v7",
          f"s_lshl_b32 s{sT}, s{sQB}, 2", f"v_add_u32 v7, s{sT}, v7", f"v_lshl_add_u32 v{vWo}, v7, 10, v6")
    def kv_voff():
        A(f"s_lshl_b32 s{sT}, s{sQB}, 2", f"v_add_u32 v5, s{sT}, v2",
          "v_xor_b32 v6, v5, v1", "v_lshlrev_b32 v6, 4, v6",
          f"s_lshl_b32 s{sT}, s{sQB}, 4", f"v_add_u32 v7, s{sT}, v2", "v_lshlrev_b32 v7, 8, v7",
          f"v_add_u32 v{vKo}, v7, v6",
          "v_and_b32 v5, 7, v5", "v_lshlrev_b32 v5, 1, v5", "v_xor_b32 v6, v5, v1", "v_lshlrev_b32 v6, 4, v6", f"v_add_u32 v{vVo}, v7, v6")
    def wq_voff():
        lc16()
        A(f"s_lshl_b32 s{sT}, s{sQB}, 3", f"v_add_u32 v7, s{sT}, v5", f"v_lshl_add_u32 v{vWq}, v7, 13, v6")
    A(f"s_lshl_b32 s{sWc}, s{sROT}, 8")
    if cfg.krot:
        A("s_lshr_b32 s56, s7, 2", "s_lshl_b32 s56, s56, 1", "s_lshl_b32 s57, s6, 2", "s_add_u32 s56, s56, s57",
          "s_bfe_u32 s57, s6, 0x10001", "s_add_u32 s56, s56, s57", "s_and_b32 s56, s56, 7")
    else:
        A("s_mov_b32 s56, 0")
    A(f"s_lshl_b32 s{sKR}, s56, 7", "s_lshl_b32 s56, s56, 19", f"s_add_u32 s{sWc}, s{sWc}, s56")
    A(f"s_cmp_ge_u32 s{sW}, 4", "s_cbranch_scc1 L_P")
    wq_voff()
    A("v_lshrrev_b32 v5, 3, v0", "v_and_b32 v6, 7, v0", "v_xor_b32 v6, v6, v2", "v_lshlrev_b32 v6, 4, v6",
      f"s_lshl_b32 s{sT}, s{sQB}, 5", f"v_add_u32 v5, s{sT}, v5", f"v_lshl_add_u32 v{vXo}, v5, 10, v6")
    A(f"s_lshl_b32 s{sX16}, s{sQB}, 12")
    first, rest = a_prologue(cfg)
    T.append(emit(fin(first)))
    kv_voff()
    T.append(emit(fin(rest)))
    wo_voff()
    A(f"v_mov_b32 v{vWoA}, v{vWo}")
    if cfg.fused:
        A("s_lshl_b32 s56, s5, 2", "s_lshr_b32 s58, s6, 1", "s_add_u32 s56, s56, s58", "s_lshl_b32 s56, s56, 7", f"s_add_u32 s56, s56, {FLG}")
        A(*srd_off(SFLG, 92, 93, "s56", 32))
    if cfg.prioA: A(f"s_setprio {cfg.prioA}")
    A(f"s_mov_b32 s{sBND}, 0x{f2u(1e-30 if cfg.force_fb else float(1 << 20)):x}")
    for s in range(4):
        A(f"v_add_u32 v5, {4*s}, v2", "v_xor_b32 v5, v5, v1", "v_lshlrev_b32 v5, 4, v5", f"v_lshl_add_u32 v{aK+s}, v1, 8, v5")
    A("v_and_b32 v5, 1, v2", "v_lshl_add_u32 v5, v5, 2, v3",
      "v_lshl_add_u32 v6, v2, 2, v3", "v_lshlrev_b32 v6, 8, v6", "v_lshl_add_u32 v6, v4, 3, v6")
    for dt in range(8):
        A(f"v_xor_b32 v7, {dt}, v5", f"v_lshl_add_u32 v{aV+dt}, v7, 5, v6")
    A(f"s_lshl_b32 s57, s{sQB}, 13", f"s_add_u32 s{sT}, s57, {YB}", f"v_add_u32 v{aQ}, s{sT}, v{vLane}")
    A("s_waitcnt vmcnt(12)", "s_barrier")
    segs = split_segments(fin(a_stream(cfg)))
    txt = [emit(s) for s in segs]
    E = lambda n: 2 + 2 * n
    for k in range(E(2), E(32) - 16):
        assert txt[k] == txt[k + 16], k
    ST(1)
    CAL(cfg.cal_pro, "L_cal1")
    PR(0)
    T += txt[:E(2)]
    A(f"s_mov_b32 s{sCNT}, 0")
    T.append("L_Aloop:")
    A(f"s_cmp_lt_u32 s{sCNT}, 2", f"s_cselect_b32 s{sT}, 2, 1", f"s_lshl_b32 s{sT}, s{sT}, 16", f"s_add_u32 s{sT}, s{sT}, s57", f"v_add_u32 v{aQ}, s{sT}, v{vLane}",
      f"v_mov_b32 v{aO}, v{aQ}", f"s_cmp_eq_u32 s{sCNT}, 0", "s_cbranch_scc0 L_Ao",
      f"v_add_u32 v{aO}, {XB - YB}, v{aO}")
    T.append("L_Ao:")
    if 1 <= cfg.probe <= 3:
        A(f"s_cmp_lg_u32 s{sCNT}, {cfg.probe}", "s_cbranch_scc1 L_nopr")
        PR(cfg.probe)
        T.append("L_nopr:")
    if cfg.cal_mid:
        A(f"s_cmp_lg_u32 s{sCNT}, 2", "s_cbranch_scc1 L_nocal")
        CAL(cfg.cal_mid, "L_cal4")
        T.append("L_nocal:")
    def sst():
        if cfg.series:
            L = [i for i in stamp(cfg, 0) if "v[6:7]" not in i.t]
            T.append(emit(L)); A("s_add_u32 s68, s68, 8")
    sst(); T += txt[E(2):E(4)]
    sst(); T += txt[E(4):E(6)]
    sst(); T += txt[E(6):E(8)]
    sst()
    A(f"s_cmp_eq_u32 s{sCNT}, 3", "s_cbranch_scc1 L_Atail")
    T += txt[E(8):E(10)]
    A(f"s_add_u32 s{sCNT}, s{sCNT}, 1", "s_branch L_Aloop")
    T.append("L_Atail:")
    A(f"v_add_u32 v{aO}, {VB0 - WB0}, v{aO}")
    if cfg.series: A(f"s_mov_b32 s68, {OOB}")
    T += txt[E(32):]
    CAL(cfg.cal_main, "L_cal2")
    PR(4)
    if not cfg.bstamp: ST(2)
    T.append(emit(fin(a_tail(cfg))))
    if cfg.fused:
        T += a_reduce(cfg)
    PR(5)
    if cfg.probe >= 0:
        A("s_sub_u32 s94, s94, s100", "s_add_u32 s94, s94, 10000")
        T.append("L_prh:")
        A("s_memrealtime s[60:61]", "s_waitcnt lgkmcnt(0)", "s_sub_u32 s60, s60, s100", "s_cmp_lt_u32 s60, s94", "s_cbranch_scc1 L_prh")
    if cfg.cal_wg >= 0: A(f"s_cmp_lg_u32 s2, {cfg.cal_wg}", "s_cbranch_scc1 L_end")
    CAL(cfg.cal_end, "L_cal3")
    ST(3)
    A("s_endpgm")
    T.append("L_P:")
    if cfg.codepf:
        A("s_getpc_b64 s[70:71]")
        T.append("L_pc:")
        A("s_sub_u32 s70, s70, L_pc-attn_main_kernel", "s_subb_u32 s71, s71, 0")
        A(f"s_cmp_ge_u32 s{sQB}, 2", "s_cbranch_scc1 L_nopf")
        A("s_lshr_b32 s56, s2, 3", "s_lshl_b32 s56, s56, 11", f"s_add_u32 s56, s56, s{sM0}",
          "s_min_u32 s56, s56, L_cold-attn_main_kernel-1024", f"v_add_u32 v5, s56, v{vLane}",
          f"global_load_dwordx4 v[{FR(0)}:{FR(0)+3}], v5, s[70:71]")
        T.append("L_nopf:")
    if cfg.fused:
        A("s_lshl_b32 s56, s5, 9", "s_lshl_b32 s57, s6, 2", "s_add_u32 s56, s56, s57", f"s_add_u32 s56, s56, {FLG}")
        A(*srd_off(SFLG, 92, 93, "s56", 388))
        A(f"s_cmp_lg_u32 s{sQB}, 3", "s_cbranch_scc1 L_norst")
        A("v_mov_b32 v5, 0", "v_lshlrev_b32 v6, 7, v0", f"buffer_store_dword v5, v6, s[{SFLG}:{SFLG+3}], 0 offen sc1")
        T.append("L_norst:")
    A(f"s_lshl_b32 s{sX16}, s{sQB}, 12")
    A("v_bfe_u32 v5, v1, 1, 2", "v_xor_b32 v5, v5, v2", "v_lshlrev_b32 v5, 4, v5", "v_lshl_add_u32 v5, v1, 7, v5",
      f"v_add_u32 v{aX}, s{sX16}, v5", f"v_add_u32 v{aX+1}, {WB0}, v{aX}", f"v_add_u32 v{aX+2}, {YB}, v{aX}")
    wq_voff()
    A(f"s_add_u32 s{sWc}, s{sWc}, 256", f"s_and_b32 s{sWc}, s{sWc}, 0x3803ff", f"s_add_u32 s{sWm0}, s{sM0}, {WB0}", f"s_mov_b32 s{sWn}, 2")
    A("v_lshrrev_b32 v5, 1, v3", "v_and_b32 v6, 1, v2", "v_lshl_add_u32 v5, v6, 1, v5",
      "v_lshl_add_u32 v6, v2, 3, v3", "v_lshlrev_b32 v6, 7, v6", "v_lshl_add_u32 v6, v4, 3, v6")
    for mt in range(4):
        A(f"v_xor_b32 v7, {mt}, v5", f"v_lshl_add_u32 v{aW2+mt}, v7, 5, v6", f"v_add_u32 v{aW+mt}, {WB0}, v{aW2+mt}",
          f"v_add_u32 v{aW3+mt}, {YB}, v{aW2+mt}")
    kv_voff()
    A("v_lshrrev_b32 v5, 1, v2", "v_lshlrev_b32 v5, 8, v5", "v_lshl_add_u32 v5, v1, 4, v5", "v_and_b32 v6, 1, v2", "v_lshl_add_u32 v5, v6, 3, v5",
      f"s_lshl_b32 s{sT}, s{sQB}, 13", f"s_add_u32 s{sT}, s{sT}, {YB}", f"v_add_u32 v{aQw}, s{sT}, v5")
    wo_voff()
    A(f"s_mov_b32 s{sSCL}, 0x{f2u(math.log2(math.e) / math.sqrt(128.0)):x}")
    A(f"s_mov_b32 s{sKn}, -1", f"s_mov_b32 s{sVn}, -2",
      f"s_add_u32 s{sKo}, s{sCol}, 16384",
      f"s_mov_b32 s{sVo}, s{sCol}")
    A(f"s_mov_b32 s{sCNT}, 2", "s_waitcnt vmcnt(0)")
    if cfg.fused:
        A("s_bfe_u32 s85, s2, 0x20003", "s_add_u32 s85, s85, 3", f"s_cmp_eq_u32 s{sQB}, 3", "s_cselect_b32 s85, s85, 99")
        A(f"s_lshl_b32 s56, s{sQB}, 7", f"s_add_u32 s{SFLG}, s{SFLG}, s56", f"s_addc_u32 s{SFLG+1}, s{SFLG+1}, 0", f"s_mov_b32 s{SFLG+2}, 4")
    T.append(emit(fin(p_prologue(cfg))))
    ST(1)
    A(f"v_lshlrev_b32 v{vXo}, 7, v0")
    if cfg.prioM: A(f"s_setprio {cfg.prioM}")
    A("s_branch L_Pgo")
    T.append("L_Ploop:")
    if cfg.fused:
        A(f"s_cmp_lg_u32 s{sCNT}, s85", "s_cbranch_scc1 L_nohs")
        A("v_mov_b32 v5, 1", "v_add_u32 v6, s6, v{0}".format(vLane), f"buffer_store_byte v5, v6, s[{SDBG}:{SDBG+3}], 0 offen sc1")
        T.append("L_nohs:")
    if cfg.wopf:
        A(f"s_add_u32 s56, s{sQB}, 4", f"s_cmp_lg_u32 s{sCNT}, s56", "s_cbranch_scc1 L_nowopf")
        A("s_lshl_b32 s56, s7, 15", f"s_lshl_b32 s57, s{sQB}, 13", "s_add_u32 s56, s56, s57",
          f"buffer_load_dword v{vFlag}, v{vXo}, s[{SWO}:{SWO+3}], s56 offen")
        T.append("L_nowopf:")
    if cfg.codepf:
        A(f"s_lshl_b32 s56, s{sQB}, 4", f"s_add_u32 s56, s56, s{sCNT}", "s_cmp_lg_u32 s56, 7", "s_cbranch_scc1 L_nocpf")
        A("s_bfe_u32 s56, s2, 0x30003", "s_lshl_b32 s56, s56, 13", "s_min_u32 s56, s56, L_cold-attn_main_kernel-8192",
          f"v_add_u32 v5, s56, v{vXo}", "global_load_dword v241, v5, s[70:71]")
        T.append("L_nocpf:")
    a0, b0 = p_phase(cfg, 0)
    T.append(emit(fin(a0)))
    A(f"s_bitcmp1_b32 s{sCNT}, 0", "s_cbranch_scc0 L_Pwr")
    T.append(emit(fin([raw("s_nop 1")] + q_pack(HLD) + [lgkm0()])))
    A("s_branch L_Pgo")
    T.append("L_Pwr:")
    pk, st = q_pack(TMP), q_store(TMP, 1)
    wr = q_store(HLD, 0)
    for k in range(8): wr += pk[6 * k:6 * k + 6] + ([st[k - 1]] if k else [])
    T.append(emit(fin(wr + [st[7], lgkm0()])))
    T.append("L_Pgo:")
    body = list(b0)
    for ph in range(1, 8):
        a, b = p_phase(cfg, ph)
        body += a + b
    T.append(emit(fin(body)))
    A(f"s_add_u32 s{sCNT}, s{sCNT}, 1", f"s_cmp_lt_u32 s{sCNT}, 8", "s_cbranch_scc1 L_Ploop")
    for mt in range(4): A(f"v_add_u32 v{aW+mt}, {XB}, v{aW2+mt}")
    A("s_lshl_b32 s58, s6, 14", f"s_lshl_b32 s{sPo}, s{sQB}, 12", f"s_add_u32 s{sPo}, s{sPo}, s58")
    if cfg.prioP: A(f"s_setprio {cfg.prioP}")
    T.append(emit(fin([raw("s_nop 7")] + p_tail(cfg))))
    if cfg.stamps:
        A("s_waitcnt vmcnt(0)")
        ST(3)
    A("s_endpgm")
    T.append("L_cold:")
    variants = {}
    for name, key in SITES.items():
        variants.setdefault(key, f"L_fbr_{key[0]}_{key[1]}_{int(key[2])}")
        T.append(f"L_fb_{name}:")
        A(f"s_call_b64 s[{sRET}:{sRET+1}], {variants[key]}", f"s_branch L_ret_{name}")
    for key, lab in variants.items():
        T.append(f"{lab}:")
        T.append(emit(fallback(*key)))
    T.append("L_end:")
    A("s_endpgm")
    return T

def reduce_kernel(cfg):
    T = []
    A = lambda *a: T.extend("    " + x for x in a)
    T += [".globl attn_reduce_kernel", ".p2align 8", ".type attn_reduce_kernel,@function", "attn_reduce_kernel:"]
    A("s_cmp_ge_u32 s2, 256", "s_cbranch_scc1 L_rend")
    if cfg.stamps: A("s_memrealtime s[40:41]")
    A("s_load_dwordx2 s[4:5], s[0:1], 80", "s_load_dwordx2 s[6:7], s[0:1], 96")
    A("s_lshr_b32 s18, s2, 3", "s_and_b32 s19, s2, 7")
    A("s_lshl_b32 s20, s18, 21", "s_lshl_b32 s21, s19, 17", "s_add_u32 s20, s20, s21", "s_add_u32 s20, s20, 0x100000")
    A("v_lshrrev_b32 v1, 6, v0", "v_and_b32 v2, 63, v0", "v_lshlrev_b32 v3, 4, v2", "v_lshl_add_u32 v3, v1, 11, v3")
    A("s_waitcnt lgkmcnt(0)")
    A(*srd_off(8, 6, 7, "s20", 131072))
    for src in range(8):
        A(f"s_mov_b32 s22, {src*16384}")
        for pair in range(2):
            b = 16 + (src * 2 + pair) * 4
            A(f"buffer_load_dwordx4 v[{b}:{b+3}], v3, s[8:11], s22 offen offset:{pair*1024} {cfg.rflags}")
    A(*srd(12, 4, 5, 1 << 22))
    A("s_and_b32 s23, s18, 15", "s_lshl_b32 s23, s23, 18", "s_lshr_b32 s24, s18, 4", "s_lshl_b32 s24, s24, 10", "s_add_u32 s23, s23, s24",
      "s_lshl_b32 s24, s19, 7", "s_add_u32 s23, s23, s24")
    A("v_and_b32 v4, 15, v2", "v_lshl_add_u32 v4, v1, 4, v4", "v_lshlrev_b32 v4, 11, v4",
      "v_bfe_u32 v5, v2, 4, 1", "v_lshl_add_u32 v4, v5, 5, v4", "v_lshrrev_b32 v5, 5, v2", "v_lshl_add_u32 v4, v5, 4, v4")
    acc = 80
    for src in range(8):
        A(f"s_waitcnt vmcnt({(7-src)*2})")
        for pair in range(2):
            b = 16 + (src * 2 + pair) * 4
            for i in range(4):
                lo, hi = acc + pair * 8 + 2 * i, acc + pair * 8 + 2 * i + 1
                if src == 0:
                    A(f"v_lshlrev_b32 v{lo}, 16, v{b+i}", f"v_and_b32 v{hi}, 0xffff0000, v{b+i}")
                else:
                    A(f"v_lshlrev_b32 v6, 16, v{b+i}", f"v_and_b32 v7, 0xffff0000, v{b+i}", f"v_add_f32 v{lo}, v{lo}, v6", f"v_add_f32 v{hi}, v{hi}, v7")
    for pair in range(2):
        a = acc + pair * 8
        for i in range(4): A(f"v_cvt_pk_bf16_f32 v{16+pair*4+i}, v{a+2*i}, v{a+2*i+1}")
    A("s_nop 1")
    for pair in range(2):
        d = 16 + pair * 4
        A(f"v_permlane16_swap_b32 v{d}, v{d+2}", f"v_permlane16_swap_b32 v{d+1}, v{d+3}")
        A(f"buffer_store_dwordx4 v[{d}:{d+3}], v4, s[12:15], s23 offen offset:{pair*64} {cfg.outflags}")
    if cfg.stamps and not cfg.series:
        A("s_waitcnt vmcnt(0)", "s_memrealtime s[42:43]", "s_waitcnt lgkmcnt(0)")
        A(*srd_off(8, 6, 7, WS_BYTES - (1 << 20), 1 << 20))
        A("s_lshl_b32 s22, s2, 8", "v_mov_b32 v4, s40", "v_mov_b32 v5, s41", "v_mov_b32 v6, s42", "v_mov_b32 v7, s43",
          "v_cmp_eq_u32 vcc, 0, v0", "s_and_saveexec_b64 s[34:35], vcc", "s_cbranch_execz L_rend",
          "buffer_store_dwordx4 v[4:7], v0, s[8:11], s22 offen offset:32")
    T.append("L_rend:")
    A("s_endpgm")
    return T

def kd(name, vgpr, sgpr):
    return [".p2align 6", f".amdhsa_kernel {name}", f"  .amdhsa_next_free_vgpr {vgpr}", f"  .amdhsa_next_free_sgpr {sgpr}",
            f"  .amdhsa_accum_offset {(vgpr+3)//4*4}", "  .amdhsa_group_segment_fixed_size 0", "  .amdhsa_kernarg_size 104",
            "  .amdhsa_user_sgpr_count 2", "  .amdhsa_user_sgpr_kernarg_segment_ptr 1", "  .amdhsa_system_sgpr_workgroup_id_x 1",
            ".end_amdhsa_kernel"]

def generate(cfg, path):
    SITES.clear()
    T = header()
    if cfg.fused:
        T += ["; @launch grid=(256,1,1) block=(512,1,1) lds=163840"]
    else:
        T += ["; @launch kernel=attn_main_kernel grid=(256,1,1) block=(512,1,1) lds=163840",
              "; @launch kernel=attn_reduce_kernel grid=(256,1,1) block=(512,1,1) lds=0"]
    T += ['.amdgcn_target "amdgcn-amd-amdhsa--gfx950"', ".text"]
    T += main_kernel(cfg)
    if not cfg.fused: T += reduce_kernel(cfg)
    T += ['.section .rodata,"a"'] + kd("attn_main_kernel", 256, 102)
    if not cfg.fused: T += kd("attn_reduce_kernel", 96, 48)
    txt = "\n".join(T) + "\n"
    if cfg.fused: txt = txt.replace("attn_main_kernel", NAME + "_kernel")
    open(path, "w").write(txt)

if __name__ == "__main__":
    cfg = Cfg()
    out = "k.s"
    for a in sys.argv[1:]:
        if "=" in a:
            k, v = a.split("=", 1)
            cur = getattr(cfg, k)
            setattr(cfg, k, (v not in ("0", "False")) if isinstance(cur, bool) else type(cur)(v))
        else:
            out = a
    generate(cfg, out)
```

```python
import sys, math, struct
from asmlib import *

NAME = "concat_heads__mha_block_cached__mha_block_cached__near_ridge"
WS_BYTES = 289406976
def f2u(x): return struct.unpack("<I", struct.pack("<f", x))[0]

KB0, VB0, WB0, XB, YB = 0, 32768, 65536, 98304, 131072
DROP = 0x30000
OOB = 0x40000000
SK, SV, SWQ, SWO, SX, SPART = 8, 12, 16, 20, 24, 32
sW, sQB, sCNT, sBND, sSCL, sKo, sVo, sWc, sT, sM0, sWm0, sRET = 36, 37, 38, 39, 40, 41, 42, 43, 44, 45, 46, 48
sPo, sCol, sPo1, sX16, sROT, sKn, sVn, sWn, sKs, sVs = 50, 51, 52, 53, 59, 28, 29, 30, 54, 55
sFm0 = 31
sKVm0 = 47
sTX = 4
SFLG, SDBG, SOUT = 72, 76, 80
sFv = 84
vFlag = 240
FLG = 0x4800000
aW3 = 248
aX = 253
vWoA = 253
def Qf(s, qs): return 8 + (s * 2 + qs) * 4
def Oa(dt, qs): return 40 + (dt * 2 + qs) * 4
def Sr(n, kt, qs):
    if kt < 2: return 104 + (kt * 2 + qs) * 4
    return 120 + (n & 1) * 16 + ((kt - 2) * 2 + qs) * 4
def Pf(n, u, qs):
    if u == 0: return 152 + (n & 1) * 8 + qs * 4
    return 168 + qs * 4
def NM(qs): return 176 + qs * 4
def FR(f): return 184 + (f & 7) * 4
TMP = 216
vL, vLS, vTS = 232, 234, 236
aK, aV, aQ, aO, vLane = 238, 242, 250, 251, 252
def Bf(s, qs): return 8 + (s * 2 + qs) * 4
def Ac(mt, qs): return 136 + (mt * 2 + qs) * 4
HLD = 168
aW, aW2, vKo, vVo, vWq, vWo, aQw, vXo = 232, 236, 242, 243, 244, 245, 246, 247

BAR_IDX = 19

class Cfg:
    stamps = False
    kvflags = "nt"
    wflags = ""
    pflags = "sc1"
    xflags = ""
    woflags = ""
    rflags = ""
    outflags = ""
    force_fb = False
    mapping = 2
    rot = 1
    codepf = True
    wopf = True
    prioA = 0
    cal_pro = 0
    cal_main = 0
    cal_end = 0
    cal_mid = 0
    cal_wg = -1
    probe = -1
    fused = True
    lastbar = 24
    flagc = 0
    flaglag = 5
    ne = 3
    slowmask = 0xe0
    pvmfast = 6
    slowph = 0xff
    tx = 0
    avoid = True
    minlead = 3
    kvpos = ""
    tlead = 1
    tlate = 3
    pvm = 5
    kvlate = 0
    psplit = 6
    pspread = True
    half = 7
    ktouch = 0
    tflags = ""
    thead = 2
    bstamp = False
    midbar = 17
    aper = 3
    pubfrom = 22
    stw = 0
    pfbody = 7
    order = "AFHTFFFF"
    pdup = 0
    plead = 2
    pwflags = ""
    krot = 0
    series = False
    prioM = 0
    ppace = 0
    nopm = False
    nodma = False
    noav = False
    barq = 19
    barp = 23
    locap = 2
    pf0 = 28
    fbar = 1
    fwait = 2
    fburst = 1
    prioP = 0
    nokv = False
    nowq = False
    nowo = False
    nops = False

def stamp(cfg, idx):
    if not cfg.stamps: return []
    return [S("s_memrealtime s[60:61]"), S("s_memtime s[94:95]"), raw("s_waitcnt lgkmcnt(0)", "lgkm0"),
            raw("v_mov_b32 v2, s60"), raw("v_mov_b32 v3, s61"), raw("v_mov_b32 v4, 0"),
            raw("v_mov_b32 v6, s94"), raw("v_mov_b32 v7, s95"),
            raw("s_mov_b64 s[62:63], exec"), raw("s_mov_b64 exec, 1"),
            raw(f"buffer_store_dwordx2 v[2:3], v4, s[64:67], s68 offen offset:{idx*8}"),
            raw(f"buffer_store_dwordx2 v[6:7], v4, s[64:67], s68 offen offset:{idx*8+64}"),
            raw("s_mov_b64 exec, s[62:63]")]

def softmax_part(n, part):
    L = []
    for qs in range(2):
        for k in range(2):
            s = Sr(n, 2 * part + k, qs)
            e = [TMP + k * 4 + i for i in range(4)]
            for i in range(4): L.append(vexp(e[i], s + i))
            if k == 0:
                L.append(valu("v_add_f32", vTS + qs, e[0], e[1]))
            else:
                L.append(valu("v_add_f32", vTS + qs, vTS + qs, e[0]))
                L.append(valu("v_add_f32", vTS + qs, vTS + qs, e[1]))
            L.append(cvtpk(Pf(n, part, qs) + 2 * k, e[0], e[1]))
            L.append(valu("v_add_f32", vTS + qs, vTS + qs, e[2]))
            L.append(valu("v_add_f32", vTS + qs, vTS + qs, e[3]))
            L.append(cvtpk(Pf(n, part, qs) + 2 * k + 1, e[2], e[3]))
    return L

def l_update(n, part):
    t = n & 7
    if t == 0 and part == 0:
        return [valu("v_mov_b32", vL + qs, vTS + qs) for qs in range(2)]
    if t == 7 and part == 1:
        return [valu("v_add_f32", vLS + qs, vL + qs, vTS + qs) for qs in range(2)]
    return [valu("v_add_f32", vL + qs, vL + qs, vTS + qs) for qs in range(2)]

SITES = {}
def check_pre(n):
    if (n & 7) == 0: return []
    return [valu("v_max_f32", TMP + 8, vTS, vTS + 1), I(f"v_cmp_lt_f32 vcc, s{sBND}, v{TMP+8}", "valu", (), {TMP + 8})]
def check(n, part, sfx):
    t = n & 7
    if t == 0: return []
    name = f"{sfx}{t}_{part}"
    SITES[name] = (n & 1, part, t == 7)
    return [raw(f"s_cbranch_vccnz L_fb_{name}"), label(f"L_ret_{name}")]

def xgroup(op, x, t):
    return [valu("v_mov_b32", t, x), swap32(t, x), valu(op, x, x, t),
            valu("v_mov_b32", t, x), swap16(t, x), valu(op, x, x, t)]

def rowmax(dst, srcs):
    L = [valu("v_max3_f32", dst, srcs[0], srcs[1], srcs[2])]
    rest = srcs[3:]
    while len(rest) >= 2:
        L.append(valu("v_max3_f32", dst, dst, rest[0], rest[1])); rest = rest[2:]
    if rest: L.append(valu("v_max_f32", dst, dst, rest[0]))
    return L

def zipl(a, b):
    out = []
    for i in range(max(len(a), len(b))):
        if i < len(a): out.append(a[i])
        if i < len(b): out.append(b[i])
    return out

def first_tile_max(n):
    per = []
    for qs in range(2):
        m, t = TMP + 8 + qs, TMP + 10 + qs
        srcs = [Sr(n, kt, qs) + i for kt in range(4) for i in range(4)]
        L = rowmax(m, srcs) + xgroup("v_max_f32", m, t)
        L += [valu("v_sub_f32", s, s, m) for s in srcs[:8]]
        per.append(L)
    L = zipl(per[0], per[1])
    late = []
    for qs in range(2):
        m = TMP + 8 + qs
        late += [valu("v_sub_f32", NM(qs) + i, "0", m) for i in range(4)]
        late += [valu("v_sub_f32", s, s, m) for s in [Sr(n, kt, qs) + i for kt in (2, 3) for i in range(4)]]
    return L, late

def o_epilogue(cfg):
    per = []
    for qs in range(2):
        per.append(xgroup("v_add_f32", vLS + qs, TMP + 12 + qs) + [vrcp(vLS + qs, vLS + qs)])
    L = zipl(per[0], per[1])
    k = 0
    for s in range(4):
        for qs in range(2):
            q = TMP + 8 + (k & 1) * 4
            for h in range(2):
                o = Oa(2 * s + h, qs)
                for i in range(4): L.append(valu("v_mul_f32", o + i, o + i, vLS + qs))
                L.append(cvtpk(q + 2 * h, o, o + 1)); L.append(cvtpk(q + 2 * h + 1, o + 2, o + 3))
            L.append(ds_w128(aO, q, (s * 2 + qs) * 1024))
            k += 1
    return L

def k_read(n, f): return [ds_r128(FR(f), aK + (f & 3), KB0 + (n & 1) * 16384 + (f >> 2) * 4096)]
def v_read(n, f):
    dt, u = f >> 1, f & 1
    o = VB0 + (n & 1) * 16384 + u * 8192
    return [ds_tr(FR(f), aV + dt, o), ds_tr(FR(f) + 2, aV + dt, o + 4096)]

NT = 32
def units(i):
    if i.k == "label" or "vmcnt" in i.t: return 0
    return 2 if i.k == "trans" else 1

def schedule(main, ds, blocks, fixed, lo_cap=2):
    fill = []
    ds = list(ds)
    n = len(main)
    used = [0] * (n + 64)
    for p, L in fixed.items(): used[p] += sum(units(i) for i in L)
    for p in range(1, n):
        if main[p] is not None and main[p].tag: used[p - 1] += 1
    g = 0
    cnt = {}
    bars = sorted(p for p, L in fixed.items() if any(i.k == "lgkm0" for i in L))
    for e, ins in ds:
        g = max(g, e)
        while cnt.get(g, 0) >= (1 if (g & 1) == 0 else 2) and main[min(g, n - 1)] is not None: g += 1
        nb = [b for b in bars if b >= e]
        assert not nb or g <= nb[0] - 2, (e, g, ins.t)
        cnt[g] = cnt.get(g, 0) + 1
        used[g] += 1
        fill.append((g, 1, ins))
    def conflict(a, b):
        return bool(a.w & (b.r | b.w)) or bool(a.r & b.w) or (not a.w and not a.r) or (not b.w and not b.r) or (a.k == "dsw" and b.k == "dsw")
    def try_place(s, e, L, hi):
        u = list(used); rest = list(L); out = []
        last = None
        for p in range(s, e + 1):
            cap = lo_cap if (p & 1) == 0 else hi
            last = None
            while rest:
                pick = None
                for k in range(min(len(rest), 14)):
                    c = rest[k]
                    if u[p] + units(c) > cap: continue
                    if any(conflict(x, c) for x in rest[:k]): continue
                    if last is not None and last.k == "trans" and c.k != "trans" and last.w & c.r: continue
                    if last is not None and c.k == "perm" and last.w & c.r: continue
                    pick = k; break
                if pick is None: break
                c = rest.pop(pick); u[p] += units(c); out.append((p, 0, c)); last = c
        return (u, out) if not rest else None
    for (s, e, L) in blocks:
        hi = lo_cap
        while True:
            r = try_place(s, e, L, hi)
            if r: break
            hi += 1
        used, out = r
        fill += out
    pre = [(p, i) for (p, o, i) in fill]
    return pre

def a_stream(cfg):
    qrd = lambda: [ds_r128(Qf(s, qs), aQ, (s * 2 + qs) * 1024) for s in range(4) for qs in range(2)]
    pre = qrd()
    for f in range(8): pre += k_read(0, f)
    main, ds, blocks, fixed = [], [], [], {}
    BQ, BP = cfg.barq, cfg.barp
    for n in range(NT + 1):
        t = n & 7
        sfx = "T" if n >= NT else "L"
        real = n < NT
        b0 = 64 * n
        for kt in range(4):
            for qs in range(2):
                for s in range(4):
                    c = Sr(n, kt, qs) if s else (None if t == 0 else NM(qs))
                    dep = [FR(4 * kt + x) for x in range(4)] if (qs == 0 and s == 0) else ()
                    main.append(mfma(Sr(n, kt, qs), FR(4 * kt + s), Qf(s, qs), c, dep) if real else None)
        if real:
            for f in range(8, 16):
                ds += [(b0 + 4 + (f & 3) + 8 * ((f - 8) >> 2), i) for i in k_read(n, f)]
        if n >= 1:
            va = softmax_part(n - 1, 1) + check_pre(n - 1)
            if t == 1 and n > 8: va = va[:12] + zipl(o_epilogue(cfg), va[12:])
            blocks.append((b0, b0 + 30, va))
        if n == 0:
            fixed[b0 + 7] = [barrier()]
            fixed[b0 + 13] = [barrier()]
        fixed[b0 + BQ] = ([vmcnt(4)] if n == 1 else []) + [lgkm0(), barrier()]
        if n >= 1:
            for f in range(8):
                ds += [(b0 + max(BQ + 1, 20 + (f & 3) + 8 * (f >> 2)), i) for i in v_read(n - 1, f)]
            fixed[b0 + 31] = check(n - 1, 1, sfx) + l_update(n - 1, 1)
        realpv = n >= 1
        m = n - 1
        b1 = b0 + 32
        for dt in range(8):
            for (u, qs) in ((0, 0), (1, 0), (1, 1), (0, 1)):
                firstk = (u == 0 and qs == 0) or (u == 1 and qs == 1)
                c = None if ((m & 7) == 0 and firstk) else Oa(dt, qs)
                dep = [FR(2 * dt + 1)] if (u == 0 and qs == 0) else ()
                main.append(mfma(Oa(dt, qs), FR(2 * dt + u), Pf(m, u, qs), c, dep) if realpv else None)
        qq = qrd() if t == 7 else []
        if realpv:
            for p in range(4):
                ds += [(b1 + 2 + 4 * p, i) for i in v_read(m, 9 + 2 * p)] + [(b1 + 3 + 4 * p, i) for i in v_read(m, 8 + 2 * p)]
                ds += [(b1, i) for i in qq[2 * p:2 * p + 2]]
        if real:
            va = softmax_part(n, 0) + check_pre(n)
            if t == 0:
                early, late = first_tile_max(n)
                blocks.append((b1 + 2, b1 + 30, early + va + late))
            else:
                blocks.append((b1, b1 + 30, va))
        fixed[b1 + BP] = ([vmcnt(8 if n == 0 else 0)] if n < 2 else []) + [lgkm0(), barrier()]
        if n + 1 < NT:
            for f in range(8):
                ds += [(b1 + max(BP + 1, 19 + 4 * (f >> 1)), i) for i in k_read(n + 1, f)]
        if real:
            sf2 = "T" if n + 1 >= NT else "L"
            fixed[b1 + 31] = check(n, 0, sf2) + l_update(n, 0)
    fill = schedule(main, ds, blocks, fixed, cfg.locap)
    fill += [(p, i) for p, L in fixed.items() for i in L]
    seq = pre + [i for i in interleave(main, fill) if i is not None]
    seq += o_epilogue(cfg)
    seq += [lgkm0(), barrier()]
    if cfg.noav: seq = [i for i in seq if i.k not in ("valu", "trans", "perm") and "cbranch" not in i.t]
    return seq

def split_segments(seq):
    segs, cur = [], []
    for i in seq:
        cur.append(i)
        if i.k == "barrier":
            segs.append(cur); cur = []
    if cur: segs.append(cur)
    return segs

def fallback(par, part, last):
    n = par + 2
    L = [raw("s_nop 7"), raw("s_nop 3")]
    D, F, T = TMP + 8, TMP + 10, TMP + 12
    kts = range(4) if part == 0 else (2, 3)
    for qs in range(2):
        srcs = [Sr(n, kt, qs) + i for kt in kts for i in range(4)]
        d, f, t = D + qs, F + qs, T + qs
        L += rowmax(d, srcs) + xgroup("v_max_f32", d, t)
        L += [valu("v_max_f32", d, "0", d), valu("v_ceil_f32", d, d), valu("v_sub_f32", t, "0", d), vexp(f, t)]
        L += [valu("v_sub_f32", s, s, d) for s in srcs]
        L += [valu("v_sub_f32", NM(qs) + i, NM(qs) + i, d) for i in range(4)]
        L += [valu("v_mul_f32", vL + qs, vL + qs, f)]
        L += [valu("v_mul_f32", Oa(dt, qs) + i, Oa(dt, qs) + i, f) for dt in range(8) for i in range(4)]
        if part == 1:
            for i in range(4):
                p = Pf(n, 0, qs) + i
                L += [valu("v_lshlrev_b32", t, "16", p), valu("v_and_b32", p, "0xffff0000", p),
                      valu("v_mul_f32", t, t, f), valu("v_mul_f32", p, p, f), cvtpk(p, t, p)]
            if not last:
                L += [valu("v_sub_f32", s, s, d) for s in [Sr(n + 1, kt, qs) + i for kt in range(4) for i in range(4)]]
    L += softmax_part(n, part)
    L += [raw("s_nop 2"), raw(f"s_setpc_b64 s[{sRET}:{sRET+1}]")]
    return fix_hazards(L)

def q_pack(dst):
    L = []
    for mt in range(4):
        for qs in range(2):
            a = Ac(mt, qs); d = dst + (mt * 2 + qs) * 2
            for i in range(4): L.append(valu("v_mul_f32", a + i, f"s{sSCL}", a + i))
            L += [cvtpk(d, a, a + 1), cvtpk(d + 1, a + 2, a + 3)]
    return L
def q_store(src, hf):
    return [ds_w64(aQw, src + (mt * 2 + qs) * 2, hf * 4096 + (mt >> 1) * 2048 + qs * 1024 + (mt & 1) * 512)
            for mt in range(4) for qs in range(2)]

def wc_adv():
    return [S(f"s_add_u32 s{sWn}, s{sWn}, 1"), S(f"s_add_u32 s{sWc}, s{sWc}, 128"), S(f"s_and_b32 s{sWc}, s{sWc}, 0x3803ff"),
            S(f"s_cmp_ge_u32 s{sWn}, 8"), S(f"s_cselect_b32 s{sWc}, {OOB}, s{sWc}"), S(f"s_cselect_b32 s{sWm0}, {DROP}, s{sWm0}")]
def wq_dma(cfg, kc, ks):
    return [m0set(f"s_add_u32 m0, s{sWm0}, {(kc & 3)*8192 + ks*4096}"),
            S(f"s_add_u32 s{sT}, s{sWc}, {kc * (1 << 19) + ks * (1 << 18)}"), S(f"s_and_b32 s{sT}, s{sT}, 0x403fffff"),
            dma(vWq, SWQ, f"s{sT}", 0, cfg.wflags)]
def kv_pre(isK):
    n, o, s = (sKn, sKo, sKs) if isK else (sVn, sVo, sVs)
    return [S(f"s_cmp_lt_u32 s{n}, 30"), S(f"s_cselect_b32 s{s}, s{o}, {OOB}"), S(f"s_cselect_b32 s{sKVm0}, s{sM0}, {DROP}"),
            S(f"s_xor_b32 s{s}, s{s}, s{sTX}"), S(f"s_add_u32 s{n}, s{n}, 1"), S(f"s_add_u32 s{o}, s{o}, 16384"), S(f"s_and_b32 s{o}, s{o}, 0x7ffff")]
def kv_dma(cfg, isK, slot, jj):
    base = (KB0 if isK else VB0) + slot * 16384 + jj * 3072
    return [m0set(f"s_add_u32 m0, s{sKVm0}, {base}"),
            dma(vKo if isK else vVo, SK if isK else SV, f"s{sKs if isK else sVs}", jj * 1024, cfg.kvflags)]
def kv_issue(cfg, isK, slot):
    L = kv_pre(isK)
    for jj in range(4): L += kv_dma(cfg, isK, slot, jj)
    return L

PRO_REG = [YB, VB0, XB, WB0, KB0]
sKR = 58
def Ac2(mt, qs):
    k = mt * 2 + qs
    return HLD + 4 * k if k < 4 else TMP + 4 * (k - 4)

def qwait(q, tags):
    last = max(i for i, t in enumerate(q) if t in tags)
    return vmcnt(len(q) - 1 - last)

def a_prologue(cfg):
    seq, q = [], []
    def wq(kc):
        L = []
        for hf in range(2):
            for ks in range(2):
                L += [m0set(f"s_add_u32 m0, s{sM0}, {PRO_REG[kc % 5] + hf*8192 + ks*4096}"),
                      S(f"s_add_u32 s{sT}, s{sWc}, {kc * (1 << 19) + ks * (1 << 18) + hf * 128}"), S(f"s_and_b32 s{sT}, s{sT}, 0x3fffff"),
                      dma(vWq, SWQ, f"s{sT}", 0, cfg.pwflags)]
        L += x_dma(cfg, kc)
        q.extend([kc] * 8)
        return L
    def two(isK):
        L = []
        s = sKs if isK else sVs
        for slot in range(2):
            L += [S(f"s_add_u32 s{s}, s{sCol}, {slot * 16384}"), S(f"s_xor_b32 s{s}, s{s}, s{sTX}")]
            for jj in range(4): L += kv_dma(cfg, isK, slot, jj)
        q.extend(["kv"] * 8)
        return L
    first = []
    for kc in range(cfg.plead): first += wq(kc)
    seq.append(S(f"s_mov_b32 s{sKVm0}, s{sM0}"))
    nxt = cfg.plead
    for kc in range(9):
        seq += [qwait(q, {kc}), barrier()]
        while nxt <= min(kc + 3, 7) and nxt <= kc + cfg.plead:
            seq += wq(nxt); nxt += 1
        if kc == 5:
            seq += [S(f"s_add_u32 s{sWc}, s{sWc}, 256"), S(f"s_and_b32 s{sWc}, s{sWc}, 0x3803ff"), S(f"s_add_u32 s{sWm0}, s{sM0}, {WB0}")]
            for c in range(4):
                for ks in range(2): seq += wq_dma(cfg, c, ks)
            q += [8] * 8
        if kc == 6: seq += two(True)
        if kc == 8: seq += two(False)
    return first, seq

def x_dma(cfg, kc):
    L = [m0set(f"s_add_u32 m0, s{sX16}, {PRO_REG[kc % 5] + 16384}"),
         S(f"s_add_u32 s{sT}, s{sKR}, {kc * 128}"), S(f"s_and_b32 s{sT}, s{sT}, 1023")]
    for p in range(4):
        if p: L += [m0set("s_add_u32 m0, m0, 1024"), S(f"s_add_u32 s{sT}, s{sT}, 8192")]
        L.append(dma(vXo, SX, f"s{sT}", 0, cfg.xflags))
    return L

def p_prologue(cfg):
    def base_of(addr):
        return (0, 0) if addr < 65536 else ((1, WB0) if addr < YB else (2, YB))
    def rd(kc, f):
        if kc == 8: return ring_read(0, f)
        hf, mt, ks = f >> 3, (f >> 1) & 3, f & 1
        addr = PRO_REG[kc % 5] + hf * 8192 + ks * 4096
        k, base = base_of(addr)
        a = (aW2, aW, aW3)[k]
        return [ds_tr(FR(f), a + mt, addr - base), ds_tr(FR(f) + 2, a + mt, addr - base + 512)]
    def xrd(kc):
        addr = PRO_REG[kc % 5] + 16384
        k, base = base_of(addr)
        return [ds_r128(Bf(2 * kc + ks, qs), aX + k, addr - base + qs * 2048 + ks * 64) for ks in range(2) for qs in range(2)]
    pre = [barrier()] + xrd(0)
    for f in range(8): pre += rd(0, f)
    main, fill = [], []
    for kc in range(8):
        b0 = 32 * kc
        for g in range(8):
            hf, mt = g >> 2, g & 3
            for (ks, qs) in ((0, 0), (1, 0), (1, 1), (0, 1)):
                firstk = (ks == 0 and qs == 0) or (ks == 1 and qs == 1)
                a = (Ac if hf else Ac2)(mt, qs)
                dep = [FR(2 * g + 1)] if (ks == 0 and qs == 0) else ()
                main.append(mfma(a, FR(2 * g + ks), Bf(2 * kc + ks, qs), None if (kc == 0 and firstk) else a, dep))
            if g == 4:
                fill.append((b0 + 17, barrier()))
                if cfg.stamps and kc in (1, 3, 6): fill += [(b0 + 17, x) for x in stamp(cfg, {1: 5, 3: 6, 6: 7}[kc])]
                if kc < 7: fill += [(b0 + 17 + 2 * k, x) for k, x in enumerate(xrd(kc + 1))]
            k2, f2 = (kc, 2 * g + 8) if g < 4 else (kc + 1, 2 * g - 8)
            r = rd(k2, f2 + 1) + rd(k2, f2)
            fill += [(b0 + 4 * g + 2 + k, x) for k, x in enumerate(r)]
        if kc == 7:
            pk = []
            for mt in range(4):
                for qs in range(2):
                    a = Ac2(mt, qs); d = HLD + (mt * 2 + qs) * 2
                    for i in range(4): pk.append(valu("v_mul_f32", a + i, f"s{sSCL}", a + i))
                    pk += [cvtpk(d, a, a + 1), cvtpk(d + 1, a + 2, a + 3)]
            fill += [(b0 + p, x) for p, x in spread(pk + q_store(HLD, 0), 18, 31)]
    seq = pre + interleave(main, fill)
    pk, st = q_pack(TMP), q_store(TMP, 1)
    for k in range(8): seq += pk[6 * k:6 * k + 6] + [st[k]]
    seq += [lgkm0(), barrier()]
    return seq

def ring_read(kc, f):
    mt, ks = f >> 1, f & 1
    o = (kc & 3) * 8192 + ks * 4096
    return [ds_tr(FR(f), aW + mt, o), ds_tr(FR(f) + 2, aW + mt, o + 512)]

def chunk_mfmas(kc):
    L = []
    for mt in range(4):
        for (ks, qs) in ((0, 0), (1, 0), (1, 1), (0, 1)):
            firstk = (ks == 0 and qs == 0) or (ks == 1 and qs == 1)
            c = None if (kc == 0 and firstk) else Ac(mt, qs)
            dep = [FR(2 * mt + 1)] if (ks == 0 and qs == 0) else ()
            L.append(mfma(Ac(mt, qs), FR(2 * mt + ks), Bf(2 * kc + ks, qs), c, dep))
    return L

def p_phase(cfg, ph):
    PS = cfg.psplit
    isK = (ph & 1) == 1
    slot = [1, 1, 0, 0, 1, 1, 0, 0][ph]
    m1, m2 = chunk_mfmas((ph - 1) & 7)[PS:], chunk_mfmas(ph)[:PS]
    fill = []
    pos = -1
    for mt in range(4):
        for f, last in ((2 * mt + 1, 4 * mt + 2), (2 * mt, 4 * mt + 3)):
            for x in ring_read(ph, f):
                pos = max(pos, last - PS)
                fill.append((min(pos, len(m1) - 1), x))
                if cfg.pspread: pos += 1
    kv = kv_issue(cfg, isK, slot)
    head, rest = kv[:9], kv[9:]
    d = []
    if ph == 5: d += wc_adv()
    for ks in range(2): d += wq_dma(cfg, (ph + 3) & 7, ks)
    fill2 = []
    if cfg.kvpos:
        P = [int(x) for x in cfg.kvpos.split(",")]
        nw = len(d) - 4
        groups = [d[:nw], d[nw:], kv[:9], kv[9:11], kv[11:13], kv[13:15]]
        extra = []
        for p, gl in zip(P, groups):
            if p < len(m1) or ph == 0: extra += [(min(p, len(m1) - 1), x) for x in gl]
            else: fill2 += [(p - len(m1), x) for x in gl]
        fill = extra + fill
    elif cfg.kvlate:
        fill = spread(d, -1, 2) + spread(kv, cfg.kvlate, len(m1) - 1) + fill
    else:
        fill = [(-1, x) for x in head] + [(k // 2, x) for k, x in enumerate(rest)] + spread(d, 3, 8) + fill
    a = interleave(m1, fill)
    if cfg.slowmask >= 0 and not (cfg.slowph >> ph) & 1:
        wt = [vmcnt(cfg.pvmfast)]
    elif cfg.slowmask >= 0:
        wt = [S(f"s_bitcmp1_b32 s86, s{sCNT}"), raw(f"s_cbranch_scc0 L_fast{ph}"), vmcnt(cfg.pvm), label(f"L_fast{ph}"), vmcnt(cfg.pvmfast)]
    else:
        wt = [vmcnt(cfg.pvm)]
    b = interleave(m2, fill2) + wt + [lgkm0(), barrier()]
    if cfg.nopm: a, b = [[i for i in s if i.k not in ("mfma", "dsr")] for s in (a, b)]
    if cfg.nodma: a = [i for i in a if i.k not in ("dma",)]
    return a, b

def wo_chunk(cfg, k, plan, voff=None):
    sl, c = plan["blocks"][k]; slot = plan["slot"][k]
    L = []
    for ks in range(4):
        lds = (XB + slot * 16384 if slot < 4 else (slot - 4) * 16384) + ks * 4096
        L += [m0set(f"s_add_u32 m0, s{sM0}, {lds}"),
              S(f"s_add_u32 s{sT}, s{sCol}, {c * 131072 + ks * 32768 + sl * 128}"), S(f"s_and_b32 s{sT}, s{sT}, 0x7ffff"),
              dma(voff or vWo, SWO, f"s{sT}", 0, cfg.woflags)]
    return vtag(L, ("wo", k))

def b_load(pos, addr):
    return [ds_r128(Bf(4 * pos + (fr >> 1), fr & 1), addr, fr * 1024) for fr in range(8)]

def w_read(slot, f):
    mt, ks = f >> 2, f & 3
    o = (slot & 3) * 16384 + ks * 4096
    a = (aW if slot < 4 else (aW2 if slot < 8 else aW3)) + mt
    return [ds_tr(FR(f), a, o), ds_tr(FR(f) + 2, a, o + 512)]

def tail_plan(cfg):
    ne = cfg.ne
    names = {"A": "A", "H": "H", "T": "T", "L": "L0", "M": "L1", "F": "F"}
    order = cfg.order or ("AHTLM"[:ne] + "F" * (8 - ne))
    fo = [names[ch] for ch in order]
    early = [d for d in ("L0", "L1", "H", "T", "A") if d in fo]
    blocks = [(fo.index(d), c) for d in early for c in range(3)]
    n0 = len(blocks)
    for s, d in enumerate(fo):
        blocks += [(s, c) for c in (range(4) if d == "F" else (3,))]
    slot = {k: k & 3 for k in range(n0 + 3)}
    slot[n0 + 3] = 4; slot[n0 + 4] = 5
    a_issue = {}
    free = []
    nxt = n0 + 5
    pre = {17: [n0 + 3], 18: [n0 + 4]}
    if "L0" not in fo:
        slot[n0 + 5] = 8; slot[n0 + 6] = 9; nxt = n0 + 7
        pre = {15: [n0 + 3], 17: [n0 + 4], 18: [n0 + 5], 19: [n0 + 6]}
    busy = {k: (blocks[k][1] == 3) or (k > n0 and blocks[k - 1][1] == 3) for k in range(n0, 32)}
    for k in range(n0, cfg.lastbar):
        free.append(slot[k - 1])
        if k == n0 + 1: free += [6, 7]
        L = []
        while free and nxt < 32 and len(L) < cfg.aper and (not cfg.avoid or not busy[k] or nxt <= k + cfg.minlead or k >= cfg.lastbar - 2):
            slot[nxt] = free.pop(0); L.append(nxt); nxt += 1
        a_issue[k] = L
    assert nxt == 32
    return dict(fo=fo, early=early, blocks=blocks, n0=n0, slot=slot, a_issue=a_issue, pre=pre)

def flag_pub(val):
    return [valu("v_mov_b32", vFlag, str(val)), vwait(lambda t: t[0] == "st" and t[1] < val)] + \
           vtag([I(f"buffer_store_dword v{vFlag}, v{vLane}, s[{SFLG}:{SFLG+3}], 0 offen sc1", "vstore", (), {vFlag, vLane})], ("fl", val))

def p_tail(cfg):
    plan = tail_plan(cfg)
    blocks, n0, slot, fo = plan["blocks"], plan["n0"], plan["slot"], plan["fo"]
    p0 = 21 - n0 - cfg.half
    assert p0 >= 5
    sp, ep = {}, {}
    p = p0
    for k in range(n0):
        sp[k] = p; p += 2 if k < cfg.half else 1; ep[k] = p - 1
    for k in range(n0, n0 + 7): sp[k] = ep[k] = 21 + (k - n0)
    ep[-1] = p0 - 1
    issue = {}
    for k in range(n0 + 3): issue.setdefault(2 + k if k < 4 else sp[k - 3], []).append(k)
    for p, L in plan["pre"].items(): issue.setdefault(p, []).extend(L)
    assert sp[2] >= 7
    def setbase(reg, base):
        return [S(f"s_lshl_b32 s{sT}, s{sQB}, 13"), S(f"s_add_u32 s{sT}, s{sT}, {base}"), valu("v_add_u32", reg, f"s{sT}", vLane)]
    def period_ops(p):
        n, kind = 23 + p // 2, "EO"[p & 1]
        mem, other = [], []
        ks = issue.get(p, [])
        for k in ks[:1]: mem += wo_chunk(cfg, k, plan)
        if kind == "E" and n <= 31: mem += vtag(kv_issue(cfg, False, n & 1), ("kv", p))
        if kind == "O" and n + 2 <= 31: mem += vtag(kv_issue(cfg, True, n & 1), ("kv", p))
        for k in ks[1:]: mem += wo_chunk(cfg, k, plan)
        if p == 0:
            other += chunk_mfmas(7)[cfg.psplit:] + [valu("v_add_u32", aQw, f"{WB0 - YB}", aQw)] + q_pack(TMP) + q_store(HLD, 0) + q_store(TMP, 1)
        if p == 1:
            other += setbase(aQw, XB) + b_load(0, aQw) + setbase(aQw, YB) + b_load(1, aQw) + setbase(aQw, WB0) + setbase(vXo, VB0)
        if p == 6: other += b_load(2, aQw)
        close = [vwait(lambda t, p=p: (t[0] == "kv" and t[1] <= p - cfg.tlead) or (t[0] == "wo" and ep[t[1] - 1] - 1 <= p))]
        if p < p0 - 1: close.append(lgkm0())
        close.append(barrier())
        return mem, other, close
    seq = []
    for p in range(p0):
        mem, other, close = period_ops(p)
        if p == p0 - 1:
            for f in range(8): other += w_read(slot[0], f)
        seq += mem + other + close
    main, fill = [], []
    src_of = {"H": HLD, "T": TMP, "L0": HLD, "L1": TMP}
    published = 0
    done_at = {}
    for k, (sl, c) in enumerate(blocks):
        b0 = 32 * k
        fresh = (c == 0)
        for mt in range(4):
            for qs in range(2):
                for ks in range(4):
                    cc = None if (fresh and ks == 0) else Ac(mt, qs)
                    dep = [FR(4 * mt + ks + 1)] if (qs == 0 and ks in (0, 2)) else ()
                    main.append(mfma(Ac(mt, qs), FR(4 * mt + ks), Bf(4 * c + ks, qs), cc, dep))
        if cfg.bstamp:
            fill.append((b0, raw("s_memtime s[90:91]")))
            fill.append((b0 + 24, raw(f"v_writelane_b32 v241, s90, {k}")))
        if k < n0:
            span = 32 // (ep[k] - sp[k] + 1)
            closes = []
            for h, p in enumerate(range(sp[k], ep[k] + 1)):
                mem, other, close = period_ops(p)
                o = b0 + h * span
                if h: fill += [(o - 1, x) for x in closes.pop()]
                fill += [(o + q, x) for q, x in spread(mem, cfg.tlate, min(17, span - 4))] + [(o + q, x) for q, x in spread(other, span // 2 - 2, span - 4)]
                closes.append(close)
            close = closes.pop()
        elif n0 < k <= cfg.lastbar:
            if k == n0 + 1: fill.append((b0 + 3, vwait(lambda t: t[0] == "wo")))
            fill.append((b0 + 3, barrier()))
        for mt in range(4):
            if mt >= 2 and k + 1 >= len(blocks): continue
            sl2, mt2 = (slot[k], mt + 2) if mt < 2 else (slot[k + 1], mt - 2)
            rd = []
            for ks in range(4): rd += w_read(sl2, 4 * mt2 + ks)
            for n, x in enumerate(rd): fill.append((b0 + 8 * mt + 4 + n, x))
        if k < n0:
            fill += [(b0 + 31, x) for x in close]
            if k == n0 - 1:
                fill += [(b0 + 31, x) for x in ([] if cfg.bstamp else stamp(cfg, 2)) + b_load(3, vXo)]
        for pair in range(2):
            for qs in range(2):
                s0 = b0 + 14 + 8 * qs + 16 * pair
                t, u = Ac(2 * pair, qs), Ac(2 * pair + 1, qs)
                if k < n0 and c == 2 and fo[sl] != "A":
                    d = fo[sl]
                    z = src_of[d] + (pair * 2 + qs) * 4
                    L = [cvtpk(z, t, t + 1), cvtpk(z + 1, t + 2, t + 3), cvtpk(z + 2, u, u + 1), cvtpk(z + 3, u + 2, u + 3)]
                    fill += [(s0 + n, x) for n, x in enumerate(L)]
                    if d[0] == "L": fill.append((s0 + 4, ds_w128(aQw, z, int(d[1]) * 4096 + (pair * 2 + qs) * 1024)))
                if k >= n0 and c == 3:
                    nxt = fo[sl + 1] if sl + 1 < len(fo) and fo[sl + 1] != "F" else None
                    if pair == 0 and qs == 0: fill.append((s0 - 1, S(f"s_add_u32 s{sPo1}, s{sPo}, {sl * 131072}")))
                    L = [cvtpk(t, t, t + 1), cvtpk(t + 1, t + 2, t + 3), cvtpk(t + 2, u, u + 1), cvtpk(t + 3, u + 2, u + 3)]
                    st = vtag([bstore(t, vLane, SPART, f"s{sPo1}", (qs * 2 + pair) * 1024, cfg.pflags)], ("st", sl))
                    if nxt:
                        s = src_of[nxt] + (pair * 2 + qs) * 4
                        U = []
                        for (dst, o) in ((u, 2), (t, 0)):
                            for h in range(2):
                                U += [valu("v_lshlrev_b32", dst + 2 * h, "16", s + o + h), valu("v_and_b32", dst + 2 * h + 1, "0xffff0000", s + o + h)]
                        fill += [(s0 + n // 2, x) for n, x in enumerate(L)] + [(s0 + 2, st[0])]
                        fill += [(s0 + p, x) for p, x in zip((3, 3, 4, 5, 5, 6, 7, 7), U)]
                    else:
                        fill += [(s0 + n, x) for n, x in enumerate(L)] + [(s0 + 4, st[0])]
                    done_at[sl] = k
        if k >= n0 and c == 3 and fo[sl] in ("H", "T"):
            d = {"H": "L0", "T": "L1"}[fo[sl]]
            if d in fo:
                assert fo.index(d) >= sl + 2
                fill += [(b0 + 17 + n, ds_r128(src_of[d] + 4 * n, aQw, int(d[1]) * 4096 + n * 1024)) for n in range(4)]
        if cfg.fused and k >= n0:
            ready = sum(1 for s, kk in done_at.items() if kk + cfg.flaglag <= k)
            if ready > published and k >= cfg.pubfrom:
                fill += [(b0 + 16, x) for x in flag_pub(ready)]
                published = ready
    seq += interleave(main, fill)
    if cfg.bstamp:
        seq += [raw("s_memtime s[90:91]"), lgkm0(), raw("v_writelane_b32 v241, s90, 32"), raw("v_lshlrev_b32 v5, 2, v0"),
                raw("s_lshl_b32 s90, s2, 8"), raw("s_add_u32 s90, s90, 0x10000"), raw(f"s_cmp_lg_u32 s{sQB}, {cfg.stw}"), raw(f"s_cselect_b32 s90, {OOB}, s90"),
                raw("buffer_store_dword v241, v5, s[64:67], s90 offen")]
    seq += stamp(cfg, 4)
    if cfg.fused:
        if published < 7: seq += flag_pub(7)
        seq += flag_pub(8)
    return resolve_vwaits(seq, [("kv", -2)] * 6 + [("kv", -1)] * 6)

def a_tail(cfg):
    plan = tail_plan(cfg)
    n0 = plan["n0"]
    seq = []
    for k in range(n0, cfg.lastbar + 1):
        last = k == cfg.lastbar
        if k > n0: seq += [vwait(lambda t, k=k, last=last: last or t[1] <= k + 1), barrier()]
        for kk in plan["a_issue"].get(k, []): seq += wo_chunk(cfg, kk, plan, vWoA)
    return resolve_vwaits(seq)

def rstamp(cfg, idx):
    if not cfg.stamps: return []
    return ["    " + x for x in ["s_memrealtime s[60:61]", "s_waitcnt lgkmcnt(0)", "v_mov_b32 v100, s60", "v_mov_b32 v101, s61", "v_mov_b32 v102, 0",
            "s_mov_b64 s[62:63], exec", "s_mov_b64 exec, 1", f"buffer_store_dwordx2 v[100:101], v102, s[64:67], s68 offen offset:{idx*8}", "s_mov_b64 exec, s[62:63]"]]

def a_reduce(cfg):
    T = []
    A = lambda *a: T.extend("    " + x for x in a)
    A("v_lshlrev_b32 v1, 7, v0", "v_and_b32 v4, 15, v0", "v_lshlrev_b32 v4, 11, v4",
      "v_bfe_u32 v5, v0, 4, 1", "v_lshl_add_u32 v4, v5, 5, v4", "v_lshrrev_b32 v5, 5, v0", "v_lshl_add_u32 v4, v5, 4, v4", "v_mov_b32 v3, 0")
    T += rstamp(cfg, 4)
    A("s_mov_b32 s85, 0")
    T.append("L_hs:")
    A(f"buffer_load_dword v6, v3, s[{SDBG}:{SDBG+3}], 0 offen sc1", "s_add_u32 s85, s85, 1", "s_waitcnt vmcnt(0)",
      "v_cmp_eq_u32 vcc, 8, v6", "s_cbranch_vccnz L_hs_ok", "s_cmp_lt_u32 s85, 0x20000", "s_cbranch_scc1 L_hs")
    T.append("L_hs_ok:")
    A(f"s_mov_b32 s87, s{sQB}")
    T.append("L_rs:")
    T += rstamp(cfg, 5)
    A("s_mov_b32 s85, 0")
    T.append("L_poll:")
    A(f"buffer_load_dword v6, v1, s[{SFLG}:{SFLG+3}], 0 offen sc1", "s_add_u32 s85, s85, 1", "s_waitcnt vmcnt(0)",
      "v_cmp_lt_u32 vcc, s87, v6", "s_cmp_eq_u32 vcc_lo, 0xff", "s_cbranch_scc1 L_got", "s_cmp_lt_u32 s85, 0x20000", "s_cbranch_scc1 L_poll")
    T.append("L_got:")
    T += rstamp(cfg, 6)
    A("s_lshl_b32 s88, s87, 17", "s_lshl_b32 s89, s6, 11", "s_add_u32 s88, s88, s89")
    for src in range(8):
        for pair in range(2):
            b = 16 + (src * 2 + pair) * 4
            A(f"buffer_load_dwordx4 v[{b}:{b+3}], v{vLane}, s[{SPART}:{SPART+3}], s88 offen offset:{pair*1024} sc1")
        if src < 7: A("s_add_u32 s88, s88, 16384")
    A("s_lshl_b32 s89, s87, 7")
    acc = 80
    for src in range(8):
        A(f"s_waitcnt vmcnt({(7-src)*2})")
        for pair in range(2):
            b = 16 + (src * 2 + pair) * 4
            for i in range(4):
                lo, hi = acc + pair * 8 + 2 * i, acc + pair * 8 + 2 * i + 1
                if src == 0:
                    A(f"v_lshlrev_b32 v{lo}, 16, v{b+i}", f"v_and_b32 v{hi}, 0xffff0000, v{b+i}")
                else:
                    A(f"v_lshlrev_b32 v6, 16, v{b+i}", f"v_and_b32 v7, 0xffff0000, v{b+i}", f"v_add_f32 v{lo}, v{lo}, v6", f"v_add_f32 v{hi}, v{hi}, v7")
    for pair in range(2):
        a = acc + pair * 8
        for i in range(4): A(f"v_cvt_pk_bf16_f32 v{8+pair*4+i}, v{a+2*i}, v{a+2*i+1}")
    T += rstamp(cfg, 7)
    A("s_nop 1")
    for pair in range(2):
        d = 8 + pair * 4
        A(f"v_permlane16_swap_b32 v{d}, v{d+2}", f"v_permlane16_swap_b32 v{d+1}, v{d+3}")
        A(f"buffer_store_dwordx4 v[{d}:{d+3}], v4, s[{SOUT}:{SOUT+3}], s89 offen offset:{pair*64} {cfg.outflags}")
    A("s_add_u32 s87, s87, 4", "s_cmp_lt_u32 s87, 8", "s_cbranch_scc1 L_rs")
    return T

def fin(seq): return fix_hazards(insert_lgkm(order_gaps(seq)))

def header():
    ref = open("cdna_kernels/" + NAME + ".s.ref").read().splitlines()
    return [l for l in ref if l.startswith(";") and "@launch" not in l and "Override" not in l and "grid=ceil" not in l]

def srd(dst, lo, hi, nbytes):
    return [f"s_mov_b32 s{dst}, s{lo}", f"s_mov_b32 s{dst+1}, s{hi}", f"s_mov_b32 s{dst+2}, {nbytes}", f"s_mov_b32 s{dst+3}, 0x20000"]
def srd_off(dst, lo, hi, off, nbytes):
    return [f"s_add_u32 s{dst}, s{lo}, {off}", f"s_addc_u32 s{dst+1}, s{hi}, 0", f"s_mov_b32 s{dst+2}, {nbytes}", f"s_mov_b32 s{dst+3}, 0x20000"]

def main_kernel(cfg):
    T = []
    A = lambda *a: T.extend("    " + x for x in a)
    ST = lambda i: T.append(emit(stamp(cfg, i))) if cfg.stamps else None
    T += [".globl attn_main_kernel", ".p2align 8", ".type attn_main_kernel,@function", "attn_main_kernel:"]
    A("s_cmp_ge_u32 s2, 256", "s_cbranch_scc1 L_end")
    cal = cfg.cal_pro or cfg.cal_main or cfg.cal_end or cfg.cal_mid or cfg.probe >= 0
    def PR(k):
        if cfg.probe == k: A("s_memrealtime s[94:95]", "s_waitcnt lgkmcnt(0)")
    if cal: A("s_memrealtime s[100:101]")
    def CAL(us, lab):
        if not us: return
        T.append(f"{lab}:")
        A("s_memrealtime s[60:61]", "s_waitcnt lgkmcnt(0)", "s_sub_u32 s60, s60, s100", f"s_cmp_lt_u32 s60, {us*100}", f"s_cbranch_scc1 {lab}")
    A("s_load_dwordx8 s[72:79], s[0:1], 0", "s_load_dwordx8 s[80:87], s[0:1], 32", "s_load_dwordx4 s[88:91], s[0:1], 64",
      "s_load_dwordx2 s[92:93], s[0:1], 96", "s_load_dwordx4 s[96:99], s[0:1], 80")
    if cfg.mapping == 0:
        A("s_and_b32 s3, s2, 7", "s_lshr_b32 s4, s2, 3", "s_lshl_b32 s5, s3, 2", "s_lshr_b32 s6, s4, 3", "s_add_u32 s5, s5, s6",
          "s_and_b32 s6, s4, 7", f"s_and_b32 s{sROT}, s3, 3")
    elif cfg.mapping == 1:
        A("s_and_b32 s6, s2, 7", "s_lshr_b32 s5, s2, 3", f"s_and_b32 s{sROT}, s5, 3")
    elif cfg.mapping == 2:
        A("s_and_b32 s3, s2, 7", "s_lshr_b32 s4, s2, 3",
          "s_and_b32 s5, s4, 15", "s_and_b32 s6, s3, 4", "s_lshl_b32 s6, s6, 2", "s_add_u32 s5, s5, s6",
          "s_and_b32 s6, s3, 3", "s_lshl_b32 s6, s6, 1", "s_lshr_b32 s4, s4, 4", "s_add_u32 s6, s6, s4",
          f"s_and_b32 s{sROT}, s5, 3")
    if not cfg.rot: A(f"s_mov_b32 s{sROT}, 0")
    if cfg.rot == 2: A(f"s_bfe_u32 s{sROT}, s5, 0x20002")
    if cfg.rot == 3: A(f"s_and_b32 s{sROT}, s5, 2")
    if cfg.rot == 4: A(f"s_or_b32 s{sROT}, s{sROT}, 2")
    A("s_and_b32 s7, s5, 15")
    tx = {0: ["s_mov_b32 s4, 0"], 1: ["s_mov_b32 s4, s6"], 2: ["s_lshr_b32 s4, s5, 2"], 3: ["s_lshr_b32 s4, s5, 2", "s_add_u32 s4, s4, s6"],
          4: ["s_xor_b32 s4, s5, s6"], 5: ["s_mul_i32 s4, s2, 0x9e3779b1", "s_lshr_b32 s4, s4, 29"], 6: ["s_lshr_b32 s4, s5, 2", "s_xor_b32 s4, s4, s6"]}[cfg.tx]
    A(*tx, "s_and_b32 s4, s4, 7", "s_lshl_b32 s4, s4, 14")
    A("v_lshrrev_b32 v1, 6, v0", "v_and_b32 v0, 63, v0", f"v_readfirstlane_b32 s{sW}, v1")
    A(f"v_lshlrev_b32 v{vLane}, 4, v0")
    A("s_waitcnt lgkmcnt(0)")
    A("s_cmp_ge_u32 s5, 16")
    for k in range(5):
        A(f"s_cselect_b32 s{72+2*k}, s{82+2*k}, s{72+2*k}", f"s_cselect_b32 s{73+2*k}, s{83+2*k}, s{73+2*k}")
    A("s_lshl_b32 s56, s7, 22", "s_lshl_b32 s57, s6, 19", "s_add_u32 s56, s56, s57")
    A(*srd_off(SK, 74, 75, "s56", 524288)); A(*srd_off(SV, 76, 77, "s56", 524288))
    A("s_lshl_b32 s56, s6, 10")
    A(*srd_off(SWQ, 78, 79, "s56", 0), f"s_sub_u32 s{SWQ+2}, 0x400000, s56")
    A(*srd_off(SWO, 80, 81, "s57", 524288))
    A("s_lshl_b32 s56, s7, 17"); A(*srd_off(SX, 72, 73, "s56", 131072))
    A("s_lshl_b32 s56, s5, 21", "s_add_u32 s56, s56, 0x100000"); A(*srd_off(SPART, 92, 93, "s56", 1 << 20))
    if cfg.fused:
        A("s_lshl_b32 s56, s5, 3"); A(*srd_off(SDBG, 98, 99, "s56", 4))
        A("s_lshl_b32 s56, s7, 18", "s_lshl_b32 s57, s6, 15", "s_add_u32 s56, s56, s57", "s_lshr_b32 s57, s5, 4", "s_lshl_b32 s57, s57, 10",
          "s_add_u32 s56, s56, s57")
        A(*srd_off(SOUT, 96, 97, "s56", 0), f"s_sub_u32 s{SOUT+2}, 0x400000, s56")
    if cfg.nokv: A(f"s_mov_b32 s{SK+2}, 0", f"s_mov_b32 s{SV+2}, 0")
    if cfg.nowq: A(f"s_mov_b32 s{SWQ+2}, 0")
    if cfg.nowo: A(f"s_mov_b32 s{SWO+2}, 0")
    if cfg.nops: A(f"s_mov_b32 s{SPART+2}, 0")
    if cfg.stamps:
        A(*srd_off(64, 92, 93, WS_BYTES - (1 << 20), 1 << 20))
        A(f"s_lshr_b32 s68, s{sW}, 2", "s_lshl_b32 s68, s68, 7", "s_lshl_b32 s69, s2, 8", "s_add_u32 s68, s68, s69",
          f"s_and_b32 s69, s{sW}, 3", f"s_cmp_lg_u32 s69, {cfg.stw}", f"s_cselect_b32 s68, {OOB}, s68")
    A(f"s_and_b32 s{sQB}, s{sW}, 3", f"s_lshl_b32 s{sM0}, s{sQB}, 10")
    A(f"s_lshl_b32 s{sCol}, s{sROT}, 17")
    ST(0)
    A("v_and_b32 v1, 15, v0", "v_lshrrev_b32 v2, 4, v0", "v_lshrrev_b32 v3, 2, v1", "v_and_b32 v4, 3, v0")
    def lc16():
        A("v_lshrrev_b32 v5, 3, v0", "v_bfe_u32 v6, v0, 4, 1", f"s_and_b32 s{sT}, s{sQB}, 1", f"s_lshl_b32 s{sT}, s{sT}, 1",
          f"v_or_b32 v6, s{sT}, v6", "v_lshlrev_b32 v6, 1, v6", "v_and_b32 v7, 7, v0", "v_xor_b32 v6, v6, v7", "v_lshlrev_b32 v6, 4, v6")
    def wo_voff():
        lc16()
        A("v_and_b32 v7, 3, v5", "v_lshrrev_b32 v5, 2, v5", "v_lshl_add_u32 v7, v5, 4, v7",
          f"s_lshl_b32 s{sT}, s{sQB}, 2", f"v_add_u32 v7, s{sT}, v7", f"v_lshl_add_u32 v{vWo}, v7, 10, v6")
    def kv_voff():
        A(f"s_lshl_b32 s{sT}, s{sQB}, 2", f"v_add_u32 v5, s{sT}, v2",
          "v_xor_b32 v6, v5, v1", "v_lshlrev_b32 v6, 4, v6",
          f"s_lshl_b32 s{sT}, s{sQB}, 4", f"v_add_u32 v7, s{sT}, v2", "v_lshlrev_b32 v7, 8, v7",
          f"v_add_u32 v{vKo}, v7, v6",
          "v_and_b32 v5, 7, v5", "v_lshlrev_b32 v5, 1, v5", "v_xor_b32 v6, v5, v1", "v_lshlrev_b32 v6, 4, v6", f"v_add_u32 v{vVo}, v7, v6")
    def wq_voff():
        lc16()
        A(f"s_lshl_b32 s{sT}, s{sQB}, 3", f"v_add_u32 v7, s{sT}, v5", f"v_lshl_add_u32 v{vWq}, v7, 13, v6")
    A(f"s_lshl_b32 s{sWc}, s{sROT}, 8")
    if cfg.krot == 1:
        A("s_lshr_b32 s56, s7, 2", "s_lshl_b32 s56, s56, 1", "s_lshl_b32 s57, s6, 2", "s_add_u32 s56, s56, s57",
          "s_bfe_u32 s57, s6, 0x10001", "s_add_u32 s56, s56, s57", "s_and_b32 s56, s56, 7")
    elif cfg.krot == 2:
        A(f"s_lshl_b32 s56, s{sROT}, 1", "s_lshr_b32 s57, s5, 4", "s_add_u32 s56, s56, s57")
    elif cfg.krot == 3:
        A(f"s_lshl_b32 s56, s{sROT}, 1", "s_lshr_b32 s57, s5, 4", "s_add_u32 s56, s56, s57", "s_add_u32 s56, s56, 4", "s_and_b32 s56, s56, 7")
    elif cfg.krot == 4:
        A("s_and_b32 s56, s7, 7")
    else:
        A("s_mov_b32 s56, 0")
    A(f"s_lshl_b32 s{sKR}, s56, 7", "s_lshl_b32 s56, s56, 19", f"s_add_u32 s{sWc}, s{sWc}, s56")
    A(f"s_cmp_ge_u32 s{sW}, 4", "s_cbranch_scc1 L_P")
    wq_voff()
    A("v_lshrrev_b32 v5, 3, v0", "v_and_b32 v6, 7, v0", "v_xor_b32 v6, v6, v2", "v_lshlrev_b32 v6, 4, v6",
      f"s_lshl_b32 s{sT}, s{sQB}, 5", f"v_add_u32 v5, s{sT}, v5", f"v_lshl_add_u32 v{vXo}, v5, 10, v6")
    A(f"s_lshl_b32 s{sX16}, s{sQB}, 12")
    first, rest = a_prologue(cfg)
    T.append(emit(fin(first)))
    kv_voff()
    T.append(emit(fin(rest)))
    wo_voff()
    A(f"v_mov_b32 v{vWoA}, v{vWo}")
    if cfg.fused:
        A("s_lshl_b32 s56, s5, 2", "s_lshr_b32 s58, s6, 1", "s_add_u32 s56, s56, s58", "s_lshl_b32 s56, s56, 10", f"s_add_u32 s56, s56, {FLG}")
        A(*srd_off(SFLG, 92, 93, "s56", 1024))
    if cfg.prioA: A(f"s_setprio {cfg.prioA}")
    A(f"s_mov_b32 s{sBND}, 0x{f2u(1e-30 if cfg.force_fb else float(1 << 20)):x}")
    for s in range(4):
        A(f"v_add_u32 v5, {4*s}, v2", "v_xor_b32 v5, v5, v1", "v_lshlrev_b32 v5, 4, v5", f"v_lshl_add_u32 v{aK+s}, v1, 8, v5")
    A("v_and_b32 v5, 1, v2", "v_lshl_add_u32 v5, v5, 2, v3",
      "v_lshl_add_u32 v6, v2, 2, v3", "v_lshlrev_b32 v6, 8, v6", "v_lshl_add_u32 v6, v4, 3, v6")
    for dt in range(8):
        A(f"v_xor_b32 v7, {dt}, v5", f"v_lshl_add_u32 v{aV+dt}, v7, 5, v6")
    A(f"s_lshl_b32 s57, s{sQB}, 13", f"s_add_u32 s{sT}, s57, {YB}", f"v_add_u32 v{aQ}, s{sT}, v{vLane}")
    A("s_waitcnt vmcnt(12)", "s_barrier")
    segs = split_segments(fin(a_stream(cfg)))
    txt = [emit(s) for s in segs]
    E = lambda n: 2 + 2 * n
    for k in range(E(2), E(32) - 16):
        assert txt[k] == txt[k + 16], k
    ST(1)
    CAL(cfg.cal_pro, "L_cal1")
    PR(0)
    T += txt[:E(2)]
    A(f"s_mov_b32 s{sCNT}, 0")
    T.append("L_Aloop:")
    A(f"s_cmp_lt_u32 s{sCNT}, 2", f"s_cselect_b32 s{sT}, 2, 1", f"s_lshl_b32 s{sT}, s{sT}, 16", f"s_add_u32 s{sT}, s{sT}, s57", f"v_add_u32 v{aQ}, s{sT}, v{vLane}",
      f"v_mov_b32 v{aO}, v{aQ}", f"s_cmp_eq_u32 s{sCNT}, 0", "s_cbranch_scc0 L_Ao",
      f"v_add_u32 v{aO}, {XB - YB}, v{aO}")
    T.append("L_Ao:")
    if 1 <= cfg.probe <= 3:
        A(f"s_cmp_lg_u32 s{sCNT}, {cfg.probe}", "s_cbranch_scc1 L_nopr")
        PR(cfg.probe)
        T.append("L_nopr:")
    if cfg.cal_mid:
        A(f"s_cmp_lg_u32 s{sCNT}, 2", "s_cbranch_scc1 L_nocal")
        CAL(cfg.cal_mid, "L_cal4")
        T.append("L_nocal:")
    def sst():
        if cfg.series:
            L = [i for i in stamp(cfg, 0) if "v[6:7]" not in i.t]
            T.append(emit(L)); A("s_add_u32 s68, s68, 8")
    sst(); T += txt[E(2):E(4)]
    sst(); T += txt[E(4):E(6)]
    sst(); T += txt[E(6):E(8)]
    sst()
    A(f"s_cmp_eq_u32 s{sCNT}, 3", "s_cbranch_scc1 L_Atail")
    T += txt[E(8):E(10)]
    A(f"s_add_u32 s{sCNT}, s{sCNT}, 1", "s_branch L_Aloop")
    T.append("L_Atail:")
    A(f"v_add_u32 v{aO}, {VB0 - WB0}, v{aO}")
    if cfg.series: A(f"s_mov_b32 s68, {OOB}")
    T += txt[E(32):]
    CAL(cfg.cal_main, "L_cal2")
    PR(4)
    if not cfg.bstamp: ST(2)
    T.append(emit(fin(a_tail(cfg))))
    if cfg.fused:
        T += a_reduce(cfg)
    PR(5)
    if cfg.probe >= 0:
        A("s_sub_u32 s94, s94, s100", "s_add_u32 s94, s94, 10000")
        T.append("L_prh:")
        A("s_memrealtime s[60:61]", "s_waitcnt lgkmcnt(0)", "s_sub_u32 s60, s60, s100", "s_cmp_lt_u32 s60, s94", "s_cbranch_scc1 L_prh")
    if cfg.cal_wg >= 0: A(f"s_cmp_lg_u32 s2, {cfg.cal_wg}", "s_cbranch_scc1 L_end")
    CAL(cfg.cal_end, "L_cal3")
    ST(3)
    A("s_endpgm")
    T.append("L_P:")
    if cfg.codepf:
        A("s_getpc_b64 s[70:71]")
        T.append("L_pc:")
        A("s_sub_u32 s70, s70, L_pc-attn_main_kernel", "s_subb_u32 s71, s71, 0")
        A(f"s_cmp_ge_u32 s{sQB}, 2", "s_cbranch_scc1 L_nopf")
        A("s_lshr_b32 s56, s2, 3", "s_lshl_b32 s56, s56, 11", f"s_add_u32 s56, s56, s{sM0}",
          "s_min_u32 s56, s56, L_cold-attn_main_kernel-1024", f"v_add_u32 v5, s56, v{vLane}",
          f"global_load_dwordx4 v[{FR(0)}:{FR(0)+3}], v5, s[70:71]")
        T.append("L_nopf:")
    if cfg.fused:
        A("s_lshl_b32 s56, s5, 12", "s_lshl_b32 s57, s6, 7", "s_add_u32 s56, s56, s57", f"s_add_u32 s56, s56, {FLG}")
        A(*srd_off(SFLG, 92, 93, "s56", 3076))
        A(f"s_cmp_lg_u32 s{sQB}, 3", "s_cbranch_scc1 L_norst")
        A("v_mov_b32 v5, 0", "v_lshlrev_b32 v6, 10, v0", f"buffer_store_dword v5, v6, s[{SFLG}:{SFLG+3}], 0 offen sc1")
        T.append("L_norst:")
    A(f"s_lshl_b32 s{sX16}, s{sQB}, 12")
    A("v_bfe_u32 v5, v1, 1, 2", "v_xor_b32 v5, v5, v2", "v_lshlrev_b32 v5, 4, v5", "v_lshl_add_u32 v5, v1, 7, v5",
      f"v_add_u32 v{aX}, s{sX16}, v5", f"v_add_u32 v{aX+1}, {WB0}, v{aX}", f"v_add_u32 v{aX+2}, {YB}, v{aX}")
    wq_voff()
    A(f"s_add_u32 s{sWc}, s{sWc}, 256", f"s_and_b32 s{sWc}, s{sWc}, 0x3803ff", f"s_add_u32 s{sWm0}, s{sM0}, {WB0}", f"s_mov_b32 s{sWn}, 2")
    A("v_lshrrev_b32 v5, 1, v3", "v_and_b32 v6, 1, v2", "v_lshl_add_u32 v5, v6, 1, v5",
      "v_lshl_add_u32 v6, v2, 3, v3", "v_lshlrev_b32 v6, 7, v6", "v_lshl_add_u32 v6, v4, 3, v6")
    for mt in range(4):
        A(f"v_xor_b32 v7, {mt}, v5", f"v_lshl_add_u32 v{aW2+mt}, v7, 5, v6", f"v_add_u32 v{aW+mt}, {WB0}, v{aW2+mt}",
          f"v_add_u32 v{aW3+mt}, {YB}, v{aW2+mt}")
    kv_voff()
    A("v_lshrrev_b32 v5, 1, v2", "v_lshlrev_b32 v5, 8, v5", "v_lshl_add_u32 v5, v1, 4, v5", "v_and_b32 v6, 1, v2", "v_lshl_add_u32 v5, v6, 3, v5",
      f"s_lshl_b32 s{sT}, s{sQB}, 13", f"s_add_u32 s{sT}, s{sT}, {YB}", f"v_add_u32 v{aQw}, s{sT}, v5")
    wo_voff()
    A(f"s_mov_b32 s{sSCL}, 0x{f2u(math.log2(math.e) / math.sqrt(128.0)):x}")
    A(f"s_mov_b32 s{sKn}, -1", f"s_mov_b32 s{sVn}, -2",
      f"s_add_u32 s{sKo}, s{sCol}, 16384",
      f"s_mov_b32 s{sVo}, s{sCol}")
    A(f"s_mov_b32 s{sCNT}, 2", "s_waitcnt vmcnt(0)")
    if cfg.fused:
        A("s_bfe_u32 s85, s2, 0x20003", "s_add_u32 s85, s85, 3", f"s_cmp_eq_u32 s{sQB}, 3", "s_cselect_b32 s85, s85, 99")
        A(f"s_lshl_b32 s56, s{sQB}, 10", f"s_add_u32 s{SFLG}, s{SFLG}, s56", f"s_addc_u32 s{SFLG+1}, s{SFLG+1}, 0", f"s_mov_b32 s{SFLG+2}, 4")
    T.append(emit(fin(p_prologue(cfg))))
    ST(1)
    A(f"v_lshlrev_b32 v{vXo}, 7, v0")
    if cfg.slowmask >= 0: A(f"s_mov_b32 s86, {cfg.slowmask}")
    if cfg.prioM: A(f"s_setprio {cfg.prioM}")
    A("s_branch L_Pgo")
    T.append("L_Ploop:")
    if cfg.fused:
        A(f"s_cmp_lg_u32 s{sCNT}, s85", "s_cbranch_scc1 L_nohs")
        A("v_mov_b32 v5, 1", f"buffer_atomic_add v5, v{vLane}, s[{SDBG}:{SDBG+3}], 0 offen sc1")
        T.append("L_nohs:")
    if cfg.wopf:
        A(f"s_add_u32 s56, s{sQB}, 4", f"s_cmp_lg_u32 s{sCNT}, s56", "s_cbranch_scc1 L_nowopf")
        A("s_lshl_b32 s56, s7, 15", f"s_lshl_b32 s57, s{sQB}, 13", "s_add_u32 s56, s56, s57",
          f"buffer_load_dword v{vFlag}, v{vXo}, s[{SWO}:{SWO+3}], s56 offen")
        T.append("L_nowopf:")
    if cfg.codepf:
        A(f"s_lshl_b32 s56, s{sQB}, 4", f"s_add_u32 s56, s56, s{sCNT}", "s_cmp_lg_u32 s56, 7", "s_cbranch_scc1 L_nocpf")
        A("s_bfe_u32 s56, s2, 0x30003", "s_lshl_b32 s56, s56, 13", "s_min_u32 s56, s56, L_cold-attn_main_kernel-8192",
          f"v_add_u32 v5, s56, v{vXo}", "global_load_dword v241, v5, s[70:71]")
        T.append("L_nocpf:")
    a0, b0 = p_phase(cfg, 0)
    T.append(emit(fin(a0)))
    A(f"s_bitcmp1_b32 s{sCNT}, 0", "s_cbranch_scc0 L_Pwr")
    T.append(emit(fin([raw("s_nop 1")] + q_pack(HLD) + [lgkm0()])))
    A("s_branch L_Pgo")
    T.append("L_Pwr:")
    pk, st = q_pack(TMP), q_store(TMP, 1)
    wr = q_store(HLD, 0)
    for k in range(8): wr += pk[6 * k:6 * k + 6] + ([st[k - 1]] if k else [])
    T.append(emit(fin(wr + [st[7], lgkm0()])))
    T.append("L_Pgo:")
    body = list(b0)
    for ph in range(1, 8):
        a, b = p_phase(cfg, ph)
        body += a + b
    T.append(emit(fin(body)))
    A(f"s_add_u32 s{sCNT}, s{sCNT}, 1", f"s_cmp_lt_u32 s{sCNT}, 8", "s_cbranch_scc1 L_Ploop")
    for mt in range(4): A(f"v_add_u32 v{aW+mt}, {XB}, v{aW2+mt}", f"v_add_u32 v{aW3+mt}, {WB0}, v{aW2+mt}")
    A("s_lshl_b32 s58, s6, 14", f"s_lshl_b32 s{sPo}, s{sQB}, 12", f"s_add_u32 s{sPo}, s{sPo}, s58")
    if cfg.prioP: A(f"s_setprio {cfg.prioP}")
    T.append(emit(fin([raw("s_nop 7")] + p_tail(cfg))))
    if cfg.stamps:
        A("s_waitcnt vmcnt(0)")
        ST(3)
    A("s_endpgm")
    T.append("L_cold:")
    variants = {}
    for name, key in SITES.items():
        variants.setdefault(key, f"L_fbr_{key[0]}_{key[1]}_{int(key[2])}")
        T.append(f"L_fb_{name}:")
        A(f"s_call_b64 s[{sRET}:{sRET+1}], {variants[key]}", f"s_branch L_ret_{name}")
    for key, lab in variants.items():
        T.append(f"{lab}:")
        T.append(emit(fallback(*key)))
    T.append("L_end:")
    A("s_endpgm")
    return T

def reduce_kernel(cfg):
    T = []
    A = lambda *a: T.extend("    " + x for x in a)
    T += [".globl attn_reduce_kernel", ".p2align 8", ".type attn_reduce_kernel,@function", "attn_reduce_kernel:"]
    A("s_cmp_ge_u32 s2, 256", "s_cbranch_scc1 L_rend")
    if cfg.stamps: A("s_memrealtime s[40:41]")
    A("s_load_dwordx2 s[4:5], s[0:1], 80", "s_load_dwordx2 s[6:7], s[0:1], 96")
    A("s_lshr_b32 s18, s2, 3", "s_and_b32 s19, s2, 7")
    A("s_lshl_b32 s20, s18, 21", "s_lshl_b32 s21, s19, 17", "s_add_u32 s20, s20, s21", "s_add_u32 s20, s20, 0x100000")
    A("v_lshrrev_b32 v1, 6, v0", "v_and_b32 v2, 63, v0", "v_lshlrev_b32 v3, 4, v2", "v_lshl_add_u32 v3, v1, 11, v3")
    A("s_waitcnt lgkmcnt(0)")
    A(*srd_off(8, 6, 7, "s20", 131072))
    for src in range(8):
        A(f"s_mov_b32 s22, {src*16384}")
        for pair in range(2):
            b = 16 + (src * 2 + pair) * 4
            A(f"buffer_load_dwordx4 v[{b}:{b+3}], v3, s[8:11], s22 offen offset:{pair*1024} {cfg.rflags}")
    A(*srd(12, 4, 5, 1 << 22))
    A("s_and_b32 s23, s18, 15", "s_lshl_b32 s23, s23, 18", "s_lshr_b32 s24, s18, 4", "s_lshl_b32 s24, s24, 10", "s_add_u32 s23, s23, s24",
      "s_lshl_b32 s24, s19, 7", "s_add_u32 s23, s23, s24")
    A("v_and_b32 v4, 15, v2", "v_lshl_add_u32 v4, v1, 4, v4", "v_lshlrev_b32 v4, 11, v4",
      "v_bfe_u32 v5, v2, 4, 1", "v_lshl_add_u32 v4, v5, 5, v4", "v_lshrrev_b32 v5, 5, v2", "v_lshl_add_u32 v4, v5, 4, v4")
    acc = 80
    for src in range(8):
        A(f"s_waitcnt vmcnt({(7-src)*2})")
        for pair in range(2):
            b = 16 + (src * 2 + pair) * 4
            for i in range(4):
                lo, hi = acc + pair * 8 + 2 * i, acc + pair * 8 + 2 * i + 1
                if src == 0:
                    A(f"v_lshlrev_b32 v{lo}, 16, v{b+i}", f"v_and_b32 v{hi}, 0xffff0000, v{b+i}")
                else:
                    A(f"v_lshlrev_b32 v6, 16, v{b+i}", f"v_and_b32 v7, 0xffff0000, v{b+i}", f"v_add_f32 v{lo}, v{lo}, v6", f"v_add_f32 v{hi}, v{hi}, v7")
    for pair in range(2):
        a = acc + pair * 8
        for i in range(4): A(f"v_cvt_pk_bf16_f32 v{16+pair*4+i}, v{a+2*i}, v{a+2*i+1}")
    A("s_nop 1")
    for pair in range(2):
        d = 16 + pair * 4
        A(f"v_permlane16_swap_b32 v{d}, v{d+2}", f"v_permlane16_swap_b32 v{d+1}, v{d+3}")
        A(f"buffer_store_dwordx4 v[{d}:{d+3}], v4, s[12:15], s23 offen offset:{pair*64} {cfg.outflags}")
    if cfg.stamps and not cfg.series:
        A("s_waitcnt vmcnt(0)", "s_memrealtime s[42:43]", "s_waitcnt lgkmcnt(0)")
        A(*srd_off(8, 6, 7, WS_BYTES - (1 << 20), 1 << 20))
        A("s_lshl_b32 s22, s2, 8", "v_mov_b32 v4, s40", "v_mov_b32 v5, s41", "v_mov_b32 v6, s42", "v_mov_b32 v7, s43",
          "v_cmp_eq_u32 vcc, 0, v0", "s_and_saveexec_b64 s[34:35], vcc", "s_cbranch_execz L_rend",
          "buffer_store_dwordx4 v[4:7], v0, s[8:11], s22 offen offset:32")
    T.append("L_rend:")
    A("s_endpgm")
    return T

def kd(name, vgpr, sgpr):
    return [".p2align 6", f".amdhsa_kernel {name}", f"  .amdhsa_next_free_vgpr {vgpr}", f"  .amdhsa_next_free_sgpr {sgpr}",
            f"  .amdhsa_accum_offset {(vgpr+3)//4*4}", "  .amdhsa_group_segment_fixed_size 0", "  .amdhsa_kernarg_size 104",
            "  .amdhsa_user_sgpr_count 2", "  .amdhsa_user_sgpr_kernarg_segment_ptr 1", "  .amdhsa_system_sgpr_workgroup_id_x 1",
            ".end_amdhsa_kernel"]

def generate(cfg, path):
    SITES.clear()
    T = header()
    if cfg.fused:
        T += ["; @launch grid=(256,1,1) block=(512,1,1) lds=163840"]
    else:
        T += ["; @launch kernel=attn_main_kernel grid=(256,1,1) block=(512,1,1) lds=163840",
              "; @launch kernel=attn_reduce_kernel grid=(256,1,1) block=(512,1,1) lds=0"]
    T += ['.amdgcn_target "amdgcn-amd-amdhsa--gfx950"', ".text"]
    T += main_kernel(cfg)
    if not cfg.fused: T += reduce_kernel(cfg)
    T += ['.section .rodata,"a"'] + kd("attn_main_kernel", 256, 102)
    if not cfg.fused: T += kd("attn_reduce_kernel", 96, 48)
    txt = "\n".join(T) + "\n"
    if cfg.fused: txt = txt.replace("attn_main_kernel", NAME + "_kernel")
    open(path, "w").write(txt)

if __name__ == "__main__":
    cfg = Cfg()
    out = "k.s"
    for a in sys.argv[1:]:
        if "=" in a:
            k, v = a.split("=", 1)
            cur = getattr(cfg, k)
            setattr(cfg, k, (v not in ("0", "False")) if isinstance(cur, bool) else type(cur)(v))
        else:
            out = a
    generate(cfg, out)
```

```python
import sys, math, struct
from asmlib import *

NAME = "concat_heads__mha_block_cached__mha_block_cached__near_ridge"
WS_BYTES = 289406976
def f2u(x): return struct.unpack("<I", struct.pack("<f", x))[0]

KB0, VB0, WB0, XB, YB = 0, 32768, 65536, 98304, 131072
DROP = 0x30000
OOB = 0x40000000
SK, SV, SWQ, SWO, SX, SPART = 8, 12, 16, 20, 24, 32
sW, sQB, sCNT, sBND, sSCL, sKo, sVo, sWc, sT, sM0, sWm0, sRET = 36, 37, 38, 39, 40, 41, 42, 43, 44, 45, 46, 48
sPo, sCol, sPo1, sX16, sROT, sKn, sVn, sWn, sKs, sVs = 50, 51, 52, 53, 59, 28, 29, 30, 54, 55
sFm0 = 31
sKVm0 = 47
sTX = 4
SFLG, SDBG, SOUT = 72, 76, 80
sFv = 84
vFlag = 240
FLG = 0x4800000
aW3 = 248
aX = 253
vWoA = 253
def Qf(s, qs): return 8 + (s * 2 + qs) * 4
def Oa(dt, qs): return 40 + (dt * 2 + qs) * 4
def Sr(n, kt, qs):
    if kt < 2: return 104 + (kt * 2 + qs) * 4
    return 120 + (n & 1) * 16 + ((kt - 2) * 2 + qs) * 4
def Pf(n, u, qs):
    if u == 0: return 152 + (n & 1) * 8 + qs * 4
    return 168 + qs * 4
def NM(qs): return 176 + qs * 4
def FR(f): return 184 + (f & 7) * 4
TMP = 216
vL, vLS, vTS = 232, 234, 236
aK, aV, aQ, aO, vLane = 238, 242, 250, 251, 252
def Bf(s, qs): return 8 + (s * 2 + qs) * 4
def Ac(mt, qs): return 136 + (mt * 2 + qs) * 4
HLD = 168
aW, aW2, vKo, vVo, vWq, vWo, aQw, vXo = 232, 236, 242, 243, 244, 245, 246, 247

BAR_IDX = 19

class Cfg:
    stamps = False
    kvflags = "nt"
    wflags = ""
    pflags = "sc1"
    xflags = ""
    woflags = ""
    rflags = ""
    outflags = ""
    force_fb = False
    mapping = 2
    rot = 1
    codepf = True
    wopf = True
    prioA = 0
    cal_pro = 0
    cal_main = 0
    cal_end = 0
    cal_mid = 0
    cal_wg = -1
    probe = -1
    fused = True
    lastbar = 26
    flagc = 0
    flaglag = 5
    ne = 3
    kvfirst = False
    tfast = 99
    dpoll = False
    pubs = "23:4"
    pfmode = 0
    nobnd = 0
    xb1 = 7
    xb2 = 13
    sser = False
    rn1 = 4
    rn2 = 16
    kperm = 0
    h1touch = 0
    slowmask = 0xfc
    pvmfast = 6
    slowph = 0xff
    slowmask2 = 0x60
    tx = 0
    avoid = True
    minlead = 3
    kvpos = ""
    tlead = 1
    tlate = 3
    pvm = 5
    kvlate = 0
    psplit = 6
    pspread = True
    half = 7
    ktouch = 0
    tflags = ""
    thead = 2
    bstamp = False
    midbar = 17
    aper = 2
    pubfrom = 22
    stw = 0
    pfbody = 7
    order = "AFHTFFFF"
    pdup = 0
    plead = 2
    pwflags = ""
    krot = 0
    series = False
    prioM = 0
    ppace = 0
    nopm = False
    nodma = False
    noav = False
    barq = 19
    barp = 23
    locap = 2
    pf0 = 28
    fbar = 1
    fwait = 2
    fburst = 1
    prioP = 0
    nokv = False
    nowq = False
    nowo = False
    nops = False

def stamp(cfg, idx):
    if not cfg.stamps: return []
    return [S("s_memrealtime s[60:61]"), S("s_memtime s[94:95]"), raw("s_waitcnt lgkmcnt(0)", "lgkm0"),
            raw("v_mov_b32 v2, s60"), raw("v_mov_b32 v3, s61"), raw("v_mov_b32 v4, 0"),
            raw("v_mov_b32 v6, s94"), raw("v_mov_b32 v7, s95"),
            raw("s_mov_b64 s[62:63], exec"), raw("s_mov_b64 exec, 1"),
            raw(f"buffer_store_dwordx2 v[2:3], v4, s[64:67], s68 offen offset:{idx*8}"),
            raw(f"buffer_store_dwordx2 v[6:7], v4, s[64:67], s68 offen offset:{idx*8+64}"),
            raw("s_mov_b64 exec, s[62:63]")]

def softmax_part(n, part):
    L = []
    for qs in range(2):
        for k in range(2):
            s = Sr(n, 2 * part + k, qs)
            e = [TMP + k * 4 + i for i in range(4)]
            for i in range(4): L.append(vexp(e[i], s + i))
            if k == 0:
                L.append(valu("v_add_f32", vTS + qs, e[0], e[1]))
            else:
                L.append(valu("v_add_f32", vTS + qs, vTS + qs, e[0]))
                L.append(valu("v_add_f32", vTS + qs, vTS + qs, e[1]))
            L.append(cvtpk(Pf(n, part, qs) + 2 * k, e[0], e[1]))
            L.append(valu("v_add_f32", vTS + qs, vTS + qs, e[2]))
            L.append(valu("v_add_f32", vTS + qs, vTS + qs, e[3]))
            L.append(cvtpk(Pf(n, part, qs) + 2 * k + 1, e[2], e[3]))
    return L

def l_update(n, part):
    t = n & 7
    if t == 0 and part == 0:
        return [valu("v_mov_b32", vL + qs, vTS + qs) for qs in range(2)]
    if t == 7 and part == 1:
        return [valu("v_add_f32", vLS + qs, vL + qs, vTS + qs) for qs in range(2)]
    return [valu("v_add_f32", vL + qs, vL + qs, vTS + qs) for qs in range(2)]

SITES = {}
def check_pre(n):
    if (n & 7) == 0: return []
    return [valu("v_max_f32", TMP + 8, vTS, vTS + 1), I(f"v_cmp_lt_f32 vcc, s{sBND}, v{TMP+8}", "valu", (), {TMP + 8})]
def check(n, part, sfx):
    t = n & 7
    if t == 0: return []
    name = f"{sfx}{t}_{part}"
    SITES[name] = (n & 1, part, t == 7)
    return [raw(f"s_cbranch_vccnz L_fb_{name}"), label(f"L_ret_{name}")]

def xgroup(op, x, t):
    return [valu("v_mov_b32", t, x), swap32(t, x), valu(op, x, x, t),
            valu("v_mov_b32", t, x), swap16(t, x), valu(op, x, x, t)]

def rowmax(dst, srcs):
    L = [valu("v_max3_f32", dst, srcs[0], srcs[1], srcs[2])]
    rest = srcs[3:]
    while len(rest) >= 2:
        L.append(valu("v_max3_f32", dst, dst, rest[0], rest[1])); rest = rest[2:]
    if rest: L.append(valu("v_max_f32", dst, dst, rest[0]))
    return L

def zipl(a, b):
    out = []
    for i in range(max(len(a), len(b))):
        if i < len(a): out.append(a[i])
        if i < len(b): out.append(b[i])
    return out

def first_tile_max(n):
    per = []
    for qs in range(2):
        m, t = TMP + 8 + qs, TMP + 10 + qs
        srcs = [Sr(n, kt, qs) + i for kt in range(4) for i in range(4)]
        L = rowmax(m, srcs) + xgroup("v_max_f32", m, t)
        L += [valu("v_sub_f32", s, s, m) for s in srcs[:8]]
        per.append(L)
    L = zipl(per[0], per[1])
    late = []
    for qs in range(2):
        m = TMP + 8 + qs
        late += [valu("v_sub_f32", NM(qs) + i, "0", m) for i in range(4)]
        late += [valu("v_sub_f32", s, s, m) for s in [Sr(n, kt, qs) + i for kt in (2, 3) for i in range(4)]]
    return L, late

def o_epilogue(cfg):
    per = []
    for qs in range(2):
        per.append(xgroup("v_add_f32", vLS + qs, TMP + 12 + qs) + [vrcp(vLS + qs, vLS + qs)])
    L = zipl(per[0], per[1])
    k = 0
    for s in range(4):
        for qs in range(2):
            q = TMP + 8 + (k & 1) * 4
            for h in range(2):
                o = Oa(2 * s + h, qs)
                for i in range(4): L.append(valu("v_mul_f32", o + i, o + i, vLS + qs))
                L.append(cvtpk(q + 2 * h, o, o + 1)); L.append(cvtpk(q + 2 * h + 1, o + 2, o + 3))
            L.append(ds_w128(aO, q, (s * 2 + qs) * 1024))
            k += 1
    return L

def k_read(n, f): return [ds_r128(FR(f), aK + (f & 3), KB0 + (n & 1) * 16384 + (f >> 2) * 4096)]
def v_read(n, f):
    dt, u = f >> 1, f & 1
    o = VB0 + (n & 1) * 16384 + u * 8192
    return [ds_tr(FR(f), aV + dt, o), ds_tr(FR(f) + 2, aV + dt, o + 4096)]

NT = 32
def units(i):
    if i.k == "label" or "vmcnt" in i.t: return 0
    return 2 if i.k == "trans" else 1

def schedule(main, ds, blocks, fixed, lo_cap=2):
    fill = []
    ds = list(ds)
    n = len(main)
    used = [0] * (n + 64)
    for p, L in fixed.items(): used[p] += sum(units(i) for i in L)
    for p in range(1, n):
        if main[p] is not None and main[p].tag: used[p - 1] += 1
    g = 0
    cnt = {}
    bars = sorted(p for p, L in fixed.items() if any(i.k == "lgkm0" for i in L))
    for e, ins in ds:
        g = max(g, e)
        while cnt.get(g, 0) >= (1 if (g & 1) == 0 else 2) and main[min(g, n - 1)] is not None: g += 1
        nb = [b for b in bars if b >= e]
        assert not nb or g <= nb[0] - 2, (e, g, ins.t)
        cnt[g] = cnt.get(g, 0) + 1
        used[g] += 1
        fill.append((g, 1, ins))
    def conflict(a, b):
        return bool(a.w & (b.r | b.w)) or bool(a.r & b.w) or (not a.w and not a.r) or (not b.w and not b.r) or (a.k == "dsw" and b.k == "dsw")
    def try_place(s, e, L, hi):
        u = list(used); rest = list(L); out = []
        last = None
        for p in range(s, e + 1):
            cap = lo_cap if (p & 1) == 0 else hi
            last = None
            while rest:
                pick = None
                for k in range(min(len(rest), 14)):
                    c = rest[k]
                    if u[p] + units(c) > cap: continue
                    if any(conflict(x, c) for x in rest[:k]): continue
                    if last is not None and last.k == "trans" and c.k != "trans" and last.w & c.r: continue
                    if last is not None and c.k == "perm" and last.w & c.r: continue
                    pick = k; break
                if pick is None: break
                c = rest.pop(pick); u[p] += units(c); out.append((p, 0, c)); last = c
        return (u, out) if not rest else None
    for (s, e, L) in blocks:
        hi = lo_cap
        while True:
            r = try_place(s, e, L, hi)
            if r: break
            hi += 1
        used, out = r
        fill += out
    pre = [(p, i) for (p, o, i) in fill]
    return pre

def a_stream(cfg):
    qrd = lambda: [ds_r128(Qf(s, qs), aQ, (s * 2 + qs) * 1024) for s in range(4) for qs in range(2)]
    pre = qrd()
    for f in range(8): pre += k_read(0, f)
    main, ds, blocks, fixed = [], [], [], {}
    BQ, BP = cfg.barq, cfg.barp
    for n in range(NT + 1):
        t = n & 7
        sfx = "T" if n >= NT else "L"
        real = n < NT
        b0 = 64 * n
        for kt in range(4):
            for qs in range(2):
                for s in range(4):
                    c = Sr(n, kt, qs) if s else (None if t == 0 else NM(qs))
                    dep = [FR(4 * kt + x) for x in range(4)] if (qs == 0 and s == 0) else ()
                    main.append(mfma(Sr(n, kt, qs), FR(4 * kt + s), Qf(s, qs), c, dep) if real else None)
        if real:
            for f in range(8, 16):
                ds += [(b0 + 4 + (f & 3) + 8 * ((f - 8) >> 2), i) for i in k_read(n, f)]
        if n >= 1:
            va = softmax_part(n - 1, 1) + check_pre(n - 1)
            if t == 1 and n > 8 and not cfg.nobnd & 1: va = va[:12] + zipl(o_epilogue(cfg), va[12:])
            blocks.append((b0, b0 + 30, va))
        if n == 0:
            fixed[cfg.xb1] = [barrier()]
            fixed[cfg.xb2] = [barrier()]
        fixed[b0 + BQ] = ([vmcnt(4)] if n == 1 else []) + [lgkm0(), barrier()]
        if n >= 1:
            for f in range(8):
                ds += [(b0 + max(BQ + 1, 20 + (f & 3) + 8 * (f >> 2)), i) for i in v_read(n - 1, f)]
            fixed[b0 + 31] = check(n - 1, 1, sfx) + l_update(n - 1, 1)
        realpv = n >= 1
        m = n - 1
        b1 = b0 + 32
        for dt in range(8):
            for (u, qs) in ((0, 0), (1, 0), (1, 1), (0, 1)):
                firstk = (u == 0 and qs == 0) or (u == 1 and qs == 1)
                c = None if ((m & 7) == 0 and firstk) else Oa(dt, qs)
                dep = [FR(2 * dt + 1)] if (u == 0 and qs == 0) else ()
                main.append(mfma(Oa(dt, qs), FR(2 * dt + u), Pf(m, u, qs), c, dep) if realpv else None)
        qq = qrd() if t == 7 else []
        if realpv:
            for p in range(4):
                ds += [(b1 + 2 + 4 * p, i) for i in v_read(m, 9 + 2 * p)] + [(b1 + 3 + 4 * p, i) for i in v_read(m, 8 + 2 * p)]
                ds += [(b1, i) for i in qq[2 * p:2 * p + 2]]
        if real:
            va = softmax_part(n, 0) + check_pre(n)
            if t == 0 and not (cfg.nobnd & 2 and n > 0):
                early, late = first_tile_max(n)
                blocks.append((b1 + 2, b1 + 30, early + va + late))
            else:
                blocks.append((b1, b1 + 30, va))
        fixed[b1 + BP] = ([vmcnt(8 if n == 0 else 0)] if n < 2 else []) + [lgkm0(), barrier()]
        if n + 1 < NT:
            for f in range(8):
                ds += [(b1 + max(BP + 1, 19 + 4 * (f >> 1)), i) for i in k_read(n + 1, f)]
        if real:
            sf2 = "T" if n + 1 >= NT else "L"
            fixed[b1 + 31] = check(n, 0, sf2) + l_update(n, 0)
    fill = schedule(main, ds, blocks, fixed, cfg.locap)
    fill += [(p, i) for p, L in fixed.items() for i in L]
    seq = pre + [i for i in interleave(main, fill) if i is not None]
    seq += o_epilogue(cfg)
    seq += [lgkm0(), barrier()]
    if cfg.noav: seq = [i for i in seq if i.k not in ("valu", "trans", "perm") and "cbranch" not in i.t]
    return seq

def split_segments(seq):
    segs, cur = [], []
    for i in seq:
        cur.append(i)
        if i.k == "barrier":
            segs.append(cur); cur = []
    if cur: segs.append(cur)
    return segs

def fallback(par, part, last):
    n = par + 2
    L = [raw("s_nop 7"), raw("s_nop 3")]
    D, F, T = TMP + 8, TMP + 10, TMP + 12
    kts = range(4) if part == 0 else (2, 3)
    for qs in range(2):
        srcs = [Sr(n, kt, qs) + i for kt in kts for i in range(4)]
        d, f, t = D + qs, F + qs, T + qs
        L += rowmax(d, srcs) + xgroup("v_max_f32", d, t)
        L += [valu("v_max_f32", d, "0", d), valu("v_ceil_f32", d, d), valu("v_sub_f32", t, "0", d), vexp(f, t)]
        L += [valu("v_sub_f32", s, s, d) for s in srcs]
        L += [valu("v_sub_f32", NM(qs) + i, NM(qs) + i, d) for i in range(4)]
        L += [valu("v_mul_f32", vL + qs, vL + qs, f)]
        L += [valu("v_mul_f32", Oa(dt, qs) + i, Oa(dt, qs) + i, f) for dt in range(8) for i in range(4)]
        if part == 1:
            for i in range(4):
                p = Pf(n, 0, qs) + i
                L += [valu("v_lshlrev_b32", t, "16", p), valu("v_and_b32", p, "0xffff0000", p),
                      valu("v_mul_f32", t, t, f), valu("v_mul_f32", p, p, f), cvtpk(p, t, p)]
            if not last:
                L += [valu("v_sub_f32", s, s, d) for s in [Sr(n + 1, kt, qs) + i for kt in range(4) for i in range(4)]]
    L += softmax_part(n, part)
    L += [raw("s_nop 2"), raw(f"s_setpc_b64 s[{sRET}:{sRET+1}]")]
    return fix_hazards(L)

def q_pack(dst):
    L = []
    for mt in range(4):
        for qs in range(2):
            a = Ac(mt, qs); d = dst + (mt * 2 + qs) * 2
            for i in range(4): L.append(valu("v_mul_f32", a + i, f"s{sSCL}", a + i))
            L += [cvtpk(d, a, a + 1), cvtpk(d + 1, a + 2, a + 3)]
    return L
def q_store(src, hf):
    return [ds_w64(aQw, src + (mt * 2 + qs) * 2, hf * 4096 + (mt >> 1) * 2048 + qs * 1024 + (mt & 1) * 512)
            for mt in range(4) for qs in range(2)]

def wc_adv():
    return [S(f"s_add_u32 s{sWn}, s{sWn}, 1"), S(f"s_add_u32 s{sWc}, s{sWc}, 128"), S(f"s_and_b32 s{sWc}, s{sWc}, 0x3803ff"),
            S(f"s_cmp_ge_u32 s{sWn}, 8"), S(f"s_cselect_b32 s{sWc}, {OOB}, s{sWc}"), S(f"s_cselect_b32 s{sWm0}, {DROP}, s{sWm0}")]
def wq_dma(cfg, kc, ks):
    return [m0set(f"s_add_u32 m0, s{sWm0}, {(kc & 3)*8192 + ks*4096}"),
            S(f"s_add_u32 s{sT}, s{sWc}, {kc * (1 << 19) + ks * (1 << 18)}"), S(f"s_and_b32 s{sT}, s{sT}, 0x403fffff"),
            dma(vWq, SWQ, f"s{sT}", 0, cfg.wflags)]
KPERM = [0]
def kv_xform(s):
    if KPERM[0] == 0: return [S(f"s_xor_b32 s{s}, s{s}, s{sTX}")]
    sh = {1: 2, 2: 1}[KPERM[0]]
    return [S(f"s_xor_b32 s{s}, s{s}, s{sTX}"), S(f"s_and_b32 s{sT}, s{s}, 0x1c000"), S(f"s_xor_b32 s{s}, s{s}, s{sT}"),
            S(f"s_lshr_b32 s{sT}, s{sT}, {sh}"), S(f"s_or_b32 s{s}, s{s}, s{sT}")]
def kv_pre(isK):
    n, o, s = (sKn, sKo, sKs) if isK else (sVn, sVo, sVs)
    return [S(f"s_cmp_lt_u32 s{n}, 30"), S(f"s_cselect_b32 s{s}, s{o}, {OOB}"), S(f"s_cselect_b32 s{sKVm0}, s{sM0}, {DROP}")] + kv_xform(s) + [
            S(f"s_add_u32 s{n}, s{n}, 1"), S(f"s_add_u32 s{o}, s{o}, 16384"), S(f"s_and_b32 s{o}, s{o}, 0x7ffff")]
def kv_dma(cfg, isK, slot, jj):
    base = (KB0 if isK else VB0) + slot * 16384 + jj * 3072
    return [m0set(f"s_add_u32 m0, s{sKVm0}, {base}"),
            dma(vKo if isK else vVo, SK if isK else SV, f"s{sKs if isK else sVs}", jj * 1024, cfg.kvflags)]
def kv_issue(cfg, isK, slot):
    L = kv_pre(isK)
    for jj in range(4): L += kv_dma(cfg, isK, slot, jj)
    return L

PRO_REG = [YB, VB0, XB, WB0, KB0]
sKR = 58
def Ac2(mt, qs):
    k = mt * 2 + qs
    return HLD + 4 * k if k < 4 else TMP + 4 * (k - 4)

def qwait(q, tags):
    last = max(i for i, t in enumerate(q) if t in tags)
    return vmcnt(len(q) - 1 - last)

def a_prologue(cfg):
    seq, q = [], []
    def wq(kc):
        L = []
        for hf in range(2):
            for ks in range(2):
                L += [m0set(f"s_add_u32 m0, s{sM0}, {PRO_REG[kc % 5] + hf*8192 + ks*4096}"),
                      S(f"s_add_u32 s{sT}, s{sWc}, {kc * (1 << 19) + ks * (1 << 18) + hf * 128}"), S(f"s_and_b32 s{sT}, s{sT}, 0x3fffff"),
                      dma(vWq, SWQ, f"s{sT}", 0, cfg.pwflags)]
        L += x_dma(cfg, kc)
        q.extend([kc] * 8)
        return L
    def two(isK):
        L = []
        s = sKs if isK else sVs
        for slot in range(2):
            L += [S(f"s_add_u32 s{s}, s{sCol}, {slot * 16384}")] + kv_xform(s)
            for jj in range(4): L += kv_dma(cfg, isK, slot, jj)
        q.extend(["kv"] * 8)
        return L
    first = []
    for kc in range(cfg.plead): first += wq(kc)
    seq.append(S(f"s_mov_b32 s{sKVm0}, s{sM0}"))
    nxt = cfg.plead
    for kc in range(9):
        seq += [qwait(q, {kc}), barrier()]
        while nxt <= min(kc + 3, 7) and nxt <= kc + cfg.plead:
            seq += wq(nxt); nxt += 1
        if kc == 5:
            seq += [S(f"s_add_u32 s{sWc}, s{sWc}, 256"), S(f"s_and_b32 s{sWc}, s{sWc}, 0x3803ff"), S(f"s_add_u32 s{sWm0}, s{sM0}, {WB0}")]
            for c in range(4):
                for ks in range(2): seq += wq_dma(cfg, c, ks)
            q += [8] * 8
        if kc == 6: seq += two(True)
        if kc == 8: seq += two(False)
    return first, seq

def x_dma(cfg, kc):
    L = [m0set(f"s_add_u32 m0, s{sX16}, {PRO_REG[kc % 5] + 16384}"),
         S(f"s_add_u32 s{sT}, s{sKR}, {kc * 128}"), S(f"s_and_b32 s{sT}, s{sT}, 1023")]
    for p in range(4):
        if p: L += [m0set("s_add_u32 m0, m0, 1024"), S(f"s_add_u32 s{sT}, s{sT}, 8192")]
        L.append(dma(vXo, SX, f"s{sT}", 0, cfg.xflags))
    return L

def p_prologue(cfg):
    def base_of(addr):
        return (0, 0) if addr < 65536 else ((1, WB0) if addr < YB else (2, YB))
    def rd(kc, f):
        if kc == 8: return ring_read(0, f)
        hf, mt, ks = f >> 3, (f >> 1) & 3, f & 1
        addr = PRO_REG[kc % 5] + hf * 8192 + ks * 4096
        k, base = base_of(addr)
        a = (aW2, aW, aW3)[k]
        return [ds_tr(FR(f), a + mt, addr - base), ds_tr(FR(f) + 2, a + mt, addr - base + 512)]
    def xrd(kc):
        addr = PRO_REG[kc % 5] + 16384
        k, base = base_of(addr)
        return [ds_r128(Bf(2 * kc + ks, qs), aX + k, addr - base + qs * 2048 + ks * 64) for ks in range(2) for qs in range(2)]
    pre = [barrier()] + xrd(0)
    for f in range(8): pre += rd(0, f)
    main, fill = [], []
    for kc in range(8):
        b0 = 32 * kc
        for g in range(8):
            hf, mt = g >> 2, g & 3
            for (ks, qs) in ((0, 0), (1, 0), (1, 1), (0, 1)):
                firstk = (ks == 0 and qs == 0) or (ks == 1 and qs == 1)
                a = (Ac if hf else Ac2)(mt, qs)
                dep = [FR(2 * g + 1)] if (ks == 0 and qs == 0) else ()
                main.append(mfma(a, FR(2 * g + ks), Bf(2 * kc + ks, qs), None if (kc == 0 and firstk) else a, dep))
            if g == 4:
                fill.append((b0 + 17, barrier()))
                if kc < 7: fill += [(b0 + 17 + 2 * k, x) for k, x in enumerate(xrd(kc + 1))]
            k2, f2 = (kc, 2 * g + 8) if g < 4 else (kc + 1, 2 * g - 8)
            r = rd(k2, f2 + 1) + rd(k2, f2)
            fill += [(b0 + 4 * g + 2 + k, x) for k, x in enumerate(r)]
        if kc == 7:
            pk = []
            for mt in range(4):
                for qs in range(2):
                    a = Ac2(mt, qs); d = HLD + (mt * 2 + qs) * 2
                    for i in range(4): pk.append(valu("v_mul_f32", a + i, f"s{sSCL}", a + i))
                    pk += [cvtpk(d, a, a + 1), cvtpk(d + 1, a + 2, a + 3)]
            fill += [(b0 + p, x) for p, x in spread(pk + q_store(HLD, 0), 18, 31)]
    seq = pre + interleave(main, fill)
    pk, st = q_pack(TMP), q_store(TMP, 1)
    for k in range(8): seq += pk[6 * k:6 * k + 6] + [st[k]]
    seq += [lgkm0(), barrier()]
    return seq

def ring_read(kc, f):
    mt, ks = f >> 1, f & 1
    o = (kc & 3) * 8192 + ks * 4096
    return [ds_tr(FR(f), aW + mt, o), ds_tr(FR(f) + 2, aW + mt, o + 512)]

def chunk_mfmas(kc):
    L = []
    for mt in range(4):
        for (ks, qs) in ((0, 0), (1, 0), (1, 1), (0, 1)):
            firstk = (ks == 0 and qs == 0) or (ks == 1 and qs == 1)
            c = None if (kc == 0 and firstk) else Ac(mt, qs)
            dep = [FR(2 * mt + 1)] if (ks == 0 and qs == 0) else ()
            L.append(mfma(Ac(mt, qs), FR(2 * mt + ks), Bf(2 * kc + ks, qs), c, dep))
    return L

def p_phase(cfg, ph):
    PS = cfg.psplit
    isK = (ph & 1) == 1
    slot = [1, 1, 0, 0, 1, 1, 0, 0][ph]
    m1, m2 = chunk_mfmas((ph - 1) & 7)[PS:], chunk_mfmas(ph)[:PS]
    fill = []
    pos = -1
    for mt in range(4):
        for f, last in ((2 * mt + 1, 4 * mt + 2), (2 * mt, 4 * mt + 3)):
            for x in ring_read(ph, f):
                pos = max(pos, last - PS)
                fill.append((min(pos, len(m1) - 1), x))
                if cfg.pspread: pos += 1
    kv = kv_issue(cfg, isK, slot)
    head, rest = kv[:-6], kv[-6:]
    d = []
    if ph == 5: d += wc_adv()
    for ks in range(2): d += wq_dma(cfg, (ph + 3) & 7, ks)
    fill2 = []
    if cfg.kvpos:
        P = [int(x) for x in cfg.kvpos.split(",")]
        nw = len(d) - 4
        groups = [d[:nw], d[nw:], kv[:-6], kv[-6:-4], kv[-4:-2], kv[-2:]]
        extra = []
        for p, gl in zip(P, groups):
            if p < len(m1) or ph == 0: extra += [(min(p, len(m1) - 1), x) for x in gl]
            else: fill2 += [(p - len(m1), x) for x in gl]
        fill = extra + fill
    elif cfg.kvlate:
        fill = spread(d, -1, 2) + spread(kv, cfg.kvlate, len(m1) - 1) + fill
    else:
        fill = [(-1, x) for x in head] + [(k // 2, x) for k, x in enumerate(rest)] + spread(d, 3, 8) + fill
    a = interleave(m1, fill)
    if cfg.slowmask >= 0 and not (cfg.slowph >> ph) & 1:
        wt = [vmcnt(cfg.pvmfast)]
    elif cfg.slowmask >= 0:
        wt = [S(f"s_bitcmp1_b32 s{86 + (ph & 1)}, s{sCNT}"), raw(f"s_cbranch_scc0 L_fast{ph}"), vmcnt(cfg.pvm), label(f"L_fast{ph}"), vmcnt(cfg.pvmfast)]
    else:
        wt = [vmcnt(cfg.pvm)]
    b = interleave(m2, fill2) + wt + [lgkm0(), barrier()]
    if cfg.nopm: a, b = [[i for i in s if i.k not in ("mfma", "dsr")] for s in (a, b)]
    if cfg.nodma: a = [i for i in a if i.k not in ("dma",)]
    return a, b

def wo_chunk(cfg, k, plan, voff=None):
    sl, c = plan["blocks"][k]; slot = plan["slot"][k]
    L = []
    for ks in range(4):
        lds = (XB + slot * 16384 if slot < 4 else (slot - 4) * 16384) + ks * 4096
        L += [m0set(f"s_add_u32 m0, s{sM0}, {lds}"),
              S(f"s_add_u32 s{sT}, s{sCol}, {c * 131072 + ks * 32768 + sl * 128}"), S(f"s_and_b32 s{sT}, s{sT}, 0x7ffff"),
              dma(voff or vWo, SWO, f"s{sT}", 0, cfg.woflags)]
    return vtag(L, ("wo", k))

def b_load(pos, addr):
    return [ds_r128(Bf(4 * pos + (fr >> 1), fr & 1), addr, fr * 1024) for fr in range(8)]

def w_read(slot, f):
    mt, ks = f >> 2, f & 3
    o = (slot & 3) * 16384 + ks * 4096
    a = (aW if slot < 4 else (aW2 if slot < 8 else aW3)) + mt
    return [ds_tr(FR(f), a, o), ds_tr(FR(f) + 2, a, o + 512)]

def tail_plan(cfg):
    ne = cfg.ne
    names = {"A": "A", "H": "H", "T": "T", "L": "L0", "M": "L1", "F": "F"}
    order = cfg.order or ("AHTLM"[:ne] + "F" * (8 - ne))
    fo = [names[ch] for ch in order]
    early = [d for d in ("L0", "L1", "H", "T", "A") if d in fo]
    blocks = [(fo.index(d), c) for d in early for c in range(3)]
    n0 = len(blocks)
    for s, d in enumerate(fo):
        blocks += [(s, c) for c in (range(4) if d == "F" else (3,))]
    slot = {k: k & 3 for k in range(n0 + 3)}
    slot[n0 + 3] = 4; slot[n0 + 4] = 5
    a_issue = {}
    free = []
    nxt = n0 + 5
    pre = {17: [n0 + 3], 18: [n0 + 4]}
    if "L0" not in fo:
        slot[n0 + 5] = 8; slot[n0 + 6] = 9; nxt = n0 + 7
        pre = {15: [n0 + 3], 17: [n0 + 4], 18: [n0 + 5], 19: [n0 + 6]}
    busy = {k: (blocks[k][1] == 3) or (k > n0 and blocks[k - 1][1] == 3) for k in range(n0, 32)}
    for k in range(n0, cfg.lastbar):
        free.append(slot[k - 1])
        if k == n0 + 1: free += [6, 7]
        L = []
        while free and nxt < 32 and len(L) < cfg.aper and (not cfg.avoid or not busy[k] or nxt <= k + cfg.minlead or k >= cfg.lastbar - 2):
            slot[nxt] = free.pop(0); L.append(nxt); nxt += 1
        a_issue[k] = L
    assert nxt == 32
    return dict(fo=fo, early=early, blocks=blocks, n0=n0, slot=slot, a_issue=a_issue, pre=pre)

def flag_pub(val):
    return [valu("v_mov_b32", vFlag, str(val)), vwait(lambda t: t[0] == "st" and t[1] < val)] + \
           vtag([I(f"buffer_store_dword v{vFlag}, v{vLane}, s[{SFLG}:{SFLG+3}], 0 offen sc1", "vstore", (), {vFlag, vLane})], ("fl", val))

def p_tail(cfg):
    plan = tail_plan(cfg)
    blocks, n0, slot, fo = plan["blocks"], plan["n0"], plan["slot"], plan["fo"]
    p0 = 21 - n0 - cfg.half
    assert p0 >= 5
    sp, ep = {}, {}
    p = p0
    for k in range(n0):
        sp[k] = p; p += 2 if k < cfg.half else 1; ep[k] = p - 1
    for k in range(n0, n0 + 7): sp[k] = ep[k] = 21 + (k - n0)
    ep[-1] = p0 - 1
    issue = {}
    for k in range(n0 + 3): issue.setdefault(2 + k if k < 4 else sp[k - 3], []).append(k)
    for p, L in plan["pre"].items(): issue.setdefault(p, []).extend(L)
    assert sp[2] >= 7
    def setbase(reg, base):
        return [S(f"s_lshl_b32 s{sT}, s{sQB}, 13"), S(f"s_add_u32 s{sT}, s{sT}, {base}"), valu("v_add_u32", reg, f"s{sT}", vLane)]
    def period_ops(p):
        n, kind = 23 + p // 2, "EO"[p & 1]
        mem, other = [], []
        ks = issue.get(p, [])
        nfirst = 0 if cfg.kvfirst else 1
        for k in ks[:nfirst]: mem += wo_chunk(cfg, k, plan)
        if kind == "E" and n <= 31: mem += vtag(kv_issue(cfg, False, n & 1), ("kv", p))
        if kind == "O" and n + 2 <= 31: mem += vtag(kv_issue(cfg, True, n & 1), ("kv", p))
        for k in ks[nfirst:]: mem += wo_chunk(cfg, k, plan)
        if p == 20 and cfg.fused: mem += hs_load()
        if p == 0:
            other += chunk_mfmas(7)[cfg.psplit:] + [valu("v_add_u32", aQw, f"{WB0 - YB}", aQw)] + q_pack(TMP) + q_store(HLD, 0) + q_store(TMP, 1)
        if p == 1:
            other += setbase(aQw, XB) + b_load(0, aQw) + setbase(aQw, YB) + b_load(1, aQw) + setbase(aQw, WB0) + setbase(vXo, VB0)
        if p == 6: other += b_load(2, aQw)
        close = [vwait(lambda t, p=p: (t[0] == "kv" and t[1] <= p - (2 if p >= cfg.tfast else cfg.tlead)) or (t[0] == "wo" and ep[t[1] - 1] - 1 <= p))]
        if p < p0 - 1: close.append(lgkm0())
        close.append(barrier())
        return mem, other, close
    seq = []
    for p in range(p0):
        mem, other, close = period_ops(p)
        if p == p0 - 1:
            for f in range(8): other += w_read(slot[0], f)
        seq += mem + other + close
    main, fill = [], []
    src_of = {"H": HLD, "T": TMP, "L0": HLD, "L1": TMP}
    published = 0
    done_at = {}
    for k, (sl, c) in enumerate(blocks):
        b0 = 32 * k
        fresh = (c == 0)
        for mt in range(4):
            for qs in range(2):
                for ks in range(4):
                    cc = None if (fresh and ks == 0) else Ac(mt, qs)
                    dep = [FR(4 * mt + ks + 1)] if (qs == 0 and ks in (0, 2)) else ()
                    main.append(mfma(Ac(mt, qs), FR(4 * mt + ks), Bf(4 * c + ks, qs), cc, dep))
        if cfg.bstamp:
            fill.append((b0, raw("s_memtime s[90:91]")))
            fill.append((b0 + 24, raw(f"v_writelane_b32 v255, s90, {k}")))
        if k < n0:
            span = 32 // (ep[k] - sp[k] + 1)
            closes = []
            for h, p in enumerate(range(sp[k], ep[k] + 1)):
                mem, other, close = period_ops(p)
                o = b0 + h * span
                if h: fill += [(o - 1, x) for x in closes.pop()]
                fill += [(o + q, x) for q, x in spread(mem, cfg.tlate, min(17, span - 4))] + [(o + q, x) for q, x in spread(other, span // 2 - 2, span - 4)]
                closes.append(close)
            close = closes.pop()
        elif n0 < k <= cfg.lastbar:
            if k == n0 + 1: fill.append((b0 + 3, vwait(lambda t: t[0] == "wo")))
            fill.append((b0 + 3, barrier()))
        for mt in range(4):
            if mt >= 2 and k + 1 >= len(blocks): continue
            sl2, mt2 = (slot[k], mt + 2) if mt < 2 else (slot[k + 1], mt - 2)
            rd = []
            for ks in range(4): rd += w_read(sl2, 4 * mt2 + ks)
            for n, x in enumerate(rd): fill.append((b0 + 8 * mt + 4 + n, x))
        if k < n0:
            fill += [(b0 + 31, x) for x in close]
            if k == n0 - 1:
                fill += [(b0 + 31, x) for x in ([] if cfg.bstamp else stamp(cfg, 2)) + b_load(3, vXo)]
        for pair in range(2):
            for qs in range(2):
                s0 = b0 + 14 + 8 * qs + 16 * pair
                t, u = Ac(2 * pair, qs), Ac(2 * pair + 1, qs)
                if k < n0 and c == 2 and fo[sl] != "A":
                    d = fo[sl]
                    z = src_of[d] + (pair * 2 + qs) * 4
                    L = [cvtpk(z, t, t + 1), cvtpk(z + 1, t + 2, t + 3), cvtpk(z + 2, u, u + 1), cvtpk(z + 3, u + 2, u + 3)]
                    fill += [(s0 + n, x) for n, x in enumerate(L)]
                    if d[0] == "L": fill.append((s0 + 4, ds_w128(aQw, z, int(d[1]) * 4096 + (pair * 2 + qs) * 1024)))
                if k >= n0 and c == 3:
                    nxt = fo[sl + 1] if sl + 1 < len(fo) and fo[sl + 1] != "F" else None
                    if pair == 0 and qs == 0: fill.append((s0 - 1, S(f"s_add_u32 s{sPo1}, s{sPo}, {sl * 131072}")))
                    L = [cvtpk(t, t, t + 1), cvtpk(t + 1, t + 2, t + 3), cvtpk(t + 2, u, u + 1), cvtpk(t + 3, u + 2, u + 3)]
                    st = vtag([bstore(t, vLane, SPART, f"s{sPo1}", (qs * 2 + pair) * 1024, cfg.pflags)], ("st", sl))
                    if nxt:
                        s = src_of[nxt] + (pair * 2 + qs) * 4
                        U = []
                        for (dst, o) in ((u, 2), (t, 0)):
                            for h in range(2):
                                U += [valu("v_lshlrev_b32", dst + 2 * h, "16", s + o + h), valu("v_and_b32", dst + 2 * h + 1, "0xffff0000", s + o + h)]
                        fill += [(s0 + n // 2, x) for n, x in enumerate(L)] + [(s0 + 2, st[0])]
                        fill += [(s0 + p, x) for p, x in zip((3, 3, 4, 5, 5, 6, 7, 7), U)]
                    else:
                        fill += [(s0 + n, x) for n, x in enumerate(L)] + [(s0 + 4, st[0])]
                    done_at[sl] = k
        if k >= n0 and c == 3 and fo[sl] in ("H", "T"):
            d = {"H": "L0", "T": "L1"}[fo[sl]]
            if d in fo:
                assert fo.index(d) >= sl + 2
                fill += [(b0 + 17 + n, ds_r128(src_of[d] + 4 * n, aQw, int(d[1]) * 4096 + n * 1024)) for n in range(4)]
        if cfg.fused and k >= n0:
            ready = sum(1 for s, kk in done_at.items() if kk + cfg.flaglag <= k)
            if cfg.pubs:
                pm = dict(tuple(int(v) for v in e.split(":")) for e in cfg.pubs.split(","))
                ready = pm.get(k, 0)
                assert ready <= sum(1 for s, kk in done_at.items() if kk + 2 <= k)
            if ready > published and (k >= cfg.pubfrom or cfg.pubs):
                fill += [(b0 + 16, x) for x in flag_pub(ready)]
                published = ready
    seq += interleave(main, fill)
    if cfg.bstamp:
        seq += [raw("s_memtime s[90:91]"), lgkm0(), raw("v_writelane_b32 v255, s90, 32"), raw("v_lshlrev_b32 v5, 2, v0"),
                raw("s_lshl_b32 s90, s2, 8"), raw("s_add_u32 s90, s90, 0x10000"), raw(f"s_cmp_lg_u32 s{sQB}, {cfg.stw}"), raw(f"s_cselect_b32 s90, {OOB}, s90"),
                raw("buffer_store_dword v255, v5, s[64:67], s90 offen")]
    seq += stamp(cfg, 4)
    if cfg.fused:
        if published < 7 and (cfg.dpoll or not cfg.pubs): seq += flag_pub(7)
        if not cfg.dpoll: seq += flag_pub(8)
    return resolve_vwaits(seq, [("kv", -2)] * 6 + [("kv", -1)] * 6)

def a_tail(cfg):
    plan = tail_plan(cfg)
    n0 = plan["n0"]
    seq = hs_load() if cfg.fused else []
    for k in range(n0, cfg.lastbar + 1):
        last = k == cfg.lastbar
        if k > n0: seq += [vwait(lambda t, k=k, last=last: last or t[1] <= k + 1), barrier()]
        for kk in plan["a_issue"].get(k, []): seq += wo_chunk(cfg, kk, plan, vWoA)
    return resolve_vwaits(seq)

def rstamp(cfg, idx):
    if not cfg.stamps: return []
    return ["    " + x for x in ["s_memrealtime s[60:61]", "s_waitcnt lgkmcnt(0)", "v_mov_b32 v100, s60", "v_mov_b32 v101, s61", "v_mov_b32 v102, 0",
            "s_mov_b64 s[62:63], exec", "s_mov_b64 exec, 1", f"buffer_store_dwordx2 v[100:101], v102, s[64:67], s68 offen offset:{idx*8}", "s_mov_b64 exec, s[62:63]"]]

vHS = 241
def hs_load():
    return vtag([I(f"buffer_load_dword v{vHS}, v{vLane}, s[{SDBG}:{SDBG+3}], 0 offen sc1", "vload", {vHS}, {vLane})], ("hs", 99))

def a_reduce(cfg, ps):
    T = []
    A = lambda *a: T.extend("    " + x for x in a)
    A("v_lshlrev_b32 v1, 7, v0", "v_and_b32 v4, 15, v0", "v_lshlrev_b32 v4, 11, v4",
      "v_bfe_u32 v5, v0, 4, 1", "v_lshl_add_u32 v4, v5, 5, v4", "v_lshrrev_b32 v5, 5, v0", "v_lshl_add_u32 v4, v5, 4, v4")
    if ps == 0: T += rstamp(cfg, 4)
    A("s_mov_b32 s85, 0")
    T.append(f"L_hs{ps}:")
    A(f"v_cmp_le_u32 vcc, 8, v{vHS}", f"s_cbranch_vccnz L_hs_ok{ps}",
      f"buffer_load_dword v{vHS}, v{vLane}, s[{SDBG}:{SDBG+3}], 0 offen sc1", "s_add_u32 s85, s85, 1", "s_waitcnt vmcnt(0)",
      "s_cmp_lt_u32 s85, 0x80000", f"s_cbranch_scc1 L_hs{ps}")
    T.append(f"L_hs_ok{ps}:")
    A(f"s_add_u32 s87, s{sQB}, {4 * ps}")
    for N in ((cfg.rn1, cfg.rn2)[ps],):
        T += rstamp(cfg, 5)
        dp = cfg.dpoll and ps == 1
        FW = SX if dp else SFLG
        def ld(i):
            b = 16 + i * 4
            if i and i % 2 == 0: A("s_add_u32 s88, s88, 16384")
            A(f"buffer_load_dwordx4 v[{b}:{b+3}], v{vLane}, s[{SPART}:{SPART+3}], s88 offen offset:{(i & 1)*1024} sc1")
        base = ["s_lshl_b32 s88, s87, 17", "s_lshl_b32 s89, s6, 11", "s_add_u32 s88, s88, s89"]
        pub8 = [f"s_cmp_lg_u32 s85, 1", "s_cbranch_scc1 L_np8_{0}", f"v_mov_b32 v{vFlag}, 8",
                f"buffer_store_dword v{vFlag}, v{vLane}, s[{SFLG}:{SFLG+3}], 0 offen sc1"]
        A("s_mov_b32 s85, 0")
        if dp:
            A(f"s_cmp_lg_u32 s{sQB}, 3", f"s_cbranch_scc1 L_poll{ps}")
            T.append("L_dp:")
            A(*base, f"buffer_load_dword v6, v1, s[{FW}:{FW+3}], 0 offen sc1")
            for i in range(16): ld(i)
            A("s_add_u32 s85, s85, 1", "s_waitcnt vmcnt(0)")
            A("v_max3_u32 v7, v16, v17, v18")
            for r in range(19, 79, 2): A(f"v_max3_u32 v7, v7, v{r}, v{r+1}")
            A("v_max_u32 v7, v7, v79", "v_cmp_eq_u32 vcc, -1, v7", "s_cbranch_vccz L_sum1")
            A(*[x.format("a") for x in pub8]); T.append("L_np8_a:")
            A("v_cmp_lt_u32 vcc, s87, v6", "s_cmp_eq_u32 vcc_lo, 0xff", f"s_cbranch_scc1 L_got{ps}",
              "s_cmp_lt_u32 s85, 0x20000", "s_cbranch_scc1 L_dp", "s_branch L_sum1")
        T.append(f"L_poll{ps}:")
        A(f"buffer_load_dword v6, v1, s[{FW}:{FW+3}], 0 offen sc1", "s_add_u32 s85, s85, 1", "s_waitcnt vmcnt(0)")
        if dp:
            A(*[x.format("b") for x in pub8]); T.append("L_np8_b:")
        A("v_cmp_lt_u32 vcc, s87, v6", "s_cmp_eq_u32 vcc_lo, 0xff", f"s_cbranch_scc1 L_got{ps}", "s_cmp_lt_u32 s85, 0x80000", f"s_cbranch_scc1 L_poll{ps}")
        T.append(f"L_got{ps}:")
        T += rstamp(cfg, 6)
        A(*base)
        for i in range(min(N, 16)): ld(i)
        if dp:
            assert N >= 16
            T.append("L_sum1:")
        A("s_lshl_b32 s89, s87, 7")
        acc = 80
        for i in range(16):
            A(f"s_waitcnt vmcnt({min(N, 16 - i) - 1})")
            if i + N < 16: ld(i + N)
            b = 16 + i * 4; pair = i & 1
            for e in range(4):
                lo, hi = acc + pair * 8 + 2 * e, acc + pair * 8 + 2 * e + 1
                if i < 2:
                    A(f"v_lshlrev_b32 v{lo}, 16, v{b+e}", f"v_and_b32 v{hi}, 0xffff0000, v{b+e}")
                else:
                    A(f"v_lshlrev_b32 v6, 16, v{b+e}", f"v_and_b32 v7, 0xffff0000, v{b+e}", f"v_add_f32 v{lo}, v{lo}, v6", f"v_add_f32 v{hi}, v{hi}, v7")
        for pair in range(2):
            a = acc + pair * 8
            for e in range(4): A(f"v_cvt_pk_bf16_f32 v{8+pair*4+e}, v{a+2*e}, v{a+2*e+1}")
        T += rstamp(cfg, 7)
        A("s_nop 1")
        for pair in range(2):
            d = 8 + pair * 4
            A(f"v_permlane16_swap_b32 v{d}, v{d+2}", f"v_permlane16_swap_b32 v{d+1}, v{d+3}")
            A(f"buffer_store_dwordx4 v[{d}:{d+3}], v4, s[{SOUT}:{SOUT+3}], s89 offen offset:{pair*64} {cfg.outflags}")
        if dp: A(*pub8[2:])
    return T

def fin(seq): return fix_hazards(insert_lgkm(order_gaps(seq)))

def header():
    ref = open("cdna_kernels/" + NAME + ".s.ref").read().splitlines()
    return [l for l in ref if l.startswith(";") and "@launch" not in l and "Override" not in l and "grid=ceil" not in l]

def srd(dst, lo, hi, nbytes):
    return [f"s_mov_b32 s{dst}, s{lo}", f"s_mov_b32 s{dst+1}, s{hi}", f"s_mov_b32 s{dst+2}, {nbytes}", f"s_mov_b32 s{dst+3}, 0x20000"]
def srd_off(dst, lo, hi, off, nbytes):
    return [f"s_add_u32 s{dst}, s{lo}, {off}", f"s_addc_u32 s{dst+1}, s{hi}, 0", f"s_mov_b32 s{dst+2}, {nbytes}", f"s_mov_b32 s{dst+3}, 0x20000"]

def main_kernel(cfg):
    T = []
    A = lambda *a: T.extend("    " + x for x in a)
    ST = lambda i: T.append(emit(stamp(cfg, i))) if cfg.stamps else None
    T += [".globl attn_main_kernel", ".p2align 8", ".type attn_main_kernel,@function", "attn_main_kernel:"]
    A("s_cmp_ge_u32 s2, 256", "s_cbranch_scc1 L_end")
    cal = cfg.cal_pro or cfg.cal_main or cfg.cal_end or cfg.cal_mid or cfg.probe >= 0
    def PR(k):
        if cfg.probe == k: A("s_memrealtime s[94:95]", "s_waitcnt lgkmcnt(0)")
    if cal: A("s_memrealtime s[100:101]")
    def CAL(us, lab):
        if not us: return
        T.append(f"{lab}:")
        A("s_memrealtime s[60:61]", "s_waitcnt lgkmcnt(0)", "s_sub_u32 s60, s60, s100", f"s_cmp_lt_u32 s60, {us*100}", f"s_cbranch_scc1 {lab}")
    A("s_load_dwordx8 s[72:79], s[0:1], 0", "s_load_dwordx8 s[80:87], s[0:1], 32", "s_load_dwordx4 s[88:91], s[0:1], 64",
      "s_load_dwordx2 s[92:93], s[0:1], 96", "s_load_dwordx4 s[96:99], s[0:1], 80")
    if cfg.mapping == 0:
        A("s_and_b32 s3, s2, 7", "s_lshr_b32 s4, s2, 3", "s_lshl_b32 s5, s3, 2", "s_lshr_b32 s6, s4, 3", "s_add_u32 s5, s5, s6",
          "s_and_b32 s6, s4, 7", f"s_and_b32 s{sROT}, s3, 3")
    elif cfg.mapping == 1:
        A("s_and_b32 s6, s2, 7", "s_lshr_b32 s5, s2, 3", f"s_and_b32 s{sROT}, s5, 3")
    elif cfg.mapping == 2:
        A("s_and_b32 s3, s2, 7", "s_lshr_b32 s4, s2, 3",
          "s_and_b32 s5, s4, 15", "s_and_b32 s6, s3, 4", "s_lshl_b32 s6, s6, 2", "s_add_u32 s5, s5, s6",
          "s_and_b32 s6, s3, 3", "s_lshl_b32 s6, s6, 1", "s_lshr_b32 s4, s4, 4", "s_add_u32 s6, s6, s4",
          f"s_and_b32 s{sROT}, s5, 3")
    elif cfg.mapping == 3:
        A("s_and_b32 s3, s2, 7", "s_lshr_b32 s4, s2, 3",
          "s_and_b32 s5, s4, 7", "s_and_b32 s6, s3, 6", "s_lshl_b32 s6, s6, 2", "s_add_u32 s5, s5, s6",
          "s_and_b32 s6, s3, 1", "s_lshl_b32 s6, s6, 2", "s_lshr_b32 s4, s4, 3", "s_add_u32 s6, s6, s4",
          f"s_and_b32 s{sROT}, s5, 3")
    if not cfg.rot: A(f"s_mov_b32 s{sROT}, 0")
    if cfg.rot == 5: A(f"s_and_b32 s{sROT}, s5, 1", f"s_lshl_b32 s{sROT}, s{sROT}, 1")
    if cfg.rot == 2: A(f"s_bfe_u32 s{sROT}, s5, 0x20002")
    if cfg.rot == 3: A(f"s_and_b32 s{sROT}, s5, 2")
    if cfg.rot == 4: A(f"s_or_b32 s{sROT}, s{sROT}, 2")
    A("s_and_b32 s7, s5, 15")
    tx = {0: ["s_mov_b32 s4, 0"], 1: ["s_mov_b32 s4, s6"], 2: ["s_lshr_b32 s4, s5, 2"], 3: ["s_lshr_b32 s4, s5, 2", "s_add_u32 s4, s4, s6"],
          4: ["s_xor_b32 s4, s5, s6"], 5: ["s_mul_i32 s4, s2, 0x9e3779b1", "s_lshr_b32 s4, s4, 29"], 6: ["s_lshr_b32 s4, s5, 2", "s_xor_b32 s4, s4, s6"]}[cfg.tx]
    A(*tx, "s_and_b32 s4, s4, 7", "s_lshl_b32 s4, s4, 14")
    A("v_lshrrev_b32 v1, 6, v0", "v_and_b32 v0, 63, v0", f"v_readfirstlane_b32 s{sW}, v1")
    A(f"v_lshlrev_b32 v{vLane}, 4, v0")
    A("s_waitcnt lgkmcnt(0)")
    A("s_cmp_ge_u32 s5, 16")
    for k in range(5):
        A(f"s_cselect_b32 s{72+2*k}, s{82+2*k}, s{72+2*k}", f"s_cselect_b32 s{73+2*k}, s{83+2*k}, s{73+2*k}")
    A("s_lshl_b32 s56, s7, 22", "s_lshl_b32 s57, s6, 19", "s_add_u32 s56, s56, s57")
    A(*srd_off(SK, 74, 75, "s56", 524288)); A(*srd_off(SV, 76, 77, "s56", 524288))
    A("s_lshl_b32 s56, s6, 10")
    A(*srd_off(SWQ, 78, 79, "s56", 0), f"s_sub_u32 s{SWQ+2}, 0x400000, s56")
    A(*srd_off(SWO, 80, 81, "s57", 524288))
    A("s_lshl_b32 s56, s7, 17"); A(*srd_off(SX, 72, 73, "s56", 131072))
    A("s_lshl_b32 s56, s5, 21", "s_add_u32 s56, s56, 0x100000"); A(*srd_off(SPART, 92, 93, "s56", 1 << 20))
    if cfg.fused:
        A("s_lshl_b32 s56, s5, 3"); A(*srd_off(SDBG, 98, 99, "s56", 4))
        A("s_lshl_b32 s56, s7, 18", "s_lshl_b32 s57, s6, 15", "s_add_u32 s56, s56, s57", "s_lshr_b32 s57, s5, 4", "s_lshl_b32 s57, s57, 10",
          "s_add_u32 s56, s56, s57")
        A(*srd_off(SOUT, 96, 97, "s56", 0), f"s_sub_u32 s{SOUT+2}, 0x400000, s56")
    if cfg.nokv: A(f"s_mov_b32 s{SK+2}, 0", f"s_mov_b32 s{SV+2}, 0")
    if cfg.nowq: A(f"s_mov_b32 s{SWQ+2}, 0")
    if cfg.nowo: A(f"s_mov_b32 s{SWO+2}, 0")
    if cfg.nops: A(f"s_mov_b32 s{SPART+2}, 0")
    if cfg.stamps:
        A(*srd_off(64, 92, 93, WS_BYTES - (1 << 20), 1 << 20))
        A(f"s_lshr_b32 s68, s{sW}, 2", "s_lshl_b32 s68, s68, 7", "s_lshl_b32 s69, s2, 8", "s_add_u32 s68, s68, s69",
          f"s_and_b32 s69, s{sW}, 3", f"s_cmp_lg_u32 s69, {cfg.stw}", f"s_cselect_b32 s68, {OOB}, s68")
    A(f"s_and_b32 s{sQB}, s{sW}, 3", f"s_lshl_b32 s{sM0}, s{sQB}, 10")
    A(f"s_lshl_b32 s{sCol}, s{sROT}, 17")
    ST(0)
    A("v_and_b32 v1, 15, v0", "v_lshrrev_b32 v2, 4, v0", "v_lshrrev_b32 v3, 2, v1", "v_and_b32 v4, 3, v0")
    def lc16():
        A("v_lshrrev_b32 v5, 3, v0", "v_bfe_u32 v6, v0, 4, 1", f"s_and_b32 s{sT}, s{sQB}, 1", f"s_lshl_b32 s{sT}, s{sT}, 1",
          f"v_or_b32 v6, s{sT}, v6", "v_lshlrev_b32 v6, 1, v6", "v_and_b32 v7, 7, v0", "v_xor_b32 v6, v6, v7", "v_lshlrev_b32 v6, 4, v6")
    def wo_voff():
        lc16()
        A("v_and_b32 v7, 3, v5", "v_lshrrev_b32 v5, 2, v5", "v_lshl_add_u32 v7, v5, 4, v7",
          f"s_lshl_b32 s{sT}, s{sQB}, 2", f"v_add_u32 v7, s{sT}, v7", f"v_lshl_add_u32 v{vWo}, v7, 10, v6")
    def kv_voff():
        A(f"s_lshl_b32 s{sT}, s{sQB}, 2", f"v_add_u32 v5, s{sT}, v2",
          "v_xor_b32 v6, v5, v1", "v_lshlrev_b32 v6, 4, v6",
          *{0: [f"s_lshl_b32 s{sT}, s{sQB}, 4"], 1: [f"s_lshl_b32 s{sT}, s{sQB}, 7"],
            2: [f"s_and_b32 s{sT}, s{sQB}, 1", f"s_lshl_b32 s{sT}, s{sT}, 4", f"s_lshr_b32 s56, s{sQB}, 1", "s_lshl_b32 s56, s56, 8", f"s_add_u32 s{sT}, s{sT}, s56"]}[cfg.kperm],
          f"v_add_u32 v7, s{sT}, v2", "v_lshlrev_b32 v7, 8, v7",
          f"v_add_u32 v{vKo}, v7, v6",
          "v_and_b32 v5, 7, v5", "v_lshlrev_b32 v5, 1, v5", "v_xor_b32 v6, v5, v1", "v_lshlrev_b32 v6, 4, v6", f"v_add_u32 v{vVo}, v7, v6")
    def wq_voff():
        lc16()
        A(f"s_lshl_b32 s{sT}, s{sQB}, 3", f"v_add_u32 v7, s{sT}, v5", f"v_lshl_add_u32 v{vWq}, v7, 13, v6")
    A(f"s_lshl_b32 s{sWc}, s{sROT}, 8")
    if cfg.krot == 1:
        A("s_lshr_b32 s56, s7, 2", "s_lshl_b32 s56, s56, 1", "s_lshl_b32 s57, s6, 2", "s_add_u32 s56, s56, s57",
          "s_bfe_u32 s57, s6, 0x10001", "s_add_u32 s56, s56, s57", "s_and_b32 s56, s56, 7")
    elif cfg.krot == 2:
        A(f"s_lshl_b32 s56, s{sROT}, 1", "s_lshr_b32 s57, s5, 4", "s_add_u32 s56, s56, s57")
    elif cfg.krot == 3:
        A(f"s_lshl_b32 s56, s{sROT}, 1", "s_lshr_b32 s57, s5, 4", "s_add_u32 s56, s56, s57", "s_add_u32 s56, s56, 4", "s_and_b32 s56, s56, 7")
    elif cfg.krot == 5:
        A("s_lshr_b32 s56, s7, 1", "s_add_u32 s56, s56, s6", "s_and_b32 s56, s56, 3", "s_lshl_b32 s56, s56, 1")
    elif cfg.krot == 6:
        A("s_lshl_b32 s56, s6, 1", "s_add_u32 s56, s56, s7", "s_and_b32 s56, s56, 7")
    elif cfg.krot == 4:
        A("s_and_b32 s56, s7, 7")
    else:
        A("s_mov_b32 s56, 0")
    A(f"s_lshl_b32 s{sKR}, s56, 7", "s_lshl_b32 s56, s56, 19", f"s_add_u32 s{sWc}, s{sWc}, s56")
    A(f"s_cmp_ge_u32 s{sW}, 4", "s_cbranch_scc1 L_P")
    wq_voff()
    A("v_lshrrev_b32 v5, 3, v0", "v_and_b32 v6, 7, v0", "v_xor_b32 v6, v6, v2", "v_lshlrev_b32 v6, 4, v6",
      f"s_lshl_b32 s{sT}, s{sQB}, 5", f"v_add_u32 v5, s{sT}, v5", f"v_lshl_add_u32 v{vXo}, v5, 10, v6")
    A(f"s_lshl_b32 s{sX16}, s{sQB}, 12")
    first, rest = a_prologue(cfg)
    T.append(emit(fin(first)))
    kv_voff()
    T.append(emit(fin(rest)))
    wo_voff()
    A(f"v_mov_b32 v{vWoA}, v{vWo}")
    if cfg.fused:
        A("s_lshl_b32 s56, s5, 2", "s_lshr_b32 s58, s6, 1", "s_add_u32 s56, s56, s58", "s_lshl_b32 s56, s56, 10", f"s_add_u32 s56, s56, {FLG}")
        A(*srd_off(SFLG, 92, 93, "s56", 1024))
    if cfg.prioA: A(f"s_setprio {cfg.prioA}")
    A(f"s_mov_b32 s{sBND}, 0x{f2u(1e-30 if cfg.force_fb else float(1 << 20)):x}")
    for s in range(4):
        A(f"v_add_u32 v5, {4*s}, v2", "v_xor_b32 v5, v5, v1", "v_lshlrev_b32 v5, 4, v5", f"v_lshl_add_u32 v{aK+s}, v1, 8, v5")
    A("v_and_b32 v5, 1, v2", "v_lshl_add_u32 v5, v5, 2, v3",
      "v_lshl_add_u32 v6, v2, 2, v3", "v_lshlrev_b32 v6, 8, v6", "v_lshl_add_u32 v6, v4, 3, v6")
    for dt in range(8):
        A(f"v_xor_b32 v7, {dt}, v5", f"v_lshl_add_u32 v{aV+dt}, v7, 5, v6")
    A(f"s_lshl_b32 s57, s{sQB}, 13", f"s_add_u32 s{sT}, s57, {YB}", f"v_add_u32 v{aQ}, s{sT}, v{vLane}")
    A("s_waitcnt vmcnt(12)", "s_barrier")
    segs = split_segments(fin(a_stream(cfg)))
    txt = [emit(s) for s in segs]
    E = lambda n: 2 + 2 * n
    for k in range(E(2), E(32) - 16):
        assert txt[k] == txt[k + 16], k
    ST(1)
    CAL(cfg.cal_pro, "L_cal1")
    PR(0)
    if cfg.sser:
        for sgm in txt[:E(2)]:
            L = [i for i in stamp(cfg, 0) if "v[6:7]" not in i.t and i.k != "lgkm0"]
            L.insert(2, raw("s_waitcnt lgkmcnt(0)"))
            T.append(emit(L)); A("s_add_u32 s68, s68, 8")
            T.append(sgm)
        T.append(emit([i for i in stamp(cfg, 0) if "v[6:7]" not in i.t])); A(f"s_mov_b32 s68, {OOB}")
    else:
        T += txt[:E(2)]
    A(f"s_mov_b32 s{sCNT}, 0")
    T.append("L_Aloop:")
    A(f"s_cmp_lt_u32 s{sCNT}, 2", f"s_cselect_b32 s{sT}, 2, 1", f"s_lshl_b32 s{sT}, s{sT}, 16", f"s_add_u32 s{sT}, s{sT}, s57", f"v_add_u32 v{aQ}, s{sT}, v{vLane}",
      f"v_mov_b32 v{aO}, v{aQ}", f"s_cmp_eq_u32 s{sCNT}, 0", "s_cbranch_scc0 L_Ao",
      f"v_add_u32 v{aO}, {XB - YB}, v{aO}")
    T.append("L_Ao:")
    if 1 <= cfg.probe <= 3:
        A(f"s_cmp_lg_u32 s{sCNT}, {cfg.probe}", "s_cbranch_scc1 L_nopr")
        PR(cfg.probe)
        T.append("L_nopr:")
    if cfg.cal_mid:
        A(f"s_cmp_lg_u32 s{sCNT}, 2", "s_cbranch_scc1 L_nocal")
        CAL(cfg.cal_mid, "L_cal4")
        T.append("L_nocal:")
    def sst():
        if cfg.series:
            L = [i for i in stamp(cfg, 0) if "v[6:7]" not in i.t]
            T.append(emit(L)); A("s_add_u32 s68, s68, 8")
    sst(); T += txt[E(2):E(4)]
    sst(); T += txt[E(4):E(6)]
    sst(); T += txt[E(6):E(8)]
    sst()
    A(f"s_cmp_eq_u32 s{sCNT}, 3", "s_cbranch_scc1 L_Atail")
    T += txt[E(8):E(10)]
    A(f"s_add_u32 s{sCNT}, s{sCNT}, 1", "s_branch L_Aloop")
    T.append("L_Atail:")
    A(f"v_add_u32 v{aO}, {VB0 - WB0}, v{aO}")
    if cfg.series: A(f"s_mov_b32 s68, {OOB}")
    T += txt[E(32):]
    CAL(cfg.cal_main, "L_cal2")
    PR(4)
    if not cfg.bstamp: ST(2)
    T.append(emit(fin(a_tail(cfg))))
    if cfg.fused:
        T += a_reduce(cfg, 0)
    PR(5)
    if cfg.probe >= 0:
        A("s_sub_u32 s94, s94, s100", "s_add_u32 s94, s94, 10000")
        T.append("L_prh:")
        A("s_memrealtime s[60:61]", "s_waitcnt lgkmcnt(0)", "s_sub_u32 s60, s60, s100", "s_cmp_lt_u32 s60, s94", "s_cbranch_scc1 L_prh")
    if cfg.cal_wg >= 0: A(f"s_cmp_lg_u32 s2, {cfg.cal_wg}", "s_cbranch_scc1 L_end")
    CAL(cfg.cal_end, "L_cal3")
    ST(3)
    A("s_endpgm")
    T.append("L_P:")
    if cfg.codepf:
        A("s_getpc_b64 s[70:71]")
        T.append("L_pc:")
        A("s_sub_u32 s70, s70, L_pc-attn_main_kernel", "s_subb_u32 s71, s71, 0")
        A(f"s_cmp_ge_u32 s{sQB}, 2", "s_cbranch_scc1 L_nopf")
        A("s_lshr_b32 s56, s2, 3", "s_lshl_b32 s56, s56, 11", f"s_add_u32 s56, s56, s{sM0}",
          "s_min_u32 s56, s56, L_cold-attn_main_kernel-1024", f"v_add_u32 v5, s56, v{vLane}",
          f"global_load_dwordx4 v[{FR(0)}:{FR(0)+3}], v5, s[70:71]")
        T.append("L_nopf:")
    if cfg.h1touch:
        if cfg.h1touch == 1: A(f"s_cmp_lg_u32 s{sQB}, 2", "s_cbranch_scc1 L_noh1", "s_mov_b32 s57, 256")
        else: A(f"s_lshl_b32 s57, s{sQB}, 8")
        A("v_lshrrev_b32 v5, 1, v0", "v_lshlrev_b32 v5, 13, v5", "v_and_b32 v6, 1, v0", "v_lshl_add_u32 v5, v6, 7, v5",
          "s_lshl_b32 s56, s7, 18", "s_add_u32 s56, s56, s57", f"buffer_load_dword v241, v5, s[{SWQ}:{SWQ+3}], s56 offen")
        T.append("L_noh1:")
    if cfg.fused:
        A("s_lshl_b32 s56, s5, 12", "s_lshl_b32 s57, s6, 7", "s_add_u32 s56, s56, s57", f"s_add_u32 s56, s56, {FLG}")
        A(*srd_off(SFLG, 92, 93, "s56", 3076))
        A(f"s_cmp_lg_u32 s{sQB}, 3", "s_cbranch_scc1 L_norst")
        A("v_mov_b32 v5, 0", "v_lshlrev_b32 v6, 10, v0", f"buffer_store_dword v5, v6, s[{SFLG}:{SFLG+3}], 0 offen sc1")
        T.append("L_norst:")
        if cfg.dpoll:
            A("v_mov_b32 v8, -1", "v_mov_b32 v9, -1", "v_mov_b32 v10, -1", "v_mov_b32 v11, -1",
              "s_lshl_b32 s56, s6, 14", f"s_lshl_b32 s57, s{sQB}, 12", "s_add_u32 s56, s56, s57", f"s_add_u32 s56, s56, {7 * 131072}")
            for i in range(4): A(f"buffer_store_dwordx4 v[8:11], v{vLane}, s[{SPART}:{SPART+3}], s56 offen offset:{i*1024} sc1")
    A(f"s_lshl_b32 s{sX16}, s{sQB}, 12")
    A("v_bfe_u32 v5, v1, 1, 2", "v_xor_b32 v5, v5, v2", "v_lshlrev_b32 v5, 4, v5", "v_lshl_add_u32 v5, v1, 7, v5",
      f"v_add_u32 v{aX}, s{sX16}, v5", f"v_add_u32 v{aX+1}, {WB0}, v{aX}", f"v_add_u32 v{aX+2}, {YB}, v{aX}")
    wq_voff()
    A(f"s_add_u32 s{sWc}, s{sWc}, 256", f"s_and_b32 s{sWc}, s{sWc}, 0x3803ff", f"s_add_u32 s{sWm0}, s{sM0}, {WB0}", f"s_mov_b32 s{sWn}, 2")
    A("v_lshrrev_b32 v5, 1, v3", "v_and_b32 v6, 1, v2", "v_lshl_add_u32 v5, v6, 1, v5",
      "v_lshl_add_u32 v6, v2, 3, v3", "v_lshlrev_b32 v6, 7, v6", "v_lshl_add_u32 v6, v4, 3, v6")
    for mt in range(4):
        A(f"v_xor_b32 v7, {mt}, v5", f"v_lshl_add_u32 v{aW2+mt}, v7, 5, v6", f"v_add_u32 v{aW+mt}, {WB0}, v{aW2+mt}",
          f"v_add_u32 v{aW3+mt}, {YB}, v{aW2+mt}")
    kv_voff()
    A("v_lshrrev_b32 v5, 1, v2", "v_lshlrev_b32 v5, 8, v5", "v_lshl_add_u32 v5, v1, 4, v5", "v_and_b32 v6, 1, v2", "v_lshl_add_u32 v5, v6, 3, v5",
      f"s_lshl_b32 s{sT}, s{sQB}, 13", f"s_add_u32 s{sT}, s{sT}, {YB}", f"v_add_u32 v{aQw}, s{sT}, v5")
    wo_voff()
    A(f"s_mov_b32 s{sSCL}, 0x{f2u(math.log2(math.e) / math.sqrt(128.0)):x}")
    A(f"s_mov_b32 s{sKn}, -1", f"s_mov_b32 s{sVn}, -2",
      f"s_add_u32 s{sKo}, s{sCol}, 16384",
      f"s_mov_b32 s{sVo}, s{sCol}")
    A(f"s_mov_b32 s{sCNT}, 2", "s_waitcnt vmcnt(0)")
    if cfg.fused:
        A("s_bfe_u32 s85, s2, 0x20003", "s_add_u32 s85, s85, 3", f"s_cmp_eq_u32 s{sQB}, 3", "s_cselect_b32 s85, s85, 99")
        A(f"s_lshl_b32 s56, s{sQB}, 10", f"s_add_u32 s{SFLG}, s{SFLG}, s56", f"s_addc_u32 s{SFLG+1}, s{SFLG+1}, 0", f"s_mov_b32 s{SFLG+2}, 4")
    T.append(emit(fin(p_prologue(cfg))))
    ST(1)
    A(f"v_lshlrev_b32 v{vXo}, 7, v0")
    if cfg.slowmask >= 0: A(f"s_mov_b32 s86, {cfg.slowmask}", f"s_mov_b32 s87, {cfg.slowmask2 if cfg.slowmask2 >= 0 else cfg.slowmask}")
    if cfg.prioM: A(f"s_setprio {cfg.prioM}")
    A("s_branch L_Pgo")
    T.append("L_Ploop:")
    if cfg.fused:
        A(f"s_cmp_lg_u32 s{sCNT}, s85", "s_cbranch_scc1 L_nohs")
        A("v_mov_b32 v5, 1", f"buffer_atomic_add v5, v{vLane}, s[{SDBG}:{SDBG+3}], 0 offen sc1")
        T.append("L_nohs:")
    if cfg.wopf:
        if cfg.pfmode == 0: A(f"s_add_u32 s56, s{sQB}, 4")
        elif cfg.pfmode == 1: A(f"s_and_b32 s56, s{sQB}, 2", "s_add_u32 s56, s56, 4")
        elif cfg.pfmode == 2: A("s_mov_b32 s56, 6")
        A(f"s_cmp_lg_u32 s{sCNT}, s56", "s_cbranch_scc1 L_nowopf")
        A("s_lshl_b32 s56, s7, 15", f"s_lshl_b32 s57, s{sQB}, 13", "s_add_u32 s56, s56, s57",
          f"buffer_load_dword v{vFlag}, v{vXo}, s[{SWO}:{SWO+3}], s56 offen")
        T.append("L_nowopf:")
    if cfg.codepf:
        A(f"s_lshl_b32 s56, s{sQB}, 4", f"s_add_u32 s56, s56, s{sCNT}", f"s_cmp_lg_u32 s56, {6 if cfg.pfmode else 7}", "s_cbranch_scc1 L_nocpf")
        A("s_bfe_u32 s56, s2, 0x30003", "s_lshl_b32 s56, s56, 13", "s_min_u32 s56, s56, L_cold-attn_main_kernel-8192",
          f"v_add_u32 v5, s56, v{vXo}", "global_load_dword v241, v5, s[70:71]")
        T.append("L_nocpf:")
    a0, b0 = p_phase(cfg, 0)
    T.append(emit(fin(a0)))
    if cfg.nobnd & 4: A("s_waitcnt lgkmcnt(0)", "s_branch L_Pgo")
    A(f"s_bitcmp1_b32 s{sCNT}, 0", "s_cbranch_scc0 L_Pwr")
    T.append(emit(fin([raw("s_nop 1")] + q_pack(HLD) + [lgkm0()])))
    A("s_branch L_Pgo")
    T.append("L_Pwr:")
    pk, st = q_pack(TMP), q_store(TMP, 1)
    wr = q_store(HLD, 0)
    for k in range(8): wr += pk[6 * k:6 * k + 6] + ([st[k - 1]] if k else [])
    T.append(emit(fin(wr + [st[7], lgkm0()])))
    T.append("L_Pgo:")
    body = list(b0)
    for ph in range(1, 8):
        a, b = p_phase(cfg, ph)
        body += a + b
    T.append(emit(fin(body)))
    A(f"s_add_u32 s{sCNT}, s{sCNT}, 1", f"s_cmp_lt_u32 s{sCNT}, 8", "s_cbranch_scc1 L_Ploop")
    for mt in range(4): A(f"v_add_u32 v{aW+mt}, {XB}, v{aW2+mt}", f"v_add_u32 v{aW3+mt}, {WB0}, v{aW2+mt}")
    A("s_lshl_b32 s58, s6, 14", f"s_lshl_b32 s{sPo}, s{sQB}, 12", f"s_add_u32 s{sPo}, s{sPo}, s58")
    if cfg.prioP: A(f"s_setprio {cfg.prioP}")
    T.append(emit(fin([raw("s_nop 7")] + p_tail(cfg))))
    if cfg.fused:
        A("s_lshl_b32 s56, s5, 2", "s_lshr_b32 s58, s6, 1", "s_add_u32 s56, s56, s58", "s_lshl_b32 s56, s56, 10", f"s_add_u32 s56, s56, {FLG}")
        A(*srd_off(SX if cfg.dpoll else SFLG, 92, 93, "s56", 1024))
        T += a_reduce(cfg, 1)
    ST(3)
    A("s_endpgm")
    T.append("L_cold:")
    variants = {}
    for name, key in SITES.items():
        variants.setdefault(key, f"L_fbr_{key[0]}_{key[1]}_{int(key[2])}")
        T.append(f"L_fb_{name}:")
        A(f"s_call_b64 s[{sRET}:{sRET+1}], {variants[key]}", f"s_branch L_ret_{name}")
    for key, lab in variants.items():
        T.append(f"{lab}:")
        T.append(emit(fallback(*key)))
    T.append("L_end:")
    A("s_endpgm")
    return T

def reduce_kernel(cfg):
    T = []
    A = lambda *a: T.extend("    " + x for x in a)
    T += [".globl attn_reduce_kernel", ".p2align 8", ".type attn_reduce_kernel,@function", "attn_reduce_kernel:"]
    A("s_cmp_ge_u32 s2, 256", "s_cbranch_scc1 L_rend")
    if cfg.stamps: A("s_memrealtime s[40:41]")
    A("s_load_dwordx2 s[4:5], s[0:1], 80", "s_load_dwordx2 s[6:7], s[0:1], 96")
    A("s_lshr_b32 s18, s2, 3", "s_and_b32 s19, s2, 7")
    A("s_lshl_b32 s20, s18, 21", "s_lshl_b32 s21, s19, 17", "s_add_u32 s20, s20, s21", "s_add_u32 s20, s20, 0x100000")
    A("v_lshrrev_b32 v1, 6, v0", "v_and_b32 v2, 63, v0", "v_lshlrev_b32 v3, 4, v2", "v_lshl_add_u32 v3, v1, 11, v3")
    A("s_waitcnt lgkmcnt(0)")
    A(*srd_off(8, 6, 7, "s20", 131072))
    for src in range(8):
        A(f"s_mov_b32 s22, {src*16384}")
        for pair in range(2):
            b = 16 + (src * 2 + pair) * 4
            A(f"buffer_load_dwordx4 v[{b}:{b+3}], v3, s[8:11], s22 offen offset:{pair*1024} {cfg.rflags}")
    A(*srd(12, 4, 5, 1 << 22))
    A("s_and_b32 s23, s18, 15", "s_lshl_b32 s23, s23, 18", "s_lshr_b32 s24, s18, 4", "s_lshl_b32 s24, s24, 10", "s_add_u32 s23, s23, s24",
      "s_lshl_b32 s24, s19, 7", "s_add_u32 s23, s23, s24")
    A("v_and_b32 v4, 15, v2", "v_lshl_add_u32 v4, v1, 4, v4", "v_lshlrev_b32 v4, 11, v4",
      "v_bfe_u32 v5, v2, 4, 1", "v_lshl_add_u32 v4, v5, 5, v4", "v_lshrrev_b32 v5, 5, v2", "v_lshl_add_u32 v4, v5, 4, v4")
    acc = 80
    for src in range(8):
        A(f"s_waitcnt vmcnt({(7-src)*2})")
        for pair in range(2):
            b = 16 + (src * 2 + pair) * 4
            for i in range(4):
                lo, hi = acc + pair * 8 + 2 * i, acc + pair * 8 + 2 * i + 1
                if src == 0:
                    A(f"v_lshlrev_b32 v{lo}, 16, v{b+i}", f"v_and_b32 v{hi}, 0xffff0000, v{b+i}")
                else:
                    A(f"v_lshlrev_b32 v6, 16, v{b+i}", f"v_and_b32 v7, 0xffff0000, v{b+i}", f"v_add_f32 v{lo}, v{lo}, v6", f"v_add_f32 v{hi}, v{hi}, v7")
    for pair in range(2):
        a = acc + pair * 8
        for i in range(4): A(f"v_cvt_pk_bf16_f32 v{16+pair*4+i}, v{a+2*i}, v{a+2*i+1}")
    A("s_nop 1")
    for pair in range(2):
        d = 16 + pair * 4
        A(f"v_permlane16_swap_b32 v{d}, v{d+2}", f"v_permlane16_swap_b32 v{d+1}, v{d+3}")
        A(f"buffer_store_dwordx4 v[{d}:{d+3}], v4, s[12:15], s23 offen offset:{pair*64} {cfg.outflags}")
    if cfg.stamps and not cfg.series:
        A("s_waitcnt vmcnt(0)", "s_memrealtime s[42:43]", "s_waitcnt lgkmcnt(0)")
        A(*srd_off(8, 6, 7, WS_BYTES - (1 << 20), 1 << 20))
        A("s_lshl_b32 s22, s2, 8", "v_mov_b32 v4, s40", "v_mov_b32 v5, s41", "v_mov_b32 v6, s42", "v_mov_b32 v7, s43",
          "v_cmp_eq_u32 vcc, 0, v0", "s_and_saveexec_b64 s[34:35], vcc", "s_cbranch_execz L_rend",
          "buffer_store_dwordx4 v[4:7], v0, s[8:11], s22 offen offset:32")
    T.append("L_rend:")
    A("s_endpgm")
    return T

def kd(name, vgpr, sgpr):
    return [".p2align 6", f".amdhsa_kernel {name}", f"  .amdhsa_next_free_vgpr {vgpr}", f"  .amdhsa_next_free_sgpr {sgpr}",
            f"  .amdhsa_accum_offset {(vgpr+3)//4*4}", "  .amdhsa_group_segment_fixed_size 0", "  .amdhsa_kernarg_size 104",
            "  .amdhsa_user_sgpr_count 2", "  .amdhsa_user_sgpr_kernarg_segment_ptr 1", "  .amdhsa_system_sgpr_workgroup_id_x 1",
            ".end_amdhsa_kernel"]

def generate(cfg, path):
    SITES.clear()
    KPERM[0] = cfg.kperm
    T = header()
    if cfg.fused:
        T += ["; @launch grid=(256,1,1) block=(512,1,1) lds=163840"]
    else:
        T += ["; @launch kernel=attn_main_kernel grid=(256,1,1) block=(512,1,1) lds=163840",
              "; @launch kernel=attn_reduce_kernel grid=(256,1,1) block=(512,1,1) lds=0"]
    T += ['.amdgcn_target "amdgcn-amd-amdhsa--gfx950"', ".text"]
    T += main_kernel(cfg)
    if not cfg.fused: T += reduce_kernel(cfg)
    T += ['.section .rodata,"a"'] + kd("attn_main_kernel", 256, 102)
    if not cfg.fused: T += kd("attn_reduce_kernel", 96, 48)
    txt = "\n".join(T) + "\n"
    if cfg.fused: txt = txt.replace("attn_main_kernel", NAME + "_kernel")
    open(path, "w").write(txt)

if __name__ == "__main__":
    cfg = Cfg()
    out = "k.s"
    for a in sys.argv[1:]:
        if "=" in a:
            k, v = a.split("=", 1)
            cur = getattr(cfg, k)
            setattr(cfg, k, (v not in ("0", "False")) if isinstance(cur, bool) else type(cur)(v))
        else:
            out = a
    generate(cfg, out)
```

```python
import sys, math, struct
from asmlib import *

NAME = "concat_heads__mha_block_cached__mha_block_cached__near_ridge"
WS_BYTES = 289406976
def f2u(x): return struct.unpack("<I", struct.pack("<f", x))[0]

KB0, VB0, WB0, XB, YB = 0, 32768, 65536, 98304, 131072
DROP = 0x30000
OOB = 0x40000000
SK, SV, SWQ, SWO, SX, SPART = 8, 12, 16, 20, 24, 32
sW, sQB, sCNT, sBND, sSCL, sKo, sVo, sWc, sT, sM0, sWm0, sRET = 36, 37, 38, 39, 40, 41, 42, 43, 44, 45, 46, 48
sPo, sCol, sPo1, sX16, sROT, sKn, sVn, sWn, sKs, sVs = 50, 51, 52, 53, 59, 28, 29, 30, 54, 55
sFm0 = 31
sKVm0 = 47
sTX = 4
SFLG, SDBG, SOUT = 72, 76, 80
sFv = 84
vFlag = 240
FLG = 0x4800000
aW3 = 248
aX = 253
vWoA = 253
def Qf(s, qs): return 8 + (s * 2 + qs) * 4
def Oa(dt, qs): return 40 + (dt * 2 + qs) * 4
def Sr(n, kt, qs):
    if kt < 2: return 104 + (kt * 2 + qs) * 4
    return 120 + (n & 1) * 16 + ((kt - 2) * 2 + qs) * 4
def Pf(n, u, qs):
    if u == 0: return 152 + (n & 1) * 8 + qs * 4
    return 168 + qs * 4
def NM(qs): return 176 + qs * 4
def FR(f): return 184 + (f & 7) * 4
TMP = 216
vL, vLS, vTS = 232, 234, 236
aK, aV, aQ, aO, vLane = 238, 242, 250, 251, 252
def Bf(s, qs): return 8 + (s * 2 + qs) * 4
def Ac(mt, qs): return 136 + (mt * 2 + qs) * 4
HLD = 168
aW, aW2, vKo, vVo, vWq, vWo, aQw, vXo = 232, 236, 242, 243, 244, 245, 246, 247

BAR_IDX = 19

class Cfg:
    stamps = False
    kvflags = "nt"
    wflags = ""
    pflags = "sc1"
    xflags = ""
    woflags = ""
    rflags = ""
    outflags = ""
    force_fb = False
    mapping = 2
    rot = 1
    codepf = True
    wopf = True
    prioA = 0
    cal_pro = 0
    cal_main = 0
    cal_end = 0
    cal_mid = 0
    cal_wg = -1
    probe = -1
    fused = True
    lastbar = 26
    flagc = 0
    flaglag = 5
    ne = 3
    kvfirst = False
    tfast = 99
    dpoll = False
    pubs = "23:4"
    pfmode = 0
    nobnd = 0
    xb1 = 7
    xb2 = 13
    sser = False
    rn1 = 4
    rn2 = 16
    kperm = 0
    h1touch = 0
    slowmask = 0xfc
    pvmfast = 6
    slowph = 0xff
    slowmask2 = 0x60
    tx = 0
    avoid = True
    minlead = 3
    kvpos = ""
    tlead = 1
    tlate = 3
    pvm = 5
    kvlate = 0
    psplit = 6
    pspread = True
    half = 7
    ktouch = 0
    tflags = ""
    thead = 2
    bstamp = False
    midbar = 17
    aper = 2
    pubfrom = 22
    stw = 0
    pfbody = 7
    order = "AFHTFFFF"
    pdup = 0
    plead = 2
    pwflags = ""
    krot = 0
    series = False
    prioM = 0
    ppace = 0
    nopm = False
    nodma = False
    noav = False
    barq = 19
    barp = 23
    locap = 2
    pf0 = 28
    fbar = 1
    fwait = 2
    fburst = 1
    prioP = 0
    nokv = False
    nowq = False
    nowo = False
    nops = False

def stamp(cfg, idx):
    if not cfg.stamps: return []
    return [S("s_memrealtime s[60:61]"), S("s_memtime s[94:95]"), raw("s_waitcnt lgkmcnt(0)", "lgkm0"),
            raw("v_mov_b32 v2, s60"), raw("v_mov_b32 v3, s61"), raw("v_mov_b32 v4, 0"),
            raw("v_mov_b32 v6, s94"), raw("v_mov_b32 v7, s95"),
            raw("s_mov_b64 s[62:63], exec"), raw("s_mov_b64 exec, 1"),
            raw(f"buffer_store_dwordx2 v[2:3], v4, s[64:67], s68 offen offset:{idx*8}"),
            raw(f"buffer_store_dwordx2 v[6:7], v4, s[64:67], s68 offen offset:{idx*8+64}"),
            raw("s_mov_b64 exec, s[62:63]")]

def softmax_part(n, part):
    L = []
    for qs in range(2):
        for k in range(2):
            s = Sr(n, 2 * part + k, qs)
            e = [TMP + k * 4 + i for i in range(4)]
            for i in range(4): L.append(vexp(e[i], s + i))
            if k == 0:
                L.append(valu("v_add_f32", vTS + qs, e[0], e[1]))
            else:
                L.append(valu("v_add_f32", vTS + qs, vTS + qs, e[0]))
                L.append(valu("v_add_f32", vTS + qs, vTS + qs, e[1]))
            L.append(cvtpk(Pf(n, part, qs) + 2 * k, e[0], e[1]))
            L.append(valu("v_add_f32", vTS + qs, vTS + qs, e[2]))
            L.append(valu("v_add_f32", vTS + qs, vTS + qs, e[3]))
            L.append(cvtpk(Pf(n, part, qs) + 2 * k + 1, e[2], e[3]))
    return L

def l_update(n, part):
    t = n & 7
    if t == 0 and part == 0:
        return [valu("v_mov_b32", vL + qs, vTS + qs) for qs in range(2)]
    if t == 7 and part == 1:
        return [valu("v_add_f32", vLS + qs, vL + qs, vTS + qs) for qs in range(2)]
    return [valu("v_add_f32", vL + qs, vL + qs, vTS + qs) for qs in range(2)]

SITES = {}
def check_pre(n):
    if (n & 7) == 0: return []
    return [valu("v_max_f32", TMP + 8, vTS, vTS + 1), I(f"v_cmp_lt_f32 vcc, s{sBND}, v{TMP+8}", "valu", (), {TMP + 8})]
def check(n, part, sfx):
    t = n & 7
    if t == 0: return []
    name = f"{sfx}{t}_{part}"
    SITES[name] = (n & 1, part, t == 7)
    return [raw(f"s_cbranch_vccnz L_fb_{name}"), label(f"L_ret_{name}")]

def xgroup(op, x, t):
    return [valu("v_mov_b32", t, x), swap32(t, x), valu(op, x, x, t),
            valu("v_mov_b32", t, x), swap16(t, x), valu(op, x, x, t)]

def rowmax(dst, srcs):
    L = [valu("v_max3_f32", dst, srcs[0], srcs[1], srcs[2])]
    rest = srcs[3:]
    while len(rest) >= 2:
        L.append(valu("v_max3_f32", dst, dst, rest[0], rest[1])); rest = rest[2:]
    if rest: L.append(valu("v_max_f32", dst, dst, rest[0]))
    return L

def zipl(a, b):
    out = []
    for i in range(max(len(a), len(b))):
        if i < len(a): out.append(a[i])
        if i < len(b): out.append(b[i])
    return out

def first_tile_max(n):
    per = []
    for qs in range(2):
        m, t = TMP + 8 + qs, TMP + 10 + qs
        srcs = [Sr(n, kt, qs) + i for kt in range(4) for i in range(4)]
        L = rowmax(m, srcs) + xgroup("v_max_f32", m, t)
        L += [valu("v_sub_f32", s, s, m) for s in srcs[:8]]
        per.append(L)
    L = zipl(per[0], per[1])
    late = []
    for qs in range(2):
        m = TMP + 8 + qs
        late += [valu("v_sub_f32", NM(qs) + i, "0", m) for i in range(4)]
        late += [valu("v_sub_f32", s, s, m) for s in [Sr(n, kt, qs) + i for kt in (2, 3) for i in range(4)]]
    return L, late

def o_epilogue(cfg):
    per = []
    for qs in range(2):
        per.append(xgroup("v_add_f32", vLS + qs, TMP + 12 + qs) + [vrcp(vLS + qs, vLS + qs)])
    L = zipl(per[0], per[1])
    k = 0
    for s in range(4):
        for qs in range(2):
            q = TMP + 8 + (k & 1) * 4
            for h in range(2):
                o = Oa(2 * s + h, qs)
                for i in range(4): L.append(valu("v_mul_f32", o + i, o + i, vLS + qs))
                L.append(cvtpk(q + 2 * h, o, o + 1)); L.append(cvtpk(q + 2 * h + 1, o + 2, o + 3))
            L.append(ds_w128(aO, q, (s * 2 + qs) * 1024))
            k += 1
    return L

def k_read(n, f): return [ds_r128(FR(f), aK + (f & 3), KB0 + (n & 1) * 16384 + (f >> 2) * 4096)]
def v_read(n, f):
    dt, u = f >> 1, f & 1
    o = VB0 + (n & 1) * 16384 + u * 8192
    return [ds_tr(FR(f), aV + dt, o), ds_tr(FR(f) + 2, aV + dt, o + 4096)]

NT = 32
def units(i):
    if i.k == "label" or "vmcnt" in i.t: return 0
    return 2 if i.k == "trans" else 1

def schedule(main, ds, blocks, fixed, lo_cap=2):
    fill = []
    ds = list(ds)
    n = len(main)
    used = [0] * (n + 64)
    for p, L in fixed.items(): used[p] += sum(units(i) for i in L)
    for p in range(1, n):
        if main[p] is not None and main[p].tag: used[p - 1] += 1
    g = 0
    cnt = {}
    bars = sorted(p for p, L in fixed.items() if any(i.k == "lgkm0" for i in L))
    for e, ins in ds:
        g = max(g, e)
        while cnt.get(g, 0) >= (1 if (g & 1) == 0 else 2) and main[min(g, n - 1)] is not None: g += 1
        nb = [b for b in bars if b >= e]
        assert not nb or g <= nb[0] - 2, (e, g, ins.t)
        cnt[g] = cnt.get(g, 0) + 1
        used[g] += 1
        fill.append((g, 1, ins))
    def conflict(a, b):
        return bool(a.w & (b.r | b.w)) or bool(a.r & b.w) or (not a.w and not a.r) or (not b.w and not b.r) or (a.k == "dsw" and b.k == "dsw")
    def try_place(s, e, L, hi):
        u = list(used); rest = list(L); out = []
        last = None
        for p in range(s, e + 1):
            cap = lo_cap if (p & 1) == 0 else hi
            last = None
            while rest:
                pick = None
                for k in range(min(len(rest), 14)):
                    c = rest[k]
                    if u[p] + units(c) > cap: continue
                    if any(conflict(x, c) for x in rest[:k]): continue
                    if last is not None and last.k == "trans" and c.k != "trans" and last.w & c.r: continue
                    if last is not None and c.k == "perm" and last.w & c.r: continue
                    pick = k; break
                if pick is None: break
                c = rest.pop(pick); u[p] += units(c); out.append((p, 0, c)); last = c
        return (u, out) if not rest else None
    for (s, e, L) in blocks:
        hi = lo_cap
        while True:
            r = try_place(s, e, L, hi)
            if r: break
            hi += 1
        used, out = r
        fill += out
    pre = [(p, i) for (p, o, i) in fill]
    return pre

def a_stream(cfg):
    qrd = lambda: [ds_r128(Qf(s, qs), aQ, (s * 2 + qs) * 1024) for s in range(4) for qs in range(2)]
    pre = qrd()
    for f in range(8): pre += k_read(0, f)
    main, ds, blocks, fixed = [], [], [], {}
    BQ, BP = cfg.barq, cfg.barp
    for n in range(NT + 1):
        t = n & 7
        sfx = "T" if n >= NT else "L"
        real = n < NT
        b0 = 64 * n
        for kt in range(4):
            for qs in range(2):
                for s in range(4):
                    c = Sr(n, kt, qs) if s else (None if t == 0 else NM(qs))
                    dep = [FR(4 * kt + x) for x in range(4)] if (qs == 0 and s == 0) else ()
                    main.append(mfma(Sr(n, kt, qs), FR(4 * kt + s), Qf(s, qs), c, dep) if real else None)
        if real:
            for f in range(8, 16):
                ds += [(b0 + 4 + (f & 3) + 8 * ((f - 8) >> 2), i) for i in k_read(n, f)]
        if n >= 1:
            va = softmax_part(n - 1, 1) + check_pre(n - 1)
            if t == 1 and n > 8 and not cfg.nobnd & 1: va = va[:12] + zipl(o_epilogue(cfg), va[12:])
            blocks.append((b0, b0 + 30, va))
        if n == 0:
            fixed[cfg.xb1] = [barrier()]
            fixed[cfg.xb2] = [barrier()]
        fixed[b0 + BQ] = ([vmcnt(4)] if n == 1 else []) + [lgkm0(), barrier()]
        if n >= 1:
            for f in range(8):
                ds += [(b0 + max(BQ + 1, 20 + (f & 3) + 8 * (f >> 2)), i) for i in v_read(n - 1, f)]
            fixed[b0 + 31] = check(n - 1, 1, sfx) + l_update(n - 1, 1)
        realpv = n >= 1
        m = n - 1
        b1 = b0 + 32
        for dt in range(8):
            for (u, qs) in ((0, 0), (1, 0), (1, 1), (0, 1)):
                firstk = (u == 0 and qs == 0) or (u == 1 and qs == 1)
                c = None if ((m & 7) == 0 and firstk) else Oa(dt, qs)
                dep = [FR(2 * dt + 1)] if (u == 0 and qs == 0) else ()
                main.append(mfma(Oa(dt, qs), FR(2 * dt + u), Pf(m, u, qs), c, dep) if realpv else None)
        qq = qrd() if t == 7 else []
        if realpv:
            for p in range(4):
                ds += [(b1 + 2 + 4 * p, i) for i in v_read(m, 9 + 2 * p)] + [(b1 + 3 + 4 * p, i) for i in v_read(m, 8 + 2 * p)]
                ds += [(b1, i) for i in qq[2 * p:2 * p + 2]]
        if real:
            va = softmax_part(n, 0) + check_pre(n)
            if t == 0 and not (cfg.nobnd & 2 and n > 0):
                early, late = first_tile_max(n)
                blocks.append((b1 + 2, b1 + 30, early + va + late))
            else:
                blocks.append((b1, b1 + 30, va))
        fixed[b1 + BP] = ([vmcnt(8 if n == 0 else 0)] if n < 2 else []) + [lgkm0(), barrier()]
        if n + 1 < NT:
            for f in range(8):
                ds += [(b1 + max(BP + 1, 19 + 4 * (f >> 1)), i) for i in k_read(n + 1, f)]
        if real:
            sf2 = "T" if n + 1 >= NT else "L"
            fixed[b1 + 31] = check(n, 0, sf2) + l_update(n, 0)
    fill = schedule(main, ds, blocks, fixed, cfg.locap)
    fill += [(p, i) for p, L in fixed.items() for i in L]
    seq = pre + [i for i in interleave(main, fill) if i is not None]
    seq += o_epilogue(cfg)
    seq += [lgkm0(), barrier()]
    if cfg.noav: seq = [i for i in seq if i.k not in ("valu", "trans", "perm") and "cbranch" not in i.t]
    return seq

def split_segments(seq):
    segs, cur = [], []
    for i in seq:
        cur.append(i)
        if i.k == "barrier":
            segs.append(cur); cur = []
    if cur: segs.append(cur)
    return segs

def fallback(par, part, last):
    n = par + 2
    L = [raw("s_nop 7"), raw("s_nop 3")]
    D, F, T = TMP + 8, TMP + 10, TMP + 12
    kts = range(4) if part == 0 else (2, 3)
    for qs in range(2):
        srcs = [Sr(n, kt, qs) + i for kt in kts for i in range(4)]
        d, f, t = D + qs, F + qs, T + qs
        L += rowmax(d, srcs) + xgroup("v_max_f32", d, t)
        L += [valu("v_max_f32", d, "0", d), valu("v_ceil_f32", d, d), valu("v_sub_f32", t, "0", d), vexp(f, t)]
        L += [valu("v_sub_f32", s, s, d) for s in srcs]
        L += [valu("v_sub_f32", NM(qs) + i, NM(qs) + i, d) for i in range(4)]
        L += [valu("v_mul_f32", vL + qs, vL + qs, f)]
        L += [valu("v_mul_f32", Oa(dt, qs) + i, Oa(dt, qs) + i, f) for dt in range(8) for i in range(4)]
        if part == 1:
            for i in range(4):
                p = Pf(n, 0, qs) + i
                L += [valu("v_lshlrev_b32", t, "16", p), valu("v_and_b32", p, "0xffff0000", p),
                      valu("v_mul_f32", t, t, f), valu("v_mul_f32", p, p, f), cvtpk(p, t, p)]
            if not last:
                L += [valu("v_sub_f32", s, s, d) for s in [Sr(n + 1, kt, qs) + i for kt in range(4) for i in range(4)]]
    L += softmax_part(n, part)
    L += [raw("s_nop 2"), raw(f"s_setpc_b64 s[{sRET}:{sRET+1}]")]
    return fix_hazards(L)

def q_pack(dst):
    L = []
    for mt in range(4):
        for qs in range(2):
            a = Ac(mt, qs); d = dst + (mt * 2 + qs) * 2
            for i in range(4): L.append(valu("v_mul_f32", a + i, f"s{sSCL}", a + i))
            L += [cvtpk(d, a, a + 1), cvtpk(d + 1, a + 2, a + 3)]
    return L
def q_store(src, hf):
    return [ds_w64(aQw, src + (mt * 2 + qs) * 2, hf * 4096 + (mt >> 1) * 2048 + qs * 1024 + (mt & 1) * 512)
            for mt in range(4) for qs in range(2)]

def wc_adv():
    return [S(f"s_add_u32 s{sWn}, s{sWn}, 1"), S(f"s_add_u32 s{sWc}, s{sWc}, 128"), S(f"s_and_b32 s{sWc}, s{sWc}, 0x3803ff"),
            S(f"s_cmp_ge_u32 s{sWn}, 8"), S(f"s_cselect_b32 s{sWc}, {OOB}, s{sWc}"), S(f"s_cselect_b32 s{sWm0}, {DROP}, s{sWm0}")]
def wq_dma(cfg, kc, ks):
    return [m0set(f"s_add_u32 m0, s{sWm0}, {(kc & 3)*8192 + ks*4096}"),
            S(f"s_add_u32 s{sT}, s{sWc}, {kc * (1 << 19) + ks * (1 << 18)}"), S(f"s_and_b32 s{sT}, s{sT}, 0x403fffff"),
            dma(vWq, SWQ, f"s{sT}", 0, cfg.wflags)]
KPERM = [0]
def kv_xform(s):
    if KPERM[0] == 0: return [S(f"s_xor_b32 s{s}, s{s}, s{sTX}")]
    sh = {1: 2, 2: 1}[KPERM[0]]
    return [S(f"s_xor_b32 s{s}, s{s}, s{sTX}"), S(f"s_and_b32 s{sT}, s{s}, 0x1c000"), S(f"s_xor_b32 s{s}, s{s}, s{sT}"),
            S(f"s_lshr_b32 s{sT}, s{sT}, {sh}"), S(f"s_or_b32 s{s}, s{s}, s{sT}")]
def kv_pre(isK):
    n, o, s = (sKn, sKo, sKs) if isK else (sVn, sVo, sVs)
    return [S(f"s_cmp_lt_u32 s{n}, 30"), S(f"s_cselect_b32 s{s}, s{o}, {OOB}"), S(f"s_cselect_b32 s{sKVm0}, s{sM0}, {DROP}")] + kv_xform(s) + [
            S(f"s_add_u32 s{n}, s{n}, 1"), S(f"s_add_u32 s{o}, s{o}, 16384"), S(f"s_and_b32 s{o}, s{o}, 0x7ffff")]
def kv_dma(cfg, isK, slot, jj):
    base = (KB0 if isK else VB0) + slot * 16384 + jj * 3072
    return [m0set(f"s_add_u32 m0, s{sKVm0}, {base}"),
            dma(vKo if isK else vVo, SK if isK else SV, f"s{sKs if isK else sVs}", jj * 1024, cfg.kvflags)]
def kv_issue(cfg, isK, slot):
    L = kv_pre(isK)
    for jj in range(4): L += kv_dma(cfg, isK, slot, jj)
    return L

PRO_REG = [YB, VB0, XB, WB0, KB0]
sKR = 58
def Ac2(mt, qs):
    k = mt * 2 + qs
    return HLD + 4 * k if k < 4 else TMP + 4 * (k - 4)

def qwait(q, tags):
    last = max(i for i, t in enumerate(q) if t in tags)
    return vmcnt(len(q) - 1 - last)

def a_prologue(cfg):
    seq, q = [], []
    def wq(kc):
        L = []
        for hf in range(2):
            for ks in range(2):
                L += [m0set(f"s_add_u32 m0, s{sM0}, {PRO_REG[kc % 5] + hf*8192 + ks*4096}"),
                      S(f"s_add_u32 s{sT}, s{sWc}, {kc * (1 << 19) + ks * (1 << 18) + hf * 128}"), S(f"s_and_b32 s{sT}, s{sT}, 0x3fffff"),
                      dma(vWq, SWQ, f"s{sT}", 0, cfg.pwflags)]
        L += x_dma(cfg, kc)
        q.extend([kc] * 8)
        return L
    def two(isK):
        L = []
        s = sKs if isK else sVs
        for slot in range(2):
            L += [S(f"s_add_u32 s{s}, s{sCol}, {slot * 16384}")] + kv_xform(s)
            for jj in range(4): L += kv_dma(cfg, isK, slot, jj)
        q.extend(["kv"] * 8)
        return L
    first = []
    for kc in range(cfg.plead): first += wq(kc)
    seq.append(S(f"s_mov_b32 s{sKVm0}, s{sM0}"))
    nxt = cfg.plead
    for kc in range(9):
        seq += [qwait(q, {kc}), barrier()]
        while nxt <= min(kc + 3, 7) and nxt <= kc + cfg.plead:
            seq += wq(nxt); nxt += 1
        if kc == 5:
            seq += [S(f"s_add_u32 s{sWc}, s{sWc}, 256"), S(f"s_and_b32 s{sWc}, s{sWc}, 0x3803ff"), S(f"s_add_u32 s{sWm0}, s{sM0}, {WB0}")]
            for c in range(4):
                for ks in range(2): seq += wq_dma(cfg, c, ks)
            q += [8] * 8
        if kc == 6: seq += two(True)
        if kc == 8: seq += two(False)
    return first, seq

def x_dma(cfg, kc):
    L = [m0set(f"s_add_u32 m0, s{sX16}, {PRO_REG[kc % 5] + 16384}"),
         S(f"s_add_u32 s{sT}, s{sKR}, {kc * 128}"), S(f"s_and_b32 s{sT}, s{sT}, 1023")]
    for p in range(4):
        if p: L += [m0set("s_add_u32 m0, m0, 1024"), S(f"s_add_u32 s{sT}, s{sT}, 8192")]
        L.append(dma(vXo, SX, f"s{sT}", 0, cfg.xflags))
    return L

def p_prologue(cfg):
    def base_of(addr):
        return (0, 0) if addr < 65536 else ((1, WB0) if addr < YB else (2, YB))
    def rd(kc, f):
        if kc == 8: return ring_read(0, f)
        hf, mt, ks = f >> 3, (f >> 1) & 3, f & 1
        addr = PRO_REG[kc % 5] + hf * 8192 + ks * 4096
        k, base = base_of(addr)
        a = (aW2, aW, aW3)[k]
        return [ds_tr(FR(f), a + mt, addr - base), ds_tr(FR(f) + 2, a + mt, addr - base + 512)]
    def xrd(kc):
        addr = PRO_REG[kc % 5] + 16384
        k, base = base_of(addr)
        return [ds_r128(Bf(2 * kc + ks, qs), aX + k, addr - base + qs * 2048 + ks * 64) for ks in range(2) for qs in range(2)]
    pre = [barrier()] + xrd(0)
    for f in range(8): pre += rd(0, f)
    main, fill = [], []
    for kc in range(8):
        b0 = 32 * kc
        for g in range(8):
            hf, mt = g >> 2, g & 3
            for (ks, qs) in ((0, 0), (1, 0), (1, 1), (0, 1)):
                firstk = (ks == 0 and qs == 0) or (ks == 1 and qs == 1)
                a = (Ac if hf else Ac2)(mt, qs)
                dep = [FR(2 * g + 1)] if (ks == 0 and qs == 0) else ()
                main.append(mfma(a, FR(2 * g + ks), Bf(2 * kc + ks, qs), None if (kc == 0 and firstk) else a, dep))
            if g == 4:
                fill.append((b0 + 17, barrier()))
                if kc < 7: fill += [(b0 + 17 + 2 * k, x) for k, x in enumerate(xrd(kc + 1))]
            k2, f2 = (kc, 2 * g + 8) if g < 4 else (kc + 1, 2 * g - 8)
            r = rd(k2, f2 + 1) + rd(k2, f2)
            fill += [(b0 + 4 * g + 2 + k, x) for k, x in enumerate(r)]
        if kc == 7:
            pk = []
            for mt in range(4):
                for qs in range(2):
                    a = Ac2(mt, qs); d = HLD + (mt * 2 + qs) * 2
                    for i in range(4): pk.append(valu("v_mul_f32", a + i, f"s{sSCL}", a + i))
                    pk += [cvtpk(d, a, a + 1), cvtpk(d + 1, a + 2, a + 3)]
            fill += [(b0 + p, x) for p, x in spread(pk + q_store(HLD, 0), 18, 31)]
    seq = pre + interleave(main, fill)
    pk, st = q_pack(TMP), q_store(TMP, 1)
    for k in range(8): seq += pk[6 * k:6 * k + 6] + [st[k]]
    seq += [lgkm0(), barrier()]
    return seq

def ring_read(kc, f):
    mt, ks = f >> 1, f & 1
    o = (kc & 3) * 8192 + ks * 4096
    return [ds_tr(FR(f), aW + mt, o), ds_tr(FR(f) + 2, aW + mt, o + 512)]

def chunk_mfmas(kc):
    L = []
    for mt in range(4):
        for (ks, qs) in ((0, 0), (1, 0), (1, 1), (0, 1)):
            firstk = (ks == 0 and qs == 0) or (ks == 1 and qs == 1)
            c = None if (kc == 0 and firstk) else Ac(mt, qs)
            dep = [FR(2 * mt + 1)] if (ks == 0 and qs == 0) else ()
            L.append(mfma(Ac(mt, qs), FR(2 * mt + ks), Bf(2 * kc + ks, qs), c, dep))
    return L

def p_phase(cfg, ph):
    PS = cfg.psplit
    isK = (ph & 1) == 1
    slot = [1, 1, 0, 0, 1, 1, 0, 0][ph]
    m1, m2 = chunk_mfmas((ph - 1) & 7)[PS:], chunk_mfmas(ph)[:PS]
    fill = []
    pos = -1
    for mt in range(4):
        for f, last in ((2 * mt + 1, 4 * mt + 2), (2 * mt, 4 * mt + 3)):
            for x in ring_read(ph, f):
                pos = max(pos, last - PS)
                fill.append((min(pos, len(m1) - 1), x))
                if cfg.pspread: pos += 1
    kv = kv_issue(cfg, isK, slot)
    head, rest = kv[:-6], kv[-6:]
    d = []
    if ph == 5: d += wc_adv()
    for ks in range(2): d += wq_dma(cfg, (ph + 3) & 7, ks)
    fill2 = []
    if cfg.kvpos:
        P = [int(x) for x in cfg.kvpos.split(",")]
        nw = len(d) - 4
        groups = [d[:nw], d[nw:], kv[:-6], kv[-6:-4], kv[-4:-2], kv[-2:]]
        extra = []
        for p, gl in zip(P, groups):
            if p < len(m1) or ph == 0: extra += [(min(p, len(m1) - 1), x) for x in gl]
            else: fill2 += [(p - len(m1), x) for x in gl]
        fill = extra + fill
    elif cfg.kvlate:
        fill = spread(d, -1, 2) + spread(kv, cfg.kvlate, len(m1) - 1) + fill
    else:
        fill = [(-1, x) for x in head] + [(k // 2, x) for k, x in enumerate(rest)] + spread(d, 3, 8) + fill
    a = interleave(m1, fill)
    if cfg.slowmask >= 0 and not (cfg.slowph >> ph) & 1:
        wt = [vmcnt(cfg.pvmfast)]
    elif cfg.slowmask >= 0:
        wt = [S(f"s_bitcmp1_b32 s{86 + (ph & 1)}, s{sCNT}"), raw(f"s_cbranch_scc0 L_fast{ph}"), vmcnt(cfg.pvm), label(f"L_fast{ph}"), vmcnt(cfg.pvmfast)]
    else:
        wt = [vmcnt(cfg.pvm)]
    b = interleave(m2, fill2) + wt + [lgkm0(), barrier()]
    if cfg.nopm: a, b = [[i for i in s if i.k not in ("mfma", "dsr")] for s in (a, b)]
    if cfg.nodma: a = [i for i in a if i.k not in ("dma",)]
    return a, b

def wo_chunk(cfg, k, plan, voff=None):
    sl, c = plan["blocks"][k]; slot = plan["slot"][k]
    L = []
    for ks in range(4):
        lds = (XB + slot * 16384 if slot < 4 else (slot - 4) * 16384) + ks * 4096
        L += [m0set(f"s_add_u32 m0, s{sM0}, {lds}"),
              S(f"s_add_u32 s{sT}, s{sCol}, {c * 131072 + ks * 32768 + sl * 128}"), S(f"s_and_b32 s{sT}, s{sT}, 0x7ffff"),
              dma(voff or vWo, SWO, f"s{sT}", 0, cfg.woflags)]
    return vtag(L, ("wo", k))

def b_load(pos, addr):
    return [ds_r128(Bf(4 * pos + (fr >> 1), fr & 1), addr, fr * 1024) for fr in range(8)]

def w_read(slot, f):
    mt, ks = f >> 2, f & 3
    o = (slot & 3) * 16384 + ks * 4096
    a = (aW if slot < 4 else (aW2 if slot < 8 else aW3)) + mt
    return [ds_tr(FR(f), a, o), ds_tr(FR(f) + 2, a, o + 512)]

def tail_plan(cfg):
    ne = cfg.ne
    names = {"A": "A", "H": "H", "T": "T", "L": "L0", "M": "L1", "F": "F"}
    order = cfg.order or ("AHTLM"[:ne] + "F" * (8 - ne))
    fo = [names[ch] for ch in order]
    early = [d for d in ("L0", "L1", "H", "T", "A") if d in fo]
    blocks = [(fo.index(d), c) for d in early for c in range(3)]
    n0 = len(blocks)
    for s, d in enumerate(fo):
        blocks += [(s, c) for c in (range(4) if d == "F" else (3,))]
    slot = {k: k & 3 for k in range(n0 + 3)}
    slot[n0 + 3] = 4; slot[n0 + 4] = 5
    a_issue = {}
    free = []
    nxt = n0 + 5
    pre = {17: [n0 + 3], 18: [n0 + 4]}
    if "L0" not in fo:
        slot[n0 + 5] = 8; slot[n0 + 6] = 9; nxt = n0 + 7
        pre = {15: [n0 + 3], 17: [n0 + 4], 18: [n0 + 5], 19: [n0 + 6]}
    busy = {k: (blocks[k][1] == 3) or (k > n0 and blocks[k - 1][1] == 3) for k in range(n0, 32)}
    for k in range(n0, cfg.lastbar):
        free.append(slot[k - 1])
        if k == n0 + 1: free += [6, 7]
        L = []
        while free and nxt < 32 and len(L) < cfg.aper and (not cfg.avoid or not busy[k] or nxt <= k + cfg.minlead or k >= cfg.lastbar - 2):
            slot[nxt] = free.pop(0); L.append(nxt); nxt += 1
        a_issue[k] = L
    assert nxt == 32
    return dict(fo=fo, early=early, blocks=blocks, n0=n0, slot=slot, a_issue=a_issue, pre=pre)

def flag_pub(val):
    return [valu("v_mov_b32", vFlag, str(val)), vwait(lambda t: t[0] == "st" and t[1] < val)] + \
           vtag([I(f"buffer_store_dword v{vFlag}, v{vLane}, s[{SFLG}:{SFLG+3}], 0 offen sc1", "vstore", (), {vFlag, vLane})], ("fl", val))

def p_tail(cfg):
    plan = tail_plan(cfg)
    blocks, n0, slot, fo = plan["blocks"], plan["n0"], plan["slot"], plan["fo"]
    p0 = 21 - n0 - cfg.half
    assert p0 >= 5
    sp, ep = {}, {}
    p = p0
    for k in range(n0):
        sp[k] = p; p += 2 if k < cfg.half else 1; ep[k] = p - 1
    for k in range(n0, n0 + 7): sp[k] = ep[k] = 21 + (k - n0)
    ep[-1] = p0 - 1
    issue = {}
    for k in range(n0 + 3): issue.setdefault(2 + k if k < 4 else sp[k - 3], []).append(k)
    for p, L in plan["pre"].items(): issue.setdefault(p, []).extend(L)
    assert sp[2] >= 7
    def setbase(reg, base):
        return [S(f"s_lshl_b32 s{sT}, s{sQB}, 13"), S(f"s_add_u32 s{sT}, s{sT}, {base}"), valu("v_add_u32", reg, f"s{sT}", vLane)]
    def period_ops(p):
        n, kind = 23 + p // 2, "EO"[p & 1]
        mem, other = [], []
        ks = issue.get(p, [])
        nfirst = 0 if cfg.kvfirst else 1
        for k in ks[:nfirst]: mem += wo_chunk(cfg, k, plan)
        if kind == "E" and n <= 31: mem += vtag(kv_issue(cfg, False, n & 1), ("kv", p))
        if kind == "O" and n + 2 <= 31: mem += vtag(kv_issue(cfg, True, n & 1), ("kv", p))
        for k in ks[nfirst:]: mem += wo_chunk(cfg, k, plan)
        if p == 20 and cfg.fused: mem += hs_load()
        if p == 0:
            other += chunk_mfmas(7)[cfg.psplit:] + [valu("v_add_u32", aQw, f"{WB0 - YB}", aQw)] + q_pack(TMP) + q_store(HLD, 0) + q_store(TMP, 1)
        if p == 1:
            other += setbase(aQw, XB) + b_load(0, aQw) + setbase(aQw, YB) + b_load(1, aQw) + setbase(aQw, WB0) + setbase(vXo, VB0)
        if p == 6: other += b_load(2, aQw)
        close = [vwait(lambda t, p=p: (t[0] == "kv" and t[1] <= p - (2 if p >= cfg.tfast else cfg.tlead)) or (t[0] == "wo" and ep[t[1] - 1] - 1 <= p))]
        if p < p0 - 1: close.append(lgkm0())
        close.append(barrier())
        return mem, other, close
    seq = []
    for p in range(p0):
        mem, other, close = period_ops(p)
        if p == p0 - 1:
            for f in range(8): other += w_read(slot[0], f)
        seq += mem + other + close
    main, fill = [], []
    src_of = {"H": HLD, "T": TMP, "L0": HLD, "L1": TMP}
    published = 0
    done_at = {}
    for k, (sl, c) in enumerate(blocks):
        b0 = 32 * k
        fresh = (c == 0)
        for mt in range(4):
            for qs in range(2):
                for ks in range(4):
                    cc = None if (fresh and ks == 0) else Ac(mt, qs)
                    dep = [FR(4 * mt + ks + 1)] if (qs == 0 and ks in (0, 2)) else ()
                    main.append(mfma(Ac(mt, qs), FR(4 * mt + ks), Bf(4 * c + ks, qs), cc, dep))
        if cfg.bstamp:
            fill.append((b0, raw("s_memtime s[90:91]")))
            fill.append((b0 + 24, raw(f"v_writelane_b32 v255, s90, {k}")))
        if k < n0:
            span = 32 // (ep[k] - sp[k] + 1)
            closes = []
            for h, p in enumerate(range(sp[k], ep[k] + 1)):
                mem, other, close = period_ops(p)
                o = b0 + h * span
                if h: fill += [(o - 1, x) for x in closes.pop()]
                fill += [(o + q, x) for q, x in spread(mem, cfg.tlate, min(17, span - 4))] + [(o + q, x) for q, x in spread(other, span // 2 - 2, span - 4)]
                closes.append(close)
            close = closes.pop()
        elif n0 < k <= cfg.lastbar:
            if k == n0 + 1: fill.append((b0 + 3, vwait(lambda t: t[0] == "wo")))
            fill.append((b0 + 3, barrier()))
        for mt in range(4):
            if mt >= 2 and k + 1 >= len(blocks): continue
            sl2, mt2 = (slot[k], mt + 2) if mt < 2 else (slot[k + 1], mt - 2)
            rd = []
            for ks in range(4): rd += w_read(sl2, 4 * mt2 + ks)
            for n, x in enumerate(rd): fill.append((b0 + 8 * mt + 4 + n, x))
        if k < n0:
            fill += [(b0 + 31, x) for x in close]
            if k == n0 - 1:
                fill += [(b0 + 31, x) for x in ([] if cfg.bstamp else stamp(cfg, 2)) + b_load(3, vXo)]
        for pair in range(2):
            for qs in range(2):
                s0 = b0 + 14 + 8 * qs + 16 * pair
                t, u = Ac(2 * pair, qs), Ac(2 * pair + 1, qs)
                if k < n0 and c == 2 and fo[sl] != "A":
                    d = fo[sl]
                    z = src_of[d] + (pair * 2 + qs) * 4
                    L = [cvtpk(z, t, t + 1), cvtpk(z + 1, t + 2, t + 3), cvtpk(z + 2, u, u + 1), cvtpk(z + 3, u + 2, u + 3)]
                    fill += [(s0 + n, x) for n, x in enumerate(L)]
                    if d[0] == "L": fill.append((s0 + 4, ds_w128(aQw, z, int(d[1]) * 4096 + (pair * 2 + qs) * 1024)))
                if k >= n0 and c == 3:
                    nxt = fo[sl + 1] if sl + 1 < len(fo) and fo[sl + 1] != "F" else None
                    if pair == 0 and qs == 0: fill.append((s0 - 1, S(f"s_add_u32 s{sPo1}, s{sPo}, {sl * 131072}")))
                    L = [cvtpk(t, t, t + 1), cvtpk(t + 1, t + 2, t + 3), cvtpk(t + 2, u, u + 1), cvtpk(t + 3, u + 2, u + 3)]
                    st = vtag([bstore(t, vLane, SPART, f"s{sPo1}", (qs * 2 + pair) * 1024, cfg.pflags)], ("st", sl))
                    if nxt:
                        s = src_of[nxt] + (pair * 2 + qs) * 4
                        U = []
                        for (dst, o) in ((u, 2), (t, 0)):
                            for h in range(2):
                                U += [valu("v_lshlrev_b32", dst + 2 * h, "16", s + o + h), valu("v_and_b32", dst + 2 * h + 1, "0xffff0000", s + o + h)]
                        fill += [(s0 + n // 2, x) for n, x in enumerate(L)] + [(s0 + 2, st[0])]
                        fill += [(s0 + p, x) for p, x in zip((3, 3, 4, 5, 5, 6, 7, 7), U)]
                    else:
                        fill += [(s0 + n, x) for n, x in enumerate(L)] + [(s0 + 4, st[0])]
                    done_at[sl] = k
        if k >= n0 and c == 3 and fo[sl] in ("H", "T"):
            d = {"H": "L0", "T": "L1"}[fo[sl]]
            if d in fo:
                assert fo.index(d) >= sl + 2
                fill += [(b0 + 17 + n, ds_r128(src_of[d] + 4 * n, aQw, int(d[1]) * 4096 + n * 1024)) for n in range(4)]
        if cfg.fused and k >= n0:
            ready = sum(1 for s, kk in done_at.items() if kk + cfg.flaglag <= k)
            if cfg.pubs:
                pm = dict(tuple(int(v) for v in e.split(":")) for e in cfg.pubs.split(","))
                ready = pm.get(k, 0)
                assert ready <= sum(1 for s, kk in done_at.items() if kk + 2 <= k)
            if ready > published and (k >= cfg.pubfrom or cfg.pubs):
                fill += [(b0 + 16, x) for x in flag_pub(ready)]
                published = ready
    seq += interleave(main, fill)
    if cfg.bstamp:
        seq += [raw("s_memtime s[90:91]"), lgkm0(), raw("v_writelane_b32 v255, s90, 32"), raw("v_lshlrev_b32 v5, 2, v0"),
                raw("s_lshl_b32 s90, s2, 8"), raw("s_add_u32 s90, s90, 0x10000"), raw(f"s_cmp_lg_u32 s{sQB}, {cfg.stw}"), raw(f"s_cselect_b32 s90, {OOB}, s90"),
                raw("buffer_store_dword v255, v5, s[64:67], s90 offen")]
    seq += stamp(cfg, 4)
    if cfg.fused:
        if published < 7 and (cfg.dpoll or not cfg.pubs): seq += flag_pub(7)
        if not cfg.dpoll: seq += flag_pub(8)
    return resolve_vwaits(seq, [("kv", -2)] * 6 + [("kv", -1)] * 6)

def a_tail(cfg):
    plan = tail_plan(cfg)
    n0 = plan["n0"]
    seq = hs_load() if cfg.fused else []
    for k in range(n0, cfg.lastbar + 1):
        last = k == cfg.lastbar
        if k > n0: seq += [vwait(lambda t, k=k, last=last: last or t[1] <= k + 1), barrier()]
        for kk in plan["a_issue"].get(k, []): seq += wo_chunk(cfg, kk, plan, vWoA)
    return resolve_vwaits(seq)

def rstamp(cfg, idx):
    if not cfg.stamps: return []
    return ["    " + x for x in ["s_memrealtime s[60:61]", "s_waitcnt lgkmcnt(0)", "v_mov_b32 v100, s60", "v_mov_b32 v101, s61", "v_mov_b32 v102, 0",
            "s_mov_b64 s[62:63], exec", "s_mov_b64 exec, 1", f"buffer_store_dwordx2 v[100:101], v102, s[64:67], s68 offen offset:{idx*8}", "s_mov_b64 exec, s[62:63]"]]

vHS = 241
def hs_load():
    return vtag([I(f"buffer_load_dword v{vHS}, v{vLane}, s[{SDBG}:{SDBG+3}], 0 offen sc1", "vload", {vHS}, {vLane})], ("hs", 99))

def a_reduce(cfg, ps):
    T = []
    A = lambda *a: T.extend("    " + x for x in a)
    A("v_lshlrev_b32 v1, 7, v0", "v_and_b32 v4, 15, v0", "v_lshlrev_b32 v4, 11, v4",
      "v_bfe_u32 v5, v0, 4, 1", "v_lshl_add_u32 v4, v5, 5, v4", "v_lshrrev_b32 v5, 5, v0", "v_lshl_add_u32 v4, v5, 4, v4")
    if ps == 0: T += rstamp(cfg, 4)
    A("s_mov_b32 s85, 0")
    T.append(f"L_hs{ps}:")
    A(f"v_cmp_le_u32 vcc, 8, v{vHS}", f"s_cbranch_vccnz L_hs_ok{ps}",
      f"buffer_load_dword v{vHS}, v{vLane}, s[{SDBG}:{SDBG+3}], 0 offen sc1", "s_add_u32 s85, s85, 1", "s_waitcnt vmcnt(0)",
      "s_cmp_lt_u32 s85, 0x80000", f"s_cbranch_scc1 L_hs{ps}")
    T.append(f"L_hs_ok{ps}:")
    A(f"s_add_u32 s87, s{sQB}, {4 * ps}")
    for N in ((cfg.rn1, cfg.rn2)[ps],):
        T += rstamp(cfg, 5)
        dp = cfg.dpoll and ps == 1
        FW = SX if dp else SFLG
        def ld(i):
            b = 16 + i * 4
            if i and i % 2 == 0: A("s_add_u32 s88, s88, 16384")
            A(f"buffer_load_dwordx4 v[{b}:{b+3}], v{vLane}, s[{SPART}:{SPART+3}], s88 offen offset:{(i & 1)*1024} sc1")
        base = ["s_lshl_b32 s88, s87, 17", "s_lshl_b32 s89, s6, 11", "s_add_u32 s88, s88, s89"]
        pub8 = [f"s_cmp_lg_u32 s85, 1", "s_cbranch_scc1 L_np8_{0}", f"v_mov_b32 v{vFlag}, 8",
                f"buffer_store_dword v{vFlag}, v{vLane}, s[{SFLG}:{SFLG+3}], 0 offen sc1"]
        A("s_mov_b32 s85, 0")
        if dp:
            A(f"s_cmp_lg_u32 s{sQB}, 3", f"s_cbranch_scc1 L_poll{ps}")
            T.append("L_dp:")
            A(*base, f"buffer_load_dword v6, v1, s[{FW}:{FW+3}], 0 offen sc1")
            for i in range(16): ld(i)
            A("s_add_u32 s85, s85, 1", "s_waitcnt vmcnt(0)")
            A("v_max3_u32 v7, v16, v17, v18")
            for r in range(19, 79, 2): A(f"v_max3_u32 v7, v7, v{r}, v{r+1}")
            A("v_max_u32 v7, v7, v79", "v_cmp_eq_u32 vcc, -1, v7", "s_cbranch_vccz L_sum1")
            A(*[x.format("a") for x in pub8]); T.append("L_np8_a:")
            A("v_cmp_lt_u32 vcc, s87, v6", "s_cmp_eq_u32 vcc_lo, 0xff", f"s_cbranch_scc1 L_got{ps}",
              "s_cmp_lt_u32 s85, 0x20000", "s_cbranch_scc1 L_dp", "s_branch L_sum1")
        T.append(f"L_poll{ps}:")
        A(f"buffer_load_dword v6, v1, s[{FW}:{FW+3}], 0 offen sc1", "s_add_u32 s85, s85, 1", "s_waitcnt vmcnt(0)")
        if dp:
            A(*[x.format("b") for x in pub8]); T.append("L_np8_b:")
        A("v_cmp_lt_u32 vcc, s87, v6", "s_cmp_eq_u32 vcc_lo, 0xff", f"s_cbranch_scc1 L_got{ps}", "s_cmp_lt_u32 s85, 0x80000", f"s_cbranch_scc1 L_poll{ps}")
        T.append(f"L_got{ps}:")
        T += rstamp(cfg, 6)
        A(*base)
        for i in range(min(N, 16)): ld(i)
        if dp:
            assert N >= 16
            T.append("L_sum1:")
        A("s_lshl_b32 s89, s87, 7")
        acc = 80
        for i in range(16):
            A(f"s_waitcnt vmcnt({min(N, 16 - i) - 1})")
            if i + N < 16: ld(i + N)
            b = 16 + i * 4; pair = i & 1
            for e in range(4):
                lo, hi = acc + pair * 8 + 2 * e, acc + pair * 8 + 2 * e + 1
                if i < 2:
                    A(f"v_lshlrev_b32 v{lo}, 16, v{b+e}", f"v_and_b32 v{hi}, 0xffff0000, v{b+e}")
                else:
                    A(f"v_lshlrev_b32 v6, 16, v{b+e}", f"v_and_b32 v7, 0xffff0000, v{b+e}", f"v_add_f32 v{lo}, v{lo}, v6", f"v_add_f32 v{hi}, v{hi}, v7")
        for pair in range(2):
            a = acc + pair * 8
            for e in range(4): A(f"v_cvt_pk_bf16_f32 v{8+pair*4+e}, v{a+2*e}, v{a+2*e+1}")
        T += rstamp(cfg, 7)
        A("s_nop 1")
        for pair in range(2):
            d = 8 + pair * 4
            A(f"v_permlane16_swap_b32 v{d}, v{d+2}", f"v_permlane16_swap_b32 v{d+1}, v{d+3}")
            A(f"buffer_store_dwordx4 v[{d}:{d+3}], v4, s[{SOUT}:{SOUT+3}], s89 offen offset:{pair*64} {cfg.outflags}")
        if dp: A(*pub8[2:])
    return T

def fin(seq): return fix_hazards(insert_lgkm(order_gaps(seq)))

def header():
    ref = open("cdna_kernels/" + NAME + ".s.ref").read().splitlines()
    return [l for l in ref if l.startswith(";") and "@launch" not in l and "Override" not in l and "grid=ceil" not in l]

def srd(dst, lo, hi, nbytes):
    return [f"s_mov_b32 s{dst}, s{lo}", f"s_mov_b32 s{dst+1}, s{hi}", f"s_mov_b32 s{dst+2}, {nbytes}", f"s_mov_b32 s{dst+3}, 0x20000"]
def srd_off(dst, lo, hi, off, nbytes):
    return [f"s_add_u32 s{dst}, s{lo}, {off}", f"s_addc_u32 s{dst+1}, s{hi}, 0", f"s_mov_b32 s{dst+2}, {nbytes}", f"s_mov_b32 s{dst+3}, 0x20000"]

def main_kernel(cfg):
    T = []
    A = lambda *a: T.extend("    " + x for x in a)
    ST = lambda i: T.append(emit(stamp(cfg, i))) if cfg.stamps else None
    T += [".globl attn_main_kernel", ".p2align 8", ".type attn_main_kernel,@function", "attn_main_kernel:"]
    A("s_cmp_ge_u32 s2, 256", "s_cbranch_scc1 L_end")
    cal = cfg.cal_pro or cfg.cal_main or cfg.cal_end or cfg.cal_mid or cfg.probe >= 0
    def PR(k):
        if cfg.probe == k: A("s_memrealtime s[94:95]", "s_waitcnt lgkmcnt(0)")
    if cal: A("s_memrealtime s[100:101]")
    def CAL(us, lab):
        if not us: return
        T.append(f"{lab}:")
        A("s_memrealtime s[60:61]", "s_waitcnt lgkmcnt(0)", "s_sub_u32 s60, s60, s100", f"s_cmp_lt_u32 s60, {us*100}", f"s_cbranch_scc1 {lab}")
    A("s_load_dwordx8 s[72:79], s[0:1], 0", "s_load_dwordx8 s[80:87], s[0:1], 32", "s_load_dwordx4 s[88:91], s[0:1], 64",
      "s_load_dwordx2 s[92:93], s[0:1], 96", "s_load_dwordx4 s[96:99], s[0:1], 80")
    A("v_lshrrev_b32 v1, 6, v0", "v_and_b32 v0, 63, v0", f"v_readfirstlane_b32 s{sW}, v1")
    A(f"v_lshlrev_b32 v{vLane}, 4, v0")
    early_pos = len(T)
    if cfg.mapping == 0:
        A("s_and_b32 s3, s2, 7", "s_lshr_b32 s4, s2, 3", "s_lshl_b32 s5, s3, 2", "s_lshr_b32 s6, s4, 3", "s_add_u32 s5, s5, s6",
          "s_and_b32 s6, s4, 7", f"s_and_b32 s{sROT}, s3, 3")
    elif cfg.mapping == 1:
        A("s_and_b32 s6, s2, 7", "s_lshr_b32 s5, s2, 3", f"s_and_b32 s{sROT}, s5, 3")
    elif cfg.mapping == 2:
        A("s_and_b32 s3, s2, 7", "s_lshr_b32 s4, s2, 3",
          "s_and_b32 s5, s4, 15", "s_and_b32 s6, s3, 4", "s_lshl_b32 s6, s6, 2", "s_add_u32 s5, s5, s6",
          "s_and_b32 s6, s3, 3", "s_lshl_b32 s6, s6, 1", "s_lshr_b32 s4, s4, 4", "s_add_u32 s6, s6, s4",
          f"s_and_b32 s{sROT}, s5, 3")
    elif cfg.mapping == 3:
        A("s_and_b32 s3, s2, 7", "s_lshr_b32 s4, s2, 3",
          "s_and_b32 s5, s4, 7", "s_and_b32 s6, s3, 6", "s_lshl_b32 s6, s6, 2", "s_add_u32 s5, s5, s6",
          "s_and_b32 s6, s3, 1", "s_lshl_b32 s6, s6, 2", "s_lshr_b32 s4, s4, 3", "s_add_u32 s6, s6, s4",
          f"s_and_b32 s{sROT}, s5, 3")
    if not cfg.rot: A(f"s_mov_b32 s{sROT}, 0")
    if cfg.rot == 5: A(f"s_and_b32 s{sROT}, s5, 1", f"s_lshl_b32 s{sROT}, s{sROT}, 1")
    if cfg.rot == 2: A(f"s_bfe_u32 s{sROT}, s5, 0x20002")
    if cfg.rot == 3: A(f"s_and_b32 s{sROT}, s5, 2")
    if cfg.rot == 4: A(f"s_or_b32 s{sROT}, s{sROT}, 2")
    A("s_and_b32 s7, s5, 15")
    tx = {0: ["s_mov_b32 s4, 0"], 1: ["s_mov_b32 s4, s6"], 2: ["s_lshr_b32 s4, s5, 2"], 3: ["s_lshr_b32 s4, s5, 2", "s_add_u32 s4, s4, s6"],
          4: ["s_xor_b32 s4, s5, s6"], 5: ["s_mul_i32 s4, s2, 0x9e3779b1", "s_lshr_b32 s4, s4, 29"], 6: ["s_lshr_b32 s4, s5, 2", "s_xor_b32 s4, s4, s6"]}[cfg.tx]
    A(*tx, "s_and_b32 s4, s4, 7", "s_lshl_b32 s4, s4, 14")
    def srd_early():
        A("s_waitcnt lgkmcnt(0)")
        A("s_cmp_ge_u32 s5, 16")
        for k in (0, 3):
            A(f"s_cselect_b32 s{72+2*k}, s{82+2*k}, s{72+2*k}", f"s_cselect_b32 s{73+2*k}, s{83+2*k}, s{73+2*k}")
        A("s_lshl_b32 s56, s6, 10")
        A(*srd_off(SWQ, 78, 79, "s56", 0)[:2], f"s_sub_u32 s{SWQ+2}, 0x400000, s56", f"s_mov_b32 s{SWQ+3}, 0x20000")
        A("s_lshl_b32 s56, s7, 17"); A(*srd_off(SX, 72, 73, "s56", 131072))
        if cfg.nowq: A(f"s_mov_b32 s{SWQ+2}, 0")
        if cfg.stamps:
            A(*srd_off(64, 92, 93, WS_BYTES - (1 << 20), 1 << 20))
            A(f"s_lshr_b32 s68, s{sW}, 2", "s_lshl_b32 s68, s68, 7", "s_lshl_b32 s69, s2, 8", "s_add_u32 s68, s68, s69",
              f"s_and_b32 s69, s{sW}, 3", f"s_cmp_lg_u32 s69, {cfg.stw}", f"s_cselect_b32 s68, {OOB}, s68")
    def srd_late():
        A("s_cmp_ge_u32 s5, 16")
        for k in (1, 2, 4):
            A(f"s_cselect_b32 s{72+2*k}, s{82+2*k}, s{72+2*k}", f"s_cselect_b32 s{73+2*k}, s{83+2*k}, s{73+2*k}")
        A("s_lshl_b32 s56, s7, 22", "s_lshl_b32 s57, s6, 19", "s_add_u32 s56, s56, s57")
        A(*srd_off(SK, 74, 75, "s56", 524288)); A(*srd_off(SV, 76, 77, "s56", 524288))
        A(*srd_off(SWO, 80, 81, "s57", 524288))
        A("s_lshl_b32 s56, s5, 21", "s_add_u32 s56, s56, 0x100000"); A(*srd_off(SPART, 92, 93, "s56", 1 << 20))
        if cfg.fused:
            A("s_lshl_b32 s56, s5, 3"); A(*srd_off(SDBG, 98, 99, "s56", 4))
            A("s_lshl_b32 s56, s7, 18", "s_lshl_b32 s57, s6, 15", "s_add_u32 s56, s56, s57", "s_lshr_b32 s57, s5, 4", "s_lshl_b32 s57, s57, 10",
              "s_add_u32 s56, s56, s57")
            A(*srd_off(SOUT, 96, 97, "s56", 0), f"s_sub_u32 s{SOUT+2}, 0x400000, s56")
        if cfg.nokv: A(f"s_mov_b32 s{SK+2}, 0", f"s_mov_b32 s{SV+2}, 0")
        if cfg.nowo: A(f"s_mov_b32 s{SWO+2}, 0")
        if cfg.nops: A(f"s_mov_b32 s{SPART+2}, 0")
    decode = T[early_pos:]; del T[early_pos:]
    A("s_nop 1")
    A(f"s_and_b32 s{sQB}, s{sW}, 3", f"s_lshl_b32 s{sM0}, s{sQB}, 10")
    if cfg.codepf:
        A("s_getpc_b64 s[70:71]")
        T.append("L_pc:")
        A("s_sub_u32 s70, s70, L_pc-attn_main_kernel", "s_subb_u32 s71, s71, 0")
        A(f"s_lshr_b32 s56, s{sW}, 1", "s_cmp_lg_u32 s56, 2", "s_cbranch_scc1 L_nopf")
        A("s_lshr_b32 s56, s2, 3", "s_lshl_b32 s56, s56, 11", f"s_add_u32 s56, s56, s{sM0}",
          "s_min_u32 s56, s56, L_cold-attn_main_kernel-1024", f"v_add_u32 v5, s56, v{vLane}",
          f"global_load_dwordx4 v[{FR(0)}:{FR(0)+3}], v5, s[70:71]")
        T.append("L_nopf:")
    T += decode
    A(f"s_lshl_b32 s{sCol}, s{sROT}, 17")
    A("v_and_b32 v1, 15, v0", "v_lshrrev_b32 v2, 4, v0", "v_lshrrev_b32 v3, 2, v1", "v_and_b32 v4, 3, v0")
    def lc16():
        A("v_lshrrev_b32 v5, 3, v0", "v_bfe_u32 v6, v0, 4, 1", f"s_and_b32 s{sT}, s{sQB}, 1", f"s_lshl_b32 s{sT}, s{sT}, 1",
          f"v_or_b32 v6, s{sT}, v6", "v_lshlrev_b32 v6, 1, v6", "v_and_b32 v7, 7, v0", "v_xor_b32 v6, v6, v7", "v_lshlrev_b32 v6, 4, v6")
    def wo_voff():
        lc16()
        A("v_and_b32 v7, 3, v5", "v_lshrrev_b32 v5, 2, v5", "v_lshl_add_u32 v7, v5, 4, v7",
          f"s_lshl_b32 s{sT}, s{sQB}, 2", f"v_add_u32 v7, s{sT}, v7", f"v_lshl_add_u32 v{vWo}, v7, 10, v6")
    def kv_voff():
        A(f"s_lshl_b32 s{sT}, s{sQB}, 2", f"v_add_u32 v5, s{sT}, v2",
          "v_xor_b32 v6, v5, v1", "v_lshlrev_b32 v6, 4, v6",
          *{0: [f"s_lshl_b32 s{sT}, s{sQB}, 4"], 1: [f"s_lshl_b32 s{sT}, s{sQB}, 7"],
            2: [f"s_and_b32 s{sT}, s{sQB}, 1", f"s_lshl_b32 s{sT}, s{sT}, 4", f"s_lshr_b32 s56, s{sQB}, 1", "s_lshl_b32 s56, s56, 8", f"s_add_u32 s{sT}, s{sT}, s56"]}[cfg.kperm],
          f"v_add_u32 v7, s{sT}, v2", "v_lshlrev_b32 v7, 8, v7",
          f"v_add_u32 v{vKo}, v7, v6",
          "v_and_b32 v5, 7, v5", "v_lshlrev_b32 v5, 1, v5", "v_xor_b32 v6, v5, v1", "v_lshlrev_b32 v6, 4, v6", f"v_add_u32 v{vVo}, v7, v6")
    def wq_voff():
        lc16()
        A(f"s_lshl_b32 s{sT}, s{sQB}, 3", f"v_add_u32 v7, s{sT}, v5", f"v_lshl_add_u32 v{vWq}, v7, 13, v6")
    A(f"s_lshl_b32 s{sWc}, s{sROT}, 8")
    if cfg.krot == 1:
        A("s_lshr_b32 s56, s7, 2", "s_lshl_b32 s56, s56, 1", "s_lshl_b32 s57, s6, 2", "s_add_u32 s56, s56, s57",
          "s_bfe_u32 s57, s6, 0x10001", "s_add_u32 s56, s56, s57", "s_and_b32 s56, s56, 7")
    elif cfg.krot == 2:
        A(f"s_lshl_b32 s56, s{sROT}, 1", "s_lshr_b32 s57, s5, 4", "s_add_u32 s56, s56, s57")
    elif cfg.krot == 3:
        A(f"s_lshl_b32 s56, s{sROT}, 1", "s_lshr_b32 s57, s5, 4", "s_add_u32 s56, s56, s57", "s_add_u32 s56, s56, 4", "s_and_b32 s56, s56, 7")
    elif cfg.krot == 5:
        A("s_lshr_b32 s56, s7, 1", "s_add_u32 s56, s56, s6", "s_and_b32 s56, s56, 3", "s_lshl_b32 s56, s56, 1")
    elif cfg.krot == 6:
        A("s_lshl_b32 s56, s6, 1", "s_add_u32 s56, s56, s7", "s_and_b32 s56, s56, 7")
    elif cfg.krot == 4:
        A("s_and_b32 s56, s7, 7")
    else:
        A("s_mov_b32 s56, 0")
    A(f"s_lshl_b32 s{sKR}, s56, 7", "s_lshl_b32 s56, s56, 19", f"s_add_u32 s{sWc}, s{sWc}, s56")
    wq_voff()
    A("v_lshrrev_b32 v5, 3, v0", "v_and_b32 v6, 7, v0", "v_xor_b32 v6, v6, v2", "v_lshlrev_b32 v6, 4, v6",
      f"s_lshl_b32 s{sT}, s{sQB}, 5", f"v_add_u32 v5, s{sT}, v5", f"v_lshl_add_u32 v{vXo}, v5, 10, v6")
    A(f"s_lshl_b32 s{sX16}, s{sQB}, 12")
    srd_early()
    if cfg.stamps:
        ST(0)
        A("v_lshrrev_b32 v2, 4, v0", "v_lshrrev_b32 v3, 2, v1", "v_and_b32 v4, 3, v0")
    A(f"s_cmp_ge_u32 s{sW}, 4", "s_cbranch_scc1 L_P")
    first, rest = a_prologue(cfg)
    T.append(emit(fin(first)))
    srd_late()
    kv_voff()
    T.append(emit(fin(rest)))
    wo_voff()
    A(f"v_mov_b32 v{vWoA}, v{vWo}")
    if cfg.fused:
        A("s_lshl_b32 s56, s5, 2", "s_lshr_b32 s58, s6, 1", "s_add_u32 s56, s56, s58", "s_lshl_b32 s56, s56, 10", f"s_add_u32 s56, s56, {FLG}")
        A(*srd_off(SFLG, 92, 93, "s56", 1024))
    if cfg.prioA: A(f"s_setprio {cfg.prioA}")
    A(f"s_mov_b32 s{sBND}, 0x{f2u(1e-30 if cfg.force_fb else float(1 << 20)):x}")
    for s in range(4):
        A(f"v_add_u32 v5, {4*s}, v2", "v_xor_b32 v5, v5, v1", "v_lshlrev_b32 v5, 4, v5", f"v_lshl_add_u32 v{aK+s}, v1, 8, v5")
    A("v_and_b32 v5, 1, v2", "v_lshl_add_u32 v5, v5, 2, v3",
      "v_lshl_add_u32 v6, v2, 2, v3", "v_lshlrev_b32 v6, 8, v6", "v_lshl_add_u32 v6, v4, 3, v6")
    for dt in range(8):
        A(f"v_xor_b32 v7, {dt}, v5", f"v_lshl_add_u32 v{aV+dt}, v7, 5, v6")
    A(f"s_lshl_b32 s57, s{sQB}, 13", f"s_add_u32 s{sT}, s57, {YB}", f"v_add_u32 v{aQ}, s{sT}, v{vLane}")
    A("s_waitcnt vmcnt(12)", "s_barrier")
    segs = split_segments(fin(a_stream(cfg)))
    txt = [emit(s) for s in segs]
    E = lambda n: 2 + 2 * n
    for k in range(E(2), E(32) - 16):
        assert txt[k] == txt[k + 16], k
    ST(1)
    CAL(cfg.cal_pro, "L_cal1")
    PR(0)
    if cfg.sser:
        for sgm in txt[:E(2)]:
            L = [i for i in stamp(cfg, 0) if "v[6:7]" not in i.t and i.k != "lgkm0"]
            L.insert(2, raw("s_waitcnt lgkmcnt(0)"))
            T.append(emit(L)); A("s_add_u32 s68, s68, 8")
            T.append(sgm)
        T.append(emit([i for i in stamp(cfg, 0) if "v[6:7]" not in i.t])); A(f"s_mov_b32 s68, {OOB}")
    else:
        T += txt[:E(2)]
    PR(6)
    A(f"s_mov_b32 s{sCNT}, 0")
    T.append("L_Aloop:")
    A(f"s_cmp_lt_u32 s{sCNT}, 2", f"s_cselect_b32 s{sT}, 2, 1", f"s_lshl_b32 s{sT}, s{sT}, 16", f"s_add_u32 s{sT}, s{sT}, s57", f"v_add_u32 v{aQ}, s{sT}, v{vLane}",
      f"v_mov_b32 v{aO}, v{aQ}", f"s_cmp_eq_u32 s{sCNT}, 0", "s_cbranch_scc0 L_Ao",
      f"v_add_u32 v{aO}, {XB - YB}, v{aO}")
    T.append("L_Ao:")
    if 1 <= cfg.probe <= 3:
        A(f"s_cmp_lg_u32 s{sCNT}, {cfg.probe}", "s_cbranch_scc1 L_nopr")
        PR(cfg.probe)
        T.append("L_nopr:")
    if cfg.cal_mid:
        A(f"s_cmp_lg_u32 s{sCNT}, 2", "s_cbranch_scc1 L_nocal")
        CAL(cfg.cal_mid, "L_cal4")
        T.append("L_nocal:")
    def sst():
        if cfg.series:
            L = [i for i in stamp(cfg, 0) if "v[6:7]" not in i.t]
            T.append(emit(L)); A("s_add_u32 s68, s68, 8")
    sst(); T += txt[E(2):E(4)]
    sst(); T += txt[E(4):E(6)]
    sst(); T += txt[E(6):E(8)]
    sst()
    A(f"s_cmp_eq_u32 s{sCNT}, 3", "s_cbranch_scc1 L_Atail")
    T += txt[E(8):E(10)]
    A(f"s_add_u32 s{sCNT}, s{sCNT}, 1", "s_branch L_Aloop")
    T.append("L_Atail:")
    A(f"v_add_u32 v{aO}, {VB0 - WB0}, v{aO}")
    if cfg.series: A(f"s_mov_b32 s68, {OOB}")
    T += txt[E(32):]
    CAL(cfg.cal_main, "L_cal2")
    PR(4)
    if not cfg.bstamp: ST(2)
    T.append(emit(fin(a_tail(cfg))))
    if cfg.fused:
        T += a_reduce(cfg, 0)
    PR(5)
    if cfg.probe >= 0:
        A("s_sub_u32 s94, s94, s100", "s_add_u32 s94, s94, 10000")
        T.append("L_prh:")
        A("s_memrealtime s[60:61]", "s_waitcnt lgkmcnt(0)", "s_sub_u32 s60, s60, s100", "s_cmp_lt_u32 s60, s94", "s_cbranch_scc1 L_prh")
    if cfg.cal_wg >= 0: A(f"s_cmp_lg_u32 s2, {cfg.cal_wg}", "s_cbranch_scc1 L_end")
    CAL(cfg.cal_end, "L_cal3")
    ST(3)
    A("s_endpgm")
    T.append("L_P:")
    srd_late()
    if cfg.h1touch:
        if cfg.h1touch == 1: A(f"s_cmp_lg_u32 s{sQB}, 2", "s_cbranch_scc1 L_noh1", "s_mov_b32 s57, 256")
        else: A(f"s_lshl_b32 s57, s{sQB}, 8")
        A("v_lshrrev_b32 v5, 1, v0", "v_lshlrev_b32 v5, 13, v5", "v_and_b32 v6, 1, v0", "v_lshl_add_u32 v5, v6, 7, v5",
          "s_lshl_b32 s56, s7, 18", "s_add_u32 s56, s56, s57", f"buffer_load_dword v241, v5, s[{SWQ}:{SWQ+3}], s56 offen")
        T.append("L_noh1:")
    if cfg.fused:
        A("s_lshl_b32 s56, s5, 12", "s_lshl_b32 s57, s6, 7", "s_add_u32 s56, s56, s57", f"s_add_u32 s56, s56, {FLG}")
        A(*srd_off(SFLG, 92, 93, "s56", 3076))
        A(f"s_cmp_lg_u32 s{sQB}, 3", "s_cbranch_scc1 L_norst")
        A("v_mov_b32 v5, 0", "v_lshlrev_b32 v6, 10, v0", f"buffer_store_dword v5, v6, s[{SFLG}:{SFLG+3}], 0 offen sc1")
        T.append("L_norst:")
        if cfg.dpoll:
            A("v_mov_b32 v8, -1", "v_mov_b32 v9, -1", "v_mov_b32 v10, -1", "v_mov_b32 v11, -1",
              "s_lshl_b32 s56, s6, 14", f"s_lshl_b32 s57, s{sQB}, 12", "s_add_u32 s56, s56, s57", f"s_add_u32 s56, s56, {7 * 131072}")
            for i in range(4): A(f"buffer_store_dwordx4 v[8:11], v{vLane}, s[{SPART}:{SPART+3}], s56 offen offset:{i*1024} sc1")
    A("v_bfe_u32 v5, v1, 1, 2", "v_xor_b32 v5, v5, v2", "v_lshlrev_b32 v5, 4, v5", "v_lshl_add_u32 v5, v1, 7, v5",
      f"v_add_u32 v{aX}, s{sX16}, v5", f"v_add_u32 v{aX+1}, {WB0}, v{aX}", f"v_add_u32 v{aX+2}, {YB}, v{aX}")
    A(f"s_add_u32 s{sWc}, s{sWc}, 256", f"s_and_b32 s{sWc}, s{sWc}, 0x3803ff", f"s_add_u32 s{sWm0}, s{sM0}, {WB0}", f"s_mov_b32 s{sWn}, 2")
    A("v_lshrrev_b32 v5, 1, v3", "v_and_b32 v6, 1, v2", "v_lshl_add_u32 v5, v6, 1, v5",
      "v_lshl_add_u32 v6, v2, 3, v3", "v_lshlrev_b32 v6, 7, v6", "v_lshl_add_u32 v6, v4, 3, v6")
    for mt in range(4):
        A(f"v_xor_b32 v7, {mt}, v5", f"v_lshl_add_u32 v{aW2+mt}, v7, 5, v6", f"v_add_u32 v{aW+mt}, {WB0}, v{aW2+mt}",
          f"v_add_u32 v{aW3+mt}, {YB}, v{aW2+mt}")
    kv_voff()
    A("v_lshrrev_b32 v5, 1, v2", "v_lshlrev_b32 v5, 8, v5", "v_lshl_add_u32 v5, v1, 4, v5", "v_and_b32 v6, 1, v2", "v_lshl_add_u32 v5, v6, 3, v5",
      f"s_lshl_b32 s{sT}, s{sQB}, 13", f"s_add_u32 s{sT}, s{sT}, {YB}", f"v_add_u32 v{aQw}, s{sT}, v5")
    wo_voff()
    A(f"s_mov_b32 s{sSCL}, 0x{f2u(math.log2(math.e) / math.sqrt(128.0)):x}")
    A(f"s_mov_b32 s{sKn}, -1", f"s_mov_b32 s{sVn}, -2",
      f"s_add_u32 s{sKo}, s{sCol}, 16384",
      f"s_mov_b32 s{sVo}, s{sCol}")
    A(f"s_mov_b32 s{sCNT}, 2", "s_waitcnt vmcnt(0)")
    if cfg.fused:
        A("s_bfe_u32 s85, s2, 0x20003", "s_add_u32 s85, s85, 3", f"s_cmp_eq_u32 s{sQB}, 3", "s_cselect_b32 s85, s85, 99")
        A(f"s_lshl_b32 s56, s{sQB}, 10", f"s_add_u32 s{SFLG}, s{SFLG}, s56", f"s_addc_u32 s{SFLG+1}, s{SFLG+1}, 0", f"s_mov_b32 s{SFLG+2}, 4")
    T.append(emit(fin(p_prologue(cfg))))
    ST(1)
    A(f"v_lshlrev_b32 v{vXo}, 7, v0")
    if cfg.slowmask >= 0: A(f"s_mov_b32 s86, {cfg.slowmask}", f"s_mov_b32 s87, {cfg.slowmask2 if cfg.slowmask2 >= 0 else cfg.slowmask}")
    if cfg.prioM: A(f"s_setprio {cfg.prioM}")
    A("s_branch L_Pgo")
    T.append("L_Ploop:")
    if cfg.fused:
        A(f"s_cmp_lg_u32 s{sCNT}, s85", "s_cbranch_scc1 L_nohs")
        A("v_mov_b32 v5, 1", f"buffer_atomic_add v5, v{vLane}, s[{SDBG}:{SDBG+3}], 0 offen sc1")
        T.append("L_nohs:")
    if cfg.wopf:
        if cfg.pfmode == 0: A(f"s_add_u32 s56, s{sQB}, 4")
        elif cfg.pfmode == 1: A(f"s_and_b32 s56, s{sQB}, 2", "s_add_u32 s56, s56, 4")
        elif cfg.pfmode == 2: A("s_mov_b32 s56, 6")
        A(f"s_cmp_lg_u32 s{sCNT}, s56", "s_cbranch_scc1 L_nowopf")
        A("s_lshl_b32 s56, s7, 15", f"s_lshl_b32 s57, s{sQB}, 13", "s_add_u32 s56, s56, s57",
          f"buffer_load_dword v{vFlag}, v{vXo}, s[{SWO}:{SWO+3}], s56 offen")
        T.append("L_nowopf:")
    if cfg.codepf:
        A(f"s_lshl_b32 s56, s{sQB}, 4", f"s_add_u32 s56, s56, s{sCNT}", f"s_cmp_lg_u32 s56, {6 if cfg.pfmode else 7}", "s_cbranch_scc1 L_nocpf")
        A("s_bfe_u32 s56, s2, 0x30003", "s_lshl_b32 s56, s56, 13", "s_min_u32 s56, s56, L_cold-attn_main_kernel-8192",
          f"v_add_u32 v5, s56, v{vXo}", "global_load_dword v241, v5, s[70:71]")
        T.append("L_nocpf:")
    a0, b0 = p_phase(cfg, 0)
    T.append(emit(fin(a0)))
    if cfg.nobnd & 4: A("s_waitcnt lgkmcnt(0)", "s_branch L_Pgo")
    A(f"s_bitcmp1_b32 s{sCNT}, 0", "s_cbranch_scc0 L_Pwr")
    T.append(emit(fin([raw("s_nop 1")] + q_pack(HLD) + [lgkm0()])))
    A("s_branch L_Pgo")
    T.append("L_Pwr:")
    pk, st = q_pack(TMP), q_store(TMP, 1)
    wr = q_store(HLD, 0)
    for k in range(8): wr += pk[6 * k:6 * k + 6] + ([st[k - 1]] if k else [])
    T.append(emit(fin(wr + [st[7], lgkm0()])))
    T.append("L_Pgo:")
    body = list(b0)
    for ph in range(1, 8):
        a, b = p_phase(cfg, ph)
        body += a + b
    T.append(emit(fin(body)))
    A(f"s_add_u32 s{sCNT}, s{sCNT}, 1", f"s_cmp_lt_u32 s{sCNT}, 8", "s_cbranch_scc1 L_Ploop")
    for mt in range(4): A(f"v_add_u32 v{aW+mt}, {XB}, v{aW2+mt}", f"v_add_u32 v{aW3+mt}, {WB0}, v{aW2+mt}")
    A("s_lshl_b32 s58, s6, 14", f"s_lshl_b32 s{sPo}, s{sQB}, 12", f"s_add_u32 s{sPo}, s{sPo}, s58")
    if cfg.prioP: A(f"s_setprio {cfg.prioP}")
    T.append(emit(fin([raw("s_nop 7")] + p_tail(cfg))))
    if cfg.fused:
        A("s_lshl_b32 s56, s5, 2", "s_lshr_b32 s58, s6, 1", "s_add_u32 s56, s56, s58", "s_lshl_b32 s56, s56, 10", f"s_add_u32 s56, s56, {FLG}")
        A(*srd_off(SX if cfg.dpoll else SFLG, 92, 93, "s56", 1024))
        T += a_reduce(cfg, 1)
    ST(3)
    A("s_endpgm")
    T.append("L_cold:")
    variants = {}
    for name, key in SITES.items():
        variants.setdefault(key, f"L_fbr_{key[0]}_{key[1]}_{int(key[2])}")
        T.append(f"L_fb_{name}:")
        A(f"s_call_b64 s[{sRET}:{sRET+1}], {variants[key]}", f"s_branch L_ret_{name}")
    for key, lab in variants.items():
        T.append(f"{lab}:")
        T.append(emit(fallback(*key)))
    T.append("L_end:")
    A("s_endpgm")
    return T

def reduce_kernel(cfg):
    T = []
    A = lambda *a: T.extend("    " + x for x in a)
    T += [".globl attn_reduce_kernel", ".p2align 8", ".type attn_reduce_kernel,@function", "attn_reduce_kernel:"]
    A("s_cmp_ge_u32 s2, 256", "s_cbranch_scc1 L_rend")
    if cfg.stamps: A("s_memrealtime s[40:41]")
    A("s_load_dwordx2 s[4:5], s[0:1], 80", "s_load_dwordx2 s[6:7], s[0:1], 96")
    A("s_lshr_b32 s18, s2, 3", "s_and_b32 s19, s2, 7")
    A("s_lshl_b32 s20, s18, 21", "s_lshl_b32 s21, s19, 17", "s_add_u32 s20, s20, s21", "s_add_u32 s20, s20, 0x100000")
    A("v_lshrrev_b32 v1, 6, v0", "v_and_b32 v2, 63, v0", "v_lshlrev_b32 v3, 4, v2", "v_lshl_add_u32 v3, v1, 11, v3")
    A("s_waitcnt lgkmcnt(0)")
    A(*srd_off(8, 6, 7, "s20", 131072))
    for src in range(8):
        A(f"s_mov_b32 s22, {src*16384}")
        for pair in range(2):
            b = 16 + (src * 2 + pair) * 4
            A(f"buffer_load_dwordx4 v[{b}:{b+3}], v3, s[8:11], s22 offen offset:{pair*1024} {cfg.rflags}")
    A(*srd(12, 4, 5, 1 << 22))
    A("s_and_b32 s23, s18, 15", "s_lshl_b32 s23, s23, 18", "s_lshr_b32 s24, s18, 4", "s_lshl_b32 s24, s24, 10", "s_add_u32 s23, s23, s24",
      "s_lshl_b32 s24, s19, 7", "s_add_u32 s23, s23, s24")
    A("v_and_b32 v4, 15, v2", "v_lshl_add_u32 v4, v1, 4, v4", "v_lshlrev_b32 v4, 11, v4",
      "v_bfe_u32 v5, v2, 4, 1", "v_lshl_add_u32 v4, v5, 5, v4", "v_lshrrev_b32 v5, 5, v2", "v_lshl_add_u32 v4, v5, 4, v4")
    acc = 80
    for src in range(8):
        A(f"s_waitcnt vmcnt({(7-src)*2})")
        for pair in range(2):
            b = 16 + (src * 2 + pair) * 4
            for i in range(4):
                lo, hi = acc + pair * 8 + 2 * i, acc + pair * 8 + 2 * i + 1
                if src == 0:
                    A(f"v_lshlrev_b32 v{lo}, 16, v{b+i}", f"v_and_b32 v{hi}, 0xffff0000, v{b+i}")
                else:
                    A(f"v_lshlrev_b32 v6, 16, v{b+i}", f"v_and_b32 v7, 0xffff0000, v{b+i}", f"v_add_f32 v{lo}, v{lo}, v6", f"v_add_f32 v{hi}, v{hi}, v7")
    for pair in range(2):
        a = acc + pair * 8
        for i in range(4): A(f"v_cvt_pk_bf16_f32 v{16+pair*4+i}, v{a+2*i}, v{a+2*i+1}")
    A("s_nop 1")
    for pair in range(2):
        d = 16 + pair * 4
        A(f"v_permlane16_swap_b32 v{d}, v{d+2}", f"v_permlane16_swap_b32 v{d+1}, v{d+3}")
        A(f"buffer_store_dwordx4 v[{d}:{d+3}], v4, s[12:15], s23 offen offset:{pair*64} {cfg.outflags}")
    if cfg.stamps and not cfg.series:
        A("s_waitcnt vmcnt(0)", "s_memrealtime s[42:43]", "s_waitcnt lgkmcnt(0)")
        A(*srd_off(8, 6, 7, WS_BYTES - (1 << 20), 1 << 20))
        A("s_lshl_b32 s22, s2, 8", "v_mov_b32 v4, s40", "v_mov_b32 v5, s41", "v_mov_b32 v6, s42", "v_mov_b32 v7, s43",
          "v_cmp_eq_u32 vcc, 0, v0", "s_and_saveexec_b64 s[34:35], vcc", "s_cbranch_execz L_rend",
          "buffer_store_dwordx4 v[4:7], v0, s[8:11], s22 offen offset:32")
    T.append("L_rend:")
    A("s_endpgm")
    return T

def kd(name, vgpr, sgpr):
    return [".p2align 6", f".amdhsa_kernel {name}", f"  .amdhsa_next_free_vgpr {vgpr}", f"  .amdhsa_next_free_sgpr {sgpr}",
            f"  .amdhsa_accum_offset {(vgpr+3)//4*4}", "  .amdhsa_group_segment_fixed_size 0", "  .amdhsa_kernarg_size 104",
            "  .amdhsa_user_sgpr_count 2", "  .amdhsa_user_sgpr_kernarg_segment_ptr 1", "  .amdhsa_system_sgpr_workgroup_id_x 1",
            ".end_amdhsa_kernel"]

DOC = """
; ---------------------------------------------------------------------------------------------------------
; One persistent workgroup per CU = (branch, batch b, 4 heads).  8 waves, two roles, all MFMA 16x16x32 bf16:
;   waves 4-7 ("P"): x fragments stay in registers; Q = x wq for the next head, all LDS-DMA of K/V/wq,
;                    then out-projection of the workgroup's own 4 heads (bf16 partial sums to d_ws)
; Softmax: reference = true row max of the first key tile of each head (folded in as the MFMA C input); every
;   half tile checks its exp sums against 2^20 and otherwise calls L_fbr_* which raises the reference to the
;   running max and rescales O, l and pending P exactly (integer power of two).
; Cross-workgroup reduce of the 8 partial sums of a (branch, batch): sc1 stores -> vmcnt -> sc1 flag (one line per
;   writer, cleared at start; the d_debug counter says all writers of the group have cleared), sc1 polls and loads.
; Generated by a script (software pipelining, counted waits and wait states are computed there).
; ---------------------------------------------------------------------------------------------------------
"""

def generate(cfg, path):
    SITES.clear()
    KPERM[0] = cfg.kperm
    T = header()
    if cfg.fused:
        T += ["; @launch grid=(256,1,1) block=(512,1,1) lds=163840"]
    else:
        T += ["; @launch kernel=attn_main_kernel grid=(256,1,1) block=(512,1,1) lds=163840",
              "; @launch kernel=attn_reduce_kernel grid=(256,1,1) block=(512,1,1) lds=0"]
    T += ['.amdgcn_target "amdgcn-amd-amdhsa--gfx950"', ".text"]
    T += DOC.strip("\n").split("\n")
    T += main_kernel(cfg)
    if not cfg.fused: T += reduce_kernel(cfg)
    T += ['.section .rodata,"a"'] + kd("attn_main_kernel", 256, 102)
    if not cfg.fused: T += kd("attn_reduce_kernel", 96, 48)
    txt = "\n".join(T) + "\n"
    if cfg.fused: txt = txt.replace("attn_main_kernel", NAME + "_kernel")
    open(path, "w").write(txt)

if __name__ == "__main__":
    cfg = Cfg()
    out = "k.s"
    for a in sys.argv[1:]:
        if "=" in a:
            k, v = a.split("=", 1)
            cur = getattr(cfg, k)
            setattr(cfg, k, (v not in ("0", "False")) if isinstance(cur, bool) else type(cur)(v))
        else:
            out = a
    generate(cfg, out)
```

```python
import sys, math, struct
from asmlib import *

NAME = "concat_heads__mha_block_cached__mha_block_cached__near_ridge"
WS_BYTES = 289406976
def f2u(x): return struct.unpack("<I", struct.pack("<f", x))[0]

KB0, VB0, WB0, XB, YB = 0, 32768, 65536, 98304, 131072
DROP = 0x30000
OOB = 0x40000000
SK, SV, SWQ, SWO, SX, SPART = 8, 12, 16, 20, 24, 32
sW, sQB, sCNT, sBND, sSCL, sKo, sVo, sWc, sT, sM0, sWm0, sRET = 36, 37, 38, 39, 40, 41, 42, 43, 44, 45, 46, 48
sPo, sCol, sPo1, sX16, sROT, sKn, sVn, sWn, sKs, sVs = 50, 51, 52, 53, 59, 28, 29, 30, 54, 55
sFm0 = 31
sKVm0 = 47
sTX = 4
SFLG, SDBG, SOUT = 72, 76, 80
sFv = 84
vFlag = 240
FLG = 0x4800000
aW3 = 248
aX = 253
vWoA = 253
def Qf(s, qs): return 8 + (s * 2 + qs) * 4
def Oa(dt, qs): return 40 + (dt * 2 + qs) * 4
def Sr(n, kt, qs):
    if kt < 2: return 104 + (kt * 2 + qs) * 4
    return 120 + (n & 1) * 16 + ((kt - 2) * 2 + qs) * 4
def Pf(n, u, qs):
    if u == 0: return 152 + (n & 1) * 8 + qs * 4
    return 168 + qs * 4
def NM(qs): return 176 + qs * 4
def FR(f): return 184 + (f & 7) * 4
TMP = 216
vL, vLS, vTS = 232, 234, 236
aK, aV, aQ, aO, vLane = 238, 242, 250, 251, 252
def Bf(s, qs): return 8 + (s * 2 + qs) * 4
def Ac(mt, qs): return 136 + (mt * 2 + qs) * 4
HLD = 168
aW, aW2, vKo, vVo, vWq, vWo, aQw, vXo = 232, 236, 242, 243, 244, 245, 246, 247

BAR_IDX = 19

class Cfg:
    stamps = False
    kvflags = "nt"
    wflags = ""
    pflags = "sc1"
    xflags = ""
    woflags = ""
    rflags = ""
    outflags = ""
    force_fb = False
    mapping = 2
    rot = 1
    codepf = True
    wopf = True
    prioA = 0
    cal_pro = 0
    cal_main = 0
    cal_end = 0
    cal_mid = 0
    cal_wg = -1
    probe = -1
    fused = True
    lastbar = 26
    flagc = 0
    flaglag = 5
    ne = 3
    startfast = 4
    tlbw = 0
    kvfirst = False
    tfast = 99
    dpoll = False
    pubs = "23:4"
    pfmode = 0
    nobnd = 0
    xb1 = 7
    xb2 = 13
    sser = False
    rn1 = 4
    rn2 = 16
    kperm = 0
    h1touch = 0
    slowmask = 0xfc
    pvmfast = 6
    slowph = 0xff
    slowmask2 = 0x60
    tx = 0
    avoid = True
    minlead = 3
    kvpos = ""
    tlead = 1
    tlate = 3
    pvm = 5
    kvlate = 0
    psplit = 6
    pspread = True
    half = 7
    ktouch = 0
    tflags = ""
    thead = 2
    bstamp = False
    midbar = 17
    aper = 2
    pubfrom = 22
    stw = 0
    pfbody = 7
    order = "AFHTFFFF"
    pdup = 0
    plead = 2
    pwflags = ""
    krot = 0
    series = False
    prioM = 0
    ppace = 0
    nopm = False
    nodma = False
    noav = False
    barq = 19
    barp = 23
    locap = 2
    pf0 = 28
    fbar = 1
    fwait = 2
    fburst = 1
    prioP = 0
    nokv = False
    nowq = False
    nowo = False
    nops = False

def stamp(cfg, idx):
    if not cfg.stamps: return []
    return [S("s_memrealtime s[60:61]"), S("s_memtime s[94:95]"), raw("s_waitcnt lgkmcnt(0)", "lgkm0"),
            raw("v_mov_b32 v2, s60"), raw("v_mov_b32 v3, s61"), raw("v_mov_b32 v4, 0"),
            raw("v_mov_b32 v6, s94"), raw("v_mov_b32 v7, s95"),
            raw("s_mov_b64 s[62:63], exec"), raw("s_mov_b64 exec, 1"),
            raw(f"buffer_store_dwordx2 v[2:3], v4, s[64:67], s68 offen offset:{idx*8}"),
            raw(f"buffer_store_dwordx2 v[6:7], v4, s[64:67], s68 offen offset:{idx*8+64}"),
            raw("s_mov_b64 exec, s[62:63]")]

def softmax_part(n, part):
    L = []
    for qs in range(2):
        for k in range(2):
            s = Sr(n, 2 * part + k, qs)
            e = [TMP + k * 4 + i for i in range(4)]
            for i in range(4): L.append(vexp(e[i], s + i))
            if k == 0:
                L.append(valu("v_add_f32", vTS + qs, e[0], e[1]))
            else:
                L.append(valu("v_add_f32", vTS + qs, vTS + qs, e[0]))
                L.append(valu("v_add_f32", vTS + qs, vTS + qs, e[1]))
            L.append(cvtpk(Pf(n, part, qs) + 2 * k, e[0], e[1]))
            L.append(valu("v_add_f32", vTS + qs, vTS + qs, e[2]))
            L.append(valu("v_add_f32", vTS + qs, vTS + qs, e[3]))
            L.append(cvtpk(Pf(n, part, qs) + 2 * k + 1, e[2], e[3]))
    return L

def l_update(n, part):
    t = n & 7
    if t == 0 and part == 0:
        return [valu("v_mov_b32", vL + qs, vTS + qs) for qs in range(2)]
    if t == 7 and part == 1:
        return [valu("v_add_f32", vLS + qs, vL + qs, vTS + qs) for qs in range(2)]
    return [valu("v_add_f32", vL + qs, vL + qs, vTS + qs) for qs in range(2)]

SITES = {}
def check_pre(n):
    if (n & 7) == 0: return []
    return [valu("v_max_f32", TMP + 8, vTS, vTS + 1), I(f"v_cmp_lt_f32 vcc, s{sBND}, v{TMP+8}", "valu", (), {TMP + 8})]
def check(n, part, sfx):
    t = n & 7
    if t == 0: return []
    name = f"{sfx}{t}_{part}"
    SITES[name] = (n & 1, part, t == 7)
    return [raw(f"s_cbranch_vccnz L_fb_{name}"), label(f"L_ret_{name}")]

def xgroup(op, x, t):
    return [valu("v_mov_b32", t, x), swap32(t, x), valu(op, x, x, t),
            valu("v_mov_b32", t, x), swap16(t, x), valu(op, x, x, t)]

def rowmax(dst, srcs):
    L = [valu("v_max3_f32", dst, srcs[0], srcs[1], srcs[2])]
    rest = srcs[3:]
    while len(rest) >= 2:
        L.append(valu("v_max3_f32", dst, dst, rest[0], rest[1])); rest = rest[2:]
    if rest: L.append(valu("v_max_f32", dst, dst, rest[0]))
    return L

def zipl(a, b):
    out = []
    for i in range(max(len(a), len(b))):
        if i < len(a): out.append(a[i])
        if i < len(b): out.append(b[i])
    return out

def first_tile_max(n):
    per = []
    for qs in range(2):
        m, t = TMP + 8 + qs, TMP + 10 + qs
        srcs = [Sr(n, kt, qs) + i for kt in range(4) for i in range(4)]
        L = rowmax(m, srcs) + xgroup("v_max_f32", m, t)
        L += [valu("v_sub_f32", s, s, m) for s in srcs[:8]]
        per.append(L)
    L = zipl(per[0], per[1])
    late = []
    for qs in range(2):
        m = TMP + 8 + qs
        late += [valu("v_sub_f32", NM(qs) + i, "0", m) for i in range(4)]
        late += [valu("v_sub_f32", s, s, m) for s in [Sr(n, kt, qs) + i for kt in (2, 3) for i in range(4)]]
    return L, late

def o_epilogue(cfg):
    per = []
    for qs in range(2):
        per.append(xgroup("v_add_f32", vLS + qs, TMP + 12 + qs) + [vrcp(vLS + qs, vLS + qs)])
    L = zipl(per[0], per[1])
    k = 0
    for s in range(4):
        for qs in range(2):
            q = TMP + 8 + (k & 1) * 4
            for h in range(2):
                o = Oa(2 * s + h, qs)
                for i in range(4): L.append(valu("v_mul_f32", o + i, o + i, vLS + qs))
                L.append(cvtpk(q + 2 * h, o, o + 1)); L.append(cvtpk(q + 2 * h + 1, o + 2, o + 3))
            L.append(ds_w128(aO, q, (s * 2 + qs) * 1024))
            k += 1
    return L

def k_read(n, f): return [ds_r128(FR(f), aK + (f & 3), KB0 + (n & 1) * 16384 + (f >> 2) * 4096)]
def v_read(n, f):
    dt, u = f >> 1, f & 1
    o = VB0 + (n & 1) * 16384 + u * 8192
    return [ds_tr(FR(f), aV + dt, o), ds_tr(FR(f) + 2, aV + dt, o + 4096)]

NT = 32
def units(i):
    if i.k == "label" or "vmcnt" in i.t: return 0
    return 2 if i.k == "trans" else 1

def schedule(main, ds, blocks, fixed, lo_cap=2):
    fill = []
    ds = list(ds)
    n = len(main)
    used = [0] * (n + 64)
    for p, L in fixed.items(): used[p] += sum(units(i) for i in L)
    for p in range(1, n):
        if main[p] is not None and main[p].tag: used[p - 1] += 1
    g = 0
    cnt = {}
    bars = sorted(p for p, L in fixed.items() if any(i.k == "lgkm0" for i in L))
    for e, ins in ds:
        g = max(g, e)
        while cnt.get(g, 0) >= (1 if (g & 1) == 0 else 2) and main[min(g, n - 1)] is not None: g += 1
        nb = [b for b in bars if b >= e]
        assert not nb or g <= nb[0] - 2, (e, g, ins.t)
        cnt[g] = cnt.get(g, 0) + 1
        used[g] += 1
        fill.append((g, 1, ins))
    def conflict(a, b):
        return bool(a.w & (b.r | b.w)) or bool(a.r & b.w) or (not a.w and not a.r) or (not b.w and not b.r) or (a.k == "dsw" and b.k == "dsw")
    def try_place(s, e, L, hi):
        u = list(used); rest = list(L); out = []
        last = None
        for p in range(s, e + 1):
            cap = lo_cap if (p & 1) == 0 else hi
            last = None
            while rest:
                pick = None
                for k in range(min(len(rest), 14)):
                    c = rest[k]
                    if u[p] + units(c) > cap: continue
                    if any(conflict(x, c) for x in rest[:k]): continue
                    if last is not None and last.k == "trans" and c.k != "trans" and last.w & c.r: continue
                    if last is not None and c.k == "perm" and last.w & c.r: continue
                    pick = k; break
                if pick is None: break
                c = rest.pop(pick); u[p] += units(c); out.append((p, 0, c)); last = c
        return (u, out) if not rest else None
    for (s, e, L) in blocks:
        hi = lo_cap
        while True:
            r = try_place(s, e, L, hi)
            if r: break
            hi += 1
        used, out = r
        fill += out
    pre = [(p, i) for (p, o, i) in fill]
    return pre

def a_stream(cfg):
    qrd = lambda: [ds_r128(Qf(s, qs), aQ, (s * 2 + qs) * 1024) for s in range(4) for qs in range(2)]
    pre = qrd()
    for f in range(8): pre += k_read(0, f)
    main, ds, blocks, fixed = [], [], [], {}
    BQ, BP = cfg.barq, cfg.barp
    for n in range(NT + 1):
        t = n & 7
        sfx = "T" if n >= NT else "L"
        real = n < NT
        b0 = 64 * n
        for kt in range(4):
            for qs in range(2):
                for s in range(4):
                    c = Sr(n, kt, qs) if s else (None if t == 0 else NM(qs))
                    dep = [FR(4 * kt + x) for x in range(4)] if (qs == 0 and s == 0) else ()
                    main.append(mfma(Sr(n, kt, qs), FR(4 * kt + s), Qf(s, qs), c, dep) if real else None)
        if real:
            for f in range(8, 16):
                ds += [(b0 + 4 + (f & 3) + 8 * ((f - 8) >> 2), i) for i in k_read(n, f)]
        if n >= 1:
            va = softmax_part(n - 1, 1) + check_pre(n - 1)
            if t == 1 and n > 8 and not cfg.nobnd & 1: va = va[:12] + zipl(o_epilogue(cfg), va[12:])
            blocks.append((b0, b0 + 30, va))
        if n == 0:
            fixed[cfg.xb1] = [barrier()]
            fixed[cfg.xb2] = [barrier()]
        fixed[b0 + BQ] = ([vmcnt(4)] if n == 1 else []) + [lgkm0(), barrier()]
        if n >= 1:
            for f in range(8):
                ds += [(b0 + max(BQ + 1, 20 + (f & 3) + 8 * (f >> 2)), i) for i in v_read(n - 1, f)]
            fixed[b0 + 31] = check(n - 1, 1, sfx) + l_update(n - 1, 1)
        realpv = n >= 1
        m = n - 1
        b1 = b0 + 32
        for dt in range(8):
            for (u, qs) in ((0, 0), (1, 0), (1, 1), (0, 1)):
                firstk = (u == 0 and qs == 0) or (u == 1 and qs == 1)
                c = None if ((m & 7) == 0 and firstk) else Oa(dt, qs)
                dep = [FR(2 * dt + 1)] if (u == 0 and qs == 0) else ()
                main.append(mfma(Oa(dt, qs), FR(2 * dt + u), Pf(m, u, qs), c, dep) if realpv else None)
        qq = qrd() if t == 7 else []
        if realpv:
            for p in range(4):
                ds += [(b1 + 2 + 4 * p, i) for i in v_read(m, 9 + 2 * p)] + [(b1 + 3 + 4 * p, i) for i in v_read(m, 8 + 2 * p)]
                ds += [(b1, i) for i in qq[2 * p:2 * p + 2]]
        if real:
            va = softmax_part(n, 0) + check_pre(n)
            if t == 0 and not (cfg.nobnd & 2 and n > 0):
                early, late = first_tile_max(n)
                blocks.append((b1 + 2, b1 + 30, early + va + late))
            else:
                blocks.append((b1, b1 + 30, va))
        fixed[b1 + BP] = ([vmcnt(8 if n == 0 else 0)] if n < 2 else []) + [lgkm0(), barrier()]
        if n + 1 < NT:
            for f in range(8):
                ds += [(b1 + max(BP + 1, 19 + 4 * (f >> 1)), i) for i in k_read(n + 1, f)]
        if real:
            sf2 = "T" if n + 1 >= NT else "L"
            fixed[b1 + 31] = check(n, 0, sf2) + l_update(n, 0)
    fill = schedule(main, ds, blocks, fixed, cfg.locap)
    fill += [(p, i) for p, L in fixed.items() for i in L]
    seq = pre + [i for i in interleave(main, fill) if i is not None]
    seq += o_epilogue(cfg)
    seq += [lgkm0(), barrier()]
    if cfg.noav: seq = [i for i in seq if i.k not in ("valu", "trans", "perm") and "cbranch" not in i.t]
    return seq

def split_segments(seq):
    segs, cur = [], []
    for i in seq:
        cur.append(i)
        if i.k == "barrier":
            segs.append(cur); cur = []
    if cur: segs.append(cur)
    return segs

def fallback(par, part, last):
    n = par + 2
    L = [raw("s_nop 7"), raw("s_nop 3")]
    D, F, T = TMP + 8, TMP + 10, TMP + 12
    kts = range(4) if part == 0 else (2, 3)
    for qs in range(2):
        srcs = [Sr(n, kt, qs) + i for kt in kts for i in range(4)]
        d, f, t = D + qs, F + qs, T + qs
        L += rowmax(d, srcs) + xgroup("v_max_f32", d, t)
        L += [valu("v_max_f32", d, "0", d), valu("v_ceil_f32", d, d), valu("v_sub_f32", t, "0", d), vexp(f, t)]
        L += [valu("v_sub_f32", s, s, d) for s in srcs]
        L += [valu("v_sub_f32", NM(qs) + i, NM(qs) + i, d) for i in range(4)]
        L += [valu("v_mul_f32", vL + qs, vL + qs, f)]
        L += [valu("v_mul_f32", Oa(dt, qs) + i, Oa(dt, qs) + i, f) for dt in range(8) for i in range(4)]
        if part == 1:
            for i in range(4):
                p = Pf(n, 0, qs) + i
                L += [valu("v_lshlrev_b32", t, "16", p), valu("v_and_b32", p, "0xffff0000", p),
                      valu("v_mul_f32", t, t, f), valu("v_mul_f32", p, p, f), cvtpk(p, t, p)]
            if not last:
                L += [valu("v_sub_f32", s, s, d) for s in [Sr(n + 1, kt, qs) + i for kt in range(4) for i in range(4)]]
    L += softmax_part(n, part)
    L += [raw("s_nop 2"), raw(f"s_setpc_b64 s[{sRET}:{sRET+1}]")]
    return fix_hazards(L)

def q_pack(dst):
    L = []
    for mt in range(4):
        for qs in range(2):
            a = Ac(mt, qs); d = dst + (mt * 2 + qs) * 2
            for i in range(4): L.append(valu("v_mul_f32", a + i, f"s{sSCL}", a + i))
            L += [cvtpk(d, a, a + 1), cvtpk(d + 1, a + 2, a + 3)]
    return L
def q_store(src, hf):
    return [ds_w64(aQw, src + (mt * 2 + qs) * 2, hf * 4096 + (mt >> 1) * 2048 + qs * 1024 + (mt & 1) * 512)
            for mt in range(4) for qs in range(2)]

def wc_adv():
    return [S(f"s_add_u32 s{sWn}, s{sWn}, 1"), S(f"s_add_u32 s{sWc}, s{sWc}, 128"), S(f"s_and_b32 s{sWc}, s{sWc}, 0x3803ff"),
            S(f"s_cmp_ge_u32 s{sWn}, 8"), S(f"s_cselect_b32 s{sWc}, {OOB}, s{sWc}"), S(f"s_cselect_b32 s{sWm0}, {DROP}, s{sWm0}")]
def wq_dma(cfg, kc, ks):
    return [m0set(f"s_add_u32 m0, s{sWm0}, {(kc & 3)*8192 + ks*4096}"),
            S(f"s_add_u32 s{sT}, s{sWc}, {kc * (1 << 19) + ks * (1 << 18)}"), S(f"s_and_b32 s{sT}, s{sT}, 0x403fffff"),
            dma(vWq, SWQ, f"s{sT}", 0, cfg.wflags)]
KPERM = [0]
def kv_xform(s):
    if KPERM[0] == 0: return [S(f"s_xor_b32 s{s}, s{s}, s{sTX}")]
    sh = {1: 2, 2: 1}[KPERM[0]]
    return [S(f"s_xor_b32 s{s}, s{s}, s{sTX}"), S(f"s_and_b32 s{sT}, s{s}, 0x1c000"), S(f"s_xor_b32 s{s}, s{s}, s{sT}"),
            S(f"s_lshr_b32 s{sT}, s{sT}, {sh}"), S(f"s_or_b32 s{s}, s{s}, s{sT}")]
def kv_pre(isK):
    n, o, s = (sKn, sKo, sKs) if isK else (sVn, sVo, sVs)
    return [S(f"s_cmp_lt_u32 s{n}, 30"), S(f"s_cselect_b32 s{s}, s{o}, {OOB}"), S(f"s_cselect_b32 s{sKVm0}, s{sM0}, {DROP}")] + kv_xform(s) + [
            S(f"s_add_u32 s{n}, s{n}, 1"), S(f"s_add_u32 s{o}, s{o}, 16384"), S(f"s_and_b32 s{o}, s{o}, 0x7ffff")]
def kv_dma(cfg, isK, slot, jj):
    base = (KB0 if isK else VB0) + slot * 16384 + jj * 3072
    return [m0set(f"s_add_u32 m0, s{sKVm0}, {base}"),
            dma(vKo if isK else vVo, SK if isK else SV, f"s{sKs if isK else sVs}", jj * 1024, cfg.kvflags)]
def kv_issue(cfg, isK, slot):
    L = kv_pre(isK)
    for jj in range(4): L += kv_dma(cfg, isK, slot, jj)
    return L

PRO_REG = [YB, VB0, XB, WB0, KB0]
sKR = 58
def Ac2(mt, qs):
    k = mt * 2 + qs
    return HLD + 4 * k if k < 4 else TMP + 4 * (k - 4)

def qwait(q, tags):
    last = max(i for i, t in enumerate(q) if t in tags)
    return vmcnt(len(q) - 1 - last)

def a_prologue(cfg):
    seq, q = [], []
    def wq(kc):
        L = []
        for hf in range(2):
            for ks in range(2):
                L += [m0set(f"s_add_u32 m0, s{sM0}, {PRO_REG[kc % 5] + hf*8192 + ks*4096}"),
                      S(f"s_add_u32 s{sT}, s{sWc}, {kc * (1 << 19) + ks * (1 << 18) + hf * 128}"), S(f"s_and_b32 s{sT}, s{sT}, 0x3fffff"),
                      dma(vWq, SWQ, f"s{sT}", 0, cfg.pwflags)]
        L += x_dma(cfg, kc)
        q.extend([kc] * 8)
        return L
    def two(isK):
        L = []
        s = sKs if isK else sVs
        for slot in range(2):
            L += [S(f"s_add_u32 s{s}, s{sCol}, {slot * 16384}")] + kv_xform(s)
            for jj in range(4): L += kv_dma(cfg, isK, slot, jj)
        q.extend(["kv"] * 8)
        return L
    first = []
    for kc in range(cfg.plead): first += wq(kc)
    seq.append(S(f"s_mov_b32 s{sKVm0}, s{sM0}"))
    nxt = cfg.plead
    for kc in range(9):
        seq += [qwait(q, {kc}), barrier()]
        while nxt <= min(kc + 3, 7) and nxt <= kc + cfg.plead:
            seq += wq(nxt); nxt += 1
        if kc == 5:
            seq += [S(f"s_add_u32 s{sWc}, s{sWc}, 256"), S(f"s_and_b32 s{sWc}, s{sWc}, 0x3803ff"), S(f"s_add_u32 s{sWm0}, s{sM0}, {WB0}")]
            for c in range(4):
                for ks in range(2): seq += wq_dma(cfg, c, ks)
            q += [8] * 8
        if kc == 6: seq += two(True)
        if kc == 8: seq += two(False)
    return first, seq

def x_dma(cfg, kc):
    L = [m0set(f"s_add_u32 m0, s{sX16}, {PRO_REG[kc % 5] + 16384}"),
         S(f"s_add_u32 s{sT}, s{sKR}, {kc * 128}"), S(f"s_and_b32 s{sT}, s{sT}, 1023")]
    for p in range(4):
        if p: L += [m0set("s_add_u32 m0, m0, 1024"), S(f"s_add_u32 s{sT}, s{sT}, 8192")]
        L.append(dma(vXo, SX, f"s{sT}", 0, cfg.xflags))
    return L

def p_prologue(cfg):
    def base_of(addr):
        return (0, 0) if addr < 65536 else ((1, WB0) if addr < YB else (2, YB))
    def rd(kc, f):
        if kc == 8: return ring_read(0, f)
        hf, mt, ks = f >> 3, (f >> 1) & 3, f & 1
        addr = PRO_REG[kc % 5] + hf * 8192 + ks * 4096
        k, base = base_of(addr)
        a = (aW2, aW, aW3)[k]
        return [ds_tr(FR(f), a + mt, addr - base), ds_tr(FR(f) + 2, a + mt, addr - base + 512)]
    def xrd(kc):
        addr = PRO_REG[kc % 5] + 16384
        k, base = base_of(addr)
        return [ds_r128(Bf(2 * kc + ks, qs), aX + k, addr - base + qs * 2048 + ks * 64) for ks in range(2) for qs in range(2)]
    pre = [barrier()] + xrd(0)
    for f in range(8): pre += rd(0, f)
    main, fill = [], []
    for kc in range(8):
        b0 = 32 * kc
        for g in range(8):
            hf, mt = g >> 2, g & 3
            for (ks, qs) in ((0, 0), (1, 0), (1, 1), (0, 1)):
                firstk = (ks == 0 and qs == 0) or (ks == 1 and qs == 1)
                a = (Ac if hf else Ac2)(mt, qs)
                dep = [FR(2 * g + 1)] if (ks == 0 and qs == 0) else ()
                main.append(mfma(a, FR(2 * g + ks), Bf(2 * kc + ks, qs), None if (kc == 0 and firstk) else a, dep))
            if g == 4:
                fill.append((b0 + 17, barrier()))
                if kc < 7: fill += [(b0 + 17 + 2 * k, x) for k, x in enumerate(xrd(kc + 1))]
            k2, f2 = (kc, 2 * g + 8) if g < 4 else (kc + 1, 2 * g - 8)
            r = rd(k2, f2 + 1) + rd(k2, f2)
            fill += [(b0 + 4 * g + 2 + k, x) for k, x in enumerate(r)]
        if kc == 7:
            pk = []
            for mt in range(4):
                for qs in range(2):
                    a = Ac2(mt, qs); d = HLD + (mt * 2 + qs) * 2
                    for i in range(4): pk.append(valu("v_mul_f32", a + i, f"s{sSCL}", a + i))
                    pk += [cvtpk(d, a, a + 1), cvtpk(d + 1, a + 2, a + 3)]
            fill += [(b0 + p, x) for p, x in spread(pk + q_store(HLD, 0), 18, 31)]
    seq = pre + interleave(main, fill)
    pk, st = q_pack(TMP), q_store(TMP, 1)
    for k in range(8): seq += pk[6 * k:6 * k + 6] + [st[k]]
    seq += [lgkm0(), barrier()]
    return seq

def ring_read(kc, f):
    mt, ks = f >> 1, f & 1
    o = (kc & 3) * 8192 + ks * 4096
    return [ds_tr(FR(f), aW + mt, o), ds_tr(FR(f) + 2, aW + mt, o + 512)]

def chunk_mfmas(kc):
    L = []
    for mt in range(4):
        for (ks, qs) in ((0, 0), (1, 0), (1, 1), (0, 1)):
            firstk = (ks == 0 and qs == 0) or (ks == 1 and qs == 1)
            c = None if (kc == 0 and firstk) else Ac(mt, qs)
            dep = [FR(2 * mt + 1)] if (ks == 0 and qs == 0) else ()
            L.append(mfma(Ac(mt, qs), FR(2 * mt + ks), Bf(2 * kc + ks, qs), c, dep))
    return L

def p_phase(cfg, ph):
    PS = cfg.psplit
    isK = (ph & 1) == 1
    slot = [1, 1, 0, 0, 1, 1, 0, 0][ph]
    m1, m2 = chunk_mfmas((ph - 1) & 7)[PS:], chunk_mfmas(ph)[:PS]
    fill = []
    pos = -1
    for mt in range(4):
        for f, last in ((2 * mt + 1, 4 * mt + 2), (2 * mt, 4 * mt + 3)):
            for x in ring_read(ph, f):
                pos = max(pos, last - PS)
                fill.append((min(pos, len(m1) - 1), x))
                if cfg.pspread: pos += 1
    kv = kv_issue(cfg, isK, slot)
    head, rest = kv[:-6], kv[-6:]
    d = []
    if ph == 5: d += wc_adv()
    for ks in range(2): d += wq_dma(cfg, (ph + 3) & 7, ks)
    fill2 = []
    if cfg.kvpos:
        P = [int(x) for x in cfg.kvpos.split(",")]
        nw = len(d) - 4
        groups = [d[:nw], d[nw:], kv[:-6], kv[-6:-4], kv[-4:-2], kv[-2:]]
        extra = []
        for p, gl in zip(P, groups):
            if p < len(m1) or ph == 0: extra += [(min(p, len(m1) - 1), x) for x in gl]
            else: fill2 += [(p - len(m1), x) for x in gl]
        fill = extra + fill
    elif cfg.kvlate:
        fill = spread(d, -1, 2) + spread(kv, cfg.kvlate, len(m1) - 1) + fill
    else:
        fill = [(-1, x) for x in head] + [(k // 2, x) for k, x in enumerate(rest)] + spread(d, 3, 8) + fill
    a = interleave(m1, fill)
    if cfg.slowmask >= 0 and not (cfg.slowph >> ph) & 1:
        wt = [vmcnt(cfg.pvmfast)]
    elif cfg.slowmask >= 0:
        wt = [S(f"s_bitcmp1_b32 {((cfg.slowmask2 if (ph & 1) and cfg.slowmask2 >= 0 else cfg.slowmask) & ~(4 if ph <= cfg.startfast else 0)):#x}, s{sCNT}"), raw(f"s_cbranch_scc0 L_fast{ph}"), vmcnt(cfg.pvm), label(f"L_fast{ph}"), vmcnt(cfg.pvmfast)]
    else:
        wt = [vmcnt(cfg.pvm)]
    b = interleave(m2, fill2) + wt + [lgkm0(), barrier()]
    if cfg.nopm: a, b = [[i for i in s if i.k not in ("mfma", "dsr")] for s in (a, b)]
    if cfg.nodma: a = [i for i in a if i.k not in ("dma",)]
    return a, b

def wo_chunk(cfg, k, plan, voff=None):
    sl, c = plan["blocks"][k]; slot = plan["slot"][k]
    L = []
    for ks in range(4):
        lds = (XB + slot * 16384 if slot < 4 else (slot - 4) * 16384) + ks * 4096
        L += [m0set(f"s_add_u32 m0, s{sM0}, {lds}"),
              S(f"s_add_u32 s{sT}, s{sCol}, {c * 131072 + ks * 32768 + sl * 128}"), S(f"s_and_b32 s{sT}, s{sT}, 0x7ffff"),
              dma(voff or vWo, SWO, f"s{sT}", 0, cfg.woflags)]
    return vtag(L, ("wo", k))

def b_load(pos, addr):
    return [ds_r128(Bf(4 * pos + (fr >> 1), fr & 1), addr, fr * 1024) for fr in range(8)]

def w_read(slot, f):
    mt, ks = f >> 2, f & 3
    o = (slot & 3) * 16384 + ks * 4096
    a = (aW if slot < 4 else (aW2 if slot < 8 else aW3)) + mt
    return [ds_tr(FR(f), a, o), ds_tr(FR(f) + 2, a, o + 512)]

def tail_plan(cfg):
    ne = cfg.ne
    names = {"A": "A", "H": "H", "T": "T", "L": "L0", "M": "L1", "F": "F"}
    order = cfg.order or ("AHTLM"[:ne] + "F" * (8 - ne))
    fo = [names[ch] for ch in order]
    early = [d for d in ("L0", "L1", "H", "T", "A") if d in fo]
    blocks = [(fo.index(d), c) for d in early for c in range(3)]
    n0 = len(blocks)
    for s, d in enumerate(fo):
        blocks += [(s, c) for c in (range(4) if d == "F" else (3,))]
    slot = {k: k & 3 for k in range(n0 + 3)}
    slot[n0 + 3] = 4; slot[n0 + 4] = 5
    a_issue = {}
    free = []
    nxt = n0 + 5
    pre = {17: [n0 + 3], 18: [n0 + 4]}
    if "L0" not in fo:
        slot[n0 + 5] = 8; slot[n0 + 6] = 9; nxt = n0 + 7
        pre = {15: [n0 + 3], 17: [n0 + 4], 18: [n0 + 5], 19: [n0 + 6]}
    busy = {k: (blocks[k][1] == 3) or (k > n0 and blocks[k - 1][1] == 3) for k in range(n0, 32)}
    for k in range(n0, cfg.lastbar):
        free.append(slot[k - 1])
        if k == n0 + 1: free += [6, 7]
        L = []
        while free and nxt < 32 and len(L) < cfg.aper and (not cfg.avoid or not busy[k] or nxt <= k + cfg.minlead or k >= cfg.lastbar - 2):
            slot[nxt] = free.pop(0); L.append(nxt); nxt += 1
        a_issue[k] = L
    assert nxt == 32
    return dict(fo=fo, early=early, blocks=blocks, n0=n0, slot=slot, a_issue=a_issue, pre=pre)

def flag_pub(val):
    return [valu("v_mov_b32", vFlag, str(val)), vwait(lambda t: t[0] == "st" and t[1] < val)] + \
           vtag([I(f"buffer_store_dword v{vFlag}, v{vLane}, s[{SFLG}:{SFLG+3}], 0 offen sc1", "vstore", (), {vFlag, vLane})], ("fl", val))

def p_tail(cfg):
    plan = tail_plan(cfg)
    blocks, n0, slot, fo = plan["blocks"], plan["n0"], plan["slot"], plan["fo"]
    p0 = 21 - n0 - cfg.half
    assert p0 >= 5
    sp, ep = {}, {}
    p = p0
    for k in range(n0):
        sp[k] = p; p += 2 if k < cfg.half else 1; ep[k] = p - 1
    for k in range(n0, n0 + 7): sp[k] = ep[k] = 21 + (k - n0)
    ep[-1] = p0 - 1
    issue = {}
    for k in range(n0 + 3): issue.setdefault(2 + k if k < 4 else sp[k - 3], []).append(k)
    for p, L in plan["pre"].items(): issue.setdefault(p, []).extend(L)
    assert sp[2] >= 7
    def setbase(reg, base):
        return [S(f"s_lshl_b32 s{sT}, s{sQB}, 13"), S(f"s_add_u32 s{sT}, s{sT}, {base}"), valu("v_add_u32", reg, f"s{sT}", vLane)]
    def period_ops(p):
        n, kind = 23 + p // 2, "EO"[p & 1]
        mem, other = [], []
        ks = issue.get(p, [])
        nfirst = 0 if cfg.kvfirst else 1
        for k in ks[:nfirst]: mem += wo_chunk(cfg, k, plan)
        if kind == "E" and n <= 31: mem += vtag(kv_issue(cfg, False, n & 1), ("kv", p))
        if kind == "O" and n + 2 <= 31: mem += vtag(kv_issue(cfg, True, n & 1), ("kv", p))
        for k in ks[nfirst:]: mem += wo_chunk(cfg, k, plan)
        if p == 20 and cfg.fused: mem += hs_load()
        if p == 0:
            other += chunk_mfmas(7)[cfg.psplit:] + [valu("v_add_u32", aQw, f"{WB0 - YB}", aQw)] + q_pack(TMP) + q_store(HLD, 0) + q_store(TMP, 1)
        if p == 1:
            other += setbase(aQw, XB) + b_load(0, aQw) + setbase(aQw, YB) + b_load(1, aQw) + setbase(aQw, WB0) + setbase(vXo, VB0)
        if p == 6: other += b_load(2, aQw)
        close = [vwait(lambda t, p=p: (t[0] == "kv" and t[1] <= p - (2 if p >= cfg.tfast else cfg.tlead)) or (t[0] == "wo" and ep[t[1] - 1] - 1 <= p))]
        if p < p0 - 1: close.append(lgkm0())
        close.append(barrier())
        return mem, other, close
    seq = []
    for p in range(p0):
        mem, other, close = period_ops(p)
        if p == p0 - 1:
            for f in range(8): other += w_read(slot[0], f)
        seq += mem + other + close
    main, fill = [], []
    src_of = {"H": HLD, "T": TMP, "L0": HLD, "L1": TMP}
    published = 0
    done_at = {}
    for k, (sl, c) in enumerate(blocks):
        b0 = 32 * k
        fresh = (c == 0)
        for mt in range(4):
            for qs in range(2):
                for ks in range(4):
                    cc = None if (fresh and ks == 0) else Ac(mt, qs)
                    dep = [FR(4 * mt + ks + 1)] if (qs == 0 and ks in (0, 2)) else ()
                    main.append(mfma(Ac(mt, qs), FR(4 * mt + ks), Bf(4 * c + ks, qs), cc, dep))
        if cfg.bstamp:
            fill.append((b0, raw("s_memtime s[90:91]")))
            fill.append((b0 + 24, raw(f"v_writelane_b32 v255, s90, {k}")))
        if k < n0:
            span = 32 // (ep[k] - sp[k] + 1)
            closes = []
            for h, p in enumerate(range(sp[k], ep[k] + 1)):
                mem, other, close = period_ops(p)
                o = b0 + h * span
                if h: fill += [(o - 1, x) for x in closes.pop()]
                fill += [(o + q, x) for q, x in spread(mem, cfg.tlate, min(17, span - 4))] + [(o + q, x) for q, x in spread(other, span // 2 - 2, span - 4)]
                closes.append(close)
            close = closes.pop()
        elif n0 < k <= cfg.lastbar:
            if k == n0 + 1: fill.append((b0 + 3, vwait(lambda t: t[0] == "wo")))
            fill.append((b0 + 3, barrier()))
        for mt in range(4):
            if mt >= 2 and k + 1 >= len(blocks): continue
            sl2, mt2 = (slot[k], mt + 2) if mt < 2 else (slot[k + 1], mt - 2)
            rd = []
            for ks in range(4): rd += w_read(sl2, 4 * mt2 + ks)
            for n, x in enumerate(rd): fill.append((b0 + 8 * mt + 4 + n, x))
        if k < n0:
            fill += [(b0 + 31, x) for x in close]
            if k == n0 - 1:
                fill += [(b0 + 31, x) for x in ([] if cfg.bstamp else stamp(cfg, 2)) + b_load(3, vXo)]
        for pair in range(2):
            for qs in range(2):
                s0 = b0 + 14 + 8 * qs + 16 * pair
                t, u = Ac(2 * pair, qs), Ac(2 * pair + 1, qs)
                if k < n0 and c == 2 and fo[sl] != "A":
                    d = fo[sl]
                    z = src_of[d] + (pair * 2 + qs) * 4
                    L = [cvtpk(z, t, t + 1), cvtpk(z + 1, t + 2, t + 3), cvtpk(z + 2, u, u + 1), cvtpk(z + 3, u + 2, u + 3)]
                    fill += [(s0 + n, x) for n, x in enumerate(L)]
                    if d[0] == "L": fill.append((s0 + 4, ds_w128(aQw, z, int(d[1]) * 4096 + (pair * 2 + qs) * 1024)))
                if k >= n0 and c == 3:
                    nxt = fo[sl + 1] if sl + 1 < len(fo) and fo[sl + 1] != "F" else None
                    if pair == 0 and qs == 0: fill.append((s0 - 1, S(f"s_add_u32 s{sPo1}, s{sPo}, {sl * 131072}")))
                    L = [cvtpk(t, t, t + 1), cvtpk(t + 1, t + 2, t + 3), cvtpk(t + 2, u, u + 1), cvtpk(t + 3, u + 2, u + 3)]
                    st = vtag([bstore(t, vLane, SPART, f"s{sPo1}", (qs * 2 + pair) * 1024, cfg.pflags)], ("st", sl))
                    if nxt:
                        s = src_of[nxt] + (pair * 2 + qs) * 4
                        U = []
                        for (dst, o) in ((u, 2), (t, 0)):
                            for h in range(2):
                                U += [valu("v_lshlrev_b32", dst + 2 * h, "16", s + o + h), valu("v_and_b32", dst + 2 * h + 1, "0xffff0000", s + o + h)]
                        fill += [(s0 + n // 2, x) for n, x in enumerate(L)] + [(s0 + 2, st[0])]
                        fill += [(s0 + p, x) for p, x in zip((3, 3, 4, 5, 5, 6, 7, 7), U)]
                    else:
                        fill += [(s0 + n, x) for n, x in enumerate(L)] + [(s0 + 4, st[0])]
                    done_at[sl] = k
        if k >= n0 and c == 3 and fo[sl] in ("H", "T"):
            d = {"H": "L0", "T": "L1"}[fo[sl]]
            if d in fo:
                assert fo.index(d) >= sl + 2
                fill += [(b0 + 17 + n, ds_r128(src_of[d] + 4 * n, aQw, int(d[1]) * 4096 + n * 1024)) for n in range(4)]
        if cfg.fused and k >= n0:
            ready = sum(1 for s, kk in done_at.items() if kk + cfg.flaglag <= k)
            if cfg.pubs:
                pm = dict(tuple(int(v) for v in e.split(":")) for e in cfg.pubs.split(","))
                ready = pm.get(k, 0)
                assert ready <= sum(1 for s, kk in done_at.items() if kk + 2 <= k)
            if ready > published and (k >= cfg.pubfrom or cfg.pubs):
                fill += [(b0 + 16, x) for x in flag_pub(ready)]
                published = ready
    seq += interleave(main, fill)
    if cfg.bstamp:
        seq += [raw("s_memtime s[90:91]"), lgkm0(), raw("v_writelane_b32 v255, s90, 32"), raw("v_lshlrev_b32 v5, 2, v0"),
                raw("s_lshl_b32 s90, s2, 8"), raw("s_add_u32 s90, s90, 0x10000"), raw(f"s_cmp_lg_u32 s{sQB}, {cfg.stw}"), raw(f"s_cselect_b32 s90, {OOB}, s90"),
                raw("buffer_store_dword v255, v5, s[64:67], s90 offen")]
    seq += stamp(cfg, 4)
    if cfg.fused:
        if published < 7 and (cfg.dpoll or not cfg.pubs): seq += flag_pub(7)
        if not cfg.dpoll: seq += flag_pub(8)
    return resolve_vwaits(seq, [("kv", -2)] * 6 + [("kv", -1)] * 6)

def a_tail(cfg):
    plan = tail_plan(cfg)
    n0 = plan["n0"]
    seq = hs_load() if cfg.fused else []
    for k in range(n0, cfg.lastbar + 1):
        last = k == cfg.lastbar
        if k > n0: seq += [vwait(lambda t, k=k, last=last: last or t[1] <= k + 1), barrier()]
        for kk in plan["a_issue"].get(k, []): seq += wo_chunk(cfg, kk, plan, vWoA)
    return resolve_vwaits(seq)

def rstamp(cfg, idx):
    if not cfg.stamps: return []
    return ["    " + x for x in ["s_memrealtime s[60:61]", "s_waitcnt lgkmcnt(0)", "v_mov_b32 v100, s60", "v_mov_b32 v101, s61", "v_mov_b32 v102, 0",
            "s_mov_b64 s[62:63], exec", "s_mov_b64 exec, 1", f"buffer_store_dwordx2 v[100:101], v102, s[64:67], s68 offen offset:{idx*8}", "s_mov_b64 exec, s[62:63]"]]

vHS = 241
def hs_load():
    return vtag([I(f"buffer_load_dword v{vHS}, v{vLane}, s[{SDBG}:{SDBG+3}], 0 offen sc1", "vload", {vHS}, {vLane})], ("hs", 99))

def a_reduce(cfg, ps):
    T = []
    A = lambda *a: T.extend("    " + x for x in a)
    A("v_lshlrev_b32 v1, 7, v0", "v_and_b32 v4, 15, v0", "v_lshlrev_b32 v4, 11, v4",
      "v_bfe_u32 v5, v0, 4, 1", "v_lshl_add_u32 v4, v5, 5, v4", "v_lshrrev_b32 v5, 5, v0", "v_lshl_add_u32 v4, v5, 4, v4")
    if ps == 0: T += rstamp(cfg, 4)
    A("s_mov_b32 s85, 0")
    T.append(f"L_hs{ps}:")
    A(f"v_cmp_le_u32 vcc, 8, v{vHS}", f"s_cbranch_vccnz L_hs_ok{ps}",
      f"buffer_load_dword v{vHS}, v{vLane}, s[{SDBG}:{SDBG+3}], 0 offen sc1", "s_add_u32 s85, s85, 1", "s_waitcnt vmcnt(0)",
      "s_cmp_lt_u32 s85, 0x80000", f"s_cbranch_scc1 L_hs{ps}")
    T.append(f"L_hs_ok{ps}:")
    A(f"s_add_u32 s87, s{sQB}, {4 * ps}")
    for N in ((cfg.rn1, cfg.rn2)[ps],):
        T += rstamp(cfg, 5)
        dp = cfg.dpoll and ps == 1
        FW = SX if dp else SFLG
        def ld(i):
            b = 16 + i * 4
            if i and i % 2 == 0: A("s_add_u32 s88, s88, 16384")
            A(f"buffer_load_dwordx4 v[{b}:{b+3}], v{vLane}, s[{SPART}:{SPART+3}], s88 offen offset:{(i & 1)*1024} sc1")
        base = ["s_lshl_b32 s88, s87, 17", "s_lshl_b32 s89, s6, 11", "s_add_u32 s88, s88, s89"]
        pub8 = [f"s_cmp_lg_u32 s85, 1", "s_cbranch_scc1 L_np8_{0}", f"v_mov_b32 v{vFlag}, 8",
                f"buffer_store_dword v{vFlag}, v{vLane}, s[{SFLG}:{SFLG+3}], 0 offen sc1"]
        A("s_mov_b32 s85, 0")
        if dp:
            A(f"s_cmp_lg_u32 s{sQB}, 3", f"s_cbranch_scc1 L_poll{ps}")
            T.append("L_dp:")
            A(*base, f"buffer_load_dword v6, v1, s[{FW}:{FW+3}], 0 offen sc1")
            for i in range(16): ld(i)
            A("s_add_u32 s85, s85, 1", "s_waitcnt vmcnt(0)")
            A("v_max3_u32 v7, v16, v17, v18")
            for r in range(19, 79, 2): A(f"v_max3_u32 v7, v7, v{r}, v{r+1}")
            A("v_max_u32 v7, v7, v79", "v_cmp_eq_u32 vcc, -1, v7", "s_cbranch_vccz L_sum1")
            A(*[x.format("a") for x in pub8]); T.append("L_np8_a:")
            A("v_cmp_lt_u32 vcc, s87, v6", "s_cmp_eq_u32 vcc_lo, 0xff", f"s_cbranch_scc1 L_got{ps}",
              "s_cmp_lt_u32 s85, 0x20000", "s_cbranch_scc1 L_dp", "s_branch L_sum1")
        T.append(f"L_poll{ps}:")
        A(f"buffer_load_dword v6, v1, s[{FW}:{FW+3}], 0 offen sc1", "s_add_u32 s85, s85, 1", "s_waitcnt vmcnt(0)")
        if dp:
            A(*[x.format("b") for x in pub8]); T.append("L_np8_b:")
        A("v_cmp_lt_u32 vcc, s87, v6", "s_cmp_eq_u32 vcc_lo, 0xff", f"s_cbranch_scc1 L_got{ps}", "s_cmp_lt_u32 s85, 0x80000", f"s_cbranch_scc1 L_poll{ps}")
        T.append(f"L_got{ps}:")
        T += rstamp(cfg, 6)
        A(*base)
        for i in range(min(N, 16)): ld(i)
        if dp:
            assert N >= 16
            T.append("L_sum1:")
        A("s_lshl_b32 s89, s87, 7")
        acc = 80
        for i in range(16):
            A(f"s_waitcnt vmcnt({min(N, 16 - i) - 1})")
            if i + N < 16: ld(i + N)
            b = 16 + i * 4; pair = i & 1
            for e in range(4):
                lo, hi = acc + pair * 8 + 2 * e, acc + pair * 8 + 2 * e + 1
                if i < 2:
                    A(f"v_lshlrev_b32 v{lo}, 16, v{b+e}", f"v_and_b32 v{hi}, 0xffff0000, v{b+e}")
                else:
                    A(f"v_lshlrev_b32 v6, 16, v{b+e}", f"v_and_b32 v7, 0xffff0000, v{b+e}", f"v_add_f32 v{lo}, v{lo}, v6", f"v_add_f32 v{hi}, v{hi}, v7")
        for pair in range(2):
            a = acc + pair * 8
            for e in range(4): A(f"v_cvt_pk_bf16_f32 v{8+pair*4+e}, v{a+2*e}, v{a+2*e+1}")
        T += rstamp(cfg, 7)
        A("s_nop 1")
        for pair in range(2):
            d = 8 + pair * 4
            A(f"v_permlane16_swap_b32 v{d}, v{d+2}", f"v_permlane16_swap_b32 v{d+1}, v{d+3}")
            A(f"buffer_store_dwordx4 v[{d}:{d+3}], v4, s[{SOUT}:{SOUT+3}], s89 offen offset:{pair*64} {cfg.outflags}")
        if dp: A(*pub8[2:])
    return T

def fin(seq): return fix_hazards(insert_lgkm(order_gaps(seq)))

def header():
    ref = open("cdna_kernels/" + NAME + ".s.ref").read().splitlines()
    return [l for l in ref if l.startswith(";") and "@launch" not in l and "Override" not in l and "grid=ceil" not in l]

def srd(dst, lo, hi, nbytes):
    return [f"s_mov_b32 s{dst}, s{lo}", f"s_mov_b32 s{dst+1}, s{hi}", f"s_mov_b32 s{dst+2}, {nbytes}", f"s_mov_b32 s{dst+3}, 0x20000"]
def srd_off(dst, lo, hi, off, nbytes):
    return [f"s_add_u32 s{dst}, s{lo}, {off}", f"s_addc_u32 s{dst+1}, s{hi}, 0", f"s_mov_b32 s{dst+2}, {nbytes}", f"s_mov_b32 s{dst+3}, 0x20000"]

def main_kernel(cfg):
    T = []
    A = lambda *a: T.extend("    " + x for x in a)
    ST = lambda i: T.append(emit(stamp(cfg, i))) if cfg.stamps else None
    T += [".globl attn_main_kernel", ".p2align 8", ".type attn_main_kernel,@function", "attn_main_kernel:"]
    A("s_cmp_ge_u32 s2, 256", "s_cbranch_scc1 L_end")
    cal = cfg.cal_pro or cfg.cal_main or cfg.cal_end or cfg.cal_mid or cfg.probe >= 0
    def PR(k):
        if cfg.probe == k: A("s_memrealtime s[94:95]", "s_waitcnt lgkmcnt(0)")
    if cal: A("s_memrealtime s[100:101]")
    def CAL(us, lab):
        if not us: return
        T.append(f"{lab}:")
        A("s_memrealtime s[60:61]", "s_waitcnt lgkmcnt(0)", "s_sub_u32 s60, s60, s100", f"s_cmp_lt_u32 s60, {us*100}", f"s_cbranch_scc1 {lab}")
    A("s_load_dwordx8 s[72:79], s[0:1], 0", "s_load_dwordx8 s[80:87], s[0:1], 32", "s_load_dwordx4 s[88:91], s[0:1], 64",
      "s_load_dwordx2 s[92:93], s[0:1], 96", "s_load_dwordx4 s[96:99], s[0:1], 80")
    A("v_lshrrev_b32 v1, 6, v0", "v_and_b32 v0, 63, v0", f"v_readfirstlane_b32 s{sW}, v1")
    A(f"v_lshlrev_b32 v{vLane}, 4, v0")
    early_pos = len(T)
    if cfg.mapping == 0:
        A("s_and_b32 s3, s2, 7", "s_lshr_b32 s4, s2, 3", "s_lshl_b32 s5, s3, 2", "s_lshr_b32 s6, s4, 3", "s_add_u32 s5, s5, s6",
          "s_and_b32 s6, s4, 7", f"s_and_b32 s{sROT}, s3, 3")
    elif cfg.mapping == 1:
        A("s_and_b32 s6, s2, 7", "s_lshr_b32 s5, s2, 3", f"s_and_b32 s{sROT}, s5, 3")
    elif cfg.mapping == 2:
        A("s_and_b32 s3, s2, 7", "s_lshr_b32 s4, s2, 3",
          "s_and_b32 s5, s4, 15", "s_and_b32 s6, s3, 4", "s_lshl_b32 s6, s6, 2", "s_add_u32 s5, s5, s6",
          "s_and_b32 s6, s3, 3", "s_lshl_b32 s6, s6, 1", "s_lshr_b32 s4, s4, 4", "s_add_u32 s6, s6, s4",
          f"s_and_b32 s{sROT}, s5, 3")
    elif cfg.mapping == 3:
        A("s_and_b32 s3, s2, 7", "s_lshr_b32 s4, s2, 3",
          "s_and_b32 s5, s4, 7", "s_and_b32 s6, s3, 6", "s_lshl_b32 s6, s6, 2", "s_add_u32 s5, s5, s6",
          "s_and_b32 s6, s3, 1", "s_lshl_b32 s6, s6, 2", "s_lshr_b32 s4, s4, 3", "s_add_u32 s6, s6, s4",
          f"s_and_b32 s{sROT}, s5, 3")
    if not cfg.rot: A(f"s_mov_b32 s{sROT}, 0")
    if cfg.rot in (6, 7, 8): A(f"s_cmp_eq_u32 s{sROT}, 1", f"s_cselect_b32 s{sROT}, {dict([(6, 3), (7, 2), (8, 0)])[cfg.rot]}, s{sROT}")
    if cfg.rot == 5: A(f"s_and_b32 s{sROT}, s5, 1", f"s_lshl_b32 s{sROT}, s{sROT}, 1")
    if cfg.rot == 2: A(f"s_bfe_u32 s{sROT}, s5, 0x20002")
    if cfg.rot == 3: A(f"s_and_b32 s{sROT}, s5, 2")
    if cfg.rot == 4: A(f"s_or_b32 s{sROT}, s{sROT}, 2")
    A("s_and_b32 s7, s5, 15")
    tx = {0: ["s_mov_b32 s4, 0"], 1: ["s_mov_b32 s4, s6"], 2: ["s_lshr_b32 s4, s5, 2"], 3: ["s_lshr_b32 s4, s5, 2", "s_add_u32 s4, s4, s6"],
          4: ["s_xor_b32 s4, s5, s6"], 5: ["s_mul_i32 s4, s2, 0x9e3779b1", "s_lshr_b32 s4, s4, 29"], 6: ["s_lshr_b32 s4, s5, 2", "s_xor_b32 s4, s4, s6"]}[cfg.tx]
    A(*tx, "s_and_b32 s4, s4, 7", "s_lshl_b32 s4, s4, 14")
    def srd_early():
        A("s_waitcnt lgkmcnt(0)")
        A("s_cmp_ge_u32 s5, 16")
        for k in (0, 3):
            A(f"s_cselect_b32 s{72+2*k}, s{82+2*k}, s{72+2*k}", f"s_cselect_b32 s{73+2*k}, s{83+2*k}, s{73+2*k}")
        A("s_lshl_b32 s56, s6, 10")
        A(*srd_off(SWQ, 78, 79, "s56", 0)[:2], f"s_sub_u32 s{SWQ+2}, 0x400000, s56", f"s_mov_b32 s{SWQ+3}, 0x20000")
        A("s_lshl_b32 s56, s7, 17"); A(*srd_off(SX, 72, 73, "s56", 131072))
        if cfg.nowq: A(f"s_mov_b32 s{SWQ+2}, 0")
        if cfg.stamps:
            A(*srd_off(64, 92, 93, WS_BYTES - (1 << 20), 1 << 20))
            A(f"s_lshr_b32 s68, s{sW}, 2", "s_lshl_b32 s68, s68, 7", "s_lshl_b32 s69, s2, 8", "s_add_u32 s68, s68, s69",
              f"s_and_b32 s69, s{sW}, 3", f"s_cmp_lg_u32 s69, {cfg.stw}", f"s_cselect_b32 s68, {OOB}, s68")
    def srd_late():
        A("s_cmp_ge_u32 s5, 16")
        for k in (1, 2, 4):
            A(f"s_cselect_b32 s{72+2*k}, s{82+2*k}, s{72+2*k}", f"s_cselect_b32 s{73+2*k}, s{83+2*k}, s{73+2*k}")
        A("s_lshl_b32 s56, s7, 22", "s_lshl_b32 s57, s6, 19", "s_add_u32 s56, s56, s57")
        A(*srd_off(SK, 74, 75, "s56", 524288)); A(*srd_off(SV, 76, 77, "s56", 524288))
        A(*srd_off(SWO, 80, 81, "s57", 524288))
        A("s_lshl_b32 s56, s5, 21", "s_add_u32 s56, s56, 0x100000"); A(*srd_off(SPART, 92, 93, "s56", 1 << 20))
        if cfg.fused:
            A("s_lshl_b32 s56, s5, 3"); A(*srd_off(SDBG, 98, 99, "s56", 4))
            A("s_lshl_b32 s56, s7, 18", "s_lshl_b32 s57, s6, 15", "s_add_u32 s56, s56, s57", "s_lshr_b32 s57, s5, 4", "s_lshl_b32 s57, s57, 10",
              "s_add_u32 s56, s56, s57")
            A(*srd_off(SOUT, 96, 97, "s56", 0), f"s_sub_u32 s{SOUT+2}, 0x400000, s56")
        if cfg.nokv: A(f"s_mov_b32 s{SK+2}, 0", f"s_mov_b32 s{SV+2}, 0")
        if cfg.nowo: A(f"s_mov_b32 s{SWO+2}, 0")
        if cfg.nops: A(f"s_mov_b32 s{SPART+2}, 0")
    decode = T[early_pos:]; del T[early_pos:]
    A("s_nop 1")
    A(f"s_and_b32 s{sQB}, s{sW}, 3", f"s_lshl_b32 s{sM0}, s{sQB}, 10")
    if cfg.codepf:
        A("s_getpc_b64 s[70:71]")
        T.append("L_pc:")
        A("s_sub_u32 s70, s70, L_pc-attn_main_kernel", "s_subb_u32 s71, s71, 0")
        A(f"s_lshr_b32 s56, s{sW}, 1", "s_cmp_lg_u32 s56, 2", "s_cbranch_scc1 L_nopf")
        A("s_lshr_b32 s56, s2, 3", "s_lshl_b32 s56, s56, 11", f"s_add_u32 s56, s56, s{sM0}",
          "s_min_u32 s56, s56, L_cold-attn_main_kernel-1024", f"v_add_u32 v5, s56, v{vLane}",
          f"global_load_dwordx4 v[{FR(0)}:{FR(0)+3}], v5, s[70:71]")
        T.append("L_nopf:")
    T += decode
    A(f"s_lshl_b32 s{sCol}, s{sROT}, 17")
    A("v_and_b32 v1, 15, v0", "v_lshrrev_b32 v2, 4, v0", "v_lshrrev_b32 v3, 2, v1", "v_and_b32 v4, 3, v0")
    def lc16():
        A("v_lshrrev_b32 v5, 3, v0", "v_bfe_u32 v6, v0, 4, 1", f"s_and_b32 s{sT}, s{sQB}, 1", f"s_lshl_b32 s{sT}, s{sT}, 1",
          f"v_or_b32 v6, s{sT}, v6", "v_lshlrev_b32 v6, 1, v6", "v_and_b32 v7, 7, v0", "v_xor_b32 v6, v6, v7", "v_lshlrev_b32 v6, 4, v6")
    def wo_voff():
        lc16()
        A("v_and_b32 v7, 3, v5", "v_lshrrev_b32 v5, 2, v5", "v_lshl_add_u32 v7, v5, 4, v7",
          f"s_lshl_b32 s{sT}, s{sQB}, 2", f"v_add_u32 v7, s{sT}, v7", f"v_lshl_add_u32 v{vWo}, v7, 10, v6")
    def kv_voff():
        A(f"s_lshl_b32 s{sT}, s{sQB}, 2", f"v_add_u32 v5, s{sT}, v2",
          "v_xor_b32 v6, v5, v1", "v_lshlrev_b32 v6, 4, v6",
          *{0: [f"s_lshl_b32 s{sT}, s{sQB}, 4"], 1: [f"s_lshl_b32 s{sT}, s{sQB}, 7"],
            2: [f"s_and_b32 s{sT}, s{sQB}, 1", f"s_lshl_b32 s{sT}, s{sT}, 4", f"s_lshr_b32 s56, s{sQB}, 1", "s_lshl_b32 s56, s56, 8", f"s_add_u32 s{sT}, s{sT}, s56"]}[cfg.kperm],
          f"v_add_u32 v7, s{sT}, v2", "v_lshlrev_b32 v7, 8, v7",
          f"v_add_u32 v{vKo}, v7, v6",
          "v_and_b32 v5, 7, v5", "v_lshlrev_b32 v5, 1, v5", "v_xor_b32 v6, v5, v1", "v_lshlrev_b32 v6, 4, v6", f"v_add_u32 v{vVo}, v7, v6")
    def wq_voff():
        lc16()
        A(f"s_lshl_b32 s{sT}, s{sQB}, 3", f"v_add_u32 v7, s{sT}, v5", f"v_lshl_add_u32 v{vWq}, v7, 13, v6")
    A(f"s_lshl_b32 s{sWc}, s{sROT}, 8")
    if cfg.krot == 1:
        A("s_lshr_b32 s56, s7, 2", "s_lshl_b32 s56, s56, 1", "s_lshl_b32 s57, s6, 2", "s_add_u32 s56, s56, s57",
          "s_bfe_u32 s57, s6, 0x10001", "s_add_u32 s56, s56, s57", "s_and_b32 s56, s56, 7")
    elif cfg.krot == 2:
        A(f"s_lshl_b32 s56, s{sROT}, 1", "s_lshr_b32 s57, s5, 4", "s_add_u32 s56, s56, s57")
    elif cfg.krot == 3:
        A(f"s_lshl_b32 s56, s{sROT}, 1", "s_lshr_b32 s57, s5, 4", "s_add_u32 s56, s56, s57", "s_add_u32 s56, s56, 4", "s_and_b32 s56, s56, 7")
    elif cfg.krot == 5:
        A("s_lshr_b32 s56, s7, 1", "s_add_u32 s56, s56, s6", "s_and_b32 s56, s56, 3", "s_lshl_b32 s56, s56, 1")
    elif cfg.krot == 6:
        A("s_lshl_b32 s56, s6, 1", "s_add_u32 s56, s56, s7", "s_and_b32 s56, s56, 7")
    elif cfg.krot == 4:
        A("s_and_b32 s56, s7, 7")
    else:
        A("s_mov_b32 s56, 0")
    A(f"s_lshl_b32 s{sKR}, s56, 7", "s_lshl_b32 s56, s56, 19", f"s_add_u32 s{sWc}, s{sWc}, s56")
    wq_voff()
    A("v_lshrrev_b32 v5, 3, v0", "v_and_b32 v6, 7, v0", "v_xor_b32 v6, v6, v2", "v_lshlrev_b32 v6, 4, v6",
      f"s_lshl_b32 s{sT}, s{sQB}, 5", f"v_add_u32 v5, s{sT}, v5", f"v_lshl_add_u32 v{vXo}, v5, 10, v6")
    A(f"s_lshl_b32 s{sX16}, s{sQB}, 12")
    srd_early()
    if cfg.stamps:
        ST(0)
        A("v_lshrrev_b32 v2, 4, v0", "v_lshrrev_b32 v3, 2, v1", "v_and_b32 v4, 3, v0")
    A(f"s_cmp_ge_u32 s{sW}, 4", "s_cbranch_scc1 L_P")
    first, rest = a_prologue(cfg)
    T.append(emit(fin(first)))
    srd_late()
    kv_voff()
    T.append(emit(fin(rest)))
    wo_voff()
    A(f"v_mov_b32 v{vWoA}, v{vWo}")
    if cfg.fused:
        A("s_lshl_b32 s56, s5, 2", "s_lshr_b32 s58, s6, 1", "s_add_u32 s56, s56, s58", "s_lshl_b32 s56, s56, 10", f"s_add_u32 s56, s56, {FLG}")
        A(*srd_off(SFLG, 92, 93, "s56", 1024))
    if cfg.prioA: A(f"s_setprio {cfg.prioA}")
    A(f"s_mov_b32 s{sBND}, 0x{f2u(1e-30 if cfg.force_fb else float(1 << 20)):x}")
    for s in range(4):
        A(f"v_add_u32 v5, {4*s}, v2", "v_xor_b32 v5, v5, v1", "v_lshlrev_b32 v5, 4, v5", f"v_lshl_add_u32 v{aK+s}, v1, 8, v5")
    A("v_and_b32 v5, 1, v2", "v_lshl_add_u32 v5, v5, 2, v3",
      "v_lshl_add_u32 v6, v2, 2, v3", "v_lshlrev_b32 v6, 8, v6", "v_lshl_add_u32 v6, v4, 3, v6")
    for dt in range(8):
        A(f"v_xor_b32 v7, {dt}, v5", f"v_lshl_add_u32 v{aV+dt}, v7, 5, v6")
    A(f"s_lshl_b32 s57, s{sQB}, 13", f"s_add_u32 s{sT}, s57, {YB}", f"v_add_u32 v{aQ}, s{sT}, v{vLane}")
    A("s_waitcnt vmcnt(12)", "s_barrier")
    segs = split_segments(fin(a_stream(cfg)))
    txt = [emit(s) for s in segs]
    E = lambda n: 2 + 2 * n
    for k in range(E(2), E(32) - 16):
        assert txt[k] == txt[k + 16], k
    ST(1)
    CAL(cfg.cal_pro, "L_cal1")
    PR(0)
    if cfg.sser:
        for sgm in txt[:E(2)]:
            L = [i for i in stamp(cfg, 0) if "v[6:7]" not in i.t and i.k != "lgkm0"]
            L.insert(2, raw("s_waitcnt lgkmcnt(0)"))
            T.append(emit(L)); A("s_add_u32 s68, s68, 8")
            T.append(sgm)
        T.append(emit([i for i in stamp(cfg, 0) if "v[6:7]" not in i.t])); A(f"s_mov_b32 s68, {OOB}")
    else:
        T += txt[:E(2)]
    PR(6)
    A(f"s_mov_b32 s{sCNT}, 0")
    T.append("L_Aloop:")
    A(f"s_cmp_lt_u32 s{sCNT}, 2", f"s_cselect_b32 s{sT}, 2, 1", f"s_lshl_b32 s{sT}, s{sT}, 16", f"s_add_u32 s{sT}, s{sT}, s57", f"v_add_u32 v{aQ}, s{sT}, v{vLane}",
      f"v_mov_b32 v{aO}, v{aQ}", f"s_cmp_eq_u32 s{sCNT}, 0", "s_cbranch_scc0 L_Ao",
      f"v_add_u32 v{aO}, {XB - YB}, v{aO}")
    T.append("L_Ao:")
    if 1 <= cfg.probe <= 3:
        A(f"s_cmp_lg_u32 s{sCNT}, {cfg.probe}", "s_cbranch_scc1 L_nopr")
        PR(cfg.probe)
        T.append("L_nopr:")
    if cfg.cal_mid:
        A(f"s_cmp_lg_u32 s{sCNT}, 2", "s_cbranch_scc1 L_nocal")
        CAL(cfg.cal_mid, "L_cal4")
        T.append("L_nocal:")
    def sst():
        if cfg.series:
            L = [i for i in stamp(cfg, 0) if "v[6:7]" not in i.t]
            T.append(emit(L)); A("s_add_u32 s68, s68, 8")
    sst(); T += txt[E(2):E(4)]
    sst(); T += txt[E(4):E(6)]
    sst(); T += txt[E(6):E(8)]
    sst()
    A(f"s_cmp_eq_u32 s{sCNT}, 3", "s_cbranch_scc1 L_Atail")
    T += txt[E(8):E(10)]
    A(f"s_add_u32 s{sCNT}, s{sCNT}, 1", "s_branch L_Aloop")
    T.append("L_Atail:")
    A(f"v_add_u32 v{aO}, {VB0 - WB0}, v{aO}")
    if cfg.series: A(f"s_mov_b32 s68, {OOB}")
    T += txt[E(32):]
    CAL(cfg.cal_main, "L_cal2")
    PR(4)
    if not cfg.bstamp: ST(2)
    T.append(emit(fin(a_tail(cfg))))
    if cfg.fused:
        T += a_reduce(cfg, 0)
    PR(5)
    if cfg.probe >= 0:
        A("s_sub_u32 s94, s94, s100", "s_add_u32 s94, s94, 10000")
        T.append("L_prh:")
        A("s_memrealtime s[60:61]", "s_waitcnt lgkmcnt(0)", "s_sub_u32 s60, s60, s100", "s_cmp_lt_u32 s60, s94", "s_cbranch_scc1 L_prh")
    if cfg.cal_wg >= 0: A(f"s_cmp_lg_u32 s2, {cfg.cal_wg}", "s_cbranch_scc1 L_end")
    CAL(cfg.cal_end, "L_cal3")
    ST(3)
    A("s_endpgm")
    T.append("L_P:")
    srd_late()
    if cfg.tlbw:
        A(f"s_cmp_lg_u32 s{sQB}, 2", "s_cbranch_scc1 L_notlb", "v_mov_b32 v5, 0")
        A(f"buffer_load_dword v{FR(1)}, v5, s[{SK}:{SK+3}], s{sCol} offen nt", f"buffer_load_dword v{FR(1)+1}, v5, s[{SV}:{SV+3}], s{sCol} offen nt")
        if cfg.tlbw > 1:
            A(f"buffer_load_dword v{FR(1)+2}, v5, s[{SWO}:{SWO+3}], 0 offen", f"buffer_load_dword v{FR(1)+3}, v5, s[{SOUT}:{SOUT+3}], 0 offen nt")
        T.append("L_notlb:")
    if cfg.h1touch:
        if cfg.h1touch == 1: A(f"s_cmp_lg_u32 s{sQB}, 2", "s_cbranch_scc1 L_noh1", "s_mov_b32 s57, 256")
        else: A(f"s_lshl_b32 s57, s{sQB}, 8")
        A("v_lshrrev_b32 v5, 1, v0", "v_lshlrev_b32 v5, 13, v5", "v_and_b32 v6, 1, v0", "v_lshl_add_u32 v5, v6, 7, v5",
          "s_lshl_b32 s56, s7, 18", "s_add_u32 s56, s56, s57", f"buffer_load_dword v241, v5, s[{SWQ}:{SWQ+3}], s56 offen")
        T.append("L_noh1:")
    if cfg.fused:
        A("s_lshl_b32 s56, s5, 12", "s_lshl_b32 s57, s6, 7", "s_add_u32 s56, s56, s57", f"s_add_u32 s56, s56, {FLG}")
        A(*srd_off(SFLG, 92, 93, "s56", 3076))
        A(f"s_cmp_lg_u32 s{sQB}, 3", "s_cbranch_scc1 L_norst")
        A("v_mov_b32 v5, 0", "v_lshlrev_b32 v6, 10, v0", f"buffer_store_dword v5, v6, s[{SFLG}:{SFLG+3}], 0 offen sc1")
        T.append("L_norst:")
        if cfg.dpoll:
            A("v_mov_b32 v8, -1", "v_mov_b32 v9, -1", "v_mov_b32 v10, -1", "v_mov_b32 v11, -1",
              "s_lshl_b32 s56, s6, 14", f"s_lshl_b32 s57, s{sQB}, 12", "s_add_u32 s56, s56, s57", f"s_add_u32 s56, s56, {7 * 131072}")
            for i in range(4): A(f"buffer_store_dwordx4 v[8:11], v{vLane}, s[{SPART}:{SPART+3}], s56 offen offset:{i*1024} sc1")
    A("v_bfe_u32 v5, v1, 1, 2", "v_xor_b32 v5, v5, v2", "v_lshlrev_b32 v5, 4, v5", "v_lshl_add_u32 v5, v1, 7, v5",
      f"v_add_u32 v{aX}, s{sX16}, v5", f"v_add_u32 v{aX+1}, {WB0}, v{aX}", f"v_add_u32 v{aX+2}, {YB}, v{aX}")
    A(f"s_add_u32 s{sWc}, s{sWc}, 256", f"s_and_b32 s{sWc}, s{sWc}, 0x3803ff", f"s_add_u32 s{sWm0}, s{sM0}, {WB0}", f"s_mov_b32 s{sWn}, 2")
    A("v_lshrrev_b32 v5, 1, v3", "v_and_b32 v6, 1, v2", "v_lshl_add_u32 v5, v6, 1, v5",
      "v_lshl_add_u32 v6, v2, 3, v3", "v_lshlrev_b32 v6, 7, v6", "v_lshl_add_u32 v6, v4, 3, v6")
    for mt in range(4):
        A(f"v_xor_b32 v7, {mt}, v5", f"v_lshl_add_u32 v{aW2+mt}, v7, 5, v6", f"v_add_u32 v{aW+mt}, {WB0}, v{aW2+mt}",
          f"v_add_u32 v{aW3+mt}, {YB}, v{aW2+mt}")
    kv_voff()
    A("v_lshrrev_b32 v5, 1, v2", "v_lshlrev_b32 v5, 8, v5", "v_lshl_add_u32 v5, v1, 4, v5", "v_and_b32 v6, 1, v2", "v_lshl_add_u32 v5, v6, 3, v5",
      f"s_lshl_b32 s{sT}, s{sQB}, 13", f"s_add_u32 s{sT}, s{sT}, {YB}", f"v_add_u32 v{aQw}, s{sT}, v5")
    wo_voff()
    A(f"s_mov_b32 s{sSCL}, 0x{f2u(math.log2(math.e) / math.sqrt(128.0)):x}")
    A(f"s_mov_b32 s{sKn}, -1", f"s_mov_b32 s{sVn}, -2",
      f"s_add_u32 s{sKo}, s{sCol}, 16384",
      f"s_mov_b32 s{sVo}, s{sCol}")
    A(f"s_mov_b32 s{sCNT}, 2", "s_waitcnt vmcnt(0)")
    if cfg.fused:
        A("s_bfe_u32 s85, s2, 0x20003", "s_add_u32 s85, s85, 3", f"s_cmp_eq_u32 s{sQB}, 3", "s_cselect_b32 s85, s85, 99")
        A(f"s_lshl_b32 s56, s{sQB}, 10", f"s_add_u32 s{SFLG}, s{SFLG}, s56", f"s_addc_u32 s{SFLG+1}, s{SFLG+1}, 0", f"s_mov_b32 s{SFLG+2}, 4")
    T.append(emit(fin(p_prologue(cfg))))
    ST(1)
    A(f"v_lshlrev_b32 v{vXo}, 7, v0")
    if cfg.prioM: A(f"s_setprio {cfg.prioM}")
    A("s_branch L_Pgo")
    T.append("L_Ploop:")
    if cfg.fused:
        A(f"s_cmp_lg_u32 s{sCNT}, s85", "s_cbranch_scc1 L_nohs")
        A("v_mov_b32 v5, 1", f"buffer_atomic_add v5, v{vLane}, s[{SDBG}:{SDBG+3}], 0 offen sc1")
        T.append("L_nohs:")
    if cfg.wopf:
        if cfg.pfmode == 0: A(f"s_add_u32 s56, s{sQB}, 4")
        elif cfg.pfmode == 1: A(f"s_and_b32 s56, s{sQB}, 2", "s_add_u32 s56, s56, 4")
        elif cfg.pfmode == 2: A("s_mov_b32 s56, 6")
        A(f"s_cmp_lg_u32 s{sCNT}, s56", "s_cbranch_scc1 L_nowopf")
        A("s_lshl_b32 s56, s7, 15", f"s_lshl_b32 s57, s{sQB}, 13", "s_add_u32 s56, s56, s57",
          f"buffer_load_dword v{vFlag}, v{vXo}, s[{SWO}:{SWO+3}], s56 offen")
        T.append("L_nowopf:")
    if cfg.codepf:
        A(f"s_lshl_b32 s56, s{sQB}, 4", f"s_add_u32 s56, s56, s{sCNT}", f"s_cmp_lg_u32 s56, {6 if cfg.pfmode else 7}", "s_cbranch_scc1 L_nocpf")
        A("s_bfe_u32 s56, s2, 0x30003", "s_lshl_b32 s56, s56, 13", "s_min_u32 s56, s56, L_cold-attn_main_kernel-8192",
          f"v_add_u32 v5, s56, v{vXo}", "global_load_dword v241, v5, s[70:71]")
        T.append("L_nocpf:")
    a0, b0 = p_phase(cfg, 0)
    T.append(emit(fin(a0)))
    if cfg.nobnd & 4: A("s_waitcnt lgkmcnt(0)", "s_branch L_Pgo")
    A(f"s_bitcmp1_b32 s{sCNT}, 0", "s_cbranch_scc0 L_Pwr")
    T.append(emit(fin([raw("s_nop 1")] + q_pack(HLD) + [lgkm0()])))
    A("s_branch L_Pgo")
    T.append("L_Pwr:")
    pk, st = q_pack(TMP), q_store(TMP, 1)
    wr = q_store(HLD, 0)
    for k in range(8): wr += pk[6 * k:6 * k + 6] + ([st[k - 1]] if k else [])
    T.append(emit(fin(wr + [st[7], lgkm0()])))
    T.append("L_Pgo:")
    body = list(b0)
    for ph in range(1, 8):
        a, b = p_phase(cfg, ph)
        body += a + b
    T.append(emit(fin(body)))
    A(f"s_add_u32 s{sCNT}, s{sCNT}, 1", f"s_cmp_lt_u32 s{sCNT}, 8", "s_cbranch_scc1 L_Ploop")
    for mt in range(4): A(f"v_add_u32 v{aW+mt}, {XB}, v{aW2+mt}", f"v_add_u32 v{aW3+mt}, {WB0}, v{aW2+mt}")
    A("s_lshl_b32 s58, s6, 14", f"s_lshl_b32 s{sPo}, s{sQB}, 12", f"s_add_u32 s{sPo}, s{sPo}, s58")
    if cfg.prioP: A(f"s_setprio {cfg.prioP}")
    T.append(emit(fin([raw("s_nop 7")] + p_tail(cfg))))
    if cfg.fused:
        A("s_lshl_b32 s56, s5, 2", "s_lshr_b32 s58, s6, 1", "s_add_u32 s56, s56, s58", "s_lshl_b32 s56, s56, 10", f"s_add_u32 s56, s56, {FLG}")
        A(*srd_off(SX if cfg.dpoll else SFLG, 92, 93, "s56", 1024))
        T += a_reduce(cfg, 1)
    ST(3)
    A("s_endpgm")
    T.append("L_cold:")
    variants = {}
    for name, key in SITES.items():
        variants.setdefault(key, f"L_fbr_{key[0]}_{key[1]}_{int(key[2])}")
        T.append(f"L_fb_{name}:")
        A(f"s_call_b64 s[{sRET}:{sRET+1}], {variants[key]}", f"s_branch L_ret_{name}")
    for key, lab in variants.items():
        T.append(f"{lab}:")
        T.append(emit(fallback(*key)))
    T.append("L_end:")
    A("s_endpgm")
    return T

def reduce_kernel(cfg):
    T = []
    A = lambda *a: T.extend("    " + x for x in a)
    T += [".globl attn_reduce_kernel", ".p2align 8", ".type attn_reduce_kernel,@function", "attn_reduce_kernel:"]
    A("s_cmp_ge_u32 s2, 256", "s_cbranch_scc1 L_rend")
    if cfg.stamps: A("s_memrealtime s[40:41]")
    A("s_load_dwordx2 s[4:5], s[0:1], 80", "s_load_dwordx2 s[6:7], s[0:1], 96")
    A("s_lshr_b32 s18, s2, 3", "s_and_b32 s19, s2, 7")
    A("s_lshl_b32 s20, s18, 21", "s_lshl_b32 s21, s19, 17", "s_add_u32 s20, s20, s21", "s_add_u32 s20, s20, 0x100000")
    A("v_lshrrev_b32 v1, 6, v0", "v_and_b32 v2, 63, v0", "v_lshlrev_b32 v3, 4, v2", "v_lshl_add_u32 v3, v1, 11, v3")
    A("s_waitcnt lgkmcnt(0)")
    A(*srd_off(8, 6, 7, "s20", 131072))
    for src in range(8):
        A(f"s_mov_b32 s22, {src*16384}")
        for pair in range(2):
            b = 16 + (src * 2 + pair) * 4
            A(f"buffer_load_dwordx4 v[{b}:{b+3}], v3, s[8:11], s22 offen offset:{pair*1024} {cfg.rflags}")
    A(*srd(12, 4, 5, 1 << 22))
    A("s_and_b32 s23, s18, 15", "s_lshl_b32 s23, s23, 18", "s_lshr_b32 s24, s18, 4", "s_lshl_b32 s24, s24, 10", "s_add_u32 s23, s23, s24",
      "s_lshl_b32 s24, s19, 7", "s_add_u32 s23, s23, s24")
    A("v_and_b32 v4, 15, v2", "v_lshl_add_u32 v4, v1, 4, v4", "v_lshlrev_b32 v4, 11, v4",
      "v_bfe_u32 v5, v2, 4, 1", "v_lshl_add_u32 v4, v5, 5, v4", "v_lshrrev_b32 v5, 5, v2", "v_lshl_add_u32 v4, v5, 4, v4")
    acc = 80
    for src in range(8):
        A(f"s_waitcnt vmcnt({(7-src)*2})")
        for pair in range(2):
            b = 16 + (src * 2 + pair) * 4
            for i in range(4):
                lo, hi = acc + pair * 8 + 2 * i, acc + pair * 8 + 2 * i + 1
                if src == 0:
                    A(f"v_lshlrev_b32 v{lo}, 16, v{b+i}", f"v_and_b32 v{hi}, 0xffff0000, v{b+i}")
                else:
                    A(f"v_lshlrev_b32 v6, 16, v{b+i}", f"v_and_b32 v7, 0xffff0000, v{b+i}", f"v_add_f32 v{lo}, v{lo}, v6", f"v_add_f32 v{hi}, v{hi}, v7")
    for pair in range(2):
        a = acc + pair * 8
        for i in range(4): A(f"v_cvt_pk_bf16_f32 v{16+pair*4+i}, v{a+2*i}, v{a+2*i+1}")
    A("s_nop 1")
    for pair in range(2):
        d = 16 + pair * 4
        A(f"v_permlane16_swap_b32 v{d}, v{d+2}", f"v_permlane16_swap_b32 v{d+1}, v{d+3}")
        A(f"buffer_store_dwordx4 v[{d}:{d+3}], v4, s[12:15], s23 offen offset:{pair*64} {cfg.outflags}")
    if cfg.stamps and not cfg.series:
        A("s_waitcnt vmcnt(0)", "s_memrealtime s[42:43]", "s_waitcnt lgkmcnt(0)")
        A(*srd_off(8, 6, 7, WS_BYTES - (1 << 20), 1 << 20))
        A("s_lshl_b32 s22, s2, 8", "v_mov_b32 v4, s40", "v_mov_b32 v5, s41", "v_mov_b32 v6, s42", "v_mov_b32 v7, s43",
          "v_cmp_eq_u32 vcc, 0, v0", "s_and_saveexec_b64 s[34:35], vcc", "s_cbranch_execz L_rend",
          "buffer_store_dwordx4 v[4:7], v0, s[8:11], s22 offen offset:32")
    T.append("L_rend:")
    A("s_endpgm")
    return T

def kd(name, vgpr, sgpr):
    return [".p2align 6", f".amdhsa_kernel {name}", f"  .amdhsa_next_free_vgpr {vgpr}", f"  .amdhsa_next_free_sgpr {sgpr}",
            f"  .amdhsa_accum_offset {(vgpr+3)//4*4}", "  .amdhsa_group_segment_fixed_size 0", "  .amdhsa_kernarg_size 104",
            "  .amdhsa_user_sgpr_count 2", "  .amdhsa_user_sgpr_kernarg_segment_ptr 1", "  .amdhsa_system_sgpr_workgroup_id_x 1",
            ".end_amdhsa_kernel"]

DOC = """
; ---------------------------------------------------------------------------------------------------------
; One persistent workgroup per CU = (branch, batch b, 4 heads).  8 waves, two roles, all MFMA 16x16x32 bf16:
;   waves 4-7 ("P"): x fragments stay in registers; Q = x wq for the next head, all LDS-DMA of K/V/wq,
;                    then out-projection of the workgroup's own 4 heads (bf16 partial sums to d_ws)
; Softmax: reference = true row max of the first key tile of each head (folded in as the MFMA C input); every
;   half tile checks its exp sums against 2^20 and otherwise calls L_fbr_* which raises the reference to the
;   running max and rescales O, l and pending P exactly (integer power of two).
; Cross-workgroup reduce of the 8 partial sums of a (branch, batch): sc1 stores -> vmcnt -> sc1 flag (one line per
;   writer, cleared at start; the d_debug counter says all writers of the group have cleared), sc1 polls and loads.
; Generated by a script (software pipelining, counted waits and wait states are computed there).
; ---------------------------------------------------------------------------------------------------------
"""

def generate(cfg, path):
    SITES.clear()
    KPERM[0] = cfg.kperm
    T = header()
    if cfg.fused:
        T += ["; @launch grid=(256,1,1) block=(512,1,1) lds=163840"]
    else:
        T += ["; @launch kernel=attn_main_kernel grid=(256,1,1) block=(512,1,1) lds=163840",
              "; @launch kernel=attn_reduce_kernel grid=(256,1,1) block=(512,1,1) lds=0"]
    T += ['.amdgcn_target "amdgcn-amd-amdhsa--gfx950"', ".text"]
    T += DOC.strip("\n").split("\n")
    T += main_kernel(cfg)
    if not cfg.fused: T += reduce_kernel(cfg)
    T += ['.section .rodata,"a"'] + kd("attn_main_kernel", 256, 102)
    if not cfg.fused: T += kd("attn_reduce_kernel", 96, 48)
    txt = "\n".join(T) + "\n"
    if cfg.fused: txt = txt.replace("attn_main_kernel", NAME + "_kernel")
    open(path, "w").write(txt)

if __name__ == "__main__":
    cfg = Cfg()
    out = "k.s"
    for a in sys.argv[1:]:
        if "=" in a:
            k, v = a.split("=", 1)
            cur = getattr(cfg, k)
            setattr(cfg, k, (v not in ("0", "False")) if isinstance(cur, bool) else type(cur)(v))
        else:
            out = a
    generate(cfg, out)
```

```python
import sys, math, struct
from asmlib import *

NAME = "concat_heads__mha_block_cached__mha_block_cached__near_ridge"
WS_BYTES = 289406976
def f2u(x): return struct.unpack("<I", struct.pack("<f", x))[0]

KB0, VB0, WB0, XB, YB = 0, 32768, 65536, 98304, 131072
DROP = 0x30000
OOB = 0x40000000
SK, SV, SWQ, SWO, SX, SPART = 8, 12, 16, 20, 24, 32
sW, sQB, sCNT, sBND, sSCL, sKo, sVo, sWc, sT, sM0, sWm0, sRET = 36, 37, 38, 39, 40, 41, 42, 43, 44, 45, 46, 48
sPo, sCol, sPo1, sX16, sROT, sKn, sVn, sWn, sKs, sVs = 50, 51, 52, 53, 59, 28, 29, 30, 54, 55
sFm0 = 31
sKVm0 = 47
sTX = 4
SFLG, SDBG, SOUT = 72, 76, 80
sFv = 84
vFlag = 240
FLG = 0x4800000
aW3 = 248
aX = 253
vWoA = 253
def Qf(s, qs): return 8 + (s * 2 + qs) * 4
def Oa(dt, qs): return 40 + (dt * 2 + qs) * 4
def Sr(n, kt, qs):
    if kt < 2: return 104 + (kt * 2 + qs) * 4
    return 120 + (n & 1) * 16 + ((kt - 2) * 2 + qs) * 4
def Pf(n, u, qs):
    if u == 0: return 152 + (n & 1) * 8 + qs * 4
    return 168 + qs * 4
def NM(qs): return 176 + qs * 4
def FR(f): return 184 + (f & 7) * 4
TMP = 216
vL, vLS, vTS = 232, 234, 236
aK, aV, aQ, aO, vLane = 238, 242, 250, 251, 252
def Bf(s, qs): return 8 + (s * 2 + qs) * 4
def Ac(mt, qs): return 136 + (mt * 2 + qs) * 4
HLD = 168
aW, aW2, vKo, vVo, vWq, vWo, aQw, vXo = 232, 236, 242, 243, 244, 245, 246, 247

BAR_IDX = 19

class Cfg:
    stamps = False
    kvflags = "nt"
    wflags = ""
    pflags = "sc1"
    xflags = ""
    woflags = ""
    rflags = ""
    outflags = ""
    force_fb = False
    mapping = 2
    rot = 1
    codepf = True
    wopf = True
    prioA = 0
    cal_pro = 0
    cal_main = 0
    cal_end = 0
    cal_mid = 0
    cal_wg = -1
    probe = -1
    fused = True
    lastbar = 26
    flagc = 0
    flaglag = 5
    ne = 3
    lastep = True
    startfast = 4
    tlbw = 0
    kvfirst = False
    tfast = 99
    dpoll = False
    pubs = "23:4"
    pfmode = 0
    nobnd = 0
    xb1 = 7
    xb2 = 13
    sser = False
    rn1 = 4
    rn2 = 16
    kperm = 0
    h1touch = 0
    slowmask = 0xfc
    pvmfast = 6
    slowph = 0xff
    slowmask2 = 0x60
    tx = 0
    avoid = True
    minlead = 3
    kvpos = ""
    tlead = 1
    tlate = 3
    pvm = 5
    kvlate = 0
    psplit = 6
    pspread = True
    half = 7
    ktouch = 0
    tflags = ""
    thead = 2
    bstamp = False
    midbar = 17
    aper = 2
    pubfrom = 22
    stw = 0
    pfbody = 7
    order = "AFHTFFFF"
    pdup = 0
    plead = 2
    pwflags = ""
    krot = 0
    series = False
    prioM = 0
    ppace = 0
    nopm = False
    nodma = False
    noav = False
    barq = 19
    barp = 23
    locap = 2
    pf0 = 28
    fbar = 1
    fwait = 2
    fburst = 1
    prioP = 0
    nokv = False
    nowq = False
    nowo = False
    nops = False

def stamp(cfg, idx):
    if not cfg.stamps: return []
    return [S("s_memrealtime s[60:61]"), S("s_memtime s[94:95]"), raw("s_waitcnt lgkmcnt(0)", "lgkm0"),
            raw("v_mov_b32 v2, s60"), raw("v_mov_b32 v3, s61"), raw("v_mov_b32 v4, 0"),
            raw("v_mov_b32 v6, s94"), raw("v_mov_b32 v7, s95"),
            raw("s_mov_b64 s[62:63], exec"), raw("s_mov_b64 exec, 1"),
            raw(f"buffer_store_dwordx2 v[2:3], v4, s[64:67], s68 offen offset:{idx*8}"),
            raw(f"buffer_store_dwordx2 v[6:7], v4, s[64:67], s68 offen offset:{idx*8+64}"),
            raw("s_mov_b64 exec, s[62:63]")]

def softmax_part(n, part):
    L = []
    for qs in range(2):
        for k in range(2):
            s = Sr(n, 2 * part + k, qs)
            e = [TMP + k * 4 + i for i in range(4)]
            for i in range(4): L.append(vexp(e[i], s + i))
            if k == 0:
                L.append(valu("v_add_f32", vTS + qs, e[0], e[1]))
            else:
                L.append(valu("v_add_f32", vTS + qs, vTS + qs, e[0]))
                L.append(valu("v_add_f32", vTS + qs, vTS + qs, e[1]))
            L.append(cvtpk(Pf(n, part, qs) + 2 * k, e[0], e[1]))
            L.append(valu("v_add_f32", vTS + qs, vTS + qs, e[2]))
            L.append(valu("v_add_f32", vTS + qs, vTS + qs, e[3]))
            L.append(cvtpk(Pf(n, part, qs) + 2 * k + 1, e[2], e[3]))
    return L

def l_update(n, part):
    t = n & 7
    if t == 0 and part == 0:
        return [valu("v_mov_b32", vL + qs, vTS + qs) for qs in range(2)]
    if t == 7 and part == 1:
        return [valu("v_add_f32", vLS + qs, vL + qs, vTS + qs) for qs in range(2)]
    return [valu("v_add_f32", vL + qs, vL + qs, vTS + qs) for qs in range(2)]

SITES = {}
def check_pre(n):
    if (n & 7) == 0: return []
    return [valu("v_max_f32", TMP + 8, vTS, vTS + 1), I(f"v_cmp_lt_f32 vcc, s{sBND}, v{TMP+8}", "valu", (), {TMP + 8})]
def check(n, part, sfx):
    t = n & 7
    if t == 0: return []
    name = f"{sfx}{t}_{part}"
    SITES[name] = (n & 1, part, t == 7)
    return [raw(f"s_cbranch_vccnz L_fb_{name}"), label(f"L_ret_{name}")]

def xgroup(op, x, t):
    return [valu("v_mov_b32", t, x), swap32(t, x), valu(op, x, x, t),
            valu("v_mov_b32", t, x), swap16(t, x), valu(op, x, x, t)]

def rowmax(dst, srcs):
    L = [valu("v_max3_f32", dst, srcs[0], srcs[1], srcs[2])]
    rest = srcs[3:]
    while len(rest) >= 2:
        L.append(valu("v_max3_f32", dst, dst, rest[0], rest[1])); rest = rest[2:]
    if rest: L.append(valu("v_max_f32", dst, dst, rest[0]))
    return L

def zipl(a, b):
    out = []
    for i in range(max(len(a), len(b))):
        if i < len(a): out.append(a[i])
        if i < len(b): out.append(b[i])
    return out

def first_tile_max(n):
    per = []
    for qs in range(2):
        m, t = TMP + 8 + qs, TMP + 10 + qs
        srcs = [Sr(n, kt, qs) + i for kt in range(4) for i in range(4)]
        L = rowmax(m, srcs) + xgroup("v_max_f32", m, t)
        L += [valu("v_sub_f32", s, s, m) for s in srcs[:8]]
        per.append(L)
    L = zipl(per[0], per[1])
    late = []
    for qs in range(2):
        m = TMP + 8 + qs
        late += [valu("v_sub_f32", NM(qs) + i, "0", m) for i in range(4)]
        late += [valu("v_sub_f32", s, s, m) for s in [Sr(n, kt, qs) + i for kt in (2, 3) for i in range(4)]]
    return L, late

def o_epilogue(cfg, stage=None):
    per = []
    for qs in range(2):
        per.append(xgroup("v_add_f32", vLS + qs, TMP + 12 + qs) + [vrcp(vLS + qs, vLS + qs)])
    L = zipl(per[0], per[1])
    k = 0
    for s in range(4):
        for qs in range(2):
            q = TMP + 8 + (k & 1) * 4 if stage is None else stage + 4 * k
            for h in range(2):
                o = Oa(2 * s + h, qs)
                for i in range(4): L.append(valu("v_mul_f32", o + i, o + i, vLS + qs))
                L.append(cvtpk(q + 2 * h, o, o + 1)); L.append(cvtpk(q + 2 * h + 1, o + 2, o + 3))
            L.append(ds_w128(aO, q, (s * 2 + qs) * 1024))
            k += 1
    return L

def k_read(n, f): return [ds_r128(FR(f), aK + (f & 3), KB0 + (n & 1) * 16384 + (f >> 2) * 4096)]
def v_read(n, f):
    dt, u = f >> 1, f & 1
    o = VB0 + (n & 1) * 16384 + u * 8192
    return [ds_tr(FR(f), aV + dt, o), ds_tr(FR(f) + 2, aV + dt, o + 4096)]

NT = 32
def units(i):
    if i.k == "label" or "vmcnt" in i.t: return 0
    return 2 if i.k == "trans" else 1

def schedule(main, ds, blocks, fixed, lo_cap=2):
    fill = []
    ds = list(ds)
    n = len(main)
    used = [0] * (n + 64)
    for p, L in fixed.items(): used[p] += sum(units(i) for i in L)
    for p in range(1, n):
        if main[p] is not None and main[p].tag: used[p - 1] += 1
    g = 0
    cnt = {}
    bars = sorted(p for p, L in fixed.items() if any(i.k == "lgkm0" for i in L))
    for e, ins in ds:
        g = max(g, e)
        while cnt.get(g, 0) >= (1 if (g & 1) == 0 else 2) and main[min(g, n - 1)] is not None: g += 1
        nb = [b for b in bars if b >= e]
        assert not nb or g <= nb[0] - 2, (e, g, ins.t)
        cnt[g] = cnt.get(g, 0) + 1
        used[g] += 1
        fill.append((g, 1, ins))
    def conflict(a, b):
        return bool(a.w & (b.r | b.w)) or bool(a.r & b.w) or (not a.w and not a.r) or (not b.w and not b.r) or (a.k == "dsw" and b.k == "dsw")
    def try_place(s, e, L, hi):
        u = list(used); rest = list(L); out = []
        last = None
        for p in range(s, e + 1):
            cap = lo_cap if (p & 1) == 0 else hi
            last = None
            while rest:
                pick = None
                for k in range(min(len(rest), 14)):
                    c = rest[k]
                    if u[p] + units(c) > cap: continue
                    if any(conflict(x, c) for x in rest[:k]): continue
                    if last is not None and last.k == "trans" and c.k != "trans" and last.w & c.r: continue
                    if last is not None and c.k == "perm" and last.w & c.r: continue
                    pick = k; break
                if pick is None: break
                c = rest.pop(pick); u[p] += units(c); out.append((p, 0, c)); last = c
        return (u, out) if not rest else None
    for (s, e, L) in blocks:
        hi = lo_cap
        while True:
            r = try_place(s, e, L, hi)
            if r: break
            hi += 1
        used, out = r
        fill += out
    pre = [(p, i) for (p, o, i) in fill]
    return pre

def a_stream(cfg):
    qrd = lambda: [ds_r128(Qf(s, qs), aQ, (s * 2 + qs) * 1024) for s in range(4) for qs in range(2)]
    pre = qrd()
    for f in range(8): pre += k_read(0, f)
    main, ds, blocks, fixed = [], [], [], {}
    BQ, BP = cfg.barq, cfg.barp
    for n in range(NT + 1):
        t = n & 7
        sfx = "T" if n >= NT else "L"
        real = n < NT
        b0 = 64 * n
        for kt in range(4):
            for qs in range(2):
                for s in range(4):
                    c = Sr(n, kt, qs) if s else (None if t == 0 else NM(qs))
                    dep = [FR(4 * kt + x) for x in range(4)] if (qs == 0 and s == 0) else ()
                    main.append(mfma(Sr(n, kt, qs), FR(4 * kt + s), Qf(s, qs), c, dep) if real else None)
        if real:
            for f in range(8, 16):
                ds += [(b0 + 4 + (f & 3) + 8 * ((f - 8) >> 2), i) for i in k_read(n, f)]
        if n >= 1:
            va = softmax_part(n - 1, 1) + check_pre(n - 1)
            if t == 1 and n > 8 and not cfg.nobnd & 1: va = va[:12] + zipl(o_epilogue(cfg), va[12:])
            blocks.append((b0, b0 + 30, va))
        if n == 0:
            fixed[cfg.xb1] = [barrier()]
            fixed[cfg.xb2] = [barrier()]
        fixed[b0 + BQ] = ([vmcnt(4)] if n == 1 else []) + [lgkm0(), barrier()]
        if n >= 1:
            for f in range(8):
                ds += [(b0 + max(BQ + 1, 20 + (f & 3) + 8 * (f >> 2)), i) for i in v_read(n - 1, f)]
            fixed[b0 + 31] = check(n - 1, 1, sfx) + l_update(n - 1, 1)
        realpv = n >= 1
        m = n - 1
        b1 = b0 + 32
        for dt in range(8):
            for (u, qs) in ((0, 0), (1, 0), (1, 1), (0, 1)):
                firstk = (u == 0 and qs == 0) or (u == 1 and qs == 1)
                c = None if ((m & 7) == 0 and firstk) else Oa(dt, qs)
                dep = [FR(2 * dt + 1)] if (u == 0 and qs == 0) else ()
                main.append(mfma(Oa(dt, qs), FR(2 * dt + u), Pf(m, u, qs), c, dep) if realpv else None)
        qq = qrd() if t == 7 else []
        if realpv:
            for p in range(4):
                ds += [(b1 + 2 + 4 * p, i) for i in v_read(m, 9 + 2 * p)] + [(b1 + 3 + 4 * p, i) for i in v_read(m, 8 + 2 * p)]
                ds += [(b1, i) for i in qq[2 * p:2 * p + 2]]
        if real:
            va = softmax_part(n, 0) + check_pre(n)
            if t == 0 and not (cfg.nobnd & 2 and n > 0):
                early, late = first_tile_max(n)
                blocks.append((b1 + 2, b1 + 30, early + va + late))
            else:
                blocks.append((b1, b1 + 30, va))
        fixed[b1 + BP] = ([vmcnt(8 if n == 0 else 0)] if n < 2 else []) + [lgkm0(), barrier()]
        if n + 1 < NT:
            for f in range(8):
                ds += [(b1 + max(BP + 1, 19 + 4 * (f >> 1)), i) for i in k_read(n + 1, f)]
        if real:
            sf2 = "T" if n + 1 >= NT else "L"
            fixed[b1 + 31] = check(n, 0, sf2) + l_update(n, 0)
    tailq = []
    if cfg.lastep:
        b1 = 64 * NT + 32
        ep = o_epilogue(cfg, stage=104)
        hdr, grp = ep[:14], [ep[14 + 13 * k:27 + 13 * k] for k in range(8)]
        blocks.append((b1, b1 + 8, hdr))
        for s in range(3):
            blocks.append((b1 + 8 * s + 10, b1 + min(8 * s + 17, 31), grp[2 * s][:12] + grp[2 * s + 1][:12]))
        for k in range(4): fixed.setdefault(b1 + cfg.barp + 2 + k, []).append(grp[k][12])
        tailq = [grp[4][12], grp[5][12]] + grp[6] + grp[7]
    fill = schedule(main, ds, blocks, fixed, cfg.locap)
    fill += [(p, i) for p, L in fixed.items() for i in L]
    seq = pre + [i for i in interleave(main, fill) if i is not None]
    seq += tailq if cfg.lastep else o_epilogue(cfg)
    seq += [lgkm0(), barrier()]
    if cfg.noav: seq = [i for i in seq if i.k not in ("valu", "trans", "perm") and "cbranch" not in i.t]
    return seq

def split_segments(seq):
    segs, cur = [], []
    for i in seq:
        cur.append(i)
        if i.k == "barrier":
            segs.append(cur); cur = []
    if cur: segs.append(cur)
    return segs

def fallback(par, part, last):
    n = par + 2
    L = [raw("s_nop 7"), raw("s_nop 3")]
    D, F, T = TMP + 8, TMP + 10, TMP + 12
    kts = range(4) if part == 0 else (2, 3)
    for qs in range(2):
        srcs = [Sr(n, kt, qs) + i for kt in kts for i in range(4)]
        d, f, t = D + qs, F + qs, T + qs
        L += rowmax(d, srcs) + xgroup("v_max_f32", d, t)
        L += [valu("v_max_f32", d, "0", d), valu("v_ceil_f32", d, d), valu("v_sub_f32", t, "0", d), vexp(f, t)]
        L += [valu("v_sub_f32", s, s, d) for s in srcs]
        L += [valu("v_sub_f32", NM(qs) + i, NM(qs) + i, d) for i in range(4)]
        L += [valu("v_mul_f32", vL + qs, vL + qs, f)]
        L += [valu("v_mul_f32", Oa(dt, qs) + i, Oa(dt, qs) + i, f) for dt in range(8) for i in range(4)]
        if part == 1:
            for i in range(4):
                p = Pf(n, 0, qs) + i
                L += [valu("v_lshlrev_b32", t, "16", p), valu("v_and_b32", p, "0xffff0000", p),
                      valu("v_mul_f32", t, t, f), valu("v_mul_f32", p, p, f), cvtpk(p, t, p)]
            if not last:
                L += [valu("v_sub_f32", s, s, d) for s in [Sr(n + 1, kt, qs) + i for kt in range(4) for i in range(4)]]
    L += softmax_part(n, part)
    L += [raw("s_nop 2"), raw(f"s_setpc_b64 s[{sRET}:{sRET+1}]")]
    return fix_hazards(L)

def q_pack(dst):
    L = []
    for mt in range(4):
        for qs in range(2):
            a = Ac(mt, qs); d = dst + (mt * 2 + qs) * 2
            for i in range(4): L.append(valu("v_mul_f32", a + i, f"s{sSCL}", a + i))
            L += [cvtpk(d, a, a + 1), cvtpk(d + 1, a + 2, a + 3)]
    return L
def q_store(src, hf):
    return [ds_w64(aQw, src + (mt * 2 + qs) * 2, hf * 4096 + (mt >> 1) * 2048 + qs * 1024 + (mt & 1) * 512)
            for mt in range(4) for qs in range(2)]

def wc_adv():
    return [S(f"s_add_u32 s{sWn}, s{sWn}, 1"), S(f"s_add_u32 s{sWc}, s{sWc}, 128"), S(f"s_and_b32 s{sWc}, s{sWc}, 0x3803ff"),
            S(f"s_cmp_ge_u32 s{sWn}, 8"), S(f"s_cselect_b32 s{sWc}, {OOB}, s{sWc}"), S(f"s_cselect_b32 s{sWm0}, {DROP}, s{sWm0}")]
def wq_dma(cfg, kc, ks):
    return [m0set(f"s_add_u32 m0, s{sWm0}, {(kc & 3)*8192 + ks*4096}"),
            S(f"s_add_u32 s{sT}, s{sWc}, {kc * (1 << 19) + ks * (1 << 18)}"), S(f"s_and_b32 s{sT}, s{sT}, 0x403fffff"),
            dma(vWq, SWQ, f"s{sT}", 0, cfg.wflags)]
KPERM = [0]
def kv_xform(s):
    if KPERM[0] == 0: return [S(f"s_xor_b32 s{s}, s{s}, s{sTX}")]
    sh = {1: 2, 2: 1}[KPERM[0]]
    return [S(f"s_xor_b32 s{s}, s{s}, s{sTX}"), S(f"s_and_b32 s{sT}, s{s}, 0x1c000"), S(f"s_xor_b32 s{s}, s{s}, s{sT}"),
            S(f"s_lshr_b32 s{sT}, s{sT}, {sh}"), S(f"s_or_b32 s{s}, s{s}, s{sT}")]
def kv_pre(isK):
    n, o, s = (sKn, sKo, sKs) if isK else (sVn, sVo, sVs)
    return [S(f"s_cmp_lt_u32 s{n}, 30"), S(f"s_cselect_b32 s{s}, s{o}, {OOB}"), S(f"s_cselect_b32 s{sKVm0}, s{sM0}, {DROP}")] + kv_xform(s) + [
            S(f"s_add_u32 s{n}, s{n}, 1"), S(f"s_add_u32 s{o}, s{o}, 16384"), S(f"s_and_b32 s{o}, s{o}, 0x7ffff")]
def kv_dma(cfg, isK, slot, jj):
    base = (KB0 if isK else VB0) + slot * 16384 + jj * 3072
    return [m0set(f"s_add_u32 m0, s{sKVm0}, {base}"),
            dma(vKo if isK else vVo, SK if isK else SV, f"s{sKs if isK else sVs}", jj * 1024, cfg.kvflags)]
def kv_issue(cfg, isK, slot):
    L = kv_pre(isK)
    for jj in range(4): L += kv_dma(cfg, isK, slot, jj)
    return L

PRO_REG = [YB, VB0, XB, WB0, KB0]
sKR = 58
def Ac2(mt, qs):
    k = mt * 2 + qs
    return HLD + 4 * k if k < 4 else TMP + 4 * (k - 4)

def qwait(q, tags):
    last = max(i for i, t in enumerate(q) if t in tags)
    return vmcnt(len(q) - 1 - last)

def a_prologue(cfg):
    seq, q = [], []
    def wq(kc):
        L = []
        for hf in range(2):
            for ks in range(2):
                L += [m0set(f"s_add_u32 m0, s{sM0}, {PRO_REG[kc % 5] + hf*8192 + ks*4096}"),
                      S(f"s_add_u32 s{sT}, s{sWc}, {kc * (1 << 19) + ks * (1 << 18) + hf * 128}"), S(f"s_and_b32 s{sT}, s{sT}, 0x3fffff"),
                      dma(vWq, SWQ, f"s{sT}", 0, cfg.pwflags)]
        L += x_dma(cfg, kc)
        q.extend([kc] * 8)
        return L
    def two(isK):
        L = []
        s = sKs if isK else sVs
        for slot in range(2):
            L += [S(f"s_add_u32 s{s}, s{sCol}, {slot * 16384}")] + kv_xform(s)
            for jj in range(4): L += kv_dma(cfg, isK, slot, jj)
        q.extend(["kv"] * 8)
        return L
    first = []
    for kc in range(cfg.plead): first += wq(kc)
    seq.append(S(f"s_mov_b32 s{sKVm0}, s{sM0}"))
    nxt = cfg.plead
    for kc in range(9):
        seq += [qwait(q, {kc}), barrier()]
        while nxt <= min(kc + 3, 7) and nxt <= kc + cfg.plead:
            seq += wq(nxt); nxt += 1
        if kc == 5:
            seq += [S(f"s_add_u32 s{sWc}, s{sWc}, 256"), S(f"s_and_b32 s{sWc}, s{sWc}, 0x3803ff"), S(f"s_add_u32 s{sWm0}, s{sM0}, {WB0}")]
            for c in range(4):
                for ks in range(2): seq += wq_dma(cfg, c, ks)
            q += [8] * 8
        if kc == 6: seq += two(True)
        if kc == 8: seq += two(False)
    return first, seq

def x_dma(cfg, kc):
    L = [m0set(f"s_add_u32 m0, s{sX16}, {PRO_REG[kc % 5] + 16384}"),
         S(f"s_add_u32 s{sT}, s{sKR}, {kc * 128}"), S(f"s_and_b32 s{sT}, s{sT}, 1023")]
    for p in range(4):
        if p: L += [m0set("s_add_u32 m0, m0, 1024"), S(f"s_add_u32 s{sT}, s{sT}, 8192")]
        L.append(dma(vXo, SX, f"s{sT}", 0, cfg.xflags))
    return L

def p_prologue(cfg):
    def base_of(addr):
        return (0, 0) if addr < 65536 else ((1, WB0) if addr < YB else (2, YB))
    def rd(kc, f):
        if kc == 8: return ring_read(0, f)
        hf, mt, ks = f >> 3, (f >> 1) & 3, f & 1
        addr = PRO_REG[kc % 5] + hf * 8192 + ks * 4096
        k, base = base_of(addr)
        a = (aW2, aW, aW3)[k]
        return [ds_tr(FR(f), a + mt, addr - base), ds_tr(FR(f) + 2, a + mt, addr - base + 512)]
    def xrd(kc):
        addr = PRO_REG[kc % 5] + 16384
        k, base = base_of(addr)
        return [ds_r128(Bf(2 * kc + ks, qs), aX + k, addr - base + qs * 2048 + ks * 64) for ks in range(2) for qs in range(2)]
    pre = [barrier()] + xrd(0)
    for f in range(8): pre += rd(0, f)
    main, fill = [], []
    for kc in range(8):
        b0 = 32 * kc
        for g in range(8):
            hf, mt = g >> 2, g & 3
            for (ks, qs) in ((0, 0), (1, 0), (1, 1), (0, 1)):
                firstk = (ks == 0 and qs == 0) or (ks == 1 and qs == 1)
                a = (Ac if hf else Ac2)(mt, qs)
                dep = [FR(2 * g + 1)] if (ks == 0 and qs == 0) else ()
                main.append(mfma(a, FR(2 * g + ks), Bf(2 * kc + ks, qs), None if (kc == 0 and firstk) else a, dep))
            if g == 4:
                fill.append((b0 + 17, barrier()))
                if kc < 7: fill += [(b0 + 17 + 2 * k, x) for k, x in enumerate(xrd(kc + 1))]
            k2, f2 = (kc, 2 * g + 8) if g < 4 else (kc + 1, 2 * g - 8)
            r = rd(k2, f2 + 1) + rd(k2, f2)
            fill += [(b0 + 4 * g + 2 + k, x) for k, x in enumerate(r)]
        if kc == 7:
            pk = []
            for mt in range(4):
                for qs in range(2):
                    a = Ac2(mt, qs); d = HLD + (mt * 2 + qs) * 2
                    for i in range(4): pk.append(valu("v_mul_f32", a + i, f"s{sSCL}", a + i))
                    pk += [cvtpk(d, a, a + 1), cvtpk(d + 1, a + 2, a + 3)]
            fill += [(b0 + p, x) for p, x in spread(pk + q_store(HLD, 0), 18, 31)]
    seq = pre + interleave(main, fill)
    pk, st = q_pack(TMP), q_store(TMP, 1)
    for k in range(8): seq += pk[6 * k:6 * k + 6] + [st[k]]
    seq += [lgkm0(), barrier()]
    return seq

def ring_read(kc, f):
    mt, ks = f >> 1, f & 1
    o = (kc & 3) * 8192 + ks * 4096
    return [ds_tr(FR(f), aW + mt, o), ds_tr(FR(f) + 2, aW + mt, o + 512)]

def chunk_mfmas(kc):
    L = []
    for mt in range(4):
        for (ks, qs) in ((0, 0), (1, 0), (1, 1), (0, 1)):
            firstk = (ks == 0 and qs == 0) or (ks == 1 and qs == 1)
            c = None if (kc == 0 and firstk) else Ac(mt, qs)
            dep = [FR(2 * mt + 1)] if (ks == 0 and qs == 0) else ()
            L.append(mfma(Ac(mt, qs), FR(2 * mt + ks), Bf(2 * kc + ks, qs), c, dep))
    return L

def p_phase(cfg, ph):
    PS = cfg.psplit
    isK = (ph & 1) == 1
    slot = [1, 1, 0, 0, 1, 1, 0, 0][ph]
    m1, m2 = chunk_mfmas((ph - 1) & 7)[PS:], chunk_mfmas(ph)[:PS]
    fill = []
    pos = -1
    for mt in range(4):
        for f, last in ((2 * mt + 1, 4 * mt + 2), (2 * mt, 4 * mt + 3)):
            for x in ring_read(ph, f):
                pos = max(pos, last - PS)
                fill.append((min(pos, len(m1) - 1), x))
                if cfg.pspread: pos += 1
    kv = kv_issue(cfg, isK, slot)
    head, rest = kv[:-6], kv[-6:]
    d = []
    if ph == 5: d += wc_adv()
    for ks in range(2): d += wq_dma(cfg, (ph + 3) & 7, ks)
    fill2 = []
    if cfg.kvpos:
        P = [int(x) for x in cfg.kvpos.split(",")]
        nw = len(d) - 4
        groups = [d[:nw], d[nw:], kv[:-6], kv[-6:-4], kv[-4:-2], kv[-2:]]
        extra = []
        for p, gl in zip(P, groups):
            if p < len(m1) or ph == 0: extra += [(min(p, len(m1) - 1), x) for x in gl]
            else: fill2 += [(p - len(m1), x) for x in gl]
        fill = extra + fill
    elif cfg.kvlate:
        fill = spread(d, -1, 2) + spread(kv, cfg.kvlate, len(m1) - 1) + fill
    else:
        fill = [(-1, x) for x in head] + [(k // 2, x) for k, x in enumerate(rest)] + spread(d, 3, 8) + fill
    if cfg.pdup:
        for k in range(cfg.pdup):
            fill2.append((1 + (k & 3), mfma(TMP + 4 * (k & 3), FR(k & 1), Bf((2 * ph + 5 + k) & 15, k & 1), TMP + 4 * (k & 3))))
            fill.append((k % len(m1), ds_tr(248 + 2 * (k & 1), aW + (k & 3), (ph & 3) * 8192 + 512 * (k & 7))))
    a = interleave(m1, fill)
    if cfg.slowmask >= 0 and not (cfg.slowph >> ph) & 1:
        wt = [vmcnt(cfg.pvmfast)]
    elif cfg.slowmask >= 0:
        wt = [S(f"s_bitcmp1_b32 {((cfg.slowmask2 if (ph & 1) and cfg.slowmask2 >= 0 else cfg.slowmask) & ~(4 if ph <= cfg.startfast else 0)):#x}, s{sCNT}"), raw(f"s_cbranch_scc0 L_fast{ph}"), vmcnt(cfg.pvm), label(f"L_fast{ph}"), vmcnt(cfg.pvmfast)]
    else:
        wt = [vmcnt(cfg.pvm)]
    b = interleave(m2, fill2) + wt + [lgkm0(), barrier()]
    if cfg.nopm: a, b = [[i for i in s if i.k not in ("mfma", "dsr")] for s in (a, b)]
    if cfg.nodma: a = [i for i in a if i.k not in ("dma",)]
    return a, b

def wo_chunk(cfg, k, plan, voff=None):
    sl, c = plan["blocks"][k]; slot = plan["slot"][k]
    L = []
    for ks in range(4):
        lds = (XB + slot * 16384 if slot < 4 else (slot - 4) * 16384) + ks * 4096
        L += [m0set(f"s_add_u32 m0, s{sM0}, {lds}"),
              S(f"s_add_u32 s{sT}, s{sCol}, {c * 131072 + ks * 32768 + sl * 128}"), S(f"s_and_b32 s{sT}, s{sT}, 0x7ffff"),
              dma(voff or vWo, SWO, f"s{sT}", 0, cfg.woflags)]
    return vtag(L, ("wo", k))

def b_load(pos, addr):
    return [ds_r128(Bf(4 * pos + (fr >> 1), fr & 1), addr, fr * 1024) for fr in range(8)]

def w_read(slot, f):
    mt, ks = f >> 2, f & 3
    o = (slot & 3) * 16384 + ks * 4096
    a = (aW if slot < 4 else (aW2 if slot < 8 else aW3)) + mt
    return [ds_tr(FR(f), a, o), ds_tr(FR(f) + 2, a, o + 512)]

def tail_plan(cfg):
    ne = cfg.ne
    names = {"A": "A", "H": "H", "T": "T", "L": "L0", "M": "L1", "F": "F"}
    order = cfg.order or ("AHTLM"[:ne] + "F" * (8 - ne))
    fo = [names[ch] for ch in order]
    early = [d for d in ("L0", "L1", "H", "T", "A") if d in fo]
    blocks = [(fo.index(d), c) for d in early for c in range(3)]
    n0 = len(blocks)
    for s, d in enumerate(fo):
        blocks += [(s, c) for c in (range(4) if d == "F" else (3,))]
    slot = {k: k & 3 for k in range(n0 + 3)}
    slot[n0 + 3] = 4; slot[n0 + 4] = 5
    a_issue = {}
    free = []
    nxt = n0 + 5
    pre = {17: [n0 + 3], 18: [n0 + 4]}
    if "L0" not in fo:
        slot[n0 + 5] = 8; slot[n0 + 6] = 9; nxt = n0 + 7
        pre = {15: [n0 + 3], 17: [n0 + 4], 18: [n0 + 5], 19: [n0 + 6]}
    busy = {k: (blocks[k][1] == 3) or (k > n0 and blocks[k - 1][1] == 3) for k in range(n0, 32)}
    for k in range(n0, cfg.lastbar):
        free.append(slot[k - 1])
        if k == n0 + 1: free += [6, 7]
        L = []
        while free and nxt < 32 and len(L) < cfg.aper and (not cfg.avoid or not busy[k] or nxt <= k + cfg.minlead or k >= cfg.lastbar - 2):
            slot[nxt] = free.pop(0); L.append(nxt); nxt += 1
        a_issue[k] = L
    assert nxt == 32
    return dict(fo=fo, early=early, blocks=blocks, n0=n0, slot=slot, a_issue=a_issue, pre=pre)

def flag_pub(val):
    return [valu("v_mov_b32", vFlag, str(val)), vwait(lambda t: t[0] == "st" and t[1] < val)] + \
           vtag([I(f"buffer_store_dword v{vFlag}, v{vLane}, s[{SFLG}:{SFLG+3}], 0 offen sc1", "vstore", (), {vFlag, vLane})], ("fl", val))

def p_tail(cfg):
    plan = tail_plan(cfg)
    blocks, n0, slot, fo = plan["blocks"], plan["n0"], plan["slot"], plan["fo"]
    p0 = 21 - n0 - cfg.half
    assert p0 >= 5
    sp, ep = {}, {}
    p = p0
    for k in range(n0):
        sp[k] = p; p += 2 if k < cfg.half else 1; ep[k] = p - 1
    for k in range(n0, n0 + 7): sp[k] = ep[k] = 21 + (k - n0)
    ep[-1] = p0 - 1
    issue = {}
    for k in range(n0 + 3): issue.setdefault(2 + k if k < 4 else sp[k - 3], []).append(k)
    for p, L in plan["pre"].items(): issue.setdefault(p, []).extend(L)
    assert sp[2] >= 7
    def setbase(reg, base):
        return [S(f"s_lshl_b32 s{sT}, s{sQB}, 13"), S(f"s_add_u32 s{sT}, s{sT}, {base}"), valu("v_add_u32", reg, f"s{sT}", vLane)]
    def period_ops(p):
        n, kind = 23 + p // 2, "EO"[p & 1]
        mem, other = [], []
        ks = issue.get(p, [])
        nfirst = 0 if cfg.kvfirst else 1
        for k in ks[:nfirst]: mem += wo_chunk(cfg, k, plan)
        if kind == "E" and n <= 31: mem += vtag(kv_issue(cfg, False, n & 1), ("kv", p))
        if kind == "O" and n + 2 <= 31: mem += vtag(kv_issue(cfg, True, n & 1), ("kv", p))
        for k in ks[nfirst:]: mem += wo_chunk(cfg, k, plan)
        if p == 20 and cfg.fused: mem += hs_load()
        if p == 0:
            other += chunk_mfmas(7)[cfg.psplit:] + [valu("v_add_u32", aQw, f"{WB0 - YB}", aQw)] + q_pack(TMP) + q_store(HLD, 0) + q_store(TMP, 1)
        if p == 1:
            other += setbase(aQw, XB) + b_load(0, aQw) + setbase(aQw, YB) + b_load(1, aQw) + setbase(aQw, WB0) + setbase(vXo, VB0)
        if p == 6: other += b_load(2, aQw)
        close = [vwait(lambda t, p=p: (t[0] == "kv" and t[1] <= p - (2 if p >= cfg.tfast else cfg.tlead)) or (t[0] == "wo" and ep[t[1] - 1] - 1 <= p))]
        if p < p0 - 1: close.append(lgkm0())
        close.append(barrier())
        return mem, other, close
    seq = []
    for p in range(p0):
        mem, other, close = period_ops(p)
        if p == p0 - 1:
            for f in range(8): other += w_read(slot[0], f)
        seq += mem + other + close
    main, fill = [], []
    src_of = {"H": HLD, "T": TMP, "L0": HLD, "L1": TMP}
    published = 0
    done_at = {}
    for k, (sl, c) in enumerate(blocks):
        b0 = 32 * k
        fresh = (c == 0)
        for mt in range(4):
            for qs in range(2):
                for ks in range(4):
                    cc = None if (fresh and ks == 0) else Ac(mt, qs)
                    dep = [FR(4 * mt + ks + 1)] if (qs == 0 and ks in (0, 2)) else ()
                    main.append(mfma(Ac(mt, qs), FR(4 * mt + ks), Bf(4 * c + ks, qs), cc, dep))
        if cfg.bstamp:
            fill.append((b0, raw("s_memtime s[90:91]")))
            fill.append((b0 + 24, raw(f"v_writelane_b32 v255, s90, {k}")))
        if k < n0:
            span = 32 // (ep[k] - sp[k] + 1)
            closes = []
            for h, p in enumerate(range(sp[k], ep[k] + 1)):
                mem, other, close = period_ops(p)
                o = b0 + h * span
                if h: fill += [(o - 1, x) for x in closes.pop()]
                fill += [(o + q, x) for q, x in spread(mem, cfg.tlate, min(17, span - 4))] + [(o + q, x) for q, x in spread(other, span // 2 - 2, span - 4)]
                closes.append(close)
            close = closes.pop()
        elif n0 < k <= cfg.lastbar:
            if k == n0 + 1: fill.append((b0 + 3, vwait(lambda t: t[0] == "wo")))
            fill.append((b0 + 3, barrier()))
        for mt in range(4):
            if mt >= 2 and k + 1 >= len(blocks): continue
            sl2, mt2 = (slot[k], mt + 2) if mt < 2 else (slot[k + 1], mt - 2)
            rd = []
            for ks in range(4): rd += w_read(sl2, 4 * mt2 + ks)
            for n, x in enumerate(rd): fill.append((b0 + 8 * mt + 4 + n, x))
        if k < n0:
            fill += [(b0 + 31, x) for x in close]
            if k == n0 - 1:
                fill += [(b0 + 31, x) for x in ([] if cfg.bstamp else stamp(cfg, 2)) + b_load(3, vXo)]
        for pair in range(2):
            for qs in range(2):
                s0 = b0 + 14 + 8 * qs + 16 * pair
                t, u = Ac(2 * pair, qs), Ac(2 * pair + 1, qs)
                if k < n0 and c == 2 and fo[sl] != "A":
                    d = fo[sl]
                    z = src_of[d] + (pair * 2 + qs) * 4
                    L = [cvtpk(z, t, t + 1), cvtpk(z + 1, t + 2, t + 3), cvtpk(z + 2, u, u + 1), cvtpk(z + 3, u + 2, u + 3)]
                    fill += [(s0 + n, x) for n, x in enumerate(L)]
                    if d[0] == "L": fill.append((s0 + 4, ds_w128(aQw, z, int(d[1]) * 4096 + (pair * 2 + qs) * 1024)))
                if k >= n0 and c == 3:
                    nxt = fo[sl + 1] if sl + 1 < len(fo) and fo[sl + 1] != "F" else None
                    if pair == 0 and qs == 0: fill.append((s0 - 1, S(f"s_add_u32 s{sPo1}, s{sPo}, {sl * 131072}")))
                    L = [cvtpk(t, t, t + 1), cvtpk(t + 1, t + 2, t + 3), cvtpk(t + 2, u, u + 1), cvtpk(t + 3, u + 2, u + 3)]
                    st = vtag([bstore(t, vLane, SPART, f"s{sPo1}", (qs * 2 + pair) * 1024, cfg.pflags)], ("st", sl))
                    if nxt:
                        s = src_of[nxt] + (pair * 2 + qs) * 4
                        U = []
                        for (dst, o) in ((u, 2), (t, 0)):
                            for h in range(2):
                                U += [valu("v_lshlrev_b32", dst + 2 * h, "16", s + o + h), valu("v_and_b32", dst + 2 * h + 1, "0xffff0000", s + o + h)]
                        fill += [(s0 + n // 2, x) for n, x in enumerate(L)] + [(s0 + 2, st[0])]
                        fill += [(s0 + p, x) for p, x in zip((3, 3, 4, 5, 5, 6, 7, 7), U)]
                    else:
                        fill += [(s0 + n, x) for n, x in enumerate(L)] + [(s0 + 4, st[0])]
                    done_at[sl] = k
        if k >= n0 and c == 3 and fo[sl] in ("H", "T"):
            d = {"H": "L0", "T": "L1"}[fo[sl]]
            if d in fo:
                assert fo.index(d) >= sl + 2
                fill += [(b0 + 17 + n, ds_r128(src_of[d] + 4 * n, aQw, int(d[1]) * 4096 + n * 1024)) for n in range(4)]
        if cfg.fused and k >= n0:
            ready = sum(1 for s, kk in done_at.items() if kk + cfg.flaglag <= k)
            if cfg.pubs:
                pm = dict(tuple(int(v) for v in e.split(":")) for e in cfg.pubs.split(","))
                ready = pm.get(k, 0)
                assert ready <= sum(1 for s, kk in done_at.items() if kk + 2 <= k)
            if ready > published and (k >= cfg.pubfrom or cfg.pubs):
                fill += [(b0 + 16, x) for x in flag_pub(ready)]
                published = ready
    seq += interleave(main, fill)
    if cfg.bstamp:
        seq += [raw("s_memtime s[90:91]"), lgkm0(), raw("v_writelane_b32 v255, s90, 32"), raw("v_lshlrev_b32 v5, 2, v0"),
                raw("s_lshl_b32 s90, s2, 8"), raw("s_add_u32 s90, s90, 0x10000"), raw(f"s_cmp_lg_u32 s{sQB}, {cfg.stw}"), raw(f"s_cselect_b32 s90, {OOB}, s90"),
                raw("buffer_store_dword v255, v5, s[64:67], s90 offen")]
    seq += stamp(cfg, 4)
    if cfg.fused:
        if published < 7 and (cfg.dpoll or not cfg.pubs): seq += flag_pub(7)
        if not cfg.dpoll: seq += flag_pub(8)
    return resolve_vwaits(seq, [("kv", -2)] * 6 + [("kv", -1)] * 6)

def a_tail(cfg):
    plan = tail_plan(cfg)
    n0 = plan["n0"]
    seq = hs_load() if cfg.fused else []
    for k in range(n0, cfg.lastbar + 1):
        last = k == cfg.lastbar
        if k > n0: seq += [vwait(lambda t, k=k, last=last: last or t[1] <= k + 1), barrier()]
        for kk in plan["a_issue"].get(k, []): seq += wo_chunk(cfg, kk, plan, vWoA)
    return resolve_vwaits(seq)

def rstamp(cfg, idx):
    if not cfg.stamps: return []
    return ["    " + x for x in ["s_memrealtime s[60:61]", "s_waitcnt lgkmcnt(0)", "v_mov_b32 v100, s60", "v_mov_b32 v101, s61", "v_mov_b32 v102, 0",
            "s_mov_b64 s[62:63], exec", "s_mov_b64 exec, 1", f"buffer_store_dwordx2 v[100:101], v102, s[64:67], s68 offen offset:{idx*8}", "s_mov_b64 exec, s[62:63]"]]

vHS = 241
def hs_load():
    return vtag([I(f"buffer_load_dword v{vHS}, v{vLane}, s[{SDBG}:{SDBG+3}], 0 offen sc1", "vload", {vHS}, {vLane})], ("hs", 99))

def a_reduce(cfg, ps):
    T = []
    A = lambda *a: T.extend("    " + x for x in a)
    A("v_lshlrev_b32 v1, 7, v0", "v_and_b32 v4, 15, v0", "v_lshlrev_b32 v4, 11, v4",
      "v_bfe_u32 v5, v0, 4, 1", "v_lshl_add_u32 v4, v5, 5, v4", "v_lshrrev_b32 v5, 5, v0", "v_lshl_add_u32 v4, v5, 4, v4")
    if ps == 0: T += rstamp(cfg, 4)
    A("s_mov_b32 s85, 0")
    T.append(f"L_hs{ps}:")
    A(f"v_cmp_le_u32 vcc, 8, v{vHS}", f"s_cbranch_vccnz L_hs_ok{ps}",
      f"buffer_load_dword v{vHS}, v{vLane}, s[{SDBG}:{SDBG+3}], 0 offen sc1", "s_add_u32 s85, s85, 1", "s_waitcnt vmcnt(0)",
      "s_cmp_lt_u32 s85, 0x80000", f"s_cbranch_scc1 L_hs{ps}")
    T.append(f"L_hs_ok{ps}:")
    A(f"s_add_u32 s87, s{sQB}, {4 * ps}")
    for N in ((cfg.rn1, cfg.rn2)[ps],):
        T += rstamp(cfg, 5)
        dp = cfg.dpoll and ps == 1
        FW = SX if dp else SFLG
        def ld(i):
            b = 16 + i * 4
            if i and i % 2 == 0: A("s_add_u32 s88, s88, 16384")
            A(f"buffer_load_dwordx4 v[{b}:{b+3}], v{vLane}, s[{SPART}:{SPART+3}], s88 offen offset:{(i & 1)*1024} sc1")
        base = ["s_lshl_b32 s88, s87, 17", "s_lshl_b32 s89, s6, 11", "s_add_u32 s88, s88, s89"]
        pub8 = [f"s_cmp_lg_u32 s85, 1", "s_cbranch_scc1 L_np8_{0}", f"v_mov_b32 v{vFlag}, 8",
                f"buffer_store_dword v{vFlag}, v{vLane}, s[{SFLG}:{SFLG+3}], 0 offen sc1"]
        A("s_mov_b32 s85, 0")
        if dp:
            A(f"s_cmp_lg_u32 s{sQB}, 3", f"s_cbranch_scc1 L_poll{ps}")
            T.append("L_dp:")
            A(*base, f"buffer_load_dword v6, v1, s[{FW}:{FW+3}], 0 offen sc1")
            for i in range(16): ld(i)
            A("s_add_u32 s85, s85, 1", "s_waitcnt vmcnt(0)")
            A("v_max3_u32 v7, v16, v17, v18")
            for r in range(19, 79, 2): A(f"v_max3_u32 v7, v7, v{r}, v{r+1}")
            A("v_max_u32 v7, v7, v79", "v_cmp_eq_u32 vcc, -1, v7", "s_cbranch_vccz L_sum1")
            A(*[x.format("a") for x in pub8]); T.append("L_np8_a:")
            A("v_cmp_lt_u32 vcc, s87, v6", "s_cmp_eq_u32 vcc_lo, 0xff", f"s_cbranch_scc1 L_got{ps}",
              "s_cmp_lt_u32 s85, 0x20000", "s_cbranch_scc1 L_dp", "s_branch L_sum1")
        T.append(f"L_poll{ps}:")
        A(f"buffer_load_dword v6, v1, s[{FW}:{FW+3}], 0 offen sc1", "s_add_u32 s85, s85, 1", "s_waitcnt vmcnt(0)")
        if dp:
            A(*[x.format("b") for x in pub8]); T.append("L_np8_b:")
        A("v_cmp_lt_u32 vcc, s87, v6", "s_cmp_eq_u32 vcc_lo, 0xff", f"s_cbranch_scc1 L_got{ps}", "s_cmp_lt_u32 s85, 0x80000", f"s_cbranch_scc1 L_poll{ps}")
        T.append(f"L_got{ps}:")
        T += rstamp(cfg, 6)
        A(*base)
        for i in range(min(N, 16)): ld(i)
        if dp:
            assert N >= 16
            T.append("L_sum1:")
        A("s_lshl_b32 s89, s87, 7")
        acc = 80
        for i in range(16):
            A(f"s_waitcnt vmcnt({min(N, 16 - i) - 1})")
            if i + N < 16: ld(i + N)
            b = 16 + i * 4; pair = i & 1
            for e in range(4):
                lo, hi = acc + pair * 8 + 2 * e, acc + pair * 8 + 2 * e + 1
                if i < 2:
                    A(f"v_lshlrev_b32 v{lo}, 16, v{b+e}", f"v_and_b32 v{hi}, 0xffff0000, v{b+e}")
                else:
                    A(f"v_lshlrev_b32 v6, 16, v{b+e}", f"v_and_b32 v7, 0xffff0000, v{b+e}", f"v_add_f32 v{lo}, v{lo}, v6", f"v_add_f32 v{hi}, v{hi}, v7")
        for pair in range(2):
            a = acc + pair * 8
            for e in range(4): A(f"v_cvt_pk_bf16_f32 v{8+pair*4+e}, v{a+2*e}, v{a+2*e+1}")
        T += rstamp(cfg, 7)
        A("s_nop 1")
        for pair in range(2):
            d = 8 + pair * 4
            A(f"v_permlane16_swap_b32 v{d}, v{d+2}", f"v_permlane16_swap_b32 v{d+1}, v{d+3}")
            A(f"buffer_store_dwordx4 v[{d}:{d+3}], v4, s[{SOUT}:{SOUT+3}], s89 offen offset:{pair*64} {cfg.outflags}")
        if dp: A(*pub8[2:])
    return T

def fin(seq): return fix_hazards(insert_lgkm(order_gaps(seq)))

def header():
    ref = open("cdna_kernels/" + NAME + ".s.ref").read().splitlines()
    return [l for l in ref if l.startswith(";") and "@launch" not in l and "Override" not in l and "grid=ceil" not in l]

def srd(dst, lo, hi, nbytes):
    return [f"s_mov_b32 s{dst}, s{lo}", f"s_mov_b32 s{dst+1}, s{hi}", f"s_mov_b32 s{dst+2}, {nbytes}", f"s_mov_b32 s{dst+3}, 0x20000"]
def srd_off(dst, lo, hi, off, nbytes):
    return [f"s_add_u32 s{dst}, s{lo}, {off}", f"s_addc_u32 s{dst+1}, s{hi}, 0", f"s_mov_b32 s{dst+2}, {nbytes}", f"s_mov_b32 s{dst+3}, 0x20000"]

def main_kernel(cfg):
    T = []
    A = lambda *a: T.extend("    " + x for x in a)
    ST = lambda i: T.append(emit(stamp(cfg, i))) if cfg.stamps else None
    T += [".globl attn_main_kernel", ".p2align 8", ".type attn_main_kernel,@function", "attn_main_kernel:"]
    A("s_cmp_ge_u32 s2, 256", "s_cbranch_scc1 L_end")
    cal = cfg.cal_pro or cfg.cal_main or cfg.cal_end or cfg.cal_mid or cfg.probe >= 0
    def PR(k):
        if cfg.probe == k: A("s_memrealtime s[94:95]", "s_waitcnt lgkmcnt(0)")
    if cal: A("s_memrealtime s[100:101]")
    def CAL(us, lab):
        if not us: return
        T.append(f"{lab}:")
        A("s_memrealtime s[60:61]", "s_waitcnt lgkmcnt(0)", "s_sub_u32 s60, s60, s100", f"s_cmp_lt_u32 s60, {us*100}", f"s_cbranch_scc1 {lab}")
    A("s_load_dwordx8 s[72:79], s[0:1], 0", "s_load_dwordx8 s[80:87], s[0:1], 32", "s_load_dwordx4 s[88:91], s[0:1], 64",
      "s_load_dwordx2 s[92:93], s[0:1], 96", "s_load_dwordx4 s[96:99], s[0:1], 80")
    A("v_lshrrev_b32 v1, 6, v0", "v_and_b32 v0, 63, v0", f"v_readfirstlane_b32 s{sW}, v1")
    A(f"v_lshlrev_b32 v{vLane}, 4, v0")
    early_pos = len(T)
    if cfg.mapping == 0:
        A("s_and_b32 s3, s2, 7", "s_lshr_b32 s4, s2, 3", "s_lshl_b32 s5, s3, 2", "s_lshr_b32 s6, s4, 3", "s_add_u32 s5, s5, s6",
          "s_and_b32 s6, s4, 7", f"s_and_b32 s{sROT}, s3, 3")
    elif cfg.mapping == 1:
        A("s_and_b32 s6, s2, 7", "s_lshr_b32 s5, s2, 3", f"s_and_b32 s{sROT}, s5, 3")
    elif cfg.mapping == 2:
        A("s_and_b32 s3, s2, 7", "s_lshr_b32 s4, s2, 3",
          "s_and_b32 s5, s4, 15", "s_and_b32 s6, s3, 4", "s_lshl_b32 s6, s6, 2", "s_add_u32 s5, s5, s6",
          "s_and_b32 s6, s3, 3", "s_lshl_b32 s6, s6, 1", "s_lshr_b32 s4, s4, 4", "s_add_u32 s6, s6, s4",
          f"s_and_b32 s{sROT}, s5, 3")
    elif cfg.mapping == 3:
        A("s_and_b32 s3, s2, 7", "s_lshr_b32 s4, s2, 3",
          "s_and_b32 s5, s4, 7", "s_and_b32 s6, s3, 6", "s_lshl_b32 s6, s6, 2", "s_add_u32 s5, s5, s6",
          "s_and_b32 s6, s3, 1", "s_lshl_b32 s6, s6, 2", "s_lshr_b32 s4, s4, 3", "s_add_u32 s6, s6, s4",
          f"s_and_b32 s{sROT}, s5, 3")
    if not cfg.rot: A(f"s_mov_b32 s{sROT}, 0")
    if cfg.rot in (6, 7, 8): A(f"s_cmp_eq_u32 s{sROT}, 1", f"s_cselect_b32 s{sROT}, {dict([(6, 3), (7, 2), (8, 0)])[cfg.rot]}, s{sROT}")
    if cfg.rot == 5: A(f"s_and_b32 s{sROT}, s5, 1", f"s_lshl_b32 s{sROT}, s{sROT}, 1")
    if cfg.rot == 2: A(f"s_bfe_u32 s{sROT}, s5, 0x20002")
    if cfg.rot == 3: A(f"s_and_b32 s{sROT}, s5, 2")
    if cfg.rot == 4: A(f"s_or_b32 s{sROT}, s{sROT}, 2")
    A("s_and_b32 s7, s5, 15")
    tx = {0: ["s_mov_b32 s4, 0"], 1: ["s_mov_b32 s4, s6"], 2: ["s_lshr_b32 s4, s5, 2"], 3: ["s_lshr_b32 s4, s5, 2", "s_add_u32 s4, s4, s6"],
          4: ["s_xor_b32 s4, s5, s6"], 5: ["s_mul_i32 s4, s2, 0x9e3779b1", "s_lshr_b32 s4, s4, 29"], 6: ["s_lshr_b32 s4, s5, 2", "s_xor_b32 s4, s4, s6"]}[cfg.tx]
    A(*tx, "s_and_b32 s4, s4, 7", "s_lshl_b32 s4, s4, 14")
    def srd_early():
        A("s_waitcnt lgkmcnt(0)")
        A("s_cmp_ge_u32 s5, 16")
        for k in (0, 3):
            A(f"s_cselect_b32 s{72+2*k}, s{82+2*k}, s{72+2*k}", f"s_cselect_b32 s{73+2*k}, s{83+2*k}, s{73+2*k}")
        A("s_lshl_b32 s56, s6, 10")
        A(*srd_off(SWQ, 78, 79, "s56", 0)[:2], f"s_sub_u32 s{SWQ+2}, 0x400000, s56", f"s_mov_b32 s{SWQ+3}, 0x20000")
        A("s_lshl_b32 s56, s7, 17"); A(*srd_off(SX, 72, 73, "s56", 131072))
        if cfg.nowq: A(f"s_mov_b32 s{SWQ+2}, 0")
        if cfg.stamps:
            A(*srd_off(64, 92, 93, WS_BYTES - (1 << 20), 1 << 20))
            A(f"s_lshr_b32 s68, s{sW}, 2", "s_lshl_b32 s68, s68, 7", "s_lshl_b32 s69, s2, 8", "s_add_u32 s68, s68, s69",
              f"s_and_b32 s69, s{sW}, 3", f"s_cmp_lg_u32 s69, {cfg.stw}", f"s_cselect_b32 s68, {OOB}, s68")
    def srd_late():
        A("s_cmp_ge_u32 s5, 16")
        for k in (1, 2, 4):
            A(f"s_cselect_b32 s{72+2*k}, s{82+2*k}, s{72+2*k}", f"s_cselect_b32 s{73+2*k}, s{83+2*k}, s{73+2*k}")
        A("s_lshl_b32 s56, s7, 22", "s_lshl_b32 s57, s6, 19", "s_add_u32 s56, s56, s57")
        A(*srd_off(SK, 74, 75, "s56", 524288)); A(*srd_off(SV, 76, 77, "s56", 524288))
        A(*srd_off(SWO, 80, 81, "s57", 524288))
        A("s_lshl_b32 s56, s5, 21", "s_add_u32 s56, s56, 0x100000"); A(*srd_off(SPART, 92, 93, "s56", 1 << 20))
        if cfg.fused:
            A("s_lshl_b32 s56, s5, 3"); A(*srd_off(SDBG, 98, 99, "s56", 4))
            A("s_lshl_b32 s56, s7, 18", "s_lshl_b32 s57, s6, 15", "s_add_u32 s56, s56, s57", "s_lshr_b32 s57, s5, 4", "s_lshl_b32 s57, s57, 10",
              "s_add_u32 s56, s56, s57")
            A(*srd_off(SOUT, 96, 97, "s56", 0), f"s_sub_u32 s{SOUT+2}, 0x400000, s56")
        if cfg.nokv: A(f"s_mov_b32 s{SK+2}, 0", f"s_mov_b32 s{SV+2}, 0")
        if cfg.nowo: A(f"s_mov_b32 s{SWO+2}, 0")
        if cfg.nops: A(f"s_mov_b32 s{SPART+2}, 0")
    decode = T[early_pos:]; del T[early_pos:]
    A("s_nop 1")
    A(f"s_and_b32 s{sQB}, s{sW}, 3", f"s_lshl_b32 s{sM0}, s{sQB}, 10")
    if cfg.codepf:
        A("s_getpc_b64 s[70:71]")
        T.append("L_pc:")
        A("s_sub_u32 s70, s70, L_pc-attn_main_kernel", "s_subb_u32 s71, s71, 0")
        A(f"s_lshr_b32 s56, s{sW}, 1", "s_cmp_lg_u32 s56, 2", "s_cbranch_scc1 L_nopf")
        A("s_lshr_b32 s56, s2, 3", "s_lshl_b32 s56, s56, 11", f"s_add_u32 s56, s56, s{sM0}",
          "s_min_u32 s56, s56, L_cold-attn_main_kernel-1024", f"v_add_u32 v5, s56, v{vLane}",
          f"global_load_dwordx4 v[{FR(0)}:{FR(0)+3}], v5, s[70:71]")
        T.append("L_nopf:")
    T += decode
    A(f"s_lshl_b32 s{sCol}, s{sROT}, 17")
    A("v_and_b32 v1, 15, v0", "v_lshrrev_b32 v2, 4, v0", "v_lshrrev_b32 v3, 2, v1", "v_and_b32 v4, 3, v0")
    def lc16():
        A("v_lshrrev_b32 v5, 3, v0", "v_bfe_u32 v6, v0, 4, 1", f"s_and_b32 s{sT}, s{sQB}, 1", f"s_lshl_b32 s{sT}, s{sT}, 1",
          f"v_or_b32 v6, s{sT}, v6", "v_lshlrev_b32 v6, 1, v6", "v_and_b32 v7, 7, v0", "v_xor_b32 v6, v6, v7", "v_lshlrev_b32 v6, 4, v6")
    def wo_voff():
        lc16()
        A("v_and_b32 v7, 3, v5", "v_lshrrev_b32 v5, 2, v5", "v_lshl_add_u32 v7, v5, 4, v7",
          f"s_lshl_b32 s{sT}, s{sQB}, 2", f"v_add_u32 v7, s{sT}, v7", f"v_lshl_add_u32 v{vWo}, v7, 10, v6")
    def kv_voff():
        A(f"s_lshl_b32 s{sT}, s{sQB}, 2", f"v_add_u32 v5, s{sT}, v2",
          "v_xor_b32 v6, v5, v1", "v_lshlrev_b32 v6, 4, v6",
          *{0: [f"s_lshl_b32 s{sT}, s{sQB}, 4"], 1: [f"s_lshl_b32 s{sT}, s{sQB}, 7"],
            2: [f"s_and_b32 s{sT}, s{sQB}, 1", f"s_lshl_b32 s{sT}, s{sT}, 4", f"s_lshr_b32 s56, s{sQB}, 1", "s_lshl_b32 s56, s56, 8", f"s_add_u32 s{sT}, s{sT}, s56"]}[cfg.kperm],
          f"v_add_u32 v7, s{sT}, v2", "v_lshlrev_b32 v7, 8, v7",
          f"v_add_u32 v{vKo}, v7, v6",
          "v_and_b32 v5, 7, v5", "v_lshlrev_b32 v5, 1, v5", "v_xor_b32 v6, v5, v1", "v_lshlrev_b32 v6, 4, v6", f"v_add_u32 v{vVo}, v7, v6")
    def wq_voff():
        lc16()
        A(f"s_lshl_b32 s{sT}, s{sQB}, 3", f"v_add_u32 v7, s{sT}, v5", f"v_lshl_add_u32 v{vWq}, v7, 13, v6")
    A(f"s_lshl_b32 s{sWc}, s{sROT}, 8")
    if cfg.krot == 1:
        A("s_lshr_b32 s56, s7, 2", "s_lshl_b32 s56, s56, 1", "s_lshl_b32 s57, s6, 2", "s_add_u32 s56, s56, s57",
          "s_bfe_u32 s57, s6, 0x10001", "s_add_u32 s56, s56, s57", "s_and_b32 s56, s56, 7")
    elif cfg.krot == 2:
        A(f"s_lshl_b32 s56, s{sROT}, 1", "s_lshr_b32 s57, s5, 4", "s_add_u32 s56, s56, s57")
    elif cfg.krot == 3:
        A(f"s_lshl_b32 s56, s{sROT}, 1", "s_lshr_b32 s57, s5, 4", "s_add_u32 s56, s56, s57", "s_add_u32 s56, s56, 4", "s_and_b32 s56, s56, 7")
    elif cfg.krot == 5:
        A("s_lshr_b32 s56, s7, 1", "s_add_u32 s56, s56, s6", "s_and_b32 s56, s56, 3", "s_lshl_b32 s56, s56, 1")
    elif cfg.krot == 6:
        A("s_lshl_b32 s56, s6, 1", "s_add_u32 s56, s56, s7", "s_and_b32 s56, s56, 7")
    elif cfg.krot == 4:
        A("s_and_b32 s56, s7, 7")
    else:
        A("s_mov_b32 s56, 0")
    A(f"s_lshl_b32 s{sKR}, s56, 7", "s_lshl_b32 s56, s56, 19", f"s_add_u32 s{sWc}, s{sWc}, s56")
    wq_voff()
    A("v_lshrrev_b32 v5, 3, v0", "v_and_b32 v6, 7, v0", "v_xor_b32 v6, v6, v2", "v_lshlrev_b32 v6, 4, v6",
      f"s_lshl_b32 s{sT}, s{sQB}, 5", f"v_add_u32 v5, s{sT}, v5", f"v_lshl_add_u32 v{vXo}, v5, 10, v6")
    A(f"s_lshl_b32 s{sX16}, s{sQB}, 12")
    srd_early()
    if cfg.stamps:
        ST(0)
        A("v_lshrrev_b32 v2, 4, v0", "v_lshrrev_b32 v3, 2, v1", "v_and_b32 v4, 3, v0")
    A(f"s_cmp_ge_u32 s{sW}, 4", "s_cbranch_scc1 L_P")
    first, rest = a_prologue(cfg)
    T.append(emit(fin(first)))
    srd_late()
    kv_voff()
    T.append(emit(fin(rest)))
    wo_voff()
    A(f"v_mov_b32 v{vWoA}, v{vWo}")
    if cfg.fused:
        A("s_lshl_b32 s56, s5, 2", "s_lshr_b32 s58, s6, 1", "s_add_u32 s56, s56, s58", "s_lshl_b32 s56, s56, 10", f"s_add_u32 s56, s56, {FLG}")
        A(*srd_off(SFLG, 92, 93, "s56", 1024))
    if cfg.prioA: A(f"s_setprio {cfg.prioA}")
    A(f"s_mov_b32 s{sBND}, 0x{f2u(1e-30 if cfg.force_fb else float(1 << 20)):x}")
    for s in range(4):
        A(f"v_add_u32 v5, {4*s}, v2", "v_xor_b32 v5, v5, v1", "v_lshlrev_b32 v5, 4, v5", f"v_lshl_add_u32 v{aK+s}, v1, 8, v5")
    A("v_and_b32 v5, 1, v2", "v_lshl_add_u32 v5, v5, 2, v3",
      "v_lshl_add_u32 v6, v2, 2, v3", "v_lshlrev_b32 v6, 8, v6", "v_lshl_add_u32 v6, v4, 3, v6")
    for dt in range(8):
        A(f"v_xor_b32 v7, {dt}, v5", f"v_lshl_add_u32 v{aV+dt}, v7, 5, v6")
    A(f"s_lshl_b32 s57, s{sQB}, 13", f"s_add_u32 s{sT}, s57, {YB}", f"v_add_u32 v{aQ}, s{sT}, v{vLane}")
    A("s_waitcnt vmcnt(12)", "s_barrier")
    segs = split_segments(fin(a_stream(cfg)))
    txt = [emit(s) for s in segs]
    E = lambda n: 2 + 2 * n
    for k in range(E(2), E(32) - 16):
        assert txt[k] == txt[k + 16], k
    ST(1)
    CAL(cfg.cal_pro, "L_cal1")
    PR(0)
    if cfg.sser:
        for sgm in txt[:E(2)]:
            L = [i for i in stamp(cfg, 0) if "v[6:7]" not in i.t and i.k != "lgkm0"]
            L.insert(2, raw("s_waitcnt lgkmcnt(0)"))
            T.append(emit(L)); A("s_add_u32 s68, s68, 8")
            T.append(sgm)
        T.append(emit([i for i in stamp(cfg, 0) if "v[6:7]" not in i.t])); A(f"s_mov_b32 s68, {OOB}")
    else:
        T += txt[:E(2)]
    PR(6)
    A(f"s_mov_b32 s{sCNT}, 0")
    T.append("L_Aloop:")
    A(f"s_cmp_lt_u32 s{sCNT}, 2", f"s_cselect_b32 s{sT}, 2, 1", f"s_lshl_b32 s{sT}, s{sT}, 16", f"s_add_u32 s{sT}, s{sT}, s57", f"v_add_u32 v{aQ}, s{sT}, v{vLane}",
      f"v_mov_b32 v{aO}, v{aQ}", f"s_cmp_eq_u32 s{sCNT}, 0", "s_cbranch_scc0 L_Ao",
      f"v_add_u32 v{aO}, {XB - YB}, v{aO}")
    T.append("L_Ao:")
    if 1 <= cfg.probe <= 3:
        A(f"s_cmp_lg_u32 s{sCNT}, {cfg.probe}", "s_cbranch_scc1 L_nopr")
        PR(cfg.probe)
        T.append("L_nopr:")
    if cfg.cal_mid:
        A(f"s_cmp_lg_u32 s{sCNT}, 2", "s_cbranch_scc1 L_nocal")
        CAL(cfg.cal_mid, "L_cal4")
        T.append("L_nocal:")
    def sst():
        if cfg.series:
            L = [i for i in stamp(cfg, 0) if "v[6:7]" not in i.t]
            T.append(emit(L)); A("s_add_u32 s68, s68, 8")
    sst(); T += txt[E(2):E(4)]
    sst(); T += txt[E(4):E(6)]
    sst(); T += txt[E(6):E(8)]
    sst()
    A(f"s_cmp_eq_u32 s{sCNT}, 3", "s_cbranch_scc1 L_Atail")
    T += txt[E(8):E(10)]
    A(f"s_add_u32 s{sCNT}, s{sCNT}, 1", "s_branch L_Aloop")
    T.append("L_Atail:")
    A(f"v_add_u32 v{aO}, {VB0 - WB0}, v{aO}")
    if cfg.series: A(f"s_mov_b32 s68, {OOB}")
    T += txt[E(32):]
    CAL(cfg.cal_main, "L_cal2")
    PR(4)
    if not cfg.bstamp: ST(2)
    T.append(emit(fin(a_tail(cfg))))
    if cfg.fused:
        T += a_reduce(cfg, 0)
    PR(5)
    if cfg.probe >= 0:
        A("s_sub_u32 s94, s94, s100", "s_add_u32 s94, s94, 10000")
        T.append("L_prh:")
        A("s_memrealtime s[60:61]", "s_waitcnt lgkmcnt(0)", "s_sub_u32 s60, s60, s100", "s_cmp_lt_u32 s60, s94", "s_cbranch_scc1 L_prh")
    if cfg.cal_wg >= 0: A(f"s_cmp_lg_u32 s2, {cfg.cal_wg}", "s_cbranch_scc1 L_end")
    CAL(cfg.cal_end, "L_cal3")
    ST(3)
    A("s_endpgm")
    T.append("L_P:")
    srd_late()
    if cfg.tlbw:
        A(f"s_cmp_lg_u32 s{sQB}, 2", "s_cbranch_scc1 L_notlb", "v_mov_b32 v5, 0")
        A(f"buffer_load_dword v{FR(1)}, v5, s[{SK}:{SK+3}], s{sCol} offen nt", f"buffer_load_dword v{FR(1)+1}, v5, s[{SV}:{SV+3}], s{sCol} offen nt")
        if cfg.tlbw > 1:
            A(f"buffer_load_dword v{FR(1)+2}, v5, s[{SWO}:{SWO+3}], 0 offen", f"buffer_load_dword v{FR(1)+3}, v5, s[{SOUT}:{SOUT+3}], 0 offen nt")
        T.append("L_notlb:")
    if cfg.h1touch:
        if cfg.h1touch == 1: A(f"s_cmp_lg_u32 s{sQB}, 2", "s_cbranch_scc1 L_noh1", "s_mov_b32 s57, 256")
        else: A(f"s_lshl_b32 s57, s{sQB}, 8")
        A("v_lshrrev_b32 v5, 1, v0", "v_lshlrev_b32 v5, 13, v5", "v_and_b32 v6, 1, v0", "v_lshl_add_u32 v5, v6, 7, v5",
          "s_lshl_b32 s56, s7, 18", "s_add_u32 s56, s56, s57", f"buffer_load_dword v241, v5, s[{SWQ}:{SWQ+3}], s56 offen")
        T.append("L_noh1:")
    if cfg.fused:
        A("s_lshl_b32 s56, s5, 12", "s_lshl_b32 s57, s6, 7", "s_add_u32 s56, s56, s57", f"s_add_u32 s56, s56, {FLG}")
        A(*srd_off(SFLG, 92, 93, "s56", 3076))
        A(f"s_cmp_lg_u32 s{sQB}, 3", "s_cbranch_scc1 L_norst")
        A("v_mov_b32 v5, 0", "v_lshlrev_b32 v6, 10, v0", f"buffer_store_dword v5, v6, s[{SFLG}:{SFLG+3}], 0 offen sc1")
        T.append("L_norst:")
        if cfg.dpoll:
            A("v_mov_b32 v8, -1", "v_mov_b32 v9, -1", "v_mov_b32 v10, -1", "v_mov_b32 v11, -1",
              "s_lshl_b32 s56, s6, 14", f"s_lshl_b32 s57, s{sQB}, 12", "s_add_u32 s56, s56, s57", f"s_add_u32 s56, s56, {7 * 131072}")
            for i in range(4): A(f"buffer_store_dwordx4 v[8:11], v{vLane}, s[{SPART}:{SPART+3}], s56 offen offset:{i*1024} sc1")
    A("v_bfe_u32 v5, v1, 1, 2", "v_xor_b32 v5, v5, v2", "v_lshlrev_b32 v5, 4, v5", "v_lshl_add_u32 v5, v1, 7, v5",
      f"v_add_u32 v{aX}, s{sX16}, v5", f"v_add_u32 v{aX+1}, {WB0}, v{aX}", f"v_add_u32 v{aX+2}, {YB}, v{aX}")
    A(f"s_add_u32 s{sWc}, s{sWc}, 256", f"s_and_b32 s{sWc}, s{sWc}, 0x3803ff", f"s_add_u32 s{sWm0}, s{sM0}, {WB0}", f"s_mov_b32 s{sWn}, 2")
    A("v_lshrrev_b32 v5, 1, v3", "v_and_b32 v6, 1, v2", "v_lshl_add_u32 v5, v6, 1, v5",
      "v_lshl_add_u32 v6, v2, 3, v3", "v_lshlrev_b32 v6, 7, v6", "v_lshl_add_u32 v6, v4, 3, v6")
    for mt in range(4):
        A(f"v_xor_b32 v7, {mt}, v5", f"v_lshl_add_u32 v{aW2+mt}, v7, 5, v6", f"v_add_u32 v{aW+mt}, {WB0}, v{aW2+mt}",
          f"v_add_u32 v{aW3+mt}, {YB}, v{aW2+mt}")
    kv_voff()
    A("v_lshrrev_b32 v5, 1, v2", "v_lshlrev_b32 v5, 8, v5", "v_lshl_add_u32 v5, v1, 4, v5", "v_and_b32 v6, 1, v2", "v_lshl_add_u32 v5, v6, 3, v5",
      f"s_lshl_b32 s{sT}, s{sQB}, 13", f"s_add_u32 s{sT}, s{sT}, {YB}", f"v_add_u32 v{aQw}, s{sT}, v5")
    wo_voff()
    A(f"s_mov_b32 s{sSCL}, 0x{f2u(math.log2(math.e) / math.sqrt(128.0)):x}")
    A(f"s_mov_b32 s{sKn}, -1", f"s_mov_b32 s{sVn}, -2",
      f"s_add_u32 s{sKo}, s{sCol}, 16384",
      f"s_mov_b32 s{sVo}, s{sCol}")
    A(f"s_mov_b32 s{sCNT}, 2", "s_waitcnt vmcnt(0)")
    if cfg.fused:
        A("s_bfe_u32 s85, s2, 0x20003", "s_add_u32 s85, s85, 3", f"s_cmp_eq_u32 s{sQB}, 3", "s_cselect_b32 s85, s85, 99")
        A(f"s_lshl_b32 s56, s{sQB}, 10", f"s_add_u32 s{SFLG}, s{SFLG}, s56", f"s_addc_u32 s{SFLG+1}, s{SFLG+1}, 0", f"s_mov_b32 s{SFLG+2}, 4")
    T.append(emit(fin(p_prologue(cfg))))
    ST(1)
    A(f"v_lshlrev_b32 v{vXo}, 7, v0")
    if cfg.prioM: A(f"s_setprio {cfg.prioM}")
    A("s_branch L_Pgo")
    T.append("L_Ploop:")
    if cfg.fused:
        A(f"s_cmp_lg_u32 s{sCNT}, s85", "s_cbranch_scc1 L_nohs")
        A("v_mov_b32 v5, 1", f"buffer_atomic_add v5, v{vLane}, s[{SDBG}:{SDBG+3}], 0 offen sc1")
        T.append("L_nohs:")
    if cfg.wopf:
        if cfg.pfmode == 0: A(f"s_add_u32 s56, s{sQB}, 4")
        elif cfg.pfmode == 1: A(f"s_and_b32 s56, s{sQB}, 2", "s_add_u32 s56, s56, 4")
        elif cfg.pfmode == 2: A("s_mov_b32 s56, 6")
        A(f"s_cmp_lg_u32 s{sCNT}, s56", "s_cbranch_scc1 L_nowopf")
        A("s_lshl_b32 s56, s7, 15", f"s_lshl_b32 s57, s{sQB}, 13", "s_add_u32 s56, s56, s57",
          f"buffer_load_dword v{vFlag}, v{vXo}, s[{SWO}:{SWO+3}], s56 offen")
        T.append("L_nowopf:")
    if cfg.codepf:
        A(f"s_lshl_b32 s56, s{sQB}, 4", f"s_add_u32 s56, s56, s{sCNT}", f"s_cmp_lg_u32 s56, {6 if cfg.pfmode else 7}", "s_cbranch_scc1 L_nocpf")
        A("s_bfe_u32 s56, s2, 0x30003", "s_lshl_b32 s56, s56, 13", "s_min_u32 s56, s56, L_cold-attn_main_kernel-8192",
          f"v_add_u32 v5, s56, v{vXo}", "global_load_dword v241, v5, s[70:71]")
        T.append("L_nocpf:")
    a0, b0 = p_phase(cfg, 0)
    T.append(emit(fin(a0)))
    if cfg.nobnd & 4: A("s_waitcnt lgkmcnt(0)", "s_branch L_Pgo")
    A(f"s_bitcmp1_b32 s{sCNT}, 0", "s_cbranch_scc0 L_Pwr")
    T.append(emit(fin([raw("s_nop 1")] + q_pack(HLD) + [lgkm0()])))
    A("s_branch L_Pgo")
    T.append("L_Pwr:")
    pk, st = q_pack(TMP), q_store(TMP, 1)
    wr = q_store(HLD, 0)
    for k in range(8): wr += pk[6 * k:6 * k + 6] + ([st[k - 1]] if k else [])
    T.append(emit(fin(wr + [st[7], lgkm0()])))
    T.append("L_Pgo:")
    body = list(b0)
    for ph in range(1, 8):
        a, b = p_phase(cfg, ph)
        body += a + b
    T.append(emit(fin(body)))
    A(f"s_add_u32 s{sCNT}, s{sCNT}, 1", f"s_cmp_lt_u32 s{sCNT}, 8", "s_cbranch_scc1 L_Ploop")
    for mt in range(4): A(f"v_add_u32 v{aW+mt}, {XB}, v{aW2+mt}", f"v_add_u32 v{aW3+mt}, {WB0}, v{aW2+mt}")
    A("s_lshl_b32 s58, s6, 14", f"s_lshl_b32 s{sPo}, s{sQB}, 12", f"s_add_u32 s{sPo}, s{sPo}, s58")
    if cfg.prioP: A(f"s_setprio {cfg.prioP}")
    T.append(emit(fin([raw("s_nop 7")] + p_tail(cfg))))
    if cfg.fused:
        A("s_lshl_b32 s56, s5, 2", "s_lshr_b32 s58, s6, 1", "s_add_u32 s56, s56, s58", "s_lshl_b32 s56, s56, 10", f"s_add_u32 s56, s56, {FLG}")
        A(*srd_off(SX if cfg.dpoll else SFLG, 92, 93, "s56", 1024))
        T += a_reduce(cfg, 1)
    ST(3)
    A("s_endpgm")
    T.append("L_cold:")
    variants = {}
    for name, key in SITES.items():
        variants.setdefault(key, f"L_fbr_{key[0]}_{key[1]}_{int(key[2])}")
        T.append(f"L_fb_{name}:")
        A(f"s_call_b64 s[{sRET}:{sRET+1}], {variants[key]}", f"s_branch L_ret_{name}")
    for key, lab in variants.items():
        T.append(f"{lab}:")
        T.append(emit(fallback(*key)))
    T.append("L_end:")
    A("s_endpgm")
    return T

def reduce_kernel(cfg):
    T = []
    A = lambda *a: T.extend("    " + x for x in a)
    T += [".globl attn_reduce_kernel", ".p2align 8", ".type attn_reduce_kernel,@function", "attn_reduce_kernel:"]
    A("s_cmp_ge_u32 s2, 256", "s_cbranch_scc1 L_rend")
    if cfg.stamps: A("s_memrealtime s[40:41]")
    A("s_load_dwordx2 s[4:5], s[0:1], 80", "s_load_dwordx2 s[6:7], s[0:1], 96")
    A("s_lshr_b32 s18, s2, 3", "s_and_b32 s19, s2, 7")
    A("s_lshl_b32 s20, s18, 21", "s_lshl_b32 s21, s19, 17", "s_add_u32 s20, s20, s21", "s_add_u32 s20, s20, 0x100000")
    A("v_lshrrev_b32 v1, 6, v0", "v_and_b32 v2, 63, v0", "v_lshlrev_b32 v3, 4, v2", "v_lshl_add_u32 v3, v1, 11, v3")
    A("s_waitcnt lgkmcnt(0)")
    A(*srd_off(8, 6, 7, "s20", 131072))
    for src in range(8):
        A(f"s_mov_b32 s22, {src*16384}")
        for pair in range(2):
            b = 16 + (src * 2 + pair) * 4
            A(f"buffer_load_dwordx4 v[{b}:{b+3}], v3, s[8:11], s22 offen offset:{pair*1024} {cfg.rflags}")
    A(*srd(12, 4, 5, 1 << 22))
    A("s_and_b32 s23, s18, 15", "s_lshl_b32 s23, s23, 18", "s_lshr_b32 s24, s18, 4", "s_lshl_b32 s24, s24, 10", "s_add_u32 s23, s23, s24",
      "s_lshl_b32 s24, s19, 7", "s_add_u32 s23, s23, s24")
    A("v_and_b32 v4, 15, v2", "v_lshl_add_u32 v4, v1, 4, v4", "v_lshlrev_b32 v4, 11, v4",
      "v_bfe_u32 v5, v2, 4, 1", "v_lshl_add_u32 v4, v5, 5, v4", "v_lshrrev_b32 v5, 5, v2", "v_lshl_add_u32 v4, v5, 4, v4")
    acc = 80
    for src in range(8):
        A(f"s_waitcnt vmcnt({(7-src)*2})")
        for pair in range(2):
            b = 16 + (src * 2 + pair) * 4
            for i in range(4):
                lo, hi = acc + pair * 8 + 2 * i, acc + pair * 8 + 2 * i + 1
                if src == 0:
                    A(f"v_lshlrev_b32 v{lo}, 16, v{b+i}", f"v_and_b32 v{hi}, 0xffff0000, v{b+i}")
                else:
                    A(f"v_lshlrev_b32 v6, 16, v{b+i}", f"v_and_b32 v7, 0xffff0000, v{b+i}", f"v_add_f32 v{lo}, v{lo}, v6", f"v_add_f32 v{hi}, v{hi}, v7")
    for pair in range(2):
        a = acc + pair * 8
        for i in range(4): A(f"v_cvt_pk_bf16_f32 v{16+pair*4+i}, v{a+2*i}, v{a+2*i+1}")
    A("s_nop 1")
    for pair in range(2):
        d = 16 + pair * 4
        A(f"v_permlane16_swap_b32 v{d}, v{d+2}", f"v_permlane16_swap_b32 v{d+1}, v{d+3}")
        A(f"buffer_store_dwordx4 v[{d}:{d+3}], v4, s[12:15], s23 offen offset:{pair*64} {cfg.outflags}")
    if cfg.stamps and not cfg.series:
        A("s_waitcnt vmcnt(0)", "s_memrealtime s[42:43]", "s_waitcnt lgkmcnt(0)")
        A(*srd_off(8, 6, 7, WS_BYTES - (1 << 20), 1 << 20))
        A("s_lshl_b32 s22, s2, 8", "v_mov_b32 v4, s40", "v_mov_b32 v5, s41", "v_mov_b32 v6, s42", "v_mov_b32 v7, s43",
          "v_cmp_eq_u32 vcc, 0, v0", "s_and_saveexec_b64 s[34:35], vcc", "s_cbranch_execz L_rend",
          "buffer_store_dwordx4 v[4:7], v0, s[8:11], s22 offen offset:32")
    T.append("L_rend:")
    A("s_endpgm")
    return T

def kd(name, vgpr, sgpr):
    return [".p2align 6", f".amdhsa_kernel {name}", f"  .amdhsa_next_free_vgpr {vgpr}", f"  .amdhsa_next_free_sgpr {sgpr}",
            f"  .amdhsa_accum_offset {(vgpr+3)//4*4}", "  .amdhsa_group_segment_fixed_size 0", "  .amdhsa_kernarg_size 104",
            "  .amdhsa_user_sgpr_count 2", "  .amdhsa_user_sgpr_kernarg_segment_ptr 1", "  .amdhsa_system_sgpr_workgroup_id_x 1",
            ".end_amdhsa_kernel"]

DOC = """
; ---------------------------------------------------------------------------------------------------------
; One persistent workgroup per CU = (branch, batch b, 4 heads).  8 waves, two roles, all MFMA 16x16x32 bf16:
;   waves 4-7 ("P"): x fragments stay in registers; Q = x wq for the next head, all LDS-DMA of K/V/wq,
;                    then out-projection of the workgroup's own 4 heads (bf16 partial sums to d_ws)
; Softmax: reference = true row max of the first key tile of each head (folded in as the MFMA C input); every
;   half tile checks its exp sums against 2^20 and otherwise calls L_fbr_* which raises the reference to the
;   running max and rescales O, l and pending P exactly (integer power of two).
; Cross-workgroup reduce of the 8 partial sums of a (branch, batch): sc1 stores -> vmcnt -> sc1 flag (one line per
;   writer, cleared at start; the d_debug counter says all writers of the group have cleared), sc1 polls and loads.
; Generated by a script (software pipelining, counted waits and wait states are computed there).
; ---------------------------------------------------------------------------------------------------------
"""

def generate(cfg, path):
    SITES.clear()
    KPERM[0] = cfg.kperm
    T = header()
    if cfg.fused:
        T += ["; @launch grid=(256,1,1) block=(512,1,1) lds=163840"]
    else:
        T += ["; @launch kernel=attn_main_kernel grid=(256,1,1) block=(512,1,1) lds=163840",
              "; @launch kernel=attn_reduce_kernel grid=(256,1,1) block=(512,1,1) lds=0"]
    T += ['.amdgcn_target "amdgcn-amd-amdhsa--gfx950"', ".text"]
    T += DOC.strip("\n").split("\n")
    T += main_kernel(cfg)
    if not cfg.fused: T += reduce_kernel(cfg)
    T += ['.section .rodata,"a"'] + kd("attn_main_kernel", 256, 102)
    if not cfg.fused: T += kd("attn_reduce_kernel", 96, 48)
    txt = "\n".join(T) + "\n"
    if cfg.fused: txt = txt.replace("attn_main_kernel", NAME + "_kernel")
    open(path, "w").write(txt)

if __name__ == "__main__":
    cfg = Cfg()
    out = "k.s"
    for a in sys.argv[1:]:
        if "=" in a:
            k, v = a.split("=", 1)
            cur = getattr(cfg, k)
            setattr(cfg, k, (v not in ("0", "False")) if isinstance(cur, bool) else type(cur)(v))
        else:
            out = a
    generate(cfg, out)
```

```python
import sys, math, struct
from asmlib import *

NAME = "concat_heads__mha_block_cached__mha_block_cached__near_ridge"
WS_BYTES = 289406976
def f2u(x): return struct.unpack("<I", struct.pack("<f", x))[0]

KB0, VB0, WB0, XB, YB = 0, 32768, 65536, 98304, 131072
DROP = 0x30000
OOB = 0x40000000
SK, SV, SWQ, SWO, SX, SPART = 8, 12, 16, 20, 24, 32
sW, sQB, sCNT, sBND, sSCL, sKo, sVo, sWc, sT, sM0, sWm0, sRET = 36, 37, 38, 39, 40, 41, 42, 43, 44, 45, 46, 48
sPo, sCol, sPo1, sX16, sROT, sKn, sVn, sWn, sKs, sVs = 50, 51, 52, 53, 59, 28, 29, 30, 54, 55
sFm0 = 31
sKVm0 = 47
sTX = 4
SFLG, SDBG, SOUT = 72, 76, 80
sFv = 84
vFlag = 240
FLG = 0x4800000
aW3 = 248
aX = 253
vWoA = 253
def Qf(s, qs): return 8 + (s * 2 + qs) * 4
def Oa(dt, qs): return 40 + (dt * 2 + qs) * 4
def Sr(n, kt, qs):
    if kt < 2: return 104 + (kt * 2 + qs) * 4
    return 120 + (n & 1) * 16 + ((kt - 2) * 2 + qs) * 4
def Pf(n, u, qs):
    if u == 0: return 152 + (n & 1) * 8 + qs * 4
    return 168 + qs * 4
def NM(qs): return 176 + qs * 4
def FR(f): return 184 + (f & 7) * 4
TMP = 216
vL, vLS, vTS = 232, 234, 236
aK, aV, aQ, aO, vLane = 238, 242, 250, 251, 252
def Bf(s, qs): return 8 + (s * 2 + qs) * 4
def Ac(mt, qs): return 136 + (mt * 2 + qs) * 4
HLD = 168
aW, aW2, vKo, vVo, vWq, vWo, aQw, vXo = 232, 236, 242, 243, 244, 245, 246, 247

BAR_IDX = 19

class Cfg:
    stamps = False
    kvflags = "nt"
    wflags = ""
    pflags = "sc1"
    xflags = ""
    woflags = ""
    rflags = ""
    outflags = ""
    force_fb = False
    mapping = 2
    rot = 1
    codepf = True
    wopf = True
    prioA = 0
    cal_pro = 0
    cal_main = 0
    cal_end = 0
    cal_mid = 0
    cal_wg = -1
    probe = -1
    fused = True
    lastbar = 26
    flagc = 0
    flaglag = 5
    ne = 3
    masks = ""
    lastep = True
    startfast = 4
    tlbw = 0
    kvfirst = False
    tfast = 99
    dpoll = False
    pubs = "23:4"
    pfmode = 0
    nobnd = 0
    xb1 = 7
    xb2 = 13
    sser = False
    rn1 = 4
    rn2 = 16
    kperm = 0
    h1touch = 0
    slowmask = 0xfc
    pvmfast = 6
    slowph = 0xff
    slowmask2 = 0x60
    tx = 0
    avoid = True
    minlead = 3
    kvpos = ""
    tlead = 1
    tlate = 3
    pvm = 5
    kvlate = 0
    psplit = 6
    pspread = True
    half = 7
    ktouch = 0
    tflags = ""
    thead = 2
    bstamp = False
    midbar = 17
    aper = 2
    pubfrom = 22
    stw = 0
    pfbody = 7
    order = "AFHTFFFF"
    pdup = 0
    plead = 2
    pwflags = ""
    krot = 0
    series = False
    prioM = 0
    ppace = 0
    nopm = False
    nodma = False
    noav = False
    barq = 19
    barp = 23
    locap = 2
    pf0 = 28
    fbar = 1
    fwait = 2
    fburst = 1
    prioP = 0
    nokv = False
    nowq = False
    nowo = False
    nops = False

def stamp(cfg, idx):
    if not cfg.stamps: return []
    return [S("s_memrealtime s[60:61]"), S("s_memtime s[94:95]"), raw("s_waitcnt lgkmcnt(0)", "lgkm0"),
            raw("v_mov_b32 v2, s60"), raw("v_mov_b32 v3, s61"), raw("v_mov_b32 v4, 0"),
            raw("v_mov_b32 v6, s94"), raw("v_mov_b32 v7, s95"),
            raw("s_mov_b64 s[62:63], exec"), raw("s_mov_b64 exec, 1"),
            raw(f"buffer_store_dwordx2 v[2:3], v4, s[64:67], s68 offen offset:{idx*8}"),
            raw(f"buffer_store_dwordx2 v[6:7], v4, s[64:67], s68 offen offset:{idx*8+64}"),
            raw("s_mov_b64 exec, s[62:63]")]

def softmax_part(n, part):
    L = []
    for qs in range(2):
        for k in range(2):
            s = Sr(n, 2 * part + k, qs)
            e = [TMP + k * 4 + i for i in range(4)]
            for i in range(4): L.append(vexp(e[i], s + i))
            if k == 0:
                L.append(valu("v_add_f32", vTS + qs, e[0], e[1]))
            else:
                L.append(valu("v_add_f32", vTS + qs, vTS + qs, e[0]))
                L.append(valu("v_add_f32", vTS + qs, vTS + qs, e[1]))
            L.append(cvtpk(Pf(n, part, qs) + 2 * k, e[0], e[1]))
            L.append(valu("v_add_f32", vTS + qs, vTS + qs, e[2]))
            L.append(valu("v_add_f32", vTS + qs, vTS + qs, e[3]))
            L.append(cvtpk(Pf(n, part, qs) + 2 * k + 1, e[2], e[3]))
    return L

def l_update(n, part):
    t = n & 7
    if t == 0 and part == 0:
        return [valu("v_mov_b32", vL + qs, vTS + qs) for qs in range(2)]
    if t == 7 and part == 1:
        return [valu("v_add_f32", vLS + qs, vL + qs, vTS + qs) for qs in range(2)]
    return [valu("v_add_f32", vL + qs, vL + qs, vTS + qs) for qs in range(2)]

SITES = {}
def check_pre(n):
    if (n & 7) == 0: return []
    return [valu("v_max_f32", TMP + 8, vTS, vTS + 1), I(f"v_cmp_lt_f32 vcc, s{sBND}, v{TMP+8}", "valu", (), {TMP + 8})]
def check(n, part, sfx):
    t = n & 7
    if t == 0: return []
    name = f"{sfx}{t}_{part}"
    SITES[name] = (n & 1, part, t == 7)
    return [raw(f"s_cbranch_vccnz L_fb_{name}"), label(f"L_ret_{name}")]

def xgroup(op, x, t):
    return [valu("v_mov_b32", t, x), swap32(t, x), valu(op, x, x, t),
            valu("v_mov_b32", t, x), swap16(t, x), valu(op, x, x, t)]

def rowmax(dst, srcs):
    L = [valu("v_max3_f32", dst, srcs[0], srcs[1], srcs[2])]
    rest = srcs[3:]
    while len(rest) >= 2:
        L.append(valu("v_max3_f32", dst, dst, rest[0], rest[1])); rest = rest[2:]
    if rest: L.append(valu("v_max_f32", dst, dst, rest[0]))
    return L

def zipl(a, b):
    out = []
    for i in range(max(len(a), len(b))):
        if i < len(a): out.append(a[i])
        if i < len(b): out.append(b[i])
    return out

def first_tile_max(n):
    per = []
    for qs in range(2):
        m, t = TMP + 8 + qs, TMP + 10 + qs
        srcs = [Sr(n, kt, qs) + i for kt in range(4) for i in range(4)]
        L = rowmax(m, srcs) + xgroup("v_max_f32", m, t)
        L += [valu("v_sub_f32", s, s, m) for s in srcs[:8]]
        per.append(L)
    L = zipl(per[0], per[1])
    late = []
    for qs in range(2):
        m = TMP + 8 + qs
        late += [valu("v_sub_f32", NM(qs) + i, "0", m) for i in range(4)]
        late += [valu("v_sub_f32", s, s, m) for s in [Sr(n, kt, qs) + i for kt in (2, 3) for i in range(4)]]
    return L, late

def o_epilogue(cfg, stage=None):
    per = []
    for qs in range(2):
        per.append(xgroup("v_add_f32", vLS + qs, TMP + 12 + qs) + [vrcp(vLS + qs, vLS + qs)])
    L = zipl(per[0], per[1])
    k = 0
    for s in range(4):
        for qs in range(2):
            q = TMP + 8 + (k & 1) * 4 if stage is None else stage + 4 * k
            for h in range(2):
                o = Oa(2 * s + h, qs)
                for i in range(4): L.append(valu("v_mul_f32", o + i, o + i, vLS + qs))
                L.append(cvtpk(q + 2 * h, o, o + 1)); L.append(cvtpk(q + 2 * h + 1, o + 2, o + 3))
            L.append(ds_w128(aO, q, (s * 2 + qs) * 1024))
            k += 1
    return L

def k_read(n, f): return [ds_r128(FR(f), aK + (f & 3), KB0 + (n & 1) * 16384 + (f >> 2) * 4096)]
def v_read(n, f):
    dt, u = f >> 1, f & 1
    o = VB0 + (n & 1) * 16384 + u * 8192
    return [ds_tr(FR(f), aV + dt, o), ds_tr(FR(f) + 2, aV + dt, o + 4096)]

NT = 32
def units(i):
    if i.k == "label" or "vmcnt" in i.t: return 0
    return 2 if i.k == "trans" else 1

def schedule(main, ds, blocks, fixed, lo_cap=2):
    fill = []
    ds = list(ds)
    n = len(main)
    used = [0] * (n + 64)
    for p, L in fixed.items(): used[p] += sum(units(i) for i in L)
    for p in range(1, n):
        if main[p] is not None and main[p].tag: used[p - 1] += 1
    g = 0
    cnt = {}
    bars = sorted(p for p, L in fixed.items() if any(i.k == "lgkm0" for i in L))
    for e, ins in ds:
        g = max(g, e)
        while cnt.get(g, 0) >= (1 if (g & 1) == 0 else 2) and main[min(g, n - 1)] is not None: g += 1
        nb = [b for b in bars if b >= e]
        assert not nb or g <= nb[0] - 2, (e, g, ins.t)
        cnt[g] = cnt.get(g, 0) + 1
        used[g] += 1
        fill.append((g, 1, ins))
    def conflict(a, b):
        return bool(a.w & (b.r | b.w)) or bool(a.r & b.w) or (not a.w and not a.r) or (not b.w and not b.r) or (a.k == "dsw" and b.k == "dsw")
    def try_place(s, e, L, hi):
        u = list(used); rest = list(L); out = []
        last = None
        for p in range(s, e + 1):
            cap = lo_cap if (p & 1) == 0 else hi
            last = None
            while rest:
                pick = None
                for k in range(min(len(rest), 14)):
                    c = rest[k]
                    if u[p] + units(c) > cap: continue
                    if any(conflict(x, c) for x in rest[:k]): continue
                    if last is not None and last.k == "trans" and c.k != "trans" and last.w & c.r: continue
                    if last is not None and c.k == "perm" and last.w & c.r: continue
                    pick = k; break
                if pick is None: break
                c = rest.pop(pick); u[p] += units(c); out.append((p, 0, c)); last = c
        return (u, out) if not rest else None
    for (s, e, L) in blocks:
        hi = lo_cap
        while True:
            r = try_place(s, e, L, hi)
            if r: break
            hi += 1
        used, out = r
        fill += out
    pre = [(p, i) for (p, o, i) in fill]
    return pre

def a_stream(cfg):
    qrd = lambda: [ds_r128(Qf(s, qs), aQ, (s * 2 + qs) * 1024) for s in range(4) for qs in range(2)]
    pre = qrd()
    for f in range(8): pre += k_read(0, f)
    main, ds, blocks, fixed = [], [], [], {}
    BQ, BP = cfg.barq, cfg.barp
    for n in range(NT + 1):
        t = n & 7
        sfx = "T" if n >= NT else "L"
        real = n < NT
        b0 = 64 * n
        for kt in range(4):
            for qs in range(2):
                for s in range(4):
                    c = Sr(n, kt, qs) if s else (None if t == 0 else NM(qs))
                    dep = [FR(4 * kt + x) for x in range(4)] if (qs == 0 and s == 0) else ()
                    main.append(mfma(Sr(n, kt, qs), FR(4 * kt + s), Qf(s, qs), c, dep) if real else None)
        if real:
            for f in range(8, 16):
                ds += [(b0 + 4 + (f & 3) + 8 * ((f - 8) >> 2), i) for i in k_read(n, f)]
        if n >= 1:
            va = softmax_part(n - 1, 1) + check_pre(n - 1)
            if t == 1 and n > 8 and not cfg.nobnd & 1: va = va[:12] + zipl(o_epilogue(cfg), va[12:])
            blocks.append((b0, b0 + 30, va))
        if n == 0:
            fixed[cfg.xb1] = [barrier()]
            fixed[cfg.xb2] = [barrier()]
        fixed[b0 + BQ] = ([vmcnt(4)] if n == 1 else []) + [lgkm0(), barrier()]
        if n >= 1:
            for f in range(8):
                ds += [(b0 + max(BQ + 1, 20 + (f & 3) + 8 * (f >> 2)), i) for i in v_read(n - 1, f)]
            fixed[b0 + 31] = check(n - 1, 1, sfx) + l_update(n - 1, 1)
        realpv = n >= 1
        m = n - 1
        b1 = b0 + 32
        for dt in range(8):
            for (u, qs) in ((0, 0), (1, 0), (1, 1), (0, 1)):
                firstk = (u == 0 and qs == 0) or (u == 1 and qs == 1)
                c = None if ((m & 7) == 0 and firstk) else Oa(dt, qs)
                dep = [FR(2 * dt + 1)] if (u == 0 and qs == 0) else ()
                main.append(mfma(Oa(dt, qs), FR(2 * dt + u), Pf(m, u, qs), c, dep) if realpv else None)
        qq = qrd() if t == 7 else []
        if realpv:
            for p in range(4):
                ds += [(b1 + 2 + 4 * p, i) for i in v_read(m, 9 + 2 * p)] + [(b1 + 3 + 4 * p, i) for i in v_read(m, 8 + 2 * p)]
                ds += [(b1, i) for i in qq[2 * p:2 * p + 2]]
        if real:
            va = softmax_part(n, 0) + check_pre(n)
            if t == 0 and not (cfg.nobnd & 2 and n > 0):
                early, late = first_tile_max(n)
                blocks.append((b1 + 2, b1 + 30, early + va + late))
            else:
                blocks.append((b1, b1 + 30, va))
        fixed[b1 + BP] = ([vmcnt(8 if n == 0 else 0)] if n < 2 else []) + [lgkm0(), barrier()]
        if n + 1 < NT:
            for f in range(8):
                ds += [(b1 + max(BP + 1, 19 + 4 * (f >> 1)), i) for i in k_read(n + 1, f)]
        if real:
            sf2 = "T" if n + 1 >= NT else "L"
            fixed[b1 + 31] = check(n, 0, sf2) + l_update(n, 0)
    tailq = []
    if cfg.lastep:
        b1 = 64 * NT + 32
        ep = o_epilogue(cfg, stage=104)
        hdr, grp = ep[:14], [ep[14 + 13 * k:27 + 13 * k] for k in range(8)]
        blocks.append((b1, b1 + 8, hdr))
        for s in range(3):
            blocks.append((b1 + 8 * s + 10, b1 + min(8 * s + 17, 31), grp[2 * s][:12] + grp[2 * s + 1][:12]))
        for k in range(4): fixed.setdefault(b1 + cfg.barp + 2 + k, []).append(grp[k][12])
        tailq = [grp[4][12], grp[5][12]] + grp[6] + grp[7]
    fill = schedule(main, ds, blocks, fixed, cfg.locap)
    fill += [(p, i) for p, L in fixed.items() for i in L]
    seq = pre + [i for i in interleave(main, fill) if i is not None]
    seq += tailq if cfg.lastep else o_epilogue(cfg)
    seq += [lgkm0(), barrier()]
    if cfg.noav: seq = [i for i in seq if i.k not in ("valu", "trans", "perm") and "cbranch" not in i.t]
    return seq

def split_segments(seq):
    segs, cur = [], []
    for i in seq:
        cur.append(i)
        if i.k == "barrier":
            segs.append(cur); cur = []
    if cur: segs.append(cur)
    return segs

def fallback(par, part, last):
    n = par + 2
    L = [raw("s_nop 7"), raw("s_nop 3")]
    D, F, T = TMP + 8, TMP + 10, TMP + 12
    kts = range(4) if part == 0 else (2, 3)
    for qs in range(2):
        srcs = [Sr(n, kt, qs) + i for kt in kts for i in range(4)]
        d, f, t = D + qs, F + qs, T + qs
        L += rowmax(d, srcs) + xgroup("v_max_f32", d, t)
        L += [valu("v_max_f32", d, "0", d), valu("v_ceil_f32", d, d), valu("v_sub_f32", t, "0", d), vexp(f, t)]
        L += [valu("v_sub_f32", s, s, d) for s in srcs]
        L += [valu("v_sub_f32", NM(qs) + i, NM(qs) + i, d) for i in range(4)]
        L += [valu("v_mul_f32", vL + qs, vL + qs, f)]
        L += [valu("v_mul_f32", Oa(dt, qs) + i, Oa(dt, qs) + i, f) for dt in range(8) for i in range(4)]
        if part == 1:
            for i in range(4):
                p = Pf(n, 0, qs) + i
                L += [valu("v_lshlrev_b32", t, "16", p), valu("v_and_b32", p, "0xffff0000", p),
                      valu("v_mul_f32", t, t, f), valu("v_mul_f32", p, p, f), cvtpk(p, t, p)]
            if not last:
                L += [valu("v_sub_f32", s, s, d) for s in [Sr(n + 1, kt, qs) + i for kt in range(4) for i in range(4)]]
    L += softmax_part(n, part)
    L += [raw("s_nop 2"), raw(f"s_setpc_b64 s[{sRET}:{sRET+1}]")]
    return fix_hazards(L)

def q_pack(dst):
    L = []
    for mt in range(4):
        for qs in range(2):
            a = Ac(mt, qs); d = dst + (mt * 2 + qs) * 2
            for i in range(4): L.append(valu("v_mul_f32", a + i, f"s{sSCL}", a + i))
            L += [cvtpk(d, a, a + 1), cvtpk(d + 1, a + 2, a + 3)]
    return L
def q_store(src, hf):
    return [ds_w64(aQw, src + (mt * 2 + qs) * 2, hf * 4096 + (mt >> 1) * 2048 + qs * 1024 + (mt & 1) * 512)
            for mt in range(4) for qs in range(2)]

def wc_adv():
    return [S(f"s_add_u32 s{sWn}, s{sWn}, 1"), S(f"s_add_u32 s{sWc}, s{sWc}, 128"), S(f"s_and_b32 s{sWc}, s{sWc}, 0x3803ff"),
            S(f"s_cmp_ge_u32 s{sWn}, 8"), S(f"s_cselect_b32 s{sWc}, {OOB}, s{sWc}"), S(f"s_cselect_b32 s{sWm0}, {DROP}, s{sWm0}")]
def wq_dma(cfg, kc, ks):
    return [m0set(f"s_add_u32 m0, s{sWm0}, {(kc & 3)*8192 + ks*4096}"),
            S(f"s_add_u32 s{sT}, s{sWc}, {kc * (1 << 19) + ks * (1 << 18)}"), S(f"s_and_b32 s{sT}, s{sT}, 0x403fffff"),
            dma(vWq, SWQ, f"s{sT}", 0, cfg.wflags)]
KPERM = [0]
def kv_xform(s):
    if KPERM[0] == 0: return [S(f"s_xor_b32 s{s}, s{s}, s{sTX}")]
    sh = {1: 2, 2: 1}[KPERM[0]]
    return [S(f"s_xor_b32 s{s}, s{s}, s{sTX}"), S(f"s_and_b32 s{sT}, s{s}, 0x1c000"), S(f"s_xor_b32 s{s}, s{s}, s{sT}"),
            S(f"s_lshr_b32 s{sT}, s{sT}, {sh}"), S(f"s_or_b32 s{s}, s{s}, s{sT}")]
def kv_pre(isK):
    n, o, s = (sKn, sKo, sKs) if isK else (sVn, sVo, sVs)
    return [S(f"s_cmp_lt_u32 s{n}, 30"), S(f"s_cselect_b32 s{s}, s{o}, {OOB}"), S(f"s_cselect_b32 s{sKVm0}, s{sM0}, {DROP}")] + kv_xform(s) + [
            S(f"s_add_u32 s{n}, s{n}, 1"), S(f"s_add_u32 s{o}, s{o}, 16384"), S(f"s_and_b32 s{o}, s{o}, 0x7ffff")]
def kv_dma(cfg, isK, slot, jj):
    base = (KB0 if isK else VB0) + slot * 16384 + jj * 3072
    return [m0set(f"s_add_u32 m0, s{sKVm0}, {base}"),
            dma(vKo if isK else vVo, SK if isK else SV, f"s{sKs if isK else sVs}", jj * 1024, cfg.kvflags)]
def kv_issue(cfg, isK, slot):
    L = kv_pre(isK)
    for jj in range(4): L += kv_dma(cfg, isK, slot, jj)
    return L

PRO_REG = [YB, VB0, XB, WB0, KB0]
sKR = 58
def Ac2(mt, qs):
    k = mt * 2 + qs
    return HLD + 4 * k if k < 4 else TMP + 4 * (k - 4)

def qwait(q, tags):
    last = max(i for i, t in enumerate(q) if t in tags)
    return vmcnt(len(q) - 1 - last)

def a_prologue(cfg):
    seq, q = [], []
    def wq(kc):
        L = []
        for hf in range(2):
            for ks in range(2):
                L += [m0set(f"s_add_u32 m0, s{sM0}, {PRO_REG[kc % 5] + hf*8192 + ks*4096}"),
                      S(f"s_add_u32 s{sT}, s{sWc}, {kc * (1 << 19) + ks * (1 << 18) + hf * 128}"), S(f"s_and_b32 s{sT}, s{sT}, 0x3fffff"),
                      dma(vWq, SWQ, f"s{sT}", 0, cfg.pwflags)]
        L += x_dma(cfg, kc)
        q.extend([kc] * 8)
        return L
    def two(isK):
        L = []
        s = sKs if isK else sVs
        for slot in range(2):
            L += [S(f"s_add_u32 s{s}, s{sCol}, {slot * 16384}")] + kv_xform(s)
            for jj in range(4): L += kv_dma(cfg, isK, slot, jj)
        q.extend(["kv"] * 8)
        return L
    first = []
    for kc in range(cfg.plead): first += wq(kc)
    seq.append(S(f"s_mov_b32 s{sKVm0}, s{sM0}"))
    nxt = cfg.plead
    for kc in range(9):
        seq += [qwait(q, {kc}), barrier()]
        while nxt <= min(kc + 3, 7) and nxt <= kc + cfg.plead:
            seq += wq(nxt); nxt += 1
        if kc == 5:
            seq += [S(f"s_add_u32 s{sWc}, s{sWc}, 256"), S(f"s_and_b32 s{sWc}, s{sWc}, 0x3803ff"), S(f"s_add_u32 s{sWm0}, s{sM0}, {WB0}")]
            for c in range(4):
                for ks in range(2): seq += wq_dma(cfg, c, ks)
            q += [8] * 8
        if kc == 6: seq += two(True)
        if kc == 8: seq += two(False)
    return first, seq

def x_dma(cfg, kc):
    L = [m0set(f"s_add_u32 m0, s{sX16}, {PRO_REG[kc % 5] + 16384}"),
         S(f"s_add_u32 s{sT}, s{sKR}, {kc * 128}"), S(f"s_and_b32 s{sT}, s{sT}, 1023")]
    for p in range(4):
        if p: L += [m0set("s_add_u32 m0, m0, 1024"), S(f"s_add_u32 s{sT}, s{sT}, 8192")]
        L.append(dma(vXo, SX, f"s{sT}", 0, cfg.xflags))
    return L

def p_prologue(cfg):
    def base_of(addr):
        return (0, 0) if addr < 65536 else ((1, WB0) if addr < YB else (2, YB))
    def rd(kc, f):
        if kc == 8: return ring_read(0, f)
        hf, mt, ks = f >> 3, (f >> 1) & 3, f & 1
        addr = PRO_REG[kc % 5] + hf * 8192 + ks * 4096
        k, base = base_of(addr)
        a = (aW2, aW, aW3)[k]
        return [ds_tr(FR(f), a + mt, addr - base), ds_tr(FR(f) + 2, a + mt, addr - base + 512)]
    def xrd(kc):
        addr = PRO_REG[kc % 5] + 16384
        k, base = base_of(addr)
        return [ds_r128(Bf(2 * kc + ks, qs), aX + k, addr - base + qs * 2048 + ks * 64) for ks in range(2) for qs in range(2)]
    pre = [barrier()] + xrd(0)
    for f in range(8): pre += rd(0, f)
    main, fill = [], []
    for kc in range(8):
        b0 = 32 * kc
        for g in range(8):
            hf, mt = g >> 2, g & 3
            for (ks, qs) in ((0, 0), (1, 0), (1, 1), (0, 1)):
                firstk = (ks == 0 and qs == 0) or (ks == 1 and qs == 1)
                a = (Ac if hf else Ac2)(mt, qs)
                dep = [FR(2 * g + 1)] if (ks == 0 and qs == 0) else ()
                main.append(mfma(a, FR(2 * g + ks), Bf(2 * kc + ks, qs), None if (kc == 0 and firstk) else a, dep))
            if g == 4:
                fill.append((b0 + 17, barrier()))
                if kc < 7: fill += [(b0 + 17 + 2 * k, x) for k, x in enumerate(xrd(kc + 1))]
            k2, f2 = (kc, 2 * g + 8) if g < 4 else (kc + 1, 2 * g - 8)
            r = rd(k2, f2 + 1) + rd(k2, f2)
            fill += [(b0 + 4 * g + 2 + k, x) for k, x in enumerate(r)]
        if kc == 7:
            pk = []
            for mt in range(4):
                for qs in range(2):
                    a = Ac2(mt, qs); d = HLD + (mt * 2 + qs) * 2
                    for i in range(4): pk.append(valu("v_mul_f32", a + i, f"s{sSCL}", a + i))
                    pk += [cvtpk(d, a, a + 1), cvtpk(d + 1, a + 2, a + 3)]
            fill += [(b0 + p, x) for p, x in spread(pk + q_store(HLD, 0), 18, 31)]
    seq = pre + interleave(main, fill)
    pk, st = q_pack(TMP), q_store(TMP, 1)
    for k in range(8): seq += pk[6 * k:6 * k + 6] + [st[k]]
    seq += [lgkm0(), barrier()]
    return seq

def ring_read(kc, f):
    mt, ks = f >> 1, f & 1
    o = (kc & 3) * 8192 + ks * 4096
    return [ds_tr(FR(f), aW + mt, o), ds_tr(FR(f) + 2, aW + mt, o + 512)]

def chunk_mfmas(kc):
    L = []
    for mt in range(4):
        for (ks, qs) in ((0, 0), (1, 0), (1, 1), (0, 1)):
            firstk = (ks == 0 and qs == 0) or (ks == 1 and qs == 1)
            c = None if (kc == 0 and firstk) else Ac(mt, qs)
            dep = [FR(2 * mt + 1)] if (ks == 0 and qs == 0) else ()
            L.append(mfma(Ac(mt, qs), FR(2 * mt + ks), Bf(2 * kc + ks, qs), c, dep))
    return L

def p_phase(cfg, ph):
    PS = cfg.psplit
    isK = (ph & 1) == 1
    slot = [1, 1, 0, 0, 1, 1, 0, 0][ph]
    m1, m2 = chunk_mfmas((ph - 1) & 7)[PS:], chunk_mfmas(ph)[:PS]
    fill = []
    pos = -1
    for mt in range(4):
        for f, last in ((2 * mt + 1, 4 * mt + 2), (2 * mt, 4 * mt + 3)):
            for x in ring_read(ph, f):
                pos = max(pos, last - PS)
                fill.append((min(pos, len(m1) - 1), x))
                if cfg.pspread: pos += 1
    kv = kv_issue(cfg, isK, slot)
    head, rest = kv[:-6], kv[-6:]
    d = []
    if ph == 5: d += wc_adv()
    for ks in range(2): d += wq_dma(cfg, (ph + 3) & 7, ks)
    fill2 = []
    if cfg.kvpos:
        P = [int(x) for x in cfg.kvpos.split(",")]
        nw = len(d) - 4
        groups = [d[:nw], d[nw:], kv[:-6], kv[-6:-4], kv[-4:-2], kv[-2:]]
        extra = []
        for p, gl in zip(P, groups):
            if p < len(m1) or ph == 0: extra += [(min(p, len(m1) - 1), x) for x in gl]
            else: fill2 += [(p - len(m1), x) for x in gl]
        fill = extra + fill
    elif cfg.kvlate:
        fill = spread(d, -1, 2) + spread(kv, cfg.kvlate, len(m1) - 1) + fill
    else:
        fill = [(-1, x) for x in head] + [(k // 2, x) for k, x in enumerate(rest)] + spread(d, 3, 8) + fill
    if cfg.pdup:
        for k in range(cfg.pdup):
            fill2.append((1 + (k & 3), mfma(TMP + 4 * (k & 3), FR(k & 1), Bf((2 * ph + 5 + k) & 15, k & 1), TMP + 4 * (k & 3))))
            fill.append((k % len(m1), ds_tr(248 + 2 * (k & 1), aW + (k & 3), (ph & 3) * 8192 + 512 * (k & 7))))
    a = interleave(m1, fill)
    mk = (cfg.slowmask2 if (ph & 1) and cfg.slowmask2 >= 0 else cfg.slowmask) & ~(4 if ph <= cfg.startfast else 0)
    if cfg.masks: mk = int(cfg.masks.split(",")[ph], 16)
    if cfg.slowmask >= 0 and (not (cfg.slowph >> ph) & 1 or mk == 0):
        wt = [vmcnt(cfg.pvmfast)]
    elif cfg.slowmask >= 0:
        wt = [S(f"s_bitcmp1_b32 {mk:#x}, s{sCNT}"), raw(f"s_cbranch_scc0 L_fast{ph}"), vmcnt(cfg.pvm), label(f"L_fast{ph}"), vmcnt(cfg.pvmfast)]
    else:
        wt = [vmcnt(cfg.pvm)]
    b = interleave(m2, fill2) + wt + [lgkm0(), barrier()]
    if cfg.nopm: a, b = [[i for i in s if i.k not in ("mfma", "dsr")] for s in (a, b)]
    if cfg.nodma: a = [i for i in a if i.k not in ("dma",)]
    return a, b

def wo_chunk(cfg, k, plan, voff=None):
    sl, c = plan["blocks"][k]; slot = plan["slot"][k]
    L = []
    for ks in range(4):
        lds = (XB + slot * 16384 if slot < 4 else (slot - 4) * 16384) + ks * 4096
        L += [m0set(f"s_add_u32 m0, s{sM0}, {lds}"),
              S(f"s_add_u32 s{sT}, s{sCol}, {c * 131072 + ks * 32768 + sl * 128}"), S(f"s_and_b32 s{sT}, s{sT}, 0x7ffff"),
              dma(voff or vWo, SWO, f"s{sT}", 0, cfg.woflags)]
    return vtag(L, ("wo", k))

def b_load(pos, addr):
    return [ds_r128(Bf(4 * pos + (fr >> 1), fr & 1), addr, fr * 1024) for fr in range(8)]

def w_read(slot, f):
    mt, ks = f >> 2, f & 3
    o = (slot & 3) * 16384 + ks * 4096
    a = (aW if slot < 4 else (aW2 if slot < 8 else aW3)) + mt
    return [ds_tr(FR(f), a, o), ds_tr(FR(f) + 2, a, o + 512)]

def tail_plan(cfg):
    ne = cfg.ne
    names = {"A": "A", "H": "H", "T": "T", "L": "L0", "M": "L1", "F": "F"}
    order = cfg.order or ("AHTLM"[:ne] + "F" * (8 - ne))
    fo = [names[ch] for ch in order]
    early = [d for d in ("L0", "L1", "H", "T", "A") if d in fo]
    blocks = [(fo.index(d), c) for d in early for c in range(3)]
    n0 = len(blocks)
    for s, d in enumerate(fo):
        blocks += [(s, c) for c in (range(4) if d == "F" else (3,))]
    slot = {k: k & 3 for k in range(n0 + 3)}
    slot[n0 + 3] = 4; slot[n0 + 4] = 5
    a_issue = {}
    free = []
    nxt = n0 + 5
    pre = {17: [n0 + 3], 18: [n0 + 4]}
    if "L0" not in fo:
        slot[n0 + 5] = 8; slot[n0 + 6] = 9; nxt = n0 + 7
        pre = {15: [n0 + 3], 17: [n0 + 4], 18: [n0 + 5], 19: [n0 + 6]}
    busy = {k: (blocks[k][1] == 3) or (k > n0 and blocks[k - 1][1] == 3) for k in range(n0, 32)}
    for k in range(n0, cfg.lastbar):
        free.append(slot[k - 1])
        if k == n0 + 1: free += [6, 7]
        L = []
        while free and nxt < 32 and len(L) < cfg.aper and (not cfg.avoid or not busy[k] or nxt <= k + cfg.minlead or k >= cfg.lastbar - 2):
            slot[nxt] = free.pop(0); L.append(nxt); nxt += 1
        a_issue[k] = L
    assert nxt == 32
    return dict(fo=fo, early=early, blocks=blocks, n0=n0, slot=slot, a_issue=a_issue, pre=pre)

def flag_pub(val):
    return [valu("v_mov_b32", vFlag, str(val)), vwait(lambda t: t[0] == "st" and t[1] < val)] + \
           vtag([I(f"buffer_store_dword v{vFlag}, v{vLane}, s[{SFLG}:{SFLG+3}], 0 offen sc1", "vstore", (), {vFlag, vLane})], ("fl", val))

def p_tail(cfg):
    plan = tail_plan(cfg)
    blocks, n0, slot, fo = plan["blocks"], plan["n0"], plan["slot"], plan["fo"]
    p0 = 21 - n0 - cfg.half
    assert p0 >= 5
    sp, ep = {}, {}
    p = p0
    for k in range(n0):
        sp[k] = p; p += 2 if k < cfg.half else 1; ep[k] = p - 1
    for k in range(n0, n0 + 7): sp[k] = ep[k] = 21 + (k - n0)
    ep[-1] = p0 - 1
    issue = {}
    for k in range(n0 + 3): issue.setdefault(2 + k if k < 4 else sp[k - 3], []).append(k)
    for p, L in plan["pre"].items(): issue.setdefault(p, []).extend(L)
    assert sp[2] >= 7
    def setbase(reg, base):
        return [S(f"s_lshl_b32 s{sT}, s{sQB}, 13"), S(f"s_add_u32 s{sT}, s{sT}, {base}"), valu("v_add_u32", reg, f"s{sT}", vLane)]
    def period_ops(p):
        n, kind = 23 + p // 2, "EO"[p & 1]
        mem, other = [], []
        ks = issue.get(p, [])
        nfirst = 0 if cfg.kvfirst else 1
        for k in ks[:nfirst]: mem += wo_chunk(cfg, k, plan)
        if kind == "E" and n <= 31: mem += vtag(kv_issue(cfg, False, n & 1), ("kv", p))
        if kind == "O" and n + 2 <= 31: mem += vtag(kv_issue(cfg, True, n & 1), ("kv", p))
        for k in ks[nfirst:]: mem += wo_chunk(cfg, k, plan)
        if p == 20 and cfg.fused: mem += hs_load()
        if p == 0:
            other += chunk_mfmas(7)[cfg.psplit:] + [valu("v_add_u32", aQw, f"{WB0 - YB}", aQw)] + q_pack(TMP) + q_store(HLD, 0) + q_store(TMP, 1)
        if p == 1:
            other += setbase(aQw, XB) + b_load(0, aQw) + setbase(aQw, YB) + b_load(1, aQw) + setbase(aQw, WB0) + setbase(vXo, VB0)
        if p == 6: other += b_load(2, aQw)
        close = [vwait(lambda t, p=p: (t[0] == "kv" and t[1] <= p - (2 if p >= cfg.tfast else cfg.tlead)) or (t[0] == "wo" and ep[t[1] - 1] - 1 <= p))]
        if p < p0 - 1: close.append(lgkm0())
        close.append(barrier())
        return mem, other, close
    seq = []
    for p in range(p0):
        mem, other, close = period_ops(p)
        if p == p0 - 1:
            for f in range(8): other += w_read(slot[0], f)
        seq += mem + other + close
    main, fill = [], []
    src_of = {"H": HLD, "T": TMP, "L0": HLD, "L1": TMP}
    published = 0
    done_at = {}
    for k, (sl, c) in enumerate(blocks):
        b0 = 32 * k
        fresh = (c == 0)
        for mt in range(4):
            for qs in range(2):
                for ks in range(4):
                    cc = None if (fresh and ks == 0) else Ac(mt, qs)
                    dep = [FR(4 * mt + ks + 1)] if (qs == 0 and ks in (0, 2)) else ()
                    main.append(mfma(Ac(mt, qs), FR(4 * mt + ks), Bf(4 * c + ks, qs), cc, dep))
        if cfg.bstamp:
            fill.append((b0, raw("s_memtime s[90:91]")))
            fill.append((b0 + 24, raw(f"v_writelane_b32 v255, s90, {k}")))
        if k < n0:
            span = 32 // (ep[k] - sp[k] + 1)
            closes = []
            for h, p in enumerate(range(sp[k], ep[k] + 1)):
                mem, other, close = period_ops(p)
                o = b0 + h * span
                if h: fill += [(o - 1, x) for x in closes.pop()]
                fill += [(o + q, x) for q, x in spread(mem, cfg.tlate, min(17, span - 4))] + [(o + q, x) for q, x in spread(other, span // 2 - 2, span - 4)]
                closes.append(close)
            close = closes.pop()
        elif n0 < k <= cfg.lastbar:
            if k == n0 + 1: fill.append((b0 + 3, vwait(lambda t: t[0] == "wo")))
            fill.append((b0 + 3, barrier()))
        for mt in range(4):
            if mt >= 2 and k + 1 >= len(blocks): continue
            sl2, mt2 = (slot[k], mt + 2) if mt < 2 else (slot[k + 1], mt - 2)
            rd = []
            for ks in range(4): rd += w_read(sl2, 4 * mt2 + ks)
            for n, x in enumerate(rd): fill.append((b0 + 8 * mt + 4 + n, x))
        if k < n0:
            fill += [(b0 + 31, x) for x in close]
            if k == n0 - 1:
                fill += [(b0 + 31, x) for x in ([] if cfg.bstamp else stamp(cfg, 2)) + b_load(3, vXo)]
        for pair in range(2):
            for qs in range(2):
                s0 = b0 + 14 + 8 * qs + 16 * pair
                t, u = Ac(2 * pair, qs), Ac(2 * pair + 1, qs)
                if k < n0 and c == 2 and fo[sl] != "A":
                    d = fo[sl]
                    z = src_of[d] + (pair * 2 + qs) * 4
                    L = [cvtpk(z, t, t + 1), cvtpk(z + 1, t + 2, t + 3), cvtpk(z + 2, u, u + 1), cvtpk(z + 3, u + 2, u + 3)]
                    fill += [(s0 + n, x) for n, x in enumerate(L)]
                    if d[0] == "L": fill.append((s0 + 4, ds_w128(aQw, z, int(d[1]) * 4096 + (pair * 2 + qs) * 1024)))
                if k >= n0 and c == 3:
                    nxt = fo[sl + 1] if sl + 1 < len(fo) and fo[sl + 1] != "F" else None
                    if pair == 0 and qs == 0: fill.append((s0 - 1, S(f"s_add_u32 s{sPo1}, s{sPo}, {sl * 131072}")))
                    L = [cvtpk(t, t, t + 1), cvtpk(t + 1, t + 2, t + 3), cvtpk(t + 2, u, u + 1), cvtpk(t + 3, u + 2, u + 3)]
                    st = vtag([bstore(t, vLane, SPART, f"s{sPo1}", (qs * 2 + pair) * 1024, cfg.pflags)], ("st", sl))
                    if nxt:
                        s = src_of[nxt] + (pair * 2 + qs) * 4
                        U = []
                        for (dst, o) in ((u, 2), (t, 0)):
                            for h in range(2):
                                U += [valu("v_lshlrev_b32", dst + 2 * h, "16", s + o + h), valu("v_and_b32", dst + 2 * h + 1, "0xffff0000", s + o + h)]
                        fill += [(s0 + n // 2, x) for n, x in enumerate(L)] + [(s0 + 2, st[0])]
                        fill += [(s0 + p, x) for p, x in zip((3, 3, 4, 5, 5, 6, 7, 7), U)]
                    else:
                        fill += [(s0 + n, x) for n, x in enumerate(L)] + [(s0 + 4, st[0])]
                    done_at[sl] = k
        if k >= n0 and c == 3 and fo[sl] in ("H", "T"):
            d = {"H": "L0", "T": "L1"}[fo[sl]]
            if d in fo:
                assert fo.index(d) >= sl + 2
                fill += [(b0 + 17 + n, ds_r128(src_of[d] + 4 * n, aQw, int(d[1]) * 4096 + n * 1024)) for n in range(4)]
        if cfg.fused and k >= n0:
            ready = sum(1 for s, kk in done_at.items() if kk + cfg.flaglag <= k)
            if cfg.pubs:
                pm = dict(tuple(int(v) for v in e.split(":")) for e in cfg.pubs.split(","))
                ready = pm.get(k, 0)
                assert ready <= sum(1 for s, kk in done_at.items() if kk + 2 <= k)
            if ready > published and (k >= cfg.pubfrom or cfg.pubs):
                fill += [(b0 + 16, x) for x in flag_pub(ready)]
                published = ready
    seq += interleave(main, fill)
    if cfg.bstamp:
        seq += [raw("s_memtime s[90:91]"), lgkm0(), raw("v_writelane_b32 v255, s90, 32"), raw("v_lshlrev_b32 v5, 2, v0"),
                raw("s_lshl_b32 s90, s2, 8"), raw("s_add_u32 s90, s90, 0x10000"), raw(f"s_cmp_lg_u32 s{sQB}, {cfg.stw}"), raw(f"s_cselect_b32 s90, {OOB}, s90"),
                raw("buffer_store_dword v255, v5, s[64:67], s90 offen")]
    seq += stamp(cfg, 4)
    if cfg.fused:
        if published < 7 and (cfg.dpoll or not cfg.pubs): seq += flag_pub(7)
        if not cfg.dpoll: seq += flag_pub(8)
    return resolve_vwaits(seq, [("kv", -2)] * 6 + [("kv", -1)] * 6)

def a_tail(cfg):
    plan = tail_plan(cfg)
    n0 = plan["n0"]
    seq = hs_load() if cfg.fused else []
    for k in range(n0, cfg.lastbar + 1):
        last = k == cfg.lastbar
        if k > n0: seq += [vwait(lambda t, k=k, last=last: last or t[1] <= k + 1), barrier()]
        for kk in plan["a_issue"].get(k, []): seq += wo_chunk(cfg, kk, plan, vWoA)
    return resolve_vwaits(seq)

def rstamp(cfg, idx):
    if not cfg.stamps: return []
    return ["    " + x for x in ["s_memrealtime s[60:61]", "s_waitcnt lgkmcnt(0)", "v_mov_b32 v100, s60", "v_mov_b32 v101, s61", "v_mov_b32 v102, 0",
            "s_mov_b64 s[62:63], exec", "s_mov_b64 exec, 1", f"buffer_store_dwordx2 v[100:101], v102, s[64:67], s68 offen offset:{idx*8}", "s_mov_b64 exec, s[62:63]"]]

vHS = 241
def hs_load():
    return vtag([I(f"buffer_load_dword v{vHS}, v{vLane}, s[{SDBG}:{SDBG+3}], 0 offen sc1", "vload", {vHS}, {vLane})], ("hs", 99))

def a_reduce(cfg, ps):
    T = []
    A = lambda *a: T.extend("    " + x for x in a)
    A("v_lshlrev_b32 v1, 7, v0", "v_and_b32 v4, 15, v0", "v_lshlrev_b32 v4, 11, v4",
      "v_bfe_u32 v5, v0, 4, 1", "v_lshl_add_u32 v4, v5, 5, v4", "v_lshrrev_b32 v5, 5, v0", "v_lshl_add_u32 v4, v5, 4, v4")
    if ps == 0: T += rstamp(cfg, 4)
    A("s_mov_b32 s85, 0")
    T.append(f"L_hs{ps}:")
    A(f"v_cmp_le_u32 vcc, 8, v{vHS}", f"s_cbranch_vccnz L_hs_ok{ps}",
      f"buffer_load_dword v{vHS}, v{vLane}, s[{SDBG}:{SDBG+3}], 0 offen sc1", "s_add_u32 s85, s85, 1", "s_waitcnt vmcnt(0)",
      "s_cmp_lt_u32 s85, 0x80000", f"s_cbranch_scc1 L_hs{ps}")
    T.append(f"L_hs_ok{ps}:")
    A(f"s_add_u32 s87, s{sQB}, {4 * ps}")
    for N in ((cfg.rn1, cfg.rn2)[ps],):
        T += rstamp(cfg, 5)
        dp = cfg.dpoll and ps == 1
        FW = SX if dp else SFLG
        def ld(i):
            b = 16 + i * 4
            if i and i % 2 == 0: A("s_add_u32 s88, s88, 16384")
            A(f"buffer_load_dwordx4 v[{b}:{b+3}], v{vLane}, s[{SPART}:{SPART+3}], s88 offen offset:{(i & 1)*1024} sc1")
        base = ["s_lshl_b32 s88, s87, 17", "s_lshl_b32 s89, s6, 11", "s_add_u32 s88, s88, s89"]
        pub8 = [f"s_cmp_lg_u32 s85, 1", "s_cbranch_scc1 L_np8_{0}", f"v_mov_b32 v{vFlag}, 8",
                f"buffer_store_dword v{vFlag}, v{vLane}, s[{SFLG}:{SFLG+3}], 0 offen sc1"]
        A("s_mov_b32 s85, 0")
        if dp:
            A(f"s_cmp_lg_u32 s{sQB}, 3", f"s_cbranch_scc1 L_poll{ps}")
            T.append("L_dp:")
            A(*base, f"buffer_load_dword v6, v1, s[{FW}:{FW+3}], 0 offen sc1")
            for i in range(16): ld(i)
            A("s_add_u32 s85, s85, 1", "s_waitcnt vmcnt(0)")
            A("v_max3_u32 v7, v16, v17, v18")
            for r in range(19, 79, 2): A(f"v_max3_u32 v7, v7, v{r}, v{r+1}")
            A("v_max_u32 v7, v7, v79", "v_cmp_eq_u32 vcc, -1, v7", "s_cbranch_vccz L_sum1")
            A(*[x.format("a") for x in pub8]); T.append("L_np8_a:")
            A("v_cmp_lt_u32 vcc, s87, v6", "s_cmp_eq_u32 vcc_lo, 0xff", f"s_cbranch_scc1 L_got{ps}",
              "s_cmp_lt_u32 s85, 0x20000", "s_cbranch_scc1 L_dp", "s_branch L_sum1")
        T.append(f"L_poll{ps}:")
        A(f"buffer_load_dword v6, v1, s[{FW}:{FW+3}], 0 offen sc1", "s_add_u32 s85, s85, 1", "s_waitcnt vmcnt(0)")
        if dp:
            A(*[x.format("b") for x in pub8]); T.append("L_np8_b:")
        A("v_cmp_lt_u32 vcc, s87, v6", "s_cmp_eq_u32 vcc_lo, 0xff", f"s_cbranch_scc1 L_got{ps}", "s_cmp_lt_u32 s85, 0x80000", f"s_cbranch_scc1 L_poll{ps}")
        T.append(f"L_got{ps}:")
        T += rstamp(cfg, 6)
        A(*base)
        for i in range(min(N, 16)): ld(i)
        if dp:
            assert N >= 16
            T.append("L_sum1:")
        A("s_lshl_b32 s89, s87, 7")
        acc = 80
        for i in range(16):
            A(f"s_waitcnt vmcnt({min(N, 16 - i) - 1})")
            if i + N < 16: ld(i + N)
            b = 16 + i * 4; pair = i & 1
            for e in range(4):
                lo, hi = acc + pair * 8 + 2 * e, acc + pair * 8 + 2 * e + 1
                if i < 2:
                    A(f"v_lshlrev_b32 v{lo}, 16, v{b+e}", f"v_and_b32 v{hi}, 0xffff0000, v{b+e}")
                else:
                    A(f"v_lshlrev_b32 v6, 16, v{b+e}", f"v_and_b32 v7, 0xffff0000, v{b+e}", f"v_add_f32 v{lo}, v{lo}, v6", f"v_add_f32 v{hi}, v{hi}, v7")
        for pair in range(2):
            a = acc + pair * 8
            for e in range(4): A(f"v_cvt_pk_bf16_f32 v{8+pair*4+e}, v{a+2*e}, v{a+2*e+1}")
        T += rstamp(cfg, 7)
        A("s_nop 1")
        for pair in range(2):
            d = 8 + pair * 4
            A(f"v_permlane16_swap_b32 v{d}, v{d+2}", f"v_permlane16_swap_b32 v{d+1}, v{d+3}")
            A(f"buffer_store_dwordx4 v[{d}:{d+3}], v4, s[{SOUT}:{SOUT+3}], s89 offen offset:{pair*64} {cfg.outflags}")
        if dp: A(*pub8[2:])
    return T

def fin(seq): return fix_hazards(insert_lgkm(order_gaps(seq)))

def header():
    ref = open("cdna_kernels/" + NAME + ".s.ref").read().splitlines()
    return [l for l in ref if l.startswith(";") and "@launch" not in l and "Override" not in l and "grid=ceil" not in l]

def srd(dst, lo, hi, nbytes):
    return [f"s_mov_b32 s{dst}, s{lo}", f"s_mov_b32 s{dst+1}, s{hi}", f"s_mov_b32 s{dst+2}, {nbytes}", f"s_mov_b32 s{dst+3}, 0x20000"]
def srd_off(dst, lo, hi, off, nbytes):
    return [f"s_add_u32 s{dst}, s{lo}, {off}", f"s_addc_u32 s{dst+1}, s{hi}, 0", f"s_mov_b32 s{dst+2}, {nbytes}", f"s_mov_b32 s{dst+3}, 0x20000"]

def main_kernel(cfg):
    T = []
    A = lambda *a: T.extend("    " + x for x in a)
    ST = lambda i: T.append(emit(stamp(cfg, i))) if cfg.stamps else None
    T += [".globl attn_main_kernel", ".p2align 8", ".type attn_main_kernel,@function", "attn_main_kernel:"]
    A("s_cmp_ge_u32 s2, 256", "s_cbranch_scc1 L_end")
    cal = cfg.cal_pro or cfg.cal_main or cfg.cal_end or cfg.cal_mid or cfg.probe >= 0
    def PR(k):
        if cfg.probe == k: A("s_memrealtime s[94:95]", "s_waitcnt lgkmcnt(0)")
    if cal: A("s_memrealtime s[100:101]")
    def CAL(us, lab):
        if not us: return
        T.append(f"{lab}:")
        A("s_memrealtime s[60:61]", "s_waitcnt lgkmcnt(0)", "s_sub_u32 s60, s60, s100", f"s_cmp_lt_u32 s60, {us*100}", f"s_cbranch_scc1 {lab}")
    A("s_load_dwordx8 s[72:79], s[0:1], 0", "s_load_dwordx8 s[80:87], s[0:1], 32", "s_load_dwordx4 s[88:91], s[0:1], 64",
      "s_load_dwordx2 s[92:93], s[0:1], 96", "s_load_dwordx4 s[96:99], s[0:1], 80")
    A("v_lshrrev_b32 v1, 6, v0", "v_and_b32 v0, 63, v0", f"v_readfirstlane_b32 s{sW}, v1")
    A(f"v_lshlrev_b32 v{vLane}, 4, v0")
    early_pos = len(T)
    if cfg.mapping == 0:
        A("s_and_b32 s3, s2, 7", "s_lshr_b32 s4, s2, 3", "s_lshl_b32 s5, s3, 2", "s_lshr_b32 s6, s4, 3", "s_add_u32 s5, s5, s6",
          "s_and_b32 s6, s4, 7", f"s_and_b32 s{sROT}, s3, 3")
    elif cfg.mapping == 1:
        A("s_and_b32 s6, s2, 7", "s_lshr_b32 s5, s2, 3", f"s_and_b32 s{sROT}, s5, 3")
    elif cfg.mapping == 2:
        A("s_and_b32 s3, s2, 7", "s_lshr_b32 s4, s2, 3",
          "s_and_b32 s5, s4, 15", "s_and_b32 s6, s3, 4", "s_lshl_b32 s6, s6, 2", "s_add_u32 s5, s5, s6",
          "s_and_b32 s6, s3, 3", "s_lshl_b32 s6, s6, 1", "s_lshr_b32 s4, s4, 4", "s_add_u32 s6, s6, s4",
          f"s_and_b32 s{sROT}, s5, 3")
    elif cfg.mapping == 3:
        A("s_and_b32 s3, s2, 7", "s_lshr_b32 s4, s2, 3",
          "s_and_b32 s5, s4, 7", "s_and_b32 s6, s3, 6", "s_lshl_b32 s6, s6, 2", "s_add_u32 s5, s5, s6",
          "s_and_b32 s6, s3, 1", "s_lshl_b32 s6, s6, 2", "s_lshr_b32 s4, s4, 3", "s_add_u32 s6, s6, s4",
          f"s_and_b32 s{sROT}, s5, 3")
    if not cfg.rot: A(f"s_mov_b32 s{sROT}, 0")
    if cfg.rot in (6, 7, 8): A(f"s_cmp_eq_u32 s{sROT}, 1", f"s_cselect_b32 s{sROT}, {dict([(6, 3), (7, 2), (8, 0)])[cfg.rot]}, s{sROT}")
    if cfg.rot == 5: A(f"s_and_b32 s{sROT}, s5, 1", f"s_lshl_b32 s{sROT}, s{sROT}, 1")
    if cfg.rot == 2: A(f"s_bfe_u32 s{sROT}, s5, 0x20002")
    if cfg.rot == 3: A(f"s_and_b32 s{sROT}, s5, 2")
    if cfg.rot == 4: A(f"s_or_b32 s{sROT}, s{sROT}, 2")
    A("s_and_b32 s7, s5, 15")
    tx = {0: ["s_mov_b32 s4, 0"], 1: ["s_mov_b32 s4, s6"], 2: ["s_lshr_b32 s4, s5, 2"], 3: ["s_lshr_b32 s4, s5, 2", "s_add_u32 s4, s4, s6"],
          4: ["s_xor_b32 s4, s5, s6"], 5: ["s_mul_i32 s4, s2, 0x9e3779b1", "s_lshr_b32 s4, s4, 29"], 6: ["s_lshr_b32 s4, s5, 2", "s_xor_b32 s4, s4, s6"]}[cfg.tx]
    A(*tx, "s_and_b32 s4, s4, 7", "s_lshl_b32 s4, s4, 14")
    def srd_early():
        A("s_waitcnt lgkmcnt(0)")
        A("s_cmp_ge_u32 s5, 16")
        for k in (0, 3):
            A(f"s_cselect_b32 s{72+2*k}, s{82+2*k}, s{72+2*k}", f"s_cselect_b32 s{73+2*k}, s{83+2*k}, s{73+2*k}")
        A("s_lshl_b32 s56, s6, 10")
        A(*srd_off(SWQ, 78, 79, "s56", 0)[:2], f"s_sub_u32 s{SWQ+2}, 0x400000, s56", f"s_mov_b32 s{SWQ+3}, 0x20000")
        A("s_lshl_b32 s56, s7, 17"); A(*srd_off(SX, 72, 73, "s56", 131072))
        if cfg.nowq: A(f"s_mov_b32 s{SWQ+2}, 0")
        if cfg.stamps:
            A(*srd_off(64, 92, 93, WS_BYTES - (1 << 20), 1 << 20))
            A(f"s_lshr_b32 s68, s{sW}, 2", "s_lshl_b32 s68, s68, 7", "s_lshl_b32 s69, s2, 8", "s_add_u32 s68, s68, s69",
              f"s_and_b32 s69, s{sW}, 3", f"s_cmp_lg_u32 s69, {cfg.stw}", f"s_cselect_b32 s68, {OOB}, s68")
    def srd_late():
        A("s_cmp_ge_u32 s5, 16")
        for k in (1, 2, 4):
            A(f"s_cselect_b32 s{72+2*k}, s{82+2*k}, s{72+2*k}", f"s_cselect_b32 s{73+2*k}, s{83+2*k}, s{73+2*k}")
        A("s_lshl_b32 s56, s7, 22", "s_lshl_b32 s57, s6, 19", "s_add_u32 s56, s56, s57")
        A(*srd_off(SK, 74, 75, "s56", 524288)); A(*srd_off(SV, 76, 77, "s56", 524288))
        A(*srd_off(SWO, 80, 81, "s57", 524288))
        A("s_lshl_b32 s56, s5, 21", "s_add_u32 s56, s56, 0x100000"); A(*srd_off(SPART, 92, 93, "s56", 1 << 20))
        if cfg.fused:
            A("s_lshl_b32 s56, s5, 3"); A(*srd_off(SDBG, 98, 99, "s56", 4))
            A("s_lshl_b32 s56, s7, 18", "s_lshl_b32 s57, s6, 15", "s_add_u32 s56, s56, s57", "s_lshr_b32 s57, s5, 4", "s_lshl_b32 s57, s57, 10",
              "s_add_u32 s56, s56, s57")
            A(*srd_off(SOUT, 96, 97, "s56", 0), f"s_sub_u32 s{SOUT+2}, 0x400000, s56")
        if cfg.nokv: A(f"s_mov_b32 s{SK+2}, 0", f"s_mov_b32 s{SV+2}, 0")
        if cfg.nowo: A(f"s_mov_b32 s{SWO+2}, 0")
        if cfg.nops: A(f"s_mov_b32 s{SPART+2}, 0")
    decode = T[early_pos:]; del T[early_pos:]
    A("s_nop 1")
    A(f"s_and_b32 s{sQB}, s{sW}, 3", f"s_lshl_b32 s{sM0}, s{sQB}, 10")
    if cfg.codepf:
        A("s_getpc_b64 s[70:71]")
        T.append("L_pc:")
        A("s_sub_u32 s70, s70, L_pc-attn_main_kernel", "s_subb_u32 s71, s71, 0")
        A(f"s_lshr_b32 s56, s{sW}, 1", "s_cmp_lg_u32 s56, 2", "s_cbranch_scc1 L_nopf")
        A("s_lshr_b32 s56, s2, 3", "s_lshl_b32 s56, s56, 11", f"s_add_u32 s56, s56, s{sM0}",
          "s_min_u32 s56, s56, L_cold-attn_main_kernel-1024", f"v_add_u32 v5, s56, v{vLane}",
          f"global_load_dwordx4 v[{FR(0)}:{FR(0)+3}], v5, s[70:71]")
        T.append("L_nopf:")
    T += decode
    A(f"s_lshl_b32 s{sCol}, s{sROT}, 17")
    A("v_and_b32 v1, 15, v0", "v_lshrrev_b32 v2, 4, v0", "v_lshrrev_b32 v3, 2, v1", "v_and_b32 v4, 3, v0")
    def lc16():
        A("v_lshrrev_b32 v5, 3, v0", "v_bfe_u32 v6, v0, 4, 1", f"s_and_b32 s{sT}, s{sQB}, 1", f"s_lshl_b32 s{sT}, s{sT}, 1",
          f"v_or_b32 v6, s{sT}, v6", "v_lshlrev_b32 v6, 1, v6", "v_and_b32 v7, 7, v0", "v_xor_b32 v6, v6, v7", "v_lshlrev_b32 v6, 4, v6")
    def wo_voff():
        lc16()
        A("v_and_b32 v7, 3, v5", "v_lshrrev_b32 v5, 2, v5", "v_lshl_add_u32 v7, v5, 4, v7",
          f"s_lshl_b32 s{sT}, s{sQB}, 2", f"v_add_u32 v7, s{sT}, v7", f"v_lshl_add_u32 v{vWo}, v7, 10, v6")
    def kv_voff():
        A(f"s_lshl_b32 s{sT}, s{sQB}, 2", f"v_add_u32 v5, s{sT}, v2",
          "v_xor_b32 v6, v5, v1", "v_lshlrev_b32 v6, 4, v6",
          *{0: [f"s_lshl_b32 s{sT}, s{sQB}, 4"], 1: [f"s_lshl_b32 s{sT}, s{sQB}, 7"],
            2: [f"s_and_b32 s{sT}, s{sQB}, 1", f"s_lshl_b32 s{sT}, s{sT}, 4", f"s_lshr_b32 s56, s{sQB}, 1", "s_lshl_b32 s56, s56, 8", f"s_add_u32 s{sT}, s{sT}, s56"]}[cfg.kperm],
          f"v_add_u32 v7, s{sT}, v2", "v_lshlrev_b32 v7, 8, v7",
          f"v_add_u32 v{vKo}, v7, v6",
          "v_and_b32 v5, 7, v5", "v_lshlrev_b32 v5, 1, v5", "v_xor_b32 v6, v5, v1", "v_lshlrev_b32 v6, 4, v6", f"v_add_u32 v{vVo}, v7, v6")
    def wq_voff():
        lc16()
        A(f"s_lshl_b32 s{sT}, s{sQB}, 3", f"v_add_u32 v7, s{sT}, v5", f"v_lshl_add_u32 v{vWq}, v7, 13, v6")
    A(f"s_lshl_b32 s{sWc}, s{sROT}, 8")
    if cfg.krot == 1:
        A("s_lshr_b32 s56, s7, 2", "s_lshl_b32 s56, s56, 1", "s_lshl_b32 s57, s6, 2", "s_add_u32 s56, s56, s57",
          "s_bfe_u32 s57, s6, 0x10001", "s_add_u32 s56, s56, s57", "s_and_b32 s56, s56, 7")
    elif cfg.krot == 2:
        A(f"s_lshl_b32 s56, s{sROT}, 1", "s_lshr_b32 s57, s5, 4", "s_add_u32 s56, s56, s57")
    elif cfg.krot == 3:
        A(f"s_lshl_b32 s56, s{sROT}, 1", "s_lshr_b32 s57, s5, 4", "s_add_u32 s56, s56, s57", "s_add_u32 s56, s56, 4", "s_and_b32 s56, s56, 7")
    elif cfg.krot == 5:
        A("s_lshr_b32 s56, s7, 1", "s_add_u32 s56, s56, s6", "s_and_b32 s56, s56, 3", "s_lshl_b32 s56, s56, 1")
    elif cfg.krot == 6:
        A("s_lshl_b32 s56, s6, 1", "s_add_u32 s56, s56, s7", "s_and_b32 s56, s56, 7")
    elif cfg.krot == 4:
        A("s_and_b32 s56, s7, 7")
    else:
        A("s_mov_b32 s56, 0")
    A(f"s_lshl_b32 s{sKR}, s56, 7", "s_lshl_b32 s56, s56, 19", f"s_add_u32 s{sWc}, s{sWc}, s56")
    wq_voff()
    A("v_lshrrev_b32 v5, 3, v0", "v_and_b32 v6, 7, v0", "v_xor_b32 v6, v6, v2", "v_lshlrev_b32 v6, 4, v6",
      f"s_lshl_b32 s{sT}, s{sQB}, 5", f"v_add_u32 v5, s{sT}, v5", f"v_lshl_add_u32 v{vXo}, v5, 10, v6")
    A(f"s_lshl_b32 s{sX16}, s{sQB}, 12")
    srd_early()
    if cfg.stamps:
        ST(0)
        A("v_lshrrev_b32 v2, 4, v0", "v_lshrrev_b32 v3, 2, v1", "v_and_b32 v4, 3, v0")
    A(f"s_cmp_ge_u32 s{sW}, 4", "s_cbranch_scc1 L_P")
    first, rest = a_prologue(cfg)
    T.append(emit(fin(first)))
    srd_late()
    kv_voff()
    T.append(emit(fin(rest)))
    wo_voff()
    A(f"v_mov_b32 v{vWoA}, v{vWo}")
    if cfg.fused:
        A("s_lshl_b32 s56, s5, 2", "s_lshr_b32 s58, s6, 1", "s_add_u32 s56, s56, s58", "s_lshl_b32 s56, s56, 10", f"s_add_u32 s56, s56, {FLG}")
        A(*srd_off(SFLG, 92, 93, "s56", 1024))
    if cfg.prioA: A(f"s_setprio {cfg.prioA}")
    A(f"s_mov_b32 s{sBND}, 0x{f2u(1e-30 if cfg.force_fb else float(1 << 20)):x}")
    for s in range(4):
        A(f"v_add_u32 v5, {4*s}, v2", "v_xor_b32 v5, v5, v1", "v_lshlrev_b32 v5, 4, v5", f"v_lshl_add_u32 v{aK+s}, v1, 8, v5")
    A("v_and_b32 v5, 1, v2", "v_lshl_add_u32 v5, v5, 2, v3",
      "v_lshl_add_u32 v6, v2, 2, v3", "v_lshlrev_b32 v6, 8, v6", "v_lshl_add_u32 v6, v4, 3, v6")
    for dt in range(8):
        A(f"v_xor_b32 v7, {dt}, v5", f"v_lshl_add_u32 v{aV+dt}, v7, 5, v6")
    A(f"s_lshl_b32 s57, s{sQB}, 13", f"s_add_u32 s{sT}, s57, {YB}", f"v_add_u32 v{aQ}, s{sT}, v{vLane}")
    A("s_waitcnt vmcnt(12)", "s_barrier")
    segs = split_segments(fin(a_stream(cfg)))
    txt = [emit(s) for s in segs]
    E = lambda n: 2 + 2 * n
    for k in range(E(2), E(32) - 16):
        assert txt[k] == txt[k + 16], k
    ST(1)
    CAL(cfg.cal_pro, "L_cal1")
    PR(0)
    if cfg.sser:
        for sgm in txt[:E(2)]:
            L = [i for i in stamp(cfg, 0) if "v[6:7]" not in i.t and i.k != "lgkm0"]
            L.insert(2, raw("s_waitcnt lgkmcnt(0)"))
            T.append(emit(L)); A("s_add_u32 s68, s68, 8")
            T.append(sgm)
        T.append(emit([i for i in stamp(cfg, 0) if "v[6:7]" not in i.t])); A(f"s_mov_b32 s68, {OOB}")
    else:
        T += txt[:E(2)]
    PR(6)
    A(f"s_mov_b32 s{sCNT}, 0")
    T.append("L_Aloop:")
    A(f"s_cmp_lt_u32 s{sCNT}, 2", f"s_cselect_b32 s{sT}, 2, 1", f"s_lshl_b32 s{sT}, s{sT}, 16", f"s_add_u32 s{sT}, s{sT}, s57", f"v_add_u32 v{aQ}, s{sT}, v{vLane}",
      f"v_mov_b32 v{aO}, v{aQ}", f"s_cmp_eq_u32 s{sCNT}, 0", "s_cbranch_scc0 L_Ao",
      f"v_add_u32 v{aO}, {XB - YB}, v{aO}")
    T.append("L_Ao:")
    if 1 <= cfg.probe <= 3:
        A(f"s_cmp_lg_u32 s{sCNT}, {cfg.probe}", "s_cbranch_scc1 L_nopr")
        PR(cfg.probe)
        T.append("L_nopr:")
    if cfg.cal_mid:
        A(f"s_cmp_lg_u32 s{sCNT}, 2", "s_cbranch_scc1 L_nocal")
        CAL(cfg.cal_mid, "L_cal4")
        T.append("L_nocal:")
    def sst():
        if cfg.series:
            L = [i for i in stamp(cfg, 0) if "v[6:7]" not in i.t]
            T.append(emit(L)); A("s_add_u32 s68, s68, 8")
    sst(); T += txt[E(2):E(4)]
    sst(); T += txt[E(4):E(6)]
    sst(); T += txt[E(6):E(8)]
    sst()
    A(f"s_cmp_eq_u32 s{sCNT}, 3", "s_cbranch_scc1 L_Atail")
    T += txt[E(8):E(10)]
    A(f"s_add_u32 s{sCNT}, s{sCNT}, 1", "s_branch L_Aloop")
    T.append("L_Atail:")
    A(f"v_add_u32 v{aO}, {VB0 - WB0}, v{aO}")
    if cfg.series: A(f"s_mov_b32 s68, {OOB}")
    T += txt[E(32):]
    CAL(cfg.cal_main, "L_cal2")
    PR(4)
    if not cfg.bstamp: ST(2)
    T.append(emit(fin(a_tail(cfg))))
    if cfg.fused:
        T += a_reduce(cfg, 0)
    PR(5)
    if cfg.probe >= 0:
        A("s_sub_u32 s94, s94, s100", "s_add_u32 s94, s94, 10000")
        T.append("L_prh:")
        A("s_memrealtime s[60:61]", "s_waitcnt lgkmcnt(0)", "s_sub_u32 s60, s60, s100", "s_cmp_lt_u32 s60, s94", "s_cbranch_scc1 L_prh")
    if cfg.cal_wg >= 0: A(f"s_cmp_lg_u32 s2, {cfg.cal_wg}", "s_cbranch_scc1 L_end")
    CAL(cfg.cal_end, "L_cal3")
    ST(3)
    A("s_endpgm")
    T.append("L_P:")
    srd_late()
    if cfg.tlbw:
        A(f"s_cmp_lg_u32 s{sQB}, 2", "s_cbranch_scc1 L_notlb", "v_mov_b32 v5, 0")
        A(f"buffer_load_dword v{FR(1)}, v5, s[{SK}:{SK+3}], s{sCol} offen nt", f"buffer_load_dword v{FR(1)+1}, v5, s[{SV}:{SV+3}], s{sCol} offen nt")
        if cfg.tlbw > 1:
            A(f"buffer_load_dword v{FR(1)+2}, v5, s[{SWO}:{SWO+3}], 0 offen", f"buffer_load_dword v{FR(1)+3}, v5, s[{SOUT}:{SOUT+3}], 0 offen nt")
        T.append("L_notlb:")
    if cfg.h1touch:
        if cfg.h1touch == 1: A(f"s_cmp_lg_u32 s{sQB}, 2", "s_cbranch_scc1 L_noh1", "s_mov_b32 s57, 256")
        else: A(f"s_lshl_b32 s57, s{sQB}, 8")
        A("v_lshrrev_b32 v5, 1, v0", "v_lshlrev_b32 v5, 13, v5", "v_and_b32 v6, 1, v0", "v_lshl_add_u32 v5, v6, 7, v5",
          "s_lshl_b32 s56, s7, 18", "s_add_u32 s56, s56, s57", f"buffer_load_dword v241, v5, s[{SWQ}:{SWQ+3}], s56 offen")
        T.append("L_noh1:")
    if cfg.fused:
        A("s_lshl_b32 s56, s5, 12", "s_lshl_b32 s57, s6, 7", "s_add_u32 s56, s56, s57", f"s_add_u32 s56, s56, {FLG}")
        A(*srd_off(SFLG, 92, 93, "s56", 3076))
        A(f"s_cmp_lg_u32 s{sQB}, 3", "s_cbranch_scc1 L_norst")
        A("v_mov_b32 v5, 0", "v_lshlrev_b32 v6, 10, v0", f"buffer_store_dword v5, v6, s[{SFLG}:{SFLG+3}], 0 offen sc1")
        T.append("L_norst:")
        if cfg.dpoll:
            A("v_mov_b32 v8, -1", "v_mov_b32 v9, -1", "v_mov_b32 v10, -1", "v_mov_b32 v11, -1",
              "s_lshl_b32 s56, s6, 14", f"s_lshl_b32 s57, s{sQB}, 12", "s_add_u32 s56, s56, s57", f"s_add_u32 s56, s56, {7 * 131072}")
            for i in range(4): A(f"buffer_store_dwordx4 v[8:11], v{vLane}, s[{SPART}:{SPART+3}], s56 offen offset:{i*1024} sc1")
    A("v_bfe_u32 v5, v1, 1, 2", "v_xor_b32 v5, v5, v2", "v_lshlrev_b32 v5, 4, v5", "v_lshl_add_u32 v5, v1, 7, v5",
      f"v_add_u32 v{aX}, s{sX16}, v5", f"v_add_u32 v{aX+1}, {WB0}, v{aX}", f"v_add_u32 v{aX+2}, {YB}, v{aX}")
    A(f"s_add_u32 s{sWc}, s{sWc}, 256", f"s_and_b32 s{sWc}, s{sWc}, 0x3803ff", f"s_add_u32 s{sWm0}, s{sM0}, {WB0}", f"s_mov_b32 s{sWn}, 2")
    A("v_lshrrev_b32 v5, 1, v3", "v_and_b32 v6, 1, v2", "v_lshl_add_u32 v5, v6, 1, v5",
      "v_lshl_add_u32 v6, v2, 3, v3", "v_lshlrev_b32 v6, 7, v6", "v_lshl_add_u32 v6, v4, 3, v6")
    for mt in range(4):
        A(f"v_xor_b32 v7, {mt}, v5", f"v_lshl_add_u32 v{aW2+mt}, v7, 5, v6", f"v_add_u32 v{aW+mt}, {WB0}, v{aW2+mt}",
          f"v_add_u32 v{aW3+mt}, {YB}, v{aW2+mt}")
    kv_voff()
    A("v_lshrrev_b32 v5, 1, v2", "v_lshlrev_b32 v5, 8, v5", "v_lshl_add_u32 v5, v1, 4, v5", "v_and_b32 v6, 1, v2", "v_lshl_add_u32 v5, v6, 3, v5",
      f"s_lshl_b32 s{sT}, s{sQB}, 13", f"s_add_u32 s{sT}, s{sT}, {YB}", f"v_add_u32 v{aQw}, s{sT}, v5")
    wo_voff()
    A(f"s_mov_b32 s{sSCL}, 0x{f2u(math.log2(math.e) / math.sqrt(128.0)):x}")
    A(f"s_mov_b32 s{sKn}, -1", f"s_mov_b32 s{sVn}, -2",
      f"s_add_u32 s{sKo}, s{sCol}, 16384",
      f"s_mov_b32 s{sVo}, s{sCol}")
    A(f"s_mov_b32 s{sCNT}, 2", "s_waitcnt vmcnt(0)")
    if cfg.fused:
        A("s_bfe_u32 s85, s2, 0x20003", "s_add_u32 s85, s85, 3", f"s_cmp_eq_u32 s{sQB}, 3", "s_cselect_b32 s85, s85, 99")
        A(f"s_lshl_b32 s56, s{sQB}, 10", f"s_add_u32 s{SFLG}, s{SFLG}, s56", f"s_addc_u32 s{SFLG+1}, s{SFLG+1}, 0", f"s_mov_b32 s{SFLG+2}, 4")
    T.append(emit(fin(p_prologue(cfg))))
    ST(1)
    A(f"v_lshlrev_b32 v{vXo}, 7, v0")
    if cfg.prioM: A(f"s_setprio {cfg.prioM}")
    A("s_branch L_Pgo")
    T.append("L_Ploop:")
    if cfg.fused:
        A(f"s_cmp_lg_u32 s{sCNT}, s85", "s_cbranch_scc1 L_nohs")
        A("v_mov_b32 v5, 1", f"buffer_atomic_add v5, v{vLane}, s[{SDBG}:{SDBG+3}], 0 offen sc1")
        T.append("L_nohs:")
    if cfg.wopf:
        if cfg.pfmode == 0: A(f"s_add_u32 s56, s{sQB}, 4")
        elif cfg.pfmode == 1: A(f"s_and_b32 s56, s{sQB}, 2", "s_add_u32 s56, s56, 4")
        elif cfg.pfmode == 2: A("s_mov_b32 s56, 6")
        A(f"s_cmp_lg_u32 s{sCNT}, s56", "s_cbranch_scc1 L_nowopf")
        A("s_lshl_b32 s56, s7, 15", f"s_lshl_b32 s57, s{sQB}, 13", "s_add_u32 s56, s56, s57",
          f"buffer_load_dword v{vFlag}, v{vXo}, s[{SWO}:{SWO+3}], s56 offen")
        T.append("L_nowopf:")
    if cfg.codepf:
        A(f"s_lshl_b32 s56, s{sQB}, 4", f"s_add_u32 s56, s56, s{sCNT}", f"s_cmp_lg_u32 s56, {6 if cfg.pfmode else 7}", "s_cbranch_scc1 L_nocpf")
        A("s_bfe_u32 s56, s2, 0x30003", "s_lshl_b32 s56, s56, 13", "s_min_u32 s56, s56, L_cold-attn_main_kernel-8192",
          f"v_add_u32 v5, s56, v{vXo}", "global_load_dword v241, v5, s[70:71]")
        T.append("L_nocpf:")
    a0, b0 = p_phase(cfg, 0)
    T.append(emit(fin(a0)))
    if cfg.nobnd & 4: A("s_waitcnt lgkmcnt(0)", "s_branch L_Pgo")
    A(f"s_bitcmp1_b32 s{sCNT}, 0", "s_cbranch_scc0 L_Pwr")
    T.append(emit(fin([raw("s_nop 1")] + q_pack(HLD) + [lgkm0()])))
    A("s_branch L_Pgo")
    T.append("L_Pwr:")
    pk, st = q_pack(TMP), q_store(TMP, 1)
    wr = q_store(HLD, 0)
    for k in range(8): wr += pk[6 * k:6 * k + 6] + ([st[k - 1]] if k else [])
    T.append(emit(fin(wr + [st[7], lgkm0()])))
    T.append("L_Pgo:")
    body = list(b0)
    for ph in range(1, 8):
        a, b = p_phase(cfg, ph)
        body += a + b
    T.append(emit(fin(body)))
    A(f"s_add_u32 s{sCNT}, s{sCNT}, 1", f"s_cmp_lt_u32 s{sCNT}, 8", "s_cbranch_scc1 L_Ploop")
    for mt in range(4): A(f"v_add_u32 v{aW+mt}, {XB}, v{aW2+mt}", f"v_add_u32 v{aW3+mt}, {WB0}, v{aW2+mt}")
    A("s_lshl_b32 s58, s6, 14", f"s_lshl_b32 s{sPo}, s{sQB}, 12", f"s_add_u32 s{sPo}, s{sPo}, s58")
    if cfg.prioP: A(f"s_setprio {cfg.prioP}")
    T.append(emit(fin([raw("s_nop 7")] + p_tail(cfg))))
    if cfg.fused:
        A("s_lshl_b32 s56, s5, 2", "s_lshr_b32 s58, s6, 1", "s_add_u32 s56, s56, s58", "s_lshl_b32 s56, s56, 10", f"s_add_u32 s56, s56, {FLG}")
        A(*srd_off(SX if cfg.dpoll else SFLG, 92, 93, "s56", 1024))
        T += a_reduce(cfg, 1)
    ST(3)
    A("s_endpgm")
    T.append("L_cold:")
    variants = {}
    for name, key in SITES.items():
        variants.setdefault(key, f"L_fbr_{key[0]}_{key[1]}_{int(key[2])}")
        T.append(f"L_fb_{name}:")
        A(f"s_call_b64 s[{sRET}:{sRET+1}], {variants[key]}", f"s_branch L_ret_{name}")
    for key, lab in variants.items():
        T.append(f"{lab}:")
        T.append(emit(fallback(*key)))
    T.append("L_end:")
    A("s_endpgm")
    return T

def reduce_kernel(cfg):
    T = []
    A = lambda *a: T.extend("    " + x for x in a)
    T += [".globl attn_reduce_kernel", ".p2align 8", ".type attn_reduce_kernel,@function", "attn_reduce_kernel:"]
    A("s_cmp_ge_u32 s2, 256", "s_cbranch_scc1 L_rend")
    if cfg.stamps: A("s_memrealtime s[40:41]")
    A("s_load_dwordx2 s[4:5], s[0:1], 80", "s_load_dwordx2 s[6:7], s[0:1], 96")
    A("s_lshr_b32 s18, s2, 3", "s_and_b32 s19, s2, 7")
    A("s_lshl_b32 s20, s18, 21", "s_lshl_b32 s21, s19, 17", "s_add_u32 s20, s20, s21", "s_add_u32 s20, s20, 0x100000")
    A("v_lshrrev_b32 v1, 6, v0", "v_and_b32 v2, 63, v0", "v_lshlrev_b32 v3, 4, v2", "v_lshl_add_u32 v3, v1, 11, v3")
    A("s_waitcnt lgkmcnt(0)")
    A(*srd_off(8, 6, 7, "s20", 131072))
    for src in range(8):
        A(f"s_mov_b32 s22, {src*16384}")
        for pair in range(2):
            b = 16 + (src * 2 + pair) * 4
            A(f"buffer_load_dwordx4 v[{b}:{b+3}], v3, s[8:11], s22 offen offset:{pair*1024} {cfg.rflags}")
    A(*srd(12, 4, 5, 1 << 22))
    A("s_and_b32 s23, s18, 15", "s_lshl_b32 s23, s23, 18", "s_lshr_b32 s24, s18, 4", "s_lshl_b32 s24, s24, 10", "s_add_u32 s23, s23, s24",
      "s_lshl_b32 s24, s19, 7", "s_add_u32 s23, s23, s24")
    A("v_and_b32 v4, 15, v2", "v_lshl_add_u32 v4, v1, 4, v4", "v_lshlrev_b32 v4, 11, v4",
      "v_bfe_u32 v5, v2, 4, 1", "v_lshl_add_u32 v4, v5, 5, v4", "v_lshrrev_b32 v5, 5, v2", "v_lshl_add_u32 v4, v5, 4, v4")
    acc = 80
    for src in range(8):
        A(f"s_waitcnt vmcnt({(7-src)*2})")
        for pair in range(2):
            b = 16 + (src * 2 + pair) * 4
            for i in range(4):
                lo, hi = acc + pair * 8 + 2 * i, acc + pair * 8 + 2 * i + 1
                if src == 0:
                    A(f"v_lshlrev_b32 v{lo}, 16, v{b+i}", f"v_and_b32 v{hi}, 0xffff0000, v{b+i}")
                else:
                    A(f"v_lshlrev_b32 v6, 16, v{b+i}", f"v_and_b32 v7, 0xffff0000, v{b+i}", f"v_add_f32 v{lo}, v{lo}, v6", f"v_add_f32 v{hi}, v{hi}, v7")
    for pair in range(2):
        a = acc + pair * 8
        for i in range(4): A(f"v_cvt_pk_bf16_f32 v{16+pair*4+i}, v{a+2*i}, v{a+2*i+1}")
    A("s_nop 1")
    for pair in range(2):
        d = 16 + pair * 4
        A(f"v_permlane16_swap_b32 v{d}, v{d+2}", f"v_permlane16_swap_b32 v{d+1}, v{d+3}")
        A(f"buffer_store_dwordx4 v[{d}:{d+3}], v4, s[12:15], s23 offen offset:{pair*64} {cfg.outflags}")
    if cfg.stamps and not cfg.series:
        A("s_waitcnt vmcnt(0)", "s_memrealtime s[42:43]", "s_waitcnt lgkmcnt(0)")
        A(*srd_off(8, 6, 7, WS_BYTES - (1 << 20), 1 << 20))
        A("s_lshl_b32 s22, s2, 8", "v_mov_b32 v4, s40", "v_mov_b32 v5, s41", "v_mov_b32 v6, s42", "v_mov_b32 v7, s43",
          "v_cmp_eq_u32 vcc, 0, v0", "s_and_saveexec_b64 s[34:35], vcc", "s_cbranch_execz L_rend",
          "buffer_store_dwordx4 v[4:7], v0, s[8:11], s22 offen offset:32")
    T.append("L_rend:")
    A("s_endpgm")
    return T

def kd(name, vgpr, sgpr):
    return [".p2align 6", f".amdhsa_kernel {name}", f"  .amdhsa_next_free_vgpr {vgpr}", f"  .amdhsa_next_free_sgpr {sgpr}",
            f"  .amdhsa_accum_offset {(vgpr+3)//4*4}", "  .amdhsa_group_segment_fixed_size 0", "  .amdhsa_kernarg_size 104",
            "  .amdhsa_user_sgpr_count 2", "  .amdhsa_user_sgpr_kernarg_segment_ptr 1", "  .amdhsa_system_sgpr_workgroup_id_x 1",
            ".end_amdhsa_kernel"]

DOC = """
; ---------------------------------------------------------------------------------------------------------
; One persistent workgroup per CU = (branch, batch b, 4 heads).  8 waves, two roles, all MFMA 16x16x32 bf16:
;   waves 4-7 ("P"): x fragments stay in registers; Q = x wq for the next head, all LDS-DMA of K/V/wq,
;                    then out-projection of the workgroup's own 4 heads (bf16 partial sums to d_ws)
; Softmax: reference = true row max of the first key tile of each head (folded in as the MFMA C input); every
;   half tile checks its exp sums against 2^20 and otherwise calls L_fbr_* which raises the reference to the
;   running max and rescales O, l and pending P exactly (integer power of two).
; Cross-workgroup reduce of the 8 partial sums of a (branch, batch): sc1 stores -> vmcnt -> sc1 flag (one line per
;   writer, cleared at start; the d_debug counter says all writers of the group have cleared), sc1 polls and loads.
; Generated by a script (software pipelining, counted waits and wait states are computed there).
; ---------------------------------------------------------------------------------------------------------
"""

def generate(cfg, path):
    SITES.clear()
    KPERM[0] = cfg.kperm
    T = header()
    if cfg.fused:
        T += ["; @launch grid=(256,1,1) block=(512,1,1) lds=163840"]
    else:
        T += ["; @launch kernel=attn_main_kernel grid=(256,1,1) block=(512,1,1) lds=163840",
              "; @launch kernel=attn_reduce_kernel grid=(256,1,1) block=(512,1,1) lds=0"]
    T += ['.amdgcn_target "amdgcn-amd-amdhsa--gfx950"', ".text"]
    T += DOC.strip("\n").split("\n")
    T += main_kernel(cfg)
    if not cfg.fused: T += reduce_kernel(cfg)
    T += ['.section .rodata,"a"'] + kd("attn_main_kernel", 256, 102)
    if not cfg.fused: T += kd("attn_reduce_kernel", 96, 48)
    txt = "\n".join(T) + "\n"
    if cfg.fused: txt = txt.replace("attn_main_kernel", NAME + "_kernel")
    open(path, "w").write(txt)

if __name__ == "__main__":
    cfg = Cfg()
    out = "k.s"
    for a in sys.argv[1:]:
        if "=" in a:
            k, v = a.split("=", 1)
            cur = getattr(cfg, k)
            setattr(cfg, k, (v not in ("0", "False")) if isinstance(cur, bool) else type(cur)(v))
        else:
            out = a
    generate(cfg, out)
```

```python
import sys, math, struct
from asmlib import *

NAME = "concat_heads__mha_block_cached__mha_block_cached__near_ridge"
WS_BYTES = 289406976
def f2u(x): return struct.unpack("<I", struct.pack("<f", x))[0]

KB0, VB0, WB0, XB, YB = 0, 32768, 65536, 98304, 131072
DROP = 0x30000
OOB = 0x40000000
SK, SV, SWQ, SWO, SX, SPART = 8, 12, 16, 20, 24, 32
sW, sQB, sCNT, sBND, sSCL, sKo, sVo, sWc, sT, sM0, sWm0, sRET = 36, 37, 38, 39, 40, 41, 42, 43, 44, 45, 46, 48
sPo, sCol, sPo1, sX16, sROT, sKn, sVn, sWn, sKs, sVs = 50, 51, 52, 53, 59, 28, 29, 30, 54, 55
sFm0 = 31
sKVm0 = 47
sTX = 4
SFLG, SDBG, SOUT = 72, 76, 80
sFv = 84
vFlag = 240
FLG = 0x4800000
aW3 = 248
aX = 253
vWoA = 253
def Qf(s, qs): return 8 + (s * 2 + qs) * 4
def Oa(dt, qs): return 40 + (dt * 2 + qs) * 4
def Sr(n, kt, qs):
    if kt < 2: return 104 + (kt * 2 + qs) * 4
    return 120 + (n & 1) * 16 + ((kt - 2) * 2 + qs) * 4
def Pf(n, u, qs):
    if u == 0: return 152 + (n & 1) * 8 + qs * 4
    return 168 + qs * 4
def NM(qs): return 176 + qs * 4
def FR(f): return 184 + (f & 7) * 4
TMP = 216
vL, vLS, vTS = 232, 234, 236
aK, aV, aQ, aO, vLane = 238, 242, 250, 251, 252
def Bf(s, qs): return 8 + (s * 2 + qs) * 4
def Ac(mt, qs): return 136 + (mt * 2 + qs) * 4
HLD = 168
aW, aW2, vKo, vVo, vWq, vWo, aQw, vXo = 232, 236, 242, 243, 244, 245, 246, 247

BAR_IDX = 19

class Cfg:
    stamps = False
    kvflags = "nt"
    wflags = ""
    pflags = "sc1"
    xflags = ""
    woflags = ""
    rflags = ""
    outflags = ""
    force_fb = False
    mapping = 2
    rot = 1
    codepf = True
    wopf = True
    prioA = 0
    cal_pro = 0
    cal_main = 0
    cal_end = 0
    cal_mid = 0
    cal_wg = -1
    probe = -1
    fused = True
    lastbar = 26
    flagc = 0
    flaglag = 5
    ne = 3
    shared_red = True
    rbatch = 4
    rkeep = 1
    prioF = 0
    masks = ""
    lastep = True
    startfast = 4
    tlbw = 0
    kvfirst = False
    tfast = 99
    dpoll = False
    pubs = "23:4"
    pfmode = 0
    nobnd = 0
    xb1 = 7
    xb2 = 13
    sser = False
    rn1 = 4
    rn2 = 16
    kperm = 0
    h1touch = 0
    slowmask = 0xfc
    pvmfast = 6
    slowph = 0xff
    slowmask2 = 0x60
    tx = 0
    avoid = True
    minlead = 3
    kvpos = ""
    tlead = 1
    tlate = 3
    pvm = 5
    kvlate = 0
    psplit = 6
    pspread = True
    half = 7
    ktouch = 0
    tflags = ""
    thead = 2
    bstamp = False
    midbar = 17
    aper = 2
    pubfrom = 22
    stw = 0
    pfbody = 7
    order = "AFHTFFFF"
    pdup = 0
    plead = 2
    pwflags = ""
    krot = 0
    series = False
    prioM = 0
    ppace = 0
    nopm = False
    nodma = False
    noav = False
    barq = 19
    barp = 23
    locap = 2
    pf0 = 28
    fbar = 1
    fwait = 2
    fburst = 1
    prioP = 0
    nokv = False
    nowq = False
    nowo = False
    nops = False

def stamp(cfg, idx):
    if not cfg.stamps: return []
    return [S("s_memrealtime s[60:61]"), S("s_memtime s[94:95]"), raw("s_waitcnt lgkmcnt(0)", "lgkm0"),
            raw("v_mov_b32 v2, s60"), raw("v_mov_b32 v3, s61"), raw("v_mov_b32 v4, 0"),
            raw("v_mov_b32 v6, s94"), raw("v_mov_b32 v7, s95"),
            raw("s_mov_b64 s[62:63], exec"), raw("s_mov_b64 exec, 1"),
            raw(f"buffer_store_dwordx2 v[2:3], v4, s[64:67], s68 offen offset:{idx*8}"),
            raw(f"buffer_store_dwordx2 v[6:7], v4, s[64:67], s68 offen offset:{idx*8+64}"),
            raw("s_mov_b64 exec, s[62:63]")]

def softmax_part(n, part):
    L = []
    for qs in range(2):
        for k in range(2):
            s = Sr(n, 2 * part + k, qs)
            e = [TMP + k * 4 + i for i in range(4)]
            for i in range(4): L.append(vexp(e[i], s + i))
            if k == 0:
                L.append(valu("v_add_f32", vTS + qs, e[0], e[1]))
            else:
                L.append(valu("v_add_f32", vTS + qs, vTS + qs, e[0]))
                L.append(valu("v_add_f32", vTS + qs, vTS + qs, e[1]))
            L.append(cvtpk(Pf(n, part, qs) + 2 * k, e[0], e[1]))
            L.append(valu("v_add_f32", vTS + qs, vTS + qs, e[2]))
            L.append(valu("v_add_f32", vTS + qs, vTS + qs, e[3]))
            L.append(cvtpk(Pf(n, part, qs) + 2 * k + 1, e[2], e[3]))
    return L

def l_update(n, part):
    t = n & 7
    if t == 0 and part == 0:
        return [valu("v_mov_b32", vL + qs, vTS + qs) for qs in range(2)]
    if t == 7 and part == 1:
        return [valu("v_add_f32", vLS + qs, vL + qs, vTS + qs) for qs in range(2)]
    return [valu("v_add_f32", vL + qs, vL + qs, vTS + qs) for qs in range(2)]

SITES = {}
def check_pre(n):
    if (n & 7) == 0: return []
    return [valu("v_max_f32", TMP + 8, vTS, vTS + 1), I(f"v_cmp_lt_f32 vcc, s{sBND}, v{TMP+8}", "valu", (), {TMP + 8})]
def check(n, part, sfx):
    t = n & 7
    if t == 0: return []
    name = f"{sfx}{t}_{part}"
    SITES[name] = (n & 1, part, t == 7)
    return [raw(f"s_cbranch_vccnz L_fb_{name}"), label(f"L_ret_{name}")]

def xgroup(op, x, t):
    return [valu("v_mov_b32", t, x), swap32(t, x), valu(op, x, x, t),
            valu("v_mov_b32", t, x), swap16(t, x), valu(op, x, x, t)]

def rowmax(dst, srcs):
    L = [valu("v_max3_f32", dst, srcs[0], srcs[1], srcs[2])]
    rest = srcs[3:]
    while len(rest) >= 2:
        L.append(valu("v_max3_f32", dst, dst, rest[0], rest[1])); rest = rest[2:]
    if rest: L.append(valu("v_max_f32", dst, dst, rest[0]))
    return L

def zipl(a, b):
    out = []
    for i in range(max(len(a), len(b))):
        if i < len(a): out.append(a[i])
        if i < len(b): out.append(b[i])
    return out

def first_tile_max(n):
    per = []
    for qs in range(2):
        m, t = TMP + 8 + qs, TMP + 10 + qs
        srcs = [Sr(n, kt, qs) + i for kt in range(4) for i in range(4)]
        L = rowmax(m, srcs) + xgroup("v_max_f32", m, t)
        L += [valu("v_sub_f32", s, s, m) for s in srcs[:8]]
        per.append(L)
    L = zipl(per[0], per[1])
    late = []
    for qs in range(2):
        m = TMP + 8 + qs
        late += [valu("v_sub_f32", NM(qs) + i, "0", m) for i in range(4)]
        late += [valu("v_sub_f32", s, s, m) for s in [Sr(n, kt, qs) + i for kt in (2, 3) for i in range(4)]]
    return L, late

def o_epilogue(cfg, stage=None):
    per = []
    for qs in range(2):
        per.append(xgroup("v_add_f32", vLS + qs, TMP + 12 + qs) + [vrcp(vLS + qs, vLS + qs)])
    L = zipl(per[0], per[1])
    k = 0
    for s in range(4):
        for qs in range(2):
            q = TMP + 8 + (k & 1) * 4 if stage is None else stage + 4 * k
            for h in range(2):
                o = Oa(2 * s + h, qs)
                for i in range(4): L.append(valu("v_mul_f32", o + i, o + i, vLS + qs))
                L.append(cvtpk(q + 2 * h, o, o + 1)); L.append(cvtpk(q + 2 * h + 1, o + 2, o + 3))
            L.append(ds_w128(aO, q, (s * 2 + qs) * 1024))
            k += 1
    return L

def k_read(n, f): return [ds_r128(FR(f), aK + (f & 3), KB0 + (n & 1) * 16384 + (f >> 2) * 4096)]
def v_read(n, f):
    dt, u = f >> 1, f & 1
    o = VB0 + (n & 1) * 16384 + u * 8192
    return [ds_tr(FR(f), aV + dt, o), ds_tr(FR(f) + 2, aV + dt, o + 4096)]

NT = 32
def units(i):
    if i.k == "label" or "vmcnt" in i.t: return 0
    return 2 if i.k == "trans" else 1

def schedule(main, ds, blocks, fixed, lo_cap=2):
    fill = []
    ds = list(ds)
    n = len(main)
    used = [0] * (n + 64)
    for p, L in fixed.items(): used[p] += sum(units(i) for i in L)
    for p in range(1, n):
        if main[p] is not None and main[p].tag: used[p - 1] += 1
    g = 0
    cnt = {}
    bars = sorted(p for p, L in fixed.items() if any(i.k == "lgkm0" for i in L))
    for e, ins in ds:
        g = max(g, e)
        while cnt.get(g, 0) >= (1 if (g & 1) == 0 else 2) and main[min(g, n - 1)] is not None: g += 1
        nb = [b for b in bars if b >= e]
        assert not nb or g <= nb[0] - 2, (e, g, ins.t)
        cnt[g] = cnt.get(g, 0) + 1
        used[g] += 1
        fill.append((g, 1, ins))
    def conflict(a, b):
        return bool(a.w & (b.r | b.w)) or bool(a.r & b.w) or (not a.w and not a.r) or (not b.w and not b.r) or (a.k == "dsw" and b.k == "dsw")
    def try_place(s, e, L, hi):
        u = list(used); rest = list(L); out = []
        last = None
        for p in range(s, e + 1):
            cap = lo_cap if (p & 1) == 0 else hi
            last = None
            while rest:
                pick = None
                for k in range(min(len(rest), 14)):
                    c = rest[k]
                    if u[p] + units(c) > cap: continue
                    if any(conflict(x, c) for x in rest[:k]): continue
                    if last is not None and last.k == "trans" and c.k != "trans" and last.w & c.r: continue
                    if last is not None and c.k == "perm" and last.w & c.r: continue
                    pick = k; break
                if pick is None: break
                c = rest.pop(pick); u[p] += units(c); out.append((p, 0, c)); last = c
        return (u, out) if not rest else None
    for (s, e, L) in blocks:
        hi = lo_cap
        while True:
            r = try_place(s, e, L, hi)
            if r: break
            hi += 1
        used, out = r
        fill += out
    pre = [(p, i) for (p, o, i) in fill]
    return pre

def a_stream(cfg):
    qrd = lambda: [ds_r128(Qf(s, qs), aQ, (s * 2 + qs) * 1024) for s in range(4) for qs in range(2)]
    pre = qrd()
    for f in range(8): pre += k_read(0, f)
    main, ds, blocks, fixed = [], [], [], {}
    BQ, BP = cfg.barq, cfg.barp
    for n in range(NT + 1):
        t = n & 7
        sfx = "T" if n >= NT else "L"
        real = n < NT
        b0 = 64 * n
        for kt in range(4):
            for qs in range(2):
                for s in range(4):
                    c = Sr(n, kt, qs) if s else (None if t == 0 else NM(qs))
                    dep = [FR(4 * kt + x) for x in range(4)] if (qs == 0 and s == 0) else ()
                    main.append(mfma(Sr(n, kt, qs), FR(4 * kt + s), Qf(s, qs), c, dep) if real else None)
        if real:
            for f in range(8, 16):
                ds += [(b0 + 4 + (f & 3) + 8 * ((f - 8) >> 2), i) for i in k_read(n, f)]
        if n >= 1:
            va = softmax_part(n - 1, 1) + check_pre(n - 1)
            if t == 1 and n > 8 and not cfg.nobnd & 1: va = va[:12] + zipl(o_epilogue(cfg), va[12:])
            blocks.append((b0, b0 + 30, va))
        if n == 0:
            fixed[cfg.xb1] = [barrier()]
            fixed[cfg.xb2] = [barrier()]
        fixed[b0 + BQ] = ([vmcnt(4)] if n == 1 else []) + [lgkm0(), barrier()]
        if n >= 1:
            for f in range(8):
                ds += [(b0 + max(BQ + 1, 20 + (f & 3) + 8 * (f >> 2)), i) for i in v_read(n - 1, f)]
            fixed[b0 + 31] = check(n - 1, 1, sfx) + l_update(n - 1, 1)
        realpv = n >= 1
        m = n - 1
        b1 = b0 + 32
        for dt in range(8):
            for (u, qs) in ((0, 0), (1, 0), (1, 1), (0, 1)):
                firstk = (u == 0 and qs == 0) or (u == 1 and qs == 1)
                c = None if ((m & 7) == 0 and firstk) else Oa(dt, qs)
                dep = [FR(2 * dt + 1)] if (u == 0 and qs == 0) else ()
                main.append(mfma(Oa(dt, qs), FR(2 * dt + u), Pf(m, u, qs), c, dep) if realpv else None)
        qq = qrd() if t == 7 else []
        if realpv:
            for p in range(4):
                ds += [(b1 + 2 + 4 * p, i) for i in v_read(m, 9 + 2 * p)] + [(b1 + 3 + 4 * p, i) for i in v_read(m, 8 + 2 * p)]
                ds += [(b1, i) for i in qq[2 * p:2 * p + 2]]
        if real:
            va = softmax_part(n, 0) + check_pre(n)
            if t == 0 and not (cfg.nobnd & 2 and n > 0):
                early, late = first_tile_max(n)
                blocks.append((b1 + 2, b1 + 30, early + va + late))
            else:
                blocks.append((b1, b1 + 30, va))
        fixed[b1 + BP] = ([vmcnt(8 if n == 0 else 0)] if n < 2 else []) + [lgkm0(), barrier()]
        if n + 1 < NT:
            for f in range(8):
                ds += [(b1 + max(BP + 1, 19 + 4 * (f >> 1)), i) for i in k_read(n + 1, f)]
        if real:
            sf2 = "T" if n + 1 >= NT else "L"
            fixed[b1 + 31] = check(n, 0, sf2) + l_update(n, 0)
    tailq = []
    if cfg.lastep:
        b1 = 64 * NT + 32
        ep = o_epilogue(cfg, stage=104)
        hdr, grp = ep[:14], [ep[14 + 13 * k:27 + 13 * k] for k in range(8)]
        blocks.append((b1, b1 + 8, hdr))
        for s in range(3):
            blocks.append((b1 + 8 * s + 10, b1 + min(8 * s + 17, 31), grp[2 * s][:12] + grp[2 * s + 1][:12]))
        for k in range(4): fixed.setdefault(b1 + cfg.barp + 2 + k, []).append(grp[k][12])
        tailq = [grp[4][12], grp[5][12]] + grp[6] + grp[7]
    fill = schedule(main, ds, blocks, fixed, cfg.locap)
    fill += [(p, i) for p, L in fixed.items() for i in L]
    seq = pre + [i for i in interleave(main, fill) if i is not None]
    seq += tailq if cfg.lastep else o_epilogue(cfg)
    seq += [lgkm0(), barrier()]
    if cfg.noav: seq = [i for i in seq if i.k not in ("valu", "trans", "perm") and "cbranch" not in i.t]
    return seq

def split_segments(seq):
    segs, cur = [], []
    for i in seq:
        cur.append(i)
        if i.k == "barrier":
            segs.append(cur); cur = []
    if cur: segs.append(cur)
    return segs

def fallback(par, part, last):
    n = par + 2
    L = [raw("s_nop 7"), raw("s_nop 3")]
    D, F, T = TMP + 8, TMP + 10, TMP + 12
    kts = range(4) if part == 0 else (2, 3)
    for qs in range(2):
        srcs = [Sr(n, kt, qs) + i for kt in kts for i in range(4)]
        d, f, t = D + qs, F + qs, T + qs
        L += rowmax(d, srcs) + xgroup("v_max_f32", d, t)
        L += [valu("v_max_f32", d, "0", d), valu("v_ceil_f32", d, d), valu("v_sub_f32", t, "0", d), vexp(f, t)]
        L += [valu("v_sub_f32", s, s, d) for s in srcs]
        L += [valu("v_sub_f32", NM(qs) + i, NM(qs) + i, d) for i in range(4)]
        L += [valu("v_mul_f32", vL + qs, vL + qs, f)]
        L += [valu("v_mul_f32", Oa(dt, qs) + i, Oa(dt, qs) + i, f) for dt in range(8) for i in range(4)]
        if part == 1:
            for i in range(4):
                p = Pf(n, 0, qs) + i
                L += [valu("v_lshlrev_b32", t, "16", p), valu("v_and_b32", p, "0xffff0000", p),
                      valu("v_mul_f32", t, t, f), valu("v_mul_f32", p, p, f), cvtpk(p, t, p)]
            if not last:
                L += [valu("v_sub_f32", s, s, d) for s in [Sr(n + 1, kt, qs) + i for kt in range(4) for i in range(4)]]
    L += softmax_part(n, part)
    L += [raw("s_nop 2"), raw(f"s_setpc_b64 s[{sRET}:{sRET+1}]")]
    return fix_hazards(L)

def q_pack(dst):
    L = []
    for mt in range(4):
        for qs in range(2):
            a = Ac(mt, qs); d = dst + (mt * 2 + qs) * 2
            for i in range(4): L.append(valu("v_mul_f32", a + i, f"s{sSCL}", a + i))
            L += [cvtpk(d, a, a + 1), cvtpk(d + 1, a + 2, a + 3)]
    return L
def q_store(src, hf):
    return [ds_w64(aQw, src + (mt * 2 + qs) * 2, hf * 4096 + (mt >> 1) * 2048 + qs * 1024 + (mt & 1) * 512)
            for mt in range(4) for qs in range(2)]

def wc_adv():
    return [S(f"s_add_u32 s{sWn}, s{sWn}, 1"), S(f"s_add_u32 s{sWc}, s{sWc}, 128"), S(f"s_and_b32 s{sWc}, s{sWc}, 0x3803ff"),
            S(f"s_cmp_ge_u32 s{sWn}, 8"), S(f"s_cselect_b32 s{sWc}, {OOB}, s{sWc}"), S(f"s_cselect_b32 s{sWm0}, {DROP}, s{sWm0}")]
def wq_dma(cfg, kc, ks):
    return [m0set(f"s_add_u32 m0, s{sWm0}, {(kc & 3)*8192 + ks*4096}"),
            S(f"s_add_u32 s{sT}, s{sWc}, {kc * (1 << 19) + ks * (1 << 18)}"), S(f"s_and_b32 s{sT}, s{sT}, 0x403fffff"),
            dma(vWq, SWQ, f"s{sT}", 0, cfg.wflags)]
KPERM = [0]
def kv_xform(s):
    if KPERM[0] == 0: return [S(f"s_xor_b32 s{s}, s{s}, s{sTX}")]
    sh = {1: 2, 2: 1}[KPERM[0]]
    return [S(f"s_xor_b32 s{s}, s{s}, s{sTX}"), S(f"s_and_b32 s{sT}, s{s}, 0x1c000"), S(f"s_xor_b32 s{s}, s{s}, s{sT}"),
            S(f"s_lshr_b32 s{sT}, s{sT}, {sh}"), S(f"s_or_b32 s{s}, s{s}, s{sT}")]
def kv_pre(isK):
    n, o, s = (sKn, sKo, sKs) if isK else (sVn, sVo, sVs)
    return [S(f"s_cmp_lt_u32 s{n}, 30"), S(f"s_cselect_b32 s{s}, s{o}, {OOB}"), S(f"s_cselect_b32 s{sKVm0}, s{sM0}, {DROP}")] + kv_xform(s) + [
            S(f"s_add_u32 s{n}, s{n}, 1"), S(f"s_add_u32 s{o}, s{o}, 16384"), S(f"s_and_b32 s{o}, s{o}, 0x7ffff")]
def kv_dma(cfg, isK, slot, jj):
    base = (KB0 if isK else VB0) + slot * 16384 + jj * 3072
    return [m0set(f"s_add_u32 m0, s{sKVm0}, {base}"),
            dma(vKo if isK else vVo, SK if isK else SV, f"s{sKs if isK else sVs}", jj * 1024, cfg.kvflags)]
def kv_issue(cfg, isK, slot):
    L = kv_pre(isK)
    for jj in range(4): L += kv_dma(cfg, isK, slot, jj)
    return L

PRO_REG = [YB, VB0, XB, WB0, KB0]
sKR = 58
def Ac2(mt, qs):
    k = mt * 2 + qs
    return HLD + 4 * k if k < 4 else TMP + 4 * (k - 4)

def qwait(q, tags):
    last = max(i for i, t in enumerate(q) if t in tags)
    return vmcnt(len(q) - 1 - last)

def a_prologue(cfg):
    seq, q = [], []
    def wq(kc):
        L = []
        for hf in range(2):
            for ks in range(2):
                L += [m0set(f"s_add_u32 m0, s{sM0}, {PRO_REG[kc % 5] + hf*8192 + ks*4096}"),
                      S(f"s_add_u32 s{sT}, s{sWc}, {kc * (1 << 19) + ks * (1 << 18) + hf * 128}"), S(f"s_and_b32 s{sT}, s{sT}, 0x3fffff"),
                      dma(vWq, SWQ, f"s{sT}", 0, cfg.pwflags)]
        L += x_dma(cfg, kc)
        q.extend([kc] * 8)
        return L
    def two(isK):
        L = []
        s = sKs if isK else sVs
        for slot in range(2):
            L += [S(f"s_add_u32 s{s}, s{sCol}, {slot * 16384}")] + kv_xform(s)
            for jj in range(4): L += kv_dma(cfg, isK, slot, jj)
        q.extend(["kv"] * 8)
        return L
    first = []
    for kc in range(cfg.plead): first += wq(kc)
    seq.append(S(f"s_mov_b32 s{sKVm0}, s{sM0}"))
    nxt = cfg.plead
    for kc in range(9):
        seq += [qwait(q, {kc}), barrier()]
        while nxt <= min(kc + 3, 7) and nxt <= kc + cfg.plead:
            seq += wq(nxt); nxt += 1
        if kc == 5:
            seq += [S(f"s_add_u32 s{sWc}, s{sWc}, 256"), S(f"s_and_b32 s{sWc}, s{sWc}, 0x3803ff"), S(f"s_add_u32 s{sWm0}, s{sM0}, {WB0}")]
            for c in range(4):
                for ks in range(2): seq += wq_dma(cfg, c, ks)
            q += [8] * 8
        if kc == 6: seq += two(True)
        if kc == 8: seq += two(False)
    return first, seq

def x_dma(cfg, kc):
    L = [m0set(f"s_add_u32 m0, s{sX16}, {PRO_REG[kc % 5] + 16384}"),
         S(f"s_add_u32 s{sT}, s{sKR}, {kc * 128}"), S(f"s_and_b32 s{sT}, s{sT}, 1023")]
    for p in range(4):
        if p: L += [m0set("s_add_u32 m0, m0, 1024"), S(f"s_add_u32 s{sT}, s{sT}, 8192")]
        L.append(dma(vXo, SX, f"s{sT}", 0, cfg.xflags))
    return L

def p_prologue(cfg):
    def base_of(addr):
        return (0, 0) if addr < 65536 else ((1, WB0) if addr < YB else (2, YB))
    def rd(kc, f):
        if kc == 8: return ring_read(0, f)
        hf, mt, ks = f >> 3, (f >> 1) & 3, f & 1
        addr = PRO_REG[kc % 5] + hf * 8192 + ks * 4096
        k, base = base_of(addr)
        a = (aW2, aW, aW3)[k]
        return [ds_tr(FR(f), a + mt, addr - base), ds_tr(FR(f) + 2, a + mt, addr - base + 512)]
    def xrd(kc):
        addr = PRO_REG[kc % 5] + 16384
        k, base = base_of(addr)
        return [ds_r128(Bf(2 * kc + ks, qs), aX + k, addr - base + qs * 2048 + ks * 64) for ks in range(2) for qs in range(2)]
    pre = [barrier()] + xrd(0)
    for f in range(8): pre += rd(0, f)
    main, fill = [], []
    for kc in range(8):
        b0 = 32 * kc
        for g in range(8):
            hf, mt = g >> 2, g & 3
            for (ks, qs) in ((0, 0), (1, 0), (1, 1), (0, 1)):
                firstk = (ks == 0 and qs == 0) or (ks == 1 and qs == 1)
                a = (Ac if hf else Ac2)(mt, qs)
                dep = [FR(2 * g + 1)] if (ks == 0 and qs == 0) else ()
                main.append(mfma(a, FR(2 * g + ks), Bf(2 * kc + ks, qs), None if (kc == 0 and firstk) else a, dep))
            if g == 4:
                fill.append((b0 + 17, barrier()))
                if kc < 7: fill += [(b0 + 17 + 2 * k, x) for k, x in enumerate(xrd(kc + 1))]
            k2, f2 = (kc, 2 * g + 8) if g < 4 else (kc + 1, 2 * g - 8)
            r = rd(k2, f2 + 1) + rd(k2, f2)
            fill += [(b0 + 4 * g + 2 + k, x) for k, x in enumerate(r)]
        if kc == 7:
            pk = []
            for mt in range(4):
                for qs in range(2):
                    a = Ac2(mt, qs); d = HLD + (mt * 2 + qs) * 2
                    for i in range(4): pk.append(valu("v_mul_f32", a + i, f"s{sSCL}", a + i))
                    pk += [cvtpk(d, a, a + 1), cvtpk(d + 1, a + 2, a + 3)]
            fill += [(b0 + p, x) for p, x in spread(pk + q_store(HLD, 0), 18, 31)]
    seq = pre + interleave(main, fill)
    pk, st = q_pack(TMP), q_store(TMP, 1)
    for k in range(8): seq += pk[6 * k:6 * k + 6] + [st[k]]
    seq += [lgkm0(), barrier()]
    return seq

def ring_read(kc, f):
    mt, ks = f >> 1, f & 1
    o = (kc & 3) * 8192 + ks * 4096
    return [ds_tr(FR(f), aW + mt, o), ds_tr(FR(f) + 2, aW + mt, o + 512)]

def chunk_mfmas(kc):
    L = []
    for mt in range(4):
        for (ks, qs) in ((0, 0), (1, 0), (1, 1), (0, 1)):
            firstk = (ks == 0 and qs == 0) or (ks == 1 and qs == 1)
            c = None if (kc == 0 and firstk) else Ac(mt, qs)
            dep = [FR(2 * mt + 1)] if (ks == 0 and qs == 0) else ()
            L.append(mfma(Ac(mt, qs), FR(2 * mt + ks), Bf(2 * kc + ks, qs), c, dep))
    return L

def p_phase(cfg, ph):
    PS = cfg.psplit
    isK = (ph & 1) == 1
    slot = [1, 1, 0, 0, 1, 1, 0, 0][ph]
    m1, m2 = chunk_mfmas((ph - 1) & 7)[PS:], chunk_mfmas(ph)[:PS]
    fill = []
    pos = -1
    for mt in range(4):
        for f, last in ((2 * mt + 1, 4 * mt + 2), (2 * mt, 4 * mt + 3)):
            for x in ring_read(ph, f):
                pos = max(pos, last - PS)
                fill.append((min(pos, len(m1) - 1), x))
                if cfg.pspread: pos += 1
    kv = kv_issue(cfg, isK, slot)
    head, rest = kv[:-6], kv[-6:]
    d = []
    if ph == 5: d += wc_adv()
    for ks in range(2): d += wq_dma(cfg, (ph + 3) & 7, ks)
    fill2 = []
    if cfg.kvpos:
        P = [int(x) for x in cfg.kvpos.split(",")]
        nw = len(d) - 4
        groups = [d[:nw], d[nw:], kv[:-6], kv[-6:-4], kv[-4:-2], kv[-2:]]
        extra = []
        for p, gl in zip(P, groups):
            if p < len(m1) or ph == 0: extra += [(min(p, len(m1) - 1), x) for x in gl]
            else: fill2 += [(p - len(m1), x) for x in gl]
        fill = extra + fill
    elif cfg.kvlate:
        fill = spread(d, -1, 2) + spread(kv, cfg.kvlate, len(m1) - 1) + fill
    else:
        fill = [(-1, x) for x in head] + [(k // 2, x) for k, x in enumerate(rest)] + spread(d, 3, 8) + fill
    if cfg.pdup:
        for k in range(cfg.pdup):
            fill2.append((1 + (k & 3), mfma(TMP + 4 * (k & 3), FR(k & 1), Bf((2 * ph + 5 + k) & 15, k & 1), TMP + 4 * (k & 3))))
            fill.append((k % len(m1), ds_tr(248 + 2 * (k & 1), aW + (k & 3), (ph & 3) * 8192 + 512 * (k & 7))))
    a = interleave(m1, fill)
    mk = (cfg.slowmask2 if (ph & 1) and cfg.slowmask2 >= 0 else cfg.slowmask) & ~(4 if ph <= cfg.startfast else 0)
    if cfg.masks: mk = int(cfg.masks.split(",")[ph], 16)
    if cfg.slowmask >= 0 and (not (cfg.slowph >> ph) & 1 or mk == 0):
        wt = [vmcnt(cfg.pvmfast)]
    elif cfg.slowmask >= 0:
        wt = [S(f"s_bitcmp1_b32 {mk:#x}, s{sCNT}"), raw(f"s_cbranch_scc0 L_fast{ph}"), vmcnt(cfg.pvm), label(f"L_fast{ph}"), vmcnt(cfg.pvmfast)]
    else:
        wt = [vmcnt(cfg.pvm)]
    b = interleave(m2, fill2) + wt + [lgkm0(), barrier()]
    if cfg.nopm: a, b = [[i for i in s if i.k not in ("mfma", "dsr")] for s in (a, b)]
    if cfg.nodma: a = [i for i in a if i.k not in ("dma",)]
    return a, b

def wo_chunk(cfg, k, plan, voff=None):
    sl, c = plan["blocks"][k]; slot = plan["slot"][k]
    L = []
    for ks in range(4):
        lds = (XB + slot * 16384 if slot < 4 else (slot - 4) * 16384) + ks * 4096
        L += [m0set(f"s_add_u32 m0, s{sM0}, {lds}"),
              S(f"s_add_u32 s{sT}, s{sCol}, {c * 131072 + ks * 32768 + sl * 128}"), S(f"s_and_b32 s{sT}, s{sT}, 0x7ffff"),
              dma(voff or vWo, SWO, f"s{sT}", 0, cfg.woflags)]
    return vtag(L, ("wo", k))

def b_load(pos, addr):
    return [ds_r128(Bf(4 * pos + (fr >> 1), fr & 1), addr, fr * 1024) for fr in range(8)]

def w_read(slot, f):
    mt, ks = f >> 2, f & 3
    o = (slot & 3) * 16384 + ks * 4096
    a = (aW if slot < 4 else (aW2 if slot < 8 else aW3)) + mt
    return [ds_tr(FR(f), a, o), ds_tr(FR(f) + 2, a, o + 512)]

def tail_plan(cfg):
    ne = cfg.ne
    names = {"A": "A", "H": "H", "T": "T", "L": "L0", "M": "L1", "F": "F"}
    order = cfg.order or ("AHTLM"[:ne] + "F" * (8 - ne))
    fo = [names[ch] for ch in order]
    early = [d for d in ("L0", "L1", "H", "T", "A") if d in fo]
    blocks = [(fo.index(d), c) for d in early for c in range(3)]
    n0 = len(blocks)
    for s, d in enumerate(fo):
        blocks += [(s, c) for c in (range(4) if d == "F" else (3,))]
    slot = {k: k & 3 for k in range(n0 + 3)}
    slot[n0 + 3] = 4; slot[n0 + 4] = 5
    a_issue = {}
    free = []
    nxt = n0 + 5
    pre = {17: [n0 + 3], 18: [n0 + 4]}
    if "L0" not in fo:
        slot[n0 + 5] = 8; slot[n0 + 6] = 9; nxt = n0 + 7
        pre = {15: [n0 + 3], 17: [n0 + 4], 18: [n0 + 5], 19: [n0 + 6]}
    busy = {k: (blocks[k][1] == 3) or (k > n0 and blocks[k - 1][1] == 3) for k in range(n0, 32)}
    for k in range(n0, cfg.lastbar):
        free.append(slot[k - 1])
        if k == n0 + 1: free += [6, 7]
        L = []
        while free and nxt < 32 and len(L) < cfg.aper and (not cfg.avoid or not busy[k] or nxt <= k + cfg.minlead or k >= cfg.lastbar - 2):
            slot[nxt] = free.pop(0); L.append(nxt); nxt += 1
        a_issue[k] = L
    assert nxt == 32
    return dict(fo=fo, early=early, blocks=blocks, n0=n0, slot=slot, a_issue=a_issue, pre=pre)

def flag_pub(val):
    return [valu("v_mov_b32", vFlag, str(val)), vwait(lambda t: t[0] == "st" and t[1] < val)] + \
           vtag([I(f"buffer_store_dword v{vFlag}, v{vLane}, s[{SFLG}:{SFLG+3}], 0 offen sc1", "vstore", (), {vFlag, vLane})], ("fl", val))

def p_tail(cfg):
    plan = tail_plan(cfg)
    blocks, n0, slot, fo = plan["blocks"], plan["n0"], plan["slot"], plan["fo"]
    p0 = 21 - n0 - cfg.half
    assert p0 >= 5
    sp, ep = {}, {}
    p = p0
    for k in range(n0):
        sp[k] = p; p += 2 if k < cfg.half else 1; ep[k] = p - 1
    for k in range(n0, n0 + 7): sp[k] = ep[k] = 21 + (k - n0)
    ep[-1] = p0 - 1
    issue = {}
    for k in range(n0 + 3): issue.setdefault(2 + k if k < 4 else sp[k - 3], []).append(k)
    for p, L in plan["pre"].items(): issue.setdefault(p, []).extend(L)
    assert sp[2] >= 7
    def setbase(reg, base):
        return [S(f"s_lshl_b32 s{sT}, s{sQB}, 13"), S(f"s_add_u32 s{sT}, s{sT}, {base}"), valu("v_add_u32", reg, f"s{sT}", vLane)]
    def period_ops(p):
        n, kind = 23 + p // 2, "EO"[p & 1]
        mem, other = [], []
        ks = issue.get(p, [])
        nfirst = 0 if cfg.kvfirst else 1
        for k in ks[:nfirst]: mem += wo_chunk(cfg, k, plan)
        if kind == "E" and n <= 31: mem += vtag(kv_issue(cfg, False, n & 1), ("kv", p))
        if kind == "O" and n + 2 <= 31: mem += vtag(kv_issue(cfg, True, n & 1), ("kv", p))
        for k in ks[nfirst:]: mem += wo_chunk(cfg, k, plan)
        if p == 20 and cfg.fused: mem += hs_load()
        if p == 0:
            other += chunk_mfmas(7)[cfg.psplit:] + [valu("v_add_u32", aQw, f"{WB0 - YB}", aQw)] + q_pack(TMP) + q_store(HLD, 0) + q_store(TMP, 1)
        if p == 1:
            other += setbase(aQw, XB) + b_load(0, aQw) + setbase(aQw, YB) + b_load(1, aQw) + setbase(aQw, WB0) + setbase(vXo, VB0)
        if p == 6: other += b_load(2, aQw)
        close = [vwait(lambda t, p=p: (t[0] == "kv" and t[1] <= p - (2 if p >= cfg.tfast else cfg.tlead)) or (t[0] == "wo" and ep[t[1] - 1] - 1 <= p))]
        if p < p0 - 1: close.append(lgkm0())
        close.append(barrier())
        return mem, other, close
    seq = []
    for p in range(p0):
        mem, other, close = period_ops(p)
        if p == p0 - 1:
            for f in range(8): other += w_read(slot[0], f)
        seq += mem + other + close
    main, fill = [], []
    src_of = {"H": HLD, "T": TMP, "L0": HLD, "L1": TMP}
    published = 0
    done_at = {}
    for k, (sl, c) in enumerate(blocks):
        b0 = 32 * k
        fresh = (c == 0)
        for mt in range(4):
            for qs in range(2):
                for ks in range(4):
                    cc = None if (fresh and ks == 0) else Ac(mt, qs)
                    dep = [FR(4 * mt + ks + 1)] if (qs == 0 and ks in (0, 2)) else ()
                    main.append(mfma(Ac(mt, qs), FR(4 * mt + ks), Bf(4 * c + ks, qs), cc, dep))
        if cfg.bstamp:
            fill.append((b0, raw("s_memtime s[90:91]")))
            fill.append((b0 + 24, raw(f"v_writelane_b32 v255, s90, {k}")))
        if k < n0:
            span = 32 // (ep[k] - sp[k] + 1)
            closes = []
            for h, p in enumerate(range(sp[k], ep[k] + 1)):
                mem, other, close = period_ops(p)
                o = b0 + h * span
                if h: fill += [(o - 1, x) for x in closes.pop()]
                fill += [(o + q, x) for q, x in spread(mem, cfg.tlate, min(17, span - 4))] + [(o + q, x) for q, x in spread(other, span // 2 - 2, span - 4)]
                closes.append(close)
            close = closes.pop()
        elif n0 < k <= cfg.lastbar:
            if k == n0 + 1: fill.append((b0 + 3, vwait(lambda t: t[0] == "wo")))
            fill.append((b0 + 3, barrier()))
        for mt in range(4):
            if mt >= 2 and k + 1 >= len(blocks): continue
            sl2, mt2 = (slot[k], mt + 2) if mt < 2 else (slot[k + 1], mt - 2)
            rd = []
            for ks in range(4): rd += w_read(sl2, 4 * mt2 + ks)
            for n, x in enumerate(rd): fill.append((b0 + 8 * mt + 4 + n, x))
        if k < n0:
            fill += [(b0 + 31, x) for x in close]
            if k == n0 - 1:
                fill += [(b0 + 31, x) for x in ([] if cfg.bstamp else stamp(cfg, 2)) + ([raw(f"s_setprio {cfg.prioF}")] if cfg.prioF else []) + b_load(3, vXo)]
        for pair in range(2):
            for qs in range(2):
                s0 = b0 + 14 + 8 * qs + 16 * pair
                t, u = Ac(2 * pair, qs), Ac(2 * pair + 1, qs)
                if k < n0 and c == 2 and fo[sl] != "A":
                    d = fo[sl]
                    z = src_of[d] + (pair * 2 + qs) * 4
                    L = [cvtpk(z, t, t + 1), cvtpk(z + 1, t + 2, t + 3), cvtpk(z + 2, u, u + 1), cvtpk(z + 3, u + 2, u + 3)]
                    fill += [(s0 + n, x) for n, x in enumerate(L)]
                    if d[0] == "L": fill.append((s0 + 4, ds_w128(aQw, z, int(d[1]) * 4096 + (pair * 2 + qs) * 1024)))
                if k >= n0 and c == 3:
                    nxt = fo[sl + 1] if sl + 1 < len(fo) and fo[sl + 1] != "F" else None
                    if pair == 0 and qs == 0: fill.append((s0 - 1, S(f"s_add_u32 s{sPo1}, s{sPo}, {sl * 131072}")))
                    L = [cvtpk(t, t, t + 1), cvtpk(t + 1, t + 2, t + 3), cvtpk(t + 2, u, u + 1), cvtpk(t + 3, u + 2, u + 3)]
                    st = vtag([bstore(t, vLane, SPART, f"s{sPo1}", (qs * 2 + pair) * 1024, cfg.pflags)], ("st", sl))
                    if nxt:
                        s = src_of[nxt] + (pair * 2 + qs) * 4
                        U = []
                        for (dst, o) in ((u, 2), (t, 0)):
                            for h in range(2):
                                U += [valu("v_lshlrev_b32", dst + 2 * h, "16", s + o + h), valu("v_and_b32", dst + 2 * h + 1, "0xffff0000", s + o + h)]
                        fill += [(s0 + n // 2, x) for n, x in enumerate(L)] + [(s0 + 2, st[0])]
                        fill += [(s0 + p, x) for p, x in zip((3, 3, 4, 5, 5, 6, 7, 7), U)]
                    else:
                        fill += [(s0 + n, x) for n, x in enumerate(L)] + [(s0 + 4, st[0])]
                    done_at[sl] = k
        if k >= n0 and c == 3 and fo[sl] in ("H", "T"):
            d = {"H": "L0", "T": "L1"}[fo[sl]]
            if d in fo:
                assert fo.index(d) >= sl + 2
                fill += [(b0 + 17 + n, ds_r128(src_of[d] + 4 * n, aQw, int(d[1]) * 4096 + n * 1024)) for n in range(4)]
        if cfg.fused and k >= n0:
            ready = sum(1 for s, kk in done_at.items() if kk + cfg.flaglag <= k)
            if cfg.pubs:
                pm = dict(tuple(int(v) for v in e.split(":")) for e in cfg.pubs.split(","))
                ready = pm.get(k, 0)
                assert ready <= sum(1 for s, kk in done_at.items() if kk + 2 <= k)
            if ready > published and (k >= cfg.pubfrom or cfg.pubs):
                fill += [(b0 + 16, x) for x in flag_pub(ready)]
                published = ready
    seq += interleave(main, fill)
    if cfg.bstamp:
        seq += [raw("s_memtime s[90:91]"), lgkm0(), raw("v_writelane_b32 v255, s90, 32"), raw("v_lshlrev_b32 v5, 2, v0"),
                raw("s_lshl_b32 s90, s2, 8"), raw("s_add_u32 s90, s90, 0x10000"), raw(f"s_cmp_lg_u32 s{sQB}, {cfg.stw}"), raw(f"s_cselect_b32 s90, {OOB}, s90"),
                raw("buffer_store_dword v255, v5, s[64:67], s90 offen")]
    seq += stamp(cfg, 4)
    if cfg.fused:
        if published < 7 and (cfg.dpoll or not cfg.pubs): seq += flag_pub(7)
        if not cfg.dpoll: seq += flag_pub(8)
    return resolve_vwaits(seq, [("kv", -2)] * 6 + [("kv", -1)] * 6)

def a_tail(cfg):
    plan = tail_plan(cfg)
    n0 = plan["n0"]
    seq = hs_load() if cfg.fused else []
    for k in range(n0, cfg.lastbar + 1):
        last = k == cfg.lastbar
        if k > n0: seq += [vwait(lambda t, k=k, last=last: last or t[1] <= k + 1), barrier()]
        for kk in plan["a_issue"].get(k, []): seq += wo_chunk(cfg, kk, plan, vWoA)
    return resolve_vwaits(seq)

def rstamp(cfg, idx):
    if not cfg.stamps: return []
    return ["    " + x for x in ["s_memrealtime s[60:61]", "s_waitcnt lgkmcnt(0)", "v_mov_b32 v100, s60", "v_mov_b32 v101, s61", "v_mov_b32 v102, 0",
            "s_mov_b64 s[62:63], exec", "s_mov_b64 exec, 1", f"buffer_store_dwordx2 v[100:101], v102, s[64:67], s68 offen offset:{idx*8}", "s_mov_b64 exec, s[62:63]"]]

vHS = 241
def hs_load():
    return vtag([I(f"buffer_load_dword v{vHS}, v{vLane}, s[{SDBG}:{SDBG+3}], 0 offen sc1", "vload", {vHS}, {vLane})], ("hs", 99))

def a_reduce(cfg, ps):
    T = []
    A = lambda *a: T.extend("    " + x for x in a)
    A("v_lshlrev_b32 v1, 7, v0", "v_and_b32 v4, 15, v0", "v_lshlrev_b32 v4, 11, v4",
      "v_bfe_u32 v5, v0, 4, 1", "v_lshl_add_u32 v4, v5, 5, v4", "v_lshrrev_b32 v5, 5, v0", "v_lshl_add_u32 v4, v5, 4, v4")
    if ps == 0: T += rstamp(cfg, 4)
    A("s_mov_b32 s85, 0")
    T.append(f"L_hs{ps}:")
    A(f"v_cmp_le_u32 vcc, 8, v{vHS}", f"s_cbranch_vccnz L_hs_ok{ps}",
      f"buffer_load_dword v{vHS}, v{vLane}, s[{SDBG}:{SDBG+3}], 0 offen sc1", "s_add_u32 s85, s85, 1", "s_waitcnt vmcnt(0)",
      "s_cmp_lt_u32 s85, 0x80000", f"s_cbranch_scc1 L_hs{ps}")
    T.append(f"L_hs_ok{ps}:")
    A(f"s_add_u32 s87, s{sQB}, {4 * ps}")
    for N in ((cfg.rn1, cfg.rn2)[ps],):
        T += rstamp(cfg, 5)
        dp = cfg.dpoll and ps == 1
        FW = SX if dp else SFLG
        def ld(i):
            b = 16 + i * 4
            if i and i % 2 == 0: A("s_add_u32 s88, s88, 16384")
            A(f"buffer_load_dwordx4 v[{b}:{b+3}], v{vLane}, s[{SPART}:{SPART+3}], s88 offen offset:{(i & 1)*1024} sc1")
        base = ["s_lshl_b32 s88, s87, 17", "s_lshl_b32 s89, s6, 11", "s_add_u32 s88, s88, s89"]
        pub8 = [f"s_cmp_lg_u32 s85, 1", "s_cbranch_scc1 L_np8_{0}", f"v_mov_b32 v{vFlag}, 8",
                f"buffer_store_dword v{vFlag}, v{vLane}, s[{SFLG}:{SFLG+3}], 0 offen sc1"]
        A("s_mov_b32 s85, 0")
        if dp:
            A(f"s_cmp_lg_u32 s{sQB}, 3", f"s_cbranch_scc1 L_poll{ps}")
            T.append("L_dp:")
            A(*base, f"buffer_load_dword v6, v1, s[{FW}:{FW+3}], 0 offen sc1")
            for i in range(16): ld(i)
            A("s_add_u32 s85, s85, 1", "s_waitcnt vmcnt(0)")
            A("v_max3_u32 v7, v16, v17, v18")
            for r in range(19, 79, 2): A(f"v_max3_u32 v7, v7, v{r}, v{r+1}")
            A("v_max_u32 v7, v7, v79", "v_cmp_eq_u32 vcc, -1, v7", "s_cbranch_vccz L_sum1")
            A(*[x.format("a") for x in pub8]); T.append("L_np8_a:")
            A("v_cmp_lt_u32 vcc, s87, v6", "s_cmp_eq_u32 vcc_lo, 0xff", f"s_cbranch_scc1 L_got{ps}",
              "s_cmp_lt_u32 s85, 0x20000", "s_cbranch_scc1 L_dp", "s_branch L_sum1")
        T.append(f"L_poll{ps}:")
        A(f"buffer_load_dword v6, v1, s[{FW}:{FW+3}], 0 offen sc1", "s_add_u32 s85, s85, 1", "s_waitcnt vmcnt(0)")
        if dp:
            A(*[x.format("b") for x in pub8]); T.append("L_np8_b:")
        A("v_cmp_lt_u32 vcc, s87, v6", "s_cmp_eq_u32 vcc_lo, 0xff", f"s_cbranch_scc1 L_got{ps}", "s_cmp_lt_u32 s85, 0x80000", f"s_cbranch_scc1 L_poll{ps}")
        T.append(f"L_got{ps}:")
        T += rstamp(cfg, 6)
        A(*base)
        for i in range(min(N, 16)): ld(i)
        if dp:
            assert N >= 16
            T.append("L_sum1:")
        A("s_lshl_b32 s89, s87, 7")
        acc = 80
        for i in range(16):
            A(f"s_waitcnt vmcnt({min(N, 16 - i) - 1})")
            if i + N < 16: ld(i + N)
            b = 16 + i * 4; pair = i & 1
            for e in range(4):
                lo, hi = acc + pair * 8 + 2 * e, acc + pair * 8 + 2 * e + 1
                if i < 2:
                    A(f"v_lshlrev_b32 v{lo}, 16, v{b+e}", f"v_and_b32 v{hi}, 0xffff0000, v{b+e}")
                else:
                    A(f"v_lshlrev_b32 v6, 16, v{b+e}", f"v_and_b32 v7, 0xffff0000, v{b+e}", f"v_add_f32 v{lo}, v{lo}, v6", f"v_add_f32 v{hi}, v{hi}, v7")
        for pair in range(2):
            a = acc + pair * 8
            for e in range(4): A(f"v_cvt_pk_bf16_f32 v{8+pair*4+e}, v{a+2*e}, v{a+2*e+1}")
        T += rstamp(cfg, 7)
        A("s_nop 1")
        for pair in range(2):
            d = 8 + pair * 4
            A(f"v_permlane16_swap_b32 v{d}, v{d+2}", f"v_permlane16_swap_b32 v{d+1}, v{d+3}")
            A(f"buffer_store_dwordx4 v[{d}:{d+3}], v4, s[{SOUT}:{SOUT+3}], s89 offen offset:{pair*64} {cfg.outflags}")
        if dp: A(*pub8[2:])
    return T

def shared_reduce(cfg):
    T = []
    A = lambda *a: T.extend("    " + x for x in a)
    T.append("L_red:")
    A("v_lshlrev_b32 v1, 7, v0", "v_and_b32 v4, 15, v0", "v_lshlrev_b32 v4, 11, v4",
      "v_bfe_u32 v5, v0, 4, 1", "v_lshl_add_u32 v4, v5, 5, v4", "v_lshrrev_b32 v5, 5, v0", "v_lshl_add_u32 v4, v5, 4, v4")
    A("s_mov_b32 s85, 0")
    T.append("L_hs:")
    A(f"v_cmp_le_u32 vcc, 8, v{vHS}", "s_cbranch_vccnz L_hs_ok",
      f"buffer_load_dword v{vHS}, v{vLane}, s[{SDBG}:{SDBG+3}], 0 offen sc1", "s_add_u32 s85, s85, 1", "s_waitcnt vmcnt(0)",
      "s_cmp_lt_u32 s85, 0x80000", "s_cbranch_scc1 L_hs")
    T.append("L_hs_ok:")
    A(f"s_add_u32 s87, s{sQB}, s84", "s_mov_b32 s85, 0")
    T += rstamp(cfg, 5)
    T.append("L_poll:")
    A(f"buffer_load_dword v6, v1, s[{SFLG}:{SFLG+3}], 0 offen sc1", "s_add_u32 s85, s85, 1", "s_waitcnt vmcnt(0)",
      "v_cmp_lt_u32 vcc, s87, v6", "s_cmp_eq_u32 vcc_lo, 0xff", "s_cbranch_scc1 L_got", "s_cmp_lt_u32 s85, 0x80000", "s_cbranch_scc1 L_poll")
    T.append("L_got:")
    T += rstamp(cfg, 6)
    A("s_lshl_b32 s88, s87, 17", "s_lshl_b32 s89, s6, 11", "s_add_u32 s88, s88, s89")
    for i in range(16):
        b = 16 + i * 4
        if i and i % 2 == 0: A("s_add_u32 s88, s88, 16384")
        if i and i % cfg.rbatch == 0:
            A("s_cmp_lg_u32 s84, 0", f"s_cbranch_scc1 L_rb{i}", f"s_waitcnt vmcnt({cfg.rkeep})")
            T.append(f"L_rb{i}:")
        A(f"buffer_load_dwordx4 v[{b}:{b+3}], v{vLane}, s[{SPART}:{SPART+3}], s88 offen offset:{(i & 1)*1024} sc1")
    A("s_lshl_b32 s89, s87, 7")
    acc = 80
    for i in range(16):
        A(f"s_waitcnt vmcnt({15 - i})")
        b = 16 + i * 4; pair = i & 1
        for e in range(4):
            lo, hi = acc + pair * 8 + 2 * e, acc + pair * 8 + 2 * e + 1
            if i < 2:
                A(f"v_lshlrev_b32 v{lo}, 16, v{b+e}", f"v_and_b32 v{hi}, 0xffff0000, v{b+e}")
            else:
                A(f"v_lshlrev_b32 v6, 16, v{b+e}", f"v_and_b32 v7, 0xffff0000, v{b+e}", f"v_add_f32 v{lo}, v{lo}, v6", f"v_add_f32 v{hi}, v{hi}, v7")
    for pair in range(2):
        a = acc + pair * 8
        for e in range(4): A(f"v_cvt_pk_bf16_f32 v{8+pair*4+e}, v{a+2*e}, v{a+2*e+1}")
    T += rstamp(cfg, 7)
    A("s_nop 1")
    for pair in range(2):
        d = 8 + pair * 4
        A(f"v_permlane16_swap_b32 v{d}, v{d+2}", f"v_permlane16_swap_b32 v{d+1}, v{d+3}")
        A(f"buffer_store_dwordx4 v[{d}:{d+3}], v4, s[{SOUT}:{SOUT+3}], s89 offen offset:{pair*64} {cfg.outflags}")
    return T

def fin(seq): return fix_hazards(insert_lgkm(order_gaps(seq)))

def header():
    ref = open("cdna_kernels/" + NAME + ".s.ref").read().splitlines()
    return [l for l in ref if l.startswith(";") and "@launch" not in l and "Override" not in l and "grid=ceil" not in l]

def srd(dst, lo, hi, nbytes):
    return [f"s_mov_b32 s{dst}, s{lo}", f"s_mov_b32 s{dst+1}, s{hi}", f"s_mov_b32 s{dst+2}, {nbytes}", f"s_mov_b32 s{dst+3}, 0x20000"]
def srd_off(dst, lo, hi, off, nbytes):
    return [f"s_add_u32 s{dst}, s{lo}, {off}", f"s_addc_u32 s{dst+1}, s{hi}, 0", f"s_mov_b32 s{dst+2}, {nbytes}", f"s_mov_b32 s{dst+3}, 0x20000"]

def main_kernel(cfg):
    T = []
    A = lambda *a: T.extend("    " + x for x in a)
    ST = lambda i: T.append(emit(stamp(cfg, i))) if cfg.stamps else None
    T += [".globl attn_main_kernel", ".p2align 8", ".type attn_main_kernel,@function", "attn_main_kernel:"]
    A("s_cmp_ge_u32 s2, 256", "s_cbranch_scc1 L_end")
    cal = cfg.cal_pro or cfg.cal_main or cfg.cal_end or cfg.cal_mid or cfg.probe >= 0
    def PR(k):
        if cfg.probe == k: A("s_memrealtime s[94:95]", "s_waitcnt lgkmcnt(0)")
    if cal: A("s_memrealtime s[100:101]")
    def CAL(us, lab):
        if not us: return
        T.append(f"{lab}:")
        A("s_memrealtime s[60:61]", "s_waitcnt lgkmcnt(0)", "s_sub_u32 s60, s60, s100", f"s_cmp_lt_u32 s60, {us*100}", f"s_cbranch_scc1 {lab}")
    A("s_load_dwordx8 s[72:79], s[0:1], 0", "s_load_dwordx8 s[80:87], s[0:1], 32", "s_load_dwordx4 s[88:91], s[0:1], 64",
      "s_load_dwordx2 s[92:93], s[0:1], 96", "s_load_dwordx4 s[96:99], s[0:1], 80")
    A("v_lshrrev_b32 v1, 6, v0", "v_and_b32 v0, 63, v0", f"v_readfirstlane_b32 s{sW}, v1")
    A(f"v_lshlrev_b32 v{vLane}, 4, v0")
    early_pos = len(T)
    if cfg.mapping == 0:
        A("s_and_b32 s3, s2, 7", "s_lshr_b32 s4, s2, 3", "s_lshl_b32 s5, s3, 2", "s_lshr_b32 s6, s4, 3", "s_add_u32 s5, s5, s6",
          "s_and_b32 s6, s4, 7", f"s_and_b32 s{sROT}, s3, 3")
    elif cfg.mapping == 1:
        A("s_and_b32 s6, s2, 7", "s_lshr_b32 s5, s2, 3", f"s_and_b32 s{sROT}, s5, 3")
    elif cfg.mapping == 2:
        A("s_and_b32 s3, s2, 7", "s_lshr_b32 s4, s2, 3",
          "s_and_b32 s5, s4, 15", "s_and_b32 s6, s3, 4", "s_lshl_b32 s6, s6, 2", "s_add_u32 s5, s5, s6",
          "s_and_b32 s6, s3, 3", "s_lshl_b32 s6, s6, 1", "s_lshr_b32 s4, s4, 4", "s_add_u32 s6, s6, s4",
          f"s_and_b32 s{sROT}, s5, 3")
    elif cfg.mapping == 3:
        A("s_and_b32 s3, s2, 7", "s_lshr_b32 s4, s2, 3",
          "s_and_b32 s5, s4, 7", "s_and_b32 s6, s3, 6", "s_lshl_b32 s6, s6, 2", "s_add_u32 s5, s5, s6",
          "s_and_b32 s6, s3, 1", "s_lshl_b32 s6, s6, 2", "s_lshr_b32 s4, s4, 3", "s_add_u32 s6, s6, s4",
          f"s_and_b32 s{sROT}, s5, 3")
    if not cfg.rot: A(f"s_mov_b32 s{sROT}, 0")
    if cfg.rot in (6, 7, 8): A(f"s_cmp_eq_u32 s{sROT}, 1", f"s_cselect_b32 s{sROT}, {dict([(6, 3), (7, 2), (8, 0)])[cfg.rot]}, s{sROT}")
    if cfg.rot == 5: A(f"s_and_b32 s{sROT}, s5, 1", f"s_lshl_b32 s{sROT}, s{sROT}, 1")
    if cfg.rot == 2: A(f"s_bfe_u32 s{sROT}, s5, 0x20002")
    if cfg.rot == 3: A(f"s_and_b32 s{sROT}, s5, 2")
    if cfg.rot == 4: A(f"s_or_b32 s{sROT}, s{sROT}, 2")
    A("s_and_b32 s7, s5, 15")
    tx = {0: ["s_mov_b32 s4, 0"], 1: ["s_mov_b32 s4, s6"], 2: ["s_lshr_b32 s4, s5, 2"], 3: ["s_lshr_b32 s4, s5, 2", "s_add_u32 s4, s4, s6"],
          4: ["s_xor_b32 s4, s5, s6"], 5: ["s_mul_i32 s4, s2, 0x9e3779b1", "s_lshr_b32 s4, s4, 29"], 6: ["s_lshr_b32 s4, s5, 2", "s_xor_b32 s4, s4, s6"]}[cfg.tx]
    A(*tx, "s_and_b32 s4, s4, 7", "s_lshl_b32 s4, s4, 14")
    def srd_early():
        A("s_waitcnt lgkmcnt(0)")
        A("s_cmp_ge_u32 s5, 16")
        for k in (0, 3):
            A(f"s_cselect_b32 s{72+2*k}, s{82+2*k}, s{72+2*k}", f"s_cselect_b32 s{73+2*k}, s{83+2*k}, s{73+2*k}")
        A("s_lshl_b32 s56, s6, 10")
        A(*srd_off(SWQ, 78, 79, "s56", 0)[:2], f"s_sub_u32 s{SWQ+2}, 0x400000, s56", f"s_mov_b32 s{SWQ+3}, 0x20000")
        A("s_lshl_b32 s56, s7, 17"); A(*srd_off(SX, 72, 73, "s56", 131072))
        if cfg.nowq: A(f"s_mov_b32 s{SWQ+2}, 0")
        if cfg.stamps:
            A(*srd_off(64, 92, 93, WS_BYTES - (1 << 20), 1 << 20))
            A(f"s_lshr_b32 s68, s{sW}, 2", "s_lshl_b32 s68, s68, 7", "s_lshl_b32 s69, s2, 8", "s_add_u32 s68, s68, s69",
              f"s_and_b32 s69, s{sW}, 3", f"s_cmp_lg_u32 s69, {cfg.stw}", f"s_cselect_b32 s68, {OOB}, s68")
    def srd_late():
        A("s_cmp_ge_u32 s5, 16")
        for k in (1, 2, 4):
            A(f"s_cselect_b32 s{72+2*k}, s{82+2*k}, s{72+2*k}", f"s_cselect_b32 s{73+2*k}, s{83+2*k}, s{73+2*k}")
        A("s_lshl_b32 s56, s7, 22", "s_lshl_b32 s57, s6, 19", "s_add_u32 s56, s56, s57")
        A(*srd_off(SK, 74, 75, "s56", 524288)); A(*srd_off(SV, 76, 77, "s56", 524288))
        A(*srd_off(SWO, 80, 81, "s57", 524288))
        A("s_lshl_b32 s56, s5, 21", "s_add_u32 s56, s56, 0x100000"); A(*srd_off(SPART, 92, 93, "s56", 1 << 20))
        if cfg.fused:
            A("s_lshl_b32 s56, s5, 3"); A(*srd_off(SDBG, 98, 99, "s56", 4))
            A("s_lshl_b32 s56, s7, 18", "s_lshl_b32 s57, s6, 15", "s_add_u32 s56, s56, s57", "s_lshr_b32 s57, s5, 4", "s_lshl_b32 s57, s57, 10",
              "s_add_u32 s56, s56, s57")
            A(*srd_off(SOUT, 96, 97, "s56", 0), f"s_sub_u32 s{SOUT+2}, 0x400000, s56")
        if cfg.nokv: A(f"s_mov_b32 s{SK+2}, 0", f"s_mov_b32 s{SV+2}, 0")
        if cfg.nowo: A(f"s_mov_b32 s{SWO+2}, 0")
        if cfg.nops: A(f"s_mov_b32 s{SPART+2}, 0")
    decode = T[early_pos:]; del T[early_pos:]
    A("s_nop 1")
    A(f"s_and_b32 s{sQB}, s{sW}, 3", f"s_lshl_b32 s{sM0}, s{sQB}, 10")
    if cfg.codepf:
        A("s_getpc_b64 s[70:71]")
        T.append("L_pc:")
        A("s_sub_u32 s70, s70, L_pc-attn_main_kernel", "s_subb_u32 s71, s71, 0")
        A(f"s_lshr_b32 s56, s{sW}, 1", "s_cmp_lg_u32 s56, 2", "s_cbranch_scc1 L_nopf")
        A("s_lshr_b32 s56, s2, 3", "s_lshl_b32 s56, s56, 11", f"s_add_u32 s56, s56, s{sM0}",
          "s_min_u32 s56, s56, L_cold-attn_main_kernel-1024", f"v_add_u32 v5, s56, v{vLane}",
          f"global_load_dwordx4 v[{FR(0)}:{FR(0)+3}], v5, s[70:71]")
        T.append("L_nopf:")
    T += decode
    A(f"s_lshl_b32 s{sCol}, s{sROT}, 17")
    A("v_and_b32 v1, 15, v0", "v_lshrrev_b32 v2, 4, v0", "v_lshrrev_b32 v3, 2, v1", "v_and_b32 v4, 3, v0")
    def lc16():
        A("v_lshrrev_b32 v5, 3, v0", "v_bfe_u32 v6, v0, 4, 1", f"s_and_b32 s{sT}, s{sQB}, 1", f"s_lshl_b32 s{sT}, s{sT}, 1",
          f"v_or_b32 v6, s{sT}, v6", "v_lshlrev_b32 v6, 1, v6", "v_and_b32 v7, 7, v0", "v_xor_b32 v6, v6, v7", "v_lshlrev_b32 v6, 4, v6")
    def wo_voff():
        lc16()
        A("v_and_b32 v7, 3, v5", "v_lshrrev_b32 v5, 2, v5", "v_lshl_add_u32 v7, v5, 4, v7",
          f"s_lshl_b32 s{sT}, s{sQB}, 2", f"v_add_u32 v7, s{sT}, v7", f"v_lshl_add_u32 v{vWo}, v7, 10, v6")
    def kv_voff():
        A(f"s_lshl_b32 s{sT}, s{sQB}, 2", f"v_add_u32 v5, s{sT}, v2",
          "v_xor_b32 v6, v5, v1", "v_lshlrev_b32 v6, 4, v6",
          *{0: [f"s_lshl_b32 s{sT}, s{sQB}, 4"], 1: [f"s_lshl_b32 s{sT}, s{sQB}, 7"],
            2: [f"s_and_b32 s{sT}, s{sQB}, 1", f"s_lshl_b32 s{sT}, s{sT}, 4", f"s_lshr_b32 s56, s{sQB}, 1", "s_lshl_b32 s56, s56, 8", f"s_add_u32 s{sT}, s{sT}, s56"]}[cfg.kperm],
          f"v_add_u32 v7, s{sT}, v2", "v_lshlrev_b32 v7, 8, v7",
          f"v_add_u32 v{vKo}, v7, v6",
          "v_and_b32 v5, 7, v5", "v_lshlrev_b32 v5, 1, v5", "v_xor_b32 v6, v5, v1", "v_lshlrev_b32 v6, 4, v6", f"v_add_u32 v{vVo}, v7, v6")
    def wq_voff():
        lc16()
        A(f"s_lshl_b32 s{sT}, s{sQB}, 3", f"v_add_u32 v7, s{sT}, v5", f"v_lshl_add_u32 v{vWq}, v7, 13, v6")
    A(f"s_lshl_b32 s{sWc}, s{sROT}, 8")
    if cfg.krot == 1:
        A("s_lshr_b32 s56, s7, 2", "s_lshl_b32 s56, s56, 1", "s_lshl_b32 s57, s6, 2", "s_add_u32 s56, s56, s57",
          "s_bfe_u32 s57, s6, 0x10001", "s_add_u32 s56, s56, s57", "s_and_b32 s56, s56, 7")
    elif cfg.krot == 2:
        A(f"s_lshl_b32 s56, s{sROT}, 1", "s_lshr_b32 s57, s5, 4", "s_add_u32 s56, s56, s57")
    elif cfg.krot == 3:
        A(f"s_lshl_b32 s56, s{sROT}, 1", "s_lshr_b32 s57, s5, 4", "s_add_u32 s56, s56, s57", "s_add_u32 s56, s56, 4", "s_and_b32 s56, s56, 7")
    elif cfg.krot == 5:
        A("s_lshr_b32 s56, s7, 1", "s_add_u32 s56, s56, s6", "s_and_b32 s56, s56, 3", "s_lshl_b32 s56, s56, 1")
    elif cfg.krot == 6:
        A("s_lshl_b32 s56, s6, 1", "s_add_u32 s56, s56, s7", "s_and_b32 s56, s56, 7")
    elif cfg.krot == 4:
        A("s_and_b32 s56, s7, 7")
    else:
        A("s_mov_b32 s56, 0")
    A(f"s_lshl_b32 s{sKR}, s56, 7", "s_lshl_b32 s56, s56, 19", f"s_add_u32 s{sWc}, s{sWc}, s56")
    wq_voff()
    A("v_lshrrev_b32 v5, 3, v0", "v_and_b32 v6, 7, v0", "v_xor_b32 v6, v6, v2", "v_lshlrev_b32 v6, 4, v6",
      f"s_lshl_b32 s{sT}, s{sQB}, 5", f"v_add_u32 v5, s{sT}, v5", f"v_lshl_add_u32 v{vXo}, v5, 10, v6")
    A(f"s_lshl_b32 s{sX16}, s{sQB}, 12")
    srd_early()
    if cfg.stamps:
        ST(0)
        A("v_lshrrev_b32 v2, 4, v0", "v_lshrrev_b32 v3, 2, v1", "v_and_b32 v4, 3, v0")
    A(f"s_cmp_ge_u32 s{sW}, 4", "s_cbranch_scc1 L_P")
    first, rest = a_prologue(cfg)
    T.append(emit(fin(first)))
    srd_late()
    kv_voff()
    T.append(emit(fin(rest)))
    wo_voff()
    A(f"v_mov_b32 v{vWoA}, v{vWo}")
    if cfg.fused:
        A("s_lshl_b32 s56, s5, 2", "s_lshr_b32 s58, s6, 1", "s_add_u32 s56, s56, s58", "s_lshl_b32 s56, s56, 10", f"s_add_u32 s56, s56, {FLG}")
        A(*srd_off(SFLG, 92, 93, "s56", 1024))
    if cfg.prioA: A(f"s_setprio {cfg.prioA}")
    A(f"s_mov_b32 s{sBND}, 0x{f2u(1e-30 if cfg.force_fb else float(1 << 20)):x}")
    for s in range(4):
        A(f"v_add_u32 v5, {4*s}, v2", "v_xor_b32 v5, v5, v1", "v_lshlrev_b32 v5, 4, v5", f"v_lshl_add_u32 v{aK+s}, v1, 8, v5")
    A("v_and_b32 v5, 1, v2", "v_lshl_add_u32 v5, v5, 2, v3",
      "v_lshl_add_u32 v6, v2, 2, v3", "v_lshlrev_b32 v6, 8, v6", "v_lshl_add_u32 v6, v4, 3, v6")
    for dt in range(8):
        A(f"v_xor_b32 v7, {dt}, v5", f"v_lshl_add_u32 v{aV+dt}, v7, 5, v6")
    A(f"s_lshl_b32 s57, s{sQB}, 13", f"s_add_u32 s{sT}, s57, {YB}", f"v_add_u32 v{aQ}, s{sT}, v{vLane}")
    A("s_waitcnt vmcnt(12)", "s_barrier")
    segs = split_segments(fin(a_stream(cfg)))
    txt = [emit(s) for s in segs]
    E = lambda n: 2 + 2 * n
    for k in range(E(2), E(32) - 16):
        assert txt[k] == txt[k + 16], k
    ST(1)
    CAL(cfg.cal_pro, "L_cal1")
    PR(0)
    if cfg.sser:
        for sgm in txt[:E(2)]:
            L = [i for i in stamp(cfg, 0) if "v[6:7]" not in i.t and i.k != "lgkm0"]
            L.insert(2, raw("s_waitcnt lgkmcnt(0)"))
            T.append(emit(L)); A("s_add_u32 s68, s68, 8")
            T.append(sgm)
        T.append(emit([i for i in stamp(cfg, 0) if "v[6:7]" not in i.t])); A(f"s_mov_b32 s68, {OOB}")
    else:
        T += txt[:E(2)]
    PR(6)
    A(f"s_mov_b32 s{sCNT}, 0")
    T.append("L_Aloop:")
    A(f"s_cmp_lt_u32 s{sCNT}, 2", f"s_cselect_b32 s{sT}, 2, 1", f"s_lshl_b32 s{sT}, s{sT}, 16", f"s_add_u32 s{sT}, s{sT}, s57", f"v_add_u32 v{aQ}, s{sT}, v{vLane}",
      f"v_mov_b32 v{aO}, v{aQ}", f"s_cmp_eq_u32 s{sCNT}, 0", "s_cbranch_scc0 L_Ao",
      f"v_add_u32 v{aO}, {XB - YB}, v{aO}")
    T.append("L_Ao:")
    if 1 <= cfg.probe <= 3:
        A(f"s_cmp_lg_u32 s{sCNT}, {cfg.probe}", "s_cbranch_scc1 L_nopr")
        PR(cfg.probe)
        T.append("L_nopr:")
    if cfg.cal_mid:
        A(f"s_cmp_lg_u32 s{sCNT}, 2", "s_cbranch_scc1 L_nocal")
        CAL(cfg.cal_mid, "L_cal4")
        T.append("L_nocal:")
    def sst():
        if cfg.series:
            L = [i for i in stamp(cfg, 0) if "v[6:7]" not in i.t]
            T.append(emit(L)); A("s_add_u32 s68, s68, 8")
    sst(); T += txt[E(2):E(4)]
    sst(); T += txt[E(4):E(6)]
    sst(); T += txt[E(6):E(8)]
    sst()
    A(f"s_cmp_eq_u32 s{sCNT}, 3", "s_cbranch_scc1 L_Atail")
    T += txt[E(8):E(10)]
    A(f"s_add_u32 s{sCNT}, s{sCNT}, 1", "s_branch L_Aloop")
    T.append("L_Atail:")
    A(f"v_add_u32 v{aO}, {VB0 - WB0}, v{aO}")
    if cfg.series: A(f"s_mov_b32 s68, {OOB}")
    T += txt[E(32):]
    CAL(cfg.cal_main, "L_cal2")
    PR(4)
    if not cfg.bstamp: ST(2)
    T.append(emit(fin(a_tail(cfg))))
    if cfg.fused:
        if cfg.shared_red:
            A("s_mov_b32 s84, 0")
            T += shared_reduce(cfg)
        else:
            T += a_reduce(cfg, 0)
    PR(5)
    if cfg.probe >= 0:
        A("s_sub_u32 s94, s94, s100", "s_add_u32 s94, s94, 10000")
        T.append("L_prh:")
        A("s_memrealtime s[60:61]", "s_waitcnt lgkmcnt(0)", "s_sub_u32 s60, s60, s100", "s_cmp_lt_u32 s60, s94", "s_cbranch_scc1 L_prh")
    if cfg.cal_wg >= 0: A(f"s_cmp_lg_u32 s2, {cfg.cal_wg}", "s_cbranch_scc1 L_end")
    CAL(cfg.cal_end, "L_cal3")
    ST(3)
    A("s_endpgm")
    T.append("L_P:")
    srd_late()
    if cfg.tlbw:
        A(f"s_cmp_lg_u32 s{sQB}, 2", "s_cbranch_scc1 L_notlb", "v_mov_b32 v5, 0")
        A(f"buffer_load_dword v{FR(1)}, v5, s[{SK}:{SK+3}], s{sCol} offen nt", f"buffer_load_dword v{FR(1)+1}, v5, s[{SV}:{SV+3}], s{sCol} offen nt")
        if cfg.tlbw > 1:
            A(f"buffer_load_dword v{FR(1)+2}, v5, s[{SWO}:{SWO+3}], 0 offen", f"buffer_load_dword v{FR(1)+3}, v5, s[{SOUT}:{SOUT+3}], 0 offen nt")
        T.append("L_notlb:")
    if cfg.h1touch:
        if cfg.h1touch == 1: A(f"s_cmp_lg_u32 s{sQB}, 2", "s_cbranch_scc1 L_noh1", "s_mov_b32 s57, 256")
        else: A(f"s_lshl_b32 s57, s{sQB}, 8")
        A("v_lshrrev_b32 v5, 1, v0", "v_lshlrev_b32 v5, 13, v5", "v_and_b32 v6, 1, v0", "v_lshl_add_u32 v5, v6, 7, v5",
          "s_lshl_b32 s56, s7, 18", "s_add_u32 s56, s56, s57", f"buffer_load_dword v241, v5, s[{SWQ}:{SWQ+3}], s56 offen")
        T.append("L_noh1:")
    if cfg.fused:
        A("s_lshl_b32 s56, s5, 12", "s_lshl_b32 s57, s6, 7", "s_add_u32 s56, s56, s57", f"s_add_u32 s56, s56, {FLG}")
        A(*srd_off(SFLG, 92, 93, "s56", 3076))
        A(f"s_cmp_lg_u32 s{sQB}, 3", "s_cbranch_scc1 L_norst")
        A("v_mov_b32 v5, 0", "v_lshlrev_b32 v6, 10, v0", f"buffer_store_dword v5, v6, s[{SFLG}:{SFLG+3}], 0 offen sc1")
        T.append("L_norst:")
        if cfg.dpoll:
            A("v_mov_b32 v8, -1", "v_mov_b32 v9, -1", "v_mov_b32 v10, -1", "v_mov_b32 v11, -1",
              "s_lshl_b32 s56, s6, 14", f"s_lshl_b32 s57, s{sQB}, 12", "s_add_u32 s56, s56, s57", f"s_add_u32 s56, s56, {7 * 131072}")
            for i in range(4): A(f"buffer_store_dwordx4 v[8:11], v{vLane}, s[{SPART}:{SPART+3}], s56 offen offset:{i*1024} sc1")
    A("v_bfe_u32 v5, v1, 1, 2", "v_xor_b32 v5, v5, v2", "v_lshlrev_b32 v5, 4, v5", "v_lshl_add_u32 v5, v1, 7, v5",
      f"v_add_u32 v{aX}, s{sX16}, v5", f"v_add_u32 v{aX+1}, {WB0}, v{aX}", f"v_add_u32 v{aX+2}, {YB}, v{aX}")
    A(f"s_add_u32 s{sWc}, s{sWc}, 256", f"s_and_b32 s{sWc}, s{sWc}, 0x3803ff", f"s_add_u32 s{sWm0}, s{sM0}, {WB0}", f"s_mov_b32 s{sWn}, 2")
    A("v_lshrrev_b32 v5, 1, v3", "v_and_b32 v6, 1, v2", "v_lshl_add_u32 v5, v6, 1, v5",
      "v_lshl_add_u32 v6, v2, 3, v3", "v_lshlrev_b32 v6, 7, v6", "v_lshl_add_u32 v6, v4, 3, v6")
    for mt in range(4):
        A(f"v_xor_b32 v7, {mt}, v5", f"v_lshl_add_u32 v{aW2+mt}, v7, 5, v6", f"v_add_u32 v{aW+mt}, {WB0}, v{aW2+mt}",
          f"v_add_u32 v{aW3+mt}, {YB}, v{aW2+mt}")
    kv_voff()
    A("v_lshrrev_b32 v5, 1, v2", "v_lshlrev_b32 v5, 8, v5", "v_lshl_add_u32 v5, v1, 4, v5", "v_and_b32 v6, 1, v2", "v_lshl_add_u32 v5, v6, 3, v5",
      f"s_lshl_b32 s{sT}, s{sQB}, 13", f"s_add_u32 s{sT}, s{sT}, {YB}", f"v_add_u32 v{aQw}, s{sT}, v5")
    wo_voff()
    A(f"s_mov_b32 s{sSCL}, 0x{f2u(math.log2(math.e) / math.sqrt(128.0)):x}")
    A(f"s_mov_b32 s{sKn}, -1", f"s_mov_b32 s{sVn}, -2",
      f"s_add_u32 s{sKo}, s{sCol}, 16384",
      f"s_mov_b32 s{sVo}, s{sCol}")
    A(f"s_mov_b32 s{sCNT}, 2", "s_waitcnt vmcnt(0)")
    if cfg.fused:
        A("s_bfe_u32 s85, s2, 0x20003", "s_add_u32 s85, s85, 3", f"s_cmp_eq_u32 s{sQB}, 3", "s_cselect_b32 s85, s85, 99")
        A(f"s_lshl_b32 s56, s{sQB}, 10", f"s_add_u32 s{SFLG}, s{SFLG}, s56", f"s_addc_u32 s{SFLG+1}, s{SFLG+1}, 0", f"s_mov_b32 s{SFLG+2}, 4")
    T.append(emit(fin(p_prologue(cfg))))
    ST(1)
    A(f"v_lshlrev_b32 v{vXo}, 7, v0")
    if cfg.prioM: A(f"s_setprio {cfg.prioM}")
    A("s_branch L_Pgo")
    T.append("L_Ploop:")
    if cfg.fused:
        A(f"s_cmp_lg_u32 s{sCNT}, s85", "s_cbranch_scc1 L_nohs")
        A("v_mov_b32 v5, 1", f"buffer_atomic_add v5, v{vLane}, s[{SDBG}:{SDBG+3}], 0 offen sc1")
        T.append("L_nohs:")
    if cfg.wopf:
        if cfg.pfmode == 0: A(f"s_add_u32 s56, s{sQB}, 4")
        elif cfg.pfmode == 1: A(f"s_and_b32 s56, s{sQB}, 2", "s_add_u32 s56, s56, 4")
        elif cfg.pfmode == 2: A("s_mov_b32 s56, 6")
        A(f"s_cmp_lg_u32 s{sCNT}, s56", "s_cbranch_scc1 L_nowopf")
        A("s_lshl_b32 s56, s7, 15", f"s_lshl_b32 s57, s{sQB}, 13", "s_add_u32 s56, s56, s57",
          f"buffer_load_dword v{vFlag}, v{vXo}, s[{SWO}:{SWO+3}], s56 offen")
        T.append("L_nowopf:")
    if cfg.codepf:
        A(f"s_lshl_b32 s56, s{sQB}, 4", f"s_add_u32 s56, s56, s{sCNT}", f"s_cmp_lg_u32 s56, {6 if cfg.pfmode else 7}", "s_cbranch_scc1 L_nocpf")
        A("s_bfe_u32 s56, s2, 0x30003", "s_lshl_b32 s56, s56, 13", "s_min_u32 s56, s56, L_cold-attn_main_kernel-8192",
          f"v_add_u32 v5, s56, v{vXo}", "global_load_dword v241, v5, s[70:71]")
        T.append("L_nocpf:")
    a0, b0 = p_phase(cfg, 0)
    T.append(emit(fin(a0)))
    if cfg.nobnd & 4: A("s_waitcnt lgkmcnt(0)", "s_branch L_Pgo")
    A(f"s_bitcmp1_b32 s{sCNT}, 0", "s_cbranch_scc0 L_Pwr")
    T.append(emit(fin([raw("s_nop 1")] + q_pack(HLD) + [lgkm0()])))
    A("s_branch L_Pgo")
    T.append("L_Pwr:")
    pk, st = q_pack(TMP), q_store(TMP, 1)
    wr = q_store(HLD, 0)
    for k in range(8): wr += pk[6 * k:6 * k + 6] + ([st[k - 1]] if k else [])
    T.append(emit(fin(wr + [st[7], lgkm0()])))
    T.append("L_Pgo:")
    body = list(b0)
    for ph in range(1, 8):
        a, b = p_phase(cfg, ph)
        body += a + b
    T.append(emit(fin(body)))
    A(f"s_add_u32 s{sCNT}, s{sCNT}, 1", f"s_cmp_lt_u32 s{sCNT}, 8", "s_cbranch_scc1 L_Ploop")
    for mt in range(4): A(f"v_add_u32 v{aW+mt}, {XB}, v{aW2+mt}", f"v_add_u32 v{aW3+mt}, {WB0}, v{aW2+mt}")
    A("s_lshl_b32 s58, s6, 14", f"s_lshl_b32 s{sPo}, s{sQB}, 12", f"s_add_u32 s{sPo}, s{sPo}, s58")
    if cfg.prioP: A(f"s_setprio {cfg.prioP}")
    T.append(emit(fin([raw("s_nop 7")] + p_tail(cfg))))
    if cfg.fused:
        A("s_lshl_b32 s56, s5, 2", "s_lshr_b32 s58, s6, 1", "s_add_u32 s56, s56, s58", "s_lshl_b32 s56, s56, 10", f"s_add_u32 s56, s56, {FLG}")
        A(*srd_off(SX if cfg.dpoll else SFLG, 92, 93, "s56", 1024))
        if cfg.shared_red: A("s_mov_b32 s84, 4", "s_branch L_red")
        else: T += a_reduce(cfg, 1)
    ST(3)
    A("s_endpgm")
    T.append("L_cold:")
    variants = {}
    for name, key in SITES.items():
        variants.setdefault(key, f"L_fbr_{key[0]}_{key[1]}_{int(key[2])}")
        T.append(f"L_fb_{name}:")
        A(f"s_call_b64 s[{sRET}:{sRET+1}], {variants[key]}", f"s_branch L_ret_{name}")
    for key, lab in variants.items():
        T.append(f"{lab}:")
        T.append(emit(fallback(*key)))
    T.append("L_end:")
    A("s_endpgm")
    return T

def reduce_kernel(cfg):
    T = []
    A = lambda *a: T.extend("    " + x for x in a)
    T += [".globl attn_reduce_kernel", ".p2align 8", ".type attn_reduce_kernel,@function", "attn_reduce_kernel:"]
    A("s_cmp_ge_u32 s2, 256", "s_cbranch_scc1 L_rend")
    if cfg.stamps: A("s_memrealtime s[40:41]")
    A("s_load_dwordx2 s[4:5], s[0:1], 80", "s_load_dwordx2 s[6:7], s[0:1], 96")
    A("s_lshr_b32 s18, s2, 3", "s_and_b32 s19, s2, 7")
    A("s_lshl_b32 s20, s18, 21", "s_lshl_b32 s21, s19, 17", "s_add_u32 s20, s20, s21", "s_add_u32 s20, s20, 0x100000")
    A("v_lshrrev_b32 v1, 6, v0", "v_and_b32 v2, 63, v0", "v_lshlrev_b32 v3, 4, v2", "v_lshl_add_u32 v3, v1, 11, v3")
    A("s_waitcnt lgkmcnt(0)")
    A(*srd_off(8, 6, 7, "s20", 131072))
    for src in range(8):
        A(f"s_mov_b32 s22, {src*16384}")
        for pair in range(2):
            b = 16 + (src * 2 + pair) * 4
            A(f"buffer_load_dwordx4 v[{b}:{b+3}], v3, s[8:11], s22 offen offset:{pair*1024} {cfg.rflags}")
    A(*srd(12, 4, 5, 1 << 22))
    A("s_and_b32 s23, s18, 15", "s_lshl_b32 s23, s23, 18", "s_lshr_b32 s24, s18, 4", "s_lshl_b32 s24, s24, 10", "s_add_u32 s23, s23, s24",
      "s_lshl_b32 s24, s19, 7", "s_add_u32 s23, s23, s24")
    A("v_and_b32 v4, 15, v2", "v_lshl_add_u32 v4, v1, 4, v4", "v_lshlrev_b32 v4, 11, v4",
      "v_bfe_u32 v5, v2, 4, 1", "v_lshl_add_u32 v4, v5, 5, v4", "v_lshrrev_b32 v5, 5, v2", "v_lshl_add_u32 v4, v5, 4, v4")
    acc = 80
    for src in range(8):
        A(f"s_waitcnt vmcnt({(7-src)*2})")
        for pair in range(2):
            b = 16 + (src * 2 + pair) * 4
            for i in range(4):
                lo, hi = acc + pair * 8 + 2 * i, acc + pair * 8 + 2 * i + 1
                if src == 0:
                    A(f"v_lshlrev_b32 v{lo}, 16, v{b+i}", f"v_and_b32 v{hi}, 0xffff0000, v{b+i}")
                else:
                    A(f"v_lshlrev_b32 v6, 16, v{b+i}", f"v_and_b32 v7, 0xffff0000, v{b+i}", f"v_add_f32 v{lo}, v{lo}, v6", f"v_add_f32 v{hi}, v{hi}, v7")
    for pair in range(2):
        a = acc + pair * 8
        for i in range(4): A(f"v_cvt_pk_bf16_f32 v{16+pair*4+i}, v{a+2*i}, v{a+2*i+1}")
    A("s_nop 1")
    for pair in range(2):
        d = 16 + pair * 4
        A(f"v_permlane16_swap_b32 v{d}, v{d+2}", f"v_permlane16_swap_b32 v{d+1}, v{d+3}")
        A(f"buffer_store_dwordx4 v[{d}:{d+3}], v4, s[12:15], s23 offen offset:{pair*64} {cfg.outflags}")
    if cfg.stamps and not cfg.series:
        A("s_waitcnt vmcnt(0)", "s_memrealtime s[42:43]", "s_waitcnt lgkmcnt(0)")
        A(*srd_off(8, 6, 7, WS_BYTES - (1 << 20), 1 << 20))
        A("s_lshl_b32 s22, s2, 8", "v_mov_b32 v4, s40", "v_mov_b32 v5, s41", "v_mov_b32 v6, s42", "v_mov_b32 v7, s43",
          "v_cmp_eq_u32 vcc, 0, v0", "s_and_saveexec_b64 s[34:35], vcc", "s_cbranch_execz L_rend",
          "buffer_store_dwordx4 v[4:7], v0, s[8:11], s22 offen offset:32")
    T.append("L_rend:")
    A("s_endpgm")
    return T

def kd(name, vgpr, sgpr):
    return [".p2align 6", f".amdhsa_kernel {name}", f"  .amdhsa_next_free_vgpr {vgpr}", f"  .amdhsa_next_free_sgpr {sgpr}",
            f"  .amdhsa_accum_offset {(vgpr+3)//4*4}", "  .amdhsa_group_segment_fixed_size 0", "  .amdhsa_kernarg_size 104",
            "  .amdhsa_user_sgpr_count 2", "  .amdhsa_user_sgpr_kernarg_segment_ptr 1", "  .amdhsa_system_sgpr_workgroup_id_x 1",
            ".end_amdhsa_kernel"]

DOC = """
; ---------------------------------------------------------------------------------------------------------
; One persistent workgroup per CU = (branch, batch b, 4 heads).  8 waves, two roles, all MFMA 16x16x32 bf16:
;   waves 4-7 ("P"): x fragments stay in registers; Q = x wq for the next head, all LDS-DMA of K/V/wq,
;                    then out-projection of the workgroup's own 4 heads (bf16 partial sums to d_ws)
; Softmax: reference = true row max of the first key tile of each head (folded in as the MFMA C input); every
;   half tile checks its exp sums against 2^20 and otherwise calls L_fbr_* which raises the reference to the
;   running max and rescales O, l and pending P exactly (integer power of two).
; Cross-workgroup reduce of the 8 partial sums of a (branch, batch): sc1 stores -> vmcnt -> sc1 flag (one line per
;   writer, cleared at start; the d_debug counter says all writers of the group have cleared), sc1 polls and loads.
; Generated by a script (software pipelining, counted waits and wait states are computed there).
; ---------------------------------------------------------------------------------------------------------
"""

def generate(cfg, path):
    SITES.clear()
    KPERM[0] = cfg.kperm
    T = header()
    if cfg.fused:
        T += ["; @launch grid=(256,1,1) block=(512,1,1) lds=163840"]
    else:
        T += ["; @launch kernel=attn_main_kernel grid=(256,1,1) block=(512,1,1) lds=163840",
              "; @launch kernel=attn_reduce_kernel grid=(256,1,1) block=(512,1,1) lds=0"]
    T += ['.amdgcn_target "amdgcn-amd-amdhsa--gfx950"', ".text"]
    T += DOC.strip("\n").split("\n")
    T += main_kernel(cfg)
    if not cfg.fused: T += reduce_kernel(cfg)
    T += ['.section .rodata,"a"'] + kd("attn_main_kernel", 256, 102)
    if not cfg.fused: T += kd("attn_reduce_kernel", 96, 48)
    txt = "\n".join(T) + "\n"
    if cfg.fused: txt = txt.replace("attn_main_kernel", NAME + "_kernel")
    open(path, "w").write(txt)

if __name__ == "__main__":
    cfg = Cfg()
    out = "k.s"
    for a in sys.argv[1:]:
        if "=" in a:
            k, v = a.split("=", 1)
            cur = getattr(cfg, k)
            setattr(cfg, k, (v not in ("0", "False")) if isinstance(cur, bool) else type(cur)(v))
        else:
            out = a
    generate(cfg, out)
```
